```python
import torch

def _softmax(x, axis=-1):
    return torch.softmax(x, dim=axis)

def _gelu(x):
    return torch.nn.functional.gelu(x, approximate='tanh')

def _silu(x):
    return torch.nn.functional.silu(x)

def _sigmoid(x):
    return torch.sigmoid(x)

def _layernorm(x, axis=-1, eps=1e-05):
    m = x.mean(dim=axis, keepdim=True)
    v = x.var(dim=axis, keepdim=True, unbiased=False)
    return (x - m) / torch.sqrt(v + eps)

def _scatter_add(tgt, idx, src, axis=0):
    return tgt.clone().index_add_(axis, idx, src)

def _segment_sum(src, seg, n):
    out = torch.zeros((n,) + src.shape[1:], dtype=src.dtype)
    return out.index_add_(0, seg, src)

def _pad(x, pw):
    flat = tuple((v for pair in reversed(pw) for v in pair))
    return torch.nn.functional.pad(x, flat)
kernel_name = 'gated_mix__memory_aug_recurrent_mem_tr__geglu_ffn__prompt'

def setup_inputs():

    _w = lambda a: (lambda t: t.to(torch.bfloat16) if t.is_floating_point() else t)(torch.as_tensor(a))

    def _A_setup():
        B, S, Dm = (1, 2048, 512)
        H, Dh = (32, 128)
        M, seg = (8, 32)
        seg = min(seg, S)
        S = S // seg * seg
        return {'x': _w((lambda *s: torch.randn(*s, dtype=torch.bfloat16) * 0.05)(B, S, Dm)), 'mem0': _w((lambda *s: torch.randn(*s, dtype=torch.bfloat16) * 0.4)(B, M, Dm)), 'Wq': _w((lambda *s: torch.randn(*s, dtype=torch.bfloat16) * 6.4)(Dm, H, Dh) * Dm ** (-0.5)), 'Wk': _w((lambda *s: torch.randn(*s, dtype=torch.bfloat16) * 6.4)(Dm, H, Dh) * Dm ** (-0.5)), 'Wv': _w((lambda *s: torch.randn(*s, dtype=torch.bfloat16) * 0.4)(Dm, H, Dh) * Dm ** (-0.5)), 'Wo': _w((lambda *s: torch.randn(*s, dtype=torch.bfloat16) * 0.4)(H, Dh, Dm) * (H * Dh) ** (-0.5)), 'seg_len': seg}
    _A_in = _A_setup()

    def _B_setup():
        B, S, D, F = (1, 2048, 512, 1792)
        return {'x': _w((lambda *s: torch.randn(*s, dtype=torch.bfloat16) * 0.05)(B, S, D)), 'w_gate': _w((lambda *s: torch.randn(*s, dtype=torch.bfloat16) * 0.05)(D, F)), 'w_up': _w((lambda *s: torch.randn(*s, dtype=torch.bfloat16) * 0.05)(D, F)), 'w_down': _w((lambda *s: torch.randn(*s, dtype=torch.bfloat16) * 0.05)(F, D))}
    _B_in = _B_setup()
    return {'A_x': _A_in['x'], 'A_mem0': _A_in['mem0'], 'A_Wq': _A_in['Wq'], 'A_Wk': _A_in['Wk'], 'A_Wv': _A_in['Wv'], 'A_Wo': _A_in['Wo'], 'A_seg_len': _A_in['seg_len'], 'B_x': _B_in['x'], 'B_w_gate': _B_in['w_gate'], 'B_w_up': _B_in['w_up'], 'B_w_down': _B_in['w_down'], 'gate_w': _w((lambda *s: torch.randn(*s, dtype=torch.bfloat16) * 0.05)(512) * 16.0)}

def reference(A_x, A_mem0, A_Wq, A_Wk, A_Wv, A_Wo, A_seg_len, B_x, B_w_gate, B_w_up, B_w_down, gate_w):

    def _A_ref(x, mem0, Wq, Wk, Wv, Wo, seg_len):
        B, S, Dm = x.shape
        H, Dh = (Wq.shape[1], Wq.shape[2])
        M = mem0.shape[1]
        scale = Dh ** (-0.5)
        n_seg = S // seg_len
        L = M + seg_len
        idx = torch.arange(L)
        mask = (idx[:, None] < M) | (idx[:, None] >= idx[None, :])
        mem = mem0
        outs = []
        for s in range(n_seg):
            xs = x[:, s * seg_len:(s + 1) * seg_len, :].clone()
            h = torch.concatenate([mem, xs], axis=1)
            q = torch.einsum('btd,dhe->bhte', h, Wq)
            k = torch.einsum('btd,dhe->bhte', h, Wk)
            v = torch.einsum('btd,dhe->bhte', h, Wv)
            scores = torch.einsum('bhqe,bhke->bhqk', q, k) * scale
            scores = torch.where(mask[None, None], scores, -1000000000.0)
            p = _softmax(scores, axis=-1)
            o = torch.einsum('bhqk,bhke->bhqe', p, v)
            o = torch.einsum('bhte,hed->btd', o, Wo)
            mem = o[:, :M, :].clone()
            outs.append(o[:, M:, :])
        return torch.concatenate(outs, axis=1)

    def _B_ref(x, w_gate, w_up, w_down):
        return _gelu(x @ w_gate) * (x @ w_up) @ w_down
    x = A_x
    g = _sigmoid((x * gate_w).sum(-1, keepdims=True))
    a = _A_ref(x, A_mem0, A_Wq, A_Wk, A_Wv, A_Wo, A_seg_len)
    b = _B_ref(x, B_w_gate, B_w_up, B_w_down)
    return g * a + (1 - g) * b
```

```python
import re

REG_RE = re.compile(r'^(-)?(\|)?(abs\()?([vas])(\d+|\[(\d+):(\d+)\])\)?\|?$')

def regs_of(tok):
    tok = tok.strip()
    if tok in ('vcc',): return {('s', 'vcc')}
    if tok in ('vcc_lo', 'vcc_hi'): return {('s', 'vcc')}
    if tok in ('exec', 'exec_lo', 'exec_hi'): return {('s', 'exec')}
    if tok == 'm0': return {('s', 'm0')}
    m = REG_RE.match(tok)
    if not m: return set()
    k = m.group(4)
    if m.group(6) is not None:
        return {(k, i) for i in range(int(m.group(6)), int(m.group(7)) + 1)}
    return {(k, int(m.group(5)))}

TRANS = ('v_exp_f32', 'v_log_f32', 'v_rcp_f32', 'v_rsq_f32', 'v_sqrt_f32', 'v_sin_f32', 'v_cos_f32')

class Ins:
    def __init__(self, text):
        self.text = text
        t = text.split(';')[0].strip()
        parts = t.split(None, 1)
        self.op = parts[0]
        rest = parts[1] if len(parts) > 1 else ''
        self.ops = [x.strip() for x in rest.split(',')] if rest else []
        self.mods = ''
        if self.ops:
            last = self.ops[-1].split(None, 1)
            self.ops[-1] = last[0]
            self.mods = last[1] if len(last) > 1 else ''
        op = self.op
        self.is_mfma = op.startswith('v_mfma') or op.startswith('v_smfmac')
        self.is_valu = op.startswith('v_') and not self.is_mfma
        self.is_ds = op.startswith('ds_')
        self.is_vmem = op.startswith('buffer_') or op.startswith('global_')
        self.is_salu = op.startswith('s_')
        self.w = set(); self.r = set()
        self.A = self.B = self.C = set()
        R = [regs_of(x) for x in self.ops]
        if self.is_mfma:
            self.w = R[0]; self.A = R[1]; self.B = R[2]
            if op.startswith('v_smfmac'):
                self.C = R[0]; self.B = R[2] | R[3]
            else:
                self.C = R[3]
            self.r = self.A | self.B | self.C
            self.passes = 8 if '32x32' in op else 4
        elif self.is_valu:
            if 'permlane' in op and 'swap' in op:
                self.w = R[0] | R[1]; self.r = R[0] | R[1]
            elif op.startswith('v_cmpx'):
                self.w = R[0] | {('s', 'exec')}; self.r = set().union(*R[1:])
            elif op.startswith(('v_add_co', 'v_sub_co', 'v_addc_co', 'v_subb_co')):
                self.w = R[0] | R[1]; self.r = set().union(*R[2:])
            else:
                self.w = R[0]; self.r = set().union(*R[1:]) if len(R) > 1 else set()
                if op.startswith(('v_fmac', 'v_writelane')) or 'dpp' in op or 'dpp' in self.mods or 'row_' in self.mods:
                    self.r = self.r | R[0]
        elif self.is_ds:
            if op.startswith('ds_read') or op.startswith('ds_bpermute') or op.startswith('ds_swizzle'):
                self.w = R[0]; self.r = set().union(*R[1:])
            else:
                self.r = set().union(*R)
        elif self.is_vmem:
            lds = re.search(r'\blds\b', self.mods) is not None
            self.lds = lds
            if 'load' in op and not lds:
                self.w = R[0]; self.r = set().union(*R[1:])
            elif 'atomic' in op and 'sc0' in self.mods.split():
                self.w = R[0]; self.r = set().union(*R)
            else:
                self.r = set().union(*R) if R else set()
            if lds: self.r = self.r | {('s', 'm0')}
            self.wide_store = ('store' in op) and op.endswith(('x3', 'x4'))
            self.data = set()
            if self.wide_store:
                self.data = R[0] if op.startswith('buffer') else R[1]
        elif self.is_salu:
            if op.startswith(('s_cmp', 's_cbranch', 's_branch', 's_waitcnt', 's_barrier', 's_nop', 's_endpgm', 's_sleep', 's_setprio', 's_bitcmp')):
                self.r = set().union(*R) if R else set()
            else:
                self.w = R[0] if R else set(); self.r = set().union(*R[1:]) if len(R) > 1 else set()
                if 'saveexec' in op: self.w = self.w | {('s', 'exec')}
        self.states = 1
        if op == 's_nop': self.states = int(self.ops[0], 0) + 1

def vg(s): return {x for x in s if x[0] in 'va'}
def sg(s): return {x for x in s if x[0] == 's'}

def need(p, c):
    n = 0
    if p.is_valu:
        wv = vg(p.w); ws = sg(p.w)
        if c.is_mfma and wv & c.r: n = max(n, 2)
        if c.is_mfma and ('s', 'exec') in ws: n = max(n, 4)
        if c.is_valu:
            if 'permlane' in c.op and wv & c.r: n = max(n, 2)
            if ('dpp' in c.op or 'row_' in c.mods or 'quad_perm' in c.mods) and wv & c.r: n = max(n, 2)
            if c.op.startswith(('v_readlane', 'v_readfirstlane')) and wv & c.r: n = max(n, 1)
            if p.op.startswith(TRANS) and wv & (c.r) and not c.op.startswith(TRANS): n = max(n, 1)
            if p.op.startswith(TRANS) and wv & (c.r): n = max(n, 1)
            if ws & sg(c.r): n = max(n, 2)
            if ws and c.op.startswith('v_cndmask') and len(c.ops) == 4 and False: pass
            if ('s', 'exec') in ws and c.op.startswith(('v_readlane', 'v_readfirstlane', 'v_writelane')) : n = max(n, 4)
            if ('s', 'exec') in ws and 'permlane' in c.op: n = max(n, 4)
            if ('s', 'exec') in ws and ('dpp' in c.op or 'row_' in c.mods): n = max(n, 5)
            if ws & sg(c.r) and c.op.startswith(('v_readlane', 'v_writelane')): n = max(n, 4)
        if (c.is_vmem) and ws & sg(c.r): n = max(n, 5)
        if (c.is_vmem or c.is_ds) and p.op.startswith(TRANS) and wv & c.r: n = max(n, 1)
        if c.is_salu and ws & sg(c.r) and not c.op.startswith('s_cbranch'): n = max(n, 1)
    if p.is_mfma:
        big = {4: 8, 8: 12}[p.passes]; part = {4: 6, 8: 10}[p.passes]; war = {4: 3, 8: 7}[p.passes]
        if c.is_mfma:
            if p.w & (c.A | c.B): n = max(n, big)
            if p.w & c.C:
                if not (p.w == c.C and p.op == c.op): n = max(n, part)
            if p.w & c.w and not (p.w & c.C):
                n = max(n, part)
        elif c.is_valu:
            if p.w & (c.r | c.w): n = max(n, big)
            if p.C & c.w: n = max(n, war)
        elif c.is_ds or c.is_vmem:
            if p.w & (c.r | c.w): n = max(n, big)
    if p.is_vmem and getattr(p, 'wide_store', False):
        if (c.is_valu or c.is_mfma) and p.data & c.w: n = max(n, 2)
        elif p.data & c.w: n = max(n, 1)
    if p.is_salu and ('s', 'm0') in p.w:
        if (c.is_vmem and getattr(c, 'lds', False)): n = max(n, 1)
    return n

def distance(seq, c):
    p = seq[0]
    if not p.is_mfma:
        return sum(x.states for x in seq[1:])
    t = 0; last = 0; lastp = p.passes
    prev = p
    for x in seq[1:] + [c]:
        t += prev.states
        if x.is_mfma:
            t = max(t, last + lastp); last = t; lastp = x.passes
        prev = x
    return t - 1

class Asm:
    def __init__(self):
        self.items = []
        self.uid = 0
    def __call__(self, text):
        for ln in text.strip().split('\n'):
            ln = ln.strip()
            if not ln: continue
            if ln.startswith(';'):
                self.items.append(('c', ln))
            elif ln.endswith(':'):
                self.items.append(('l', ln[:-1]))
            elif ln.startswith('.'):
                self.items.append(('d', ln))
            else:
                self.items.append(('i', Ins(ln)))
    def label(self, n): self.items.append(('l', n))
    def newlabel(self, base):
        self.uid += 1
        return f"{base}_{self.uid}"
    def pad(self, verbose=False):
        out = []; win = []
        npad = 0
        for it in self.items:
            if it[0] != 'i':
                out.append(it); continue
            c = it[1]
            req = 0
            for j in range(len(win) - 1, -1, -1):
                k = need(win[j], c)
                if k:
                    while distance(win[j:] + ([Ins(f"s_nop {req-1}")] if req else []), c) < k: req += 1
            if req > 0:
                nop = Ins(f"s_nop {req-1}")
                out.append(('i', nop)); win.append(nop); npad += 1
                if verbose: print(f"pad {req} before: {c.text}")
            out.append(it); win.append(c)
            if c.op in ('s_branch', 's_endpgm', 's_setpc_b64'): win = []
            win = win[-24:]
        self.items = out
        self.check_branches()
        return npad
    def check_branches(self):
        idx = {it[1]: i for i, it in enumerate(self.items) if it[0] == 'l'}
        for i, it in enumerate(self.items):
            if it[0] != 'i': continue
            b = it[1]
            if not (b.op.startswith('s_cbranch') or b.op == 's_branch'): continue
            tgt = b.ops[0]
            if tgt not in idx: continue
            tail = []
            j = i
            while j >= 0 and len(tail) < 24:
                if self.items[j][0] == 'i':
                    if j != i and self.items[j][1].op in ('s_branch', 's_endpgm'): break
                    tail.append(self.items[j][1])
                j -= 1
            head = []
            j = idx[tgt]
            while j < len(self.items) and len(head) < 24:
                if self.items[j][0] == 'i':
                    head.append(self.items[j][1])
                    if self.items[j][1].op in ('s_branch', 's_endpgm'): break
                j += 1
            dh = 0
            for c in head:
                dist = dh
                for p in tail:
                    if need(p, c) > dist:
                        raise RuntimeError(f"branch hazard via {b.text}: '{p.text}' -> '{c.text}' needs {need(p,c)} has {dist}")
                    dist += p.states
                    if dist > 20: break
                dh += c.states
                if dh > 20: break
    def text(self):
        o = []
        for k, v in self.items:
            if k == 'i': o.append('    ' + v.text)
            elif k == 'l': o.append(v + ':')
            else: o.append(('    ' if k == 'c' else '') + v)
        return '\n'.join(o) + '\n'

def vr(base, n=1):
    return f"v{base}" if n == 1 else f"v[{base}:{base+n-1}]"
def ar(base, n=1):
    return f"a{base}" if n == 1 else f"a[{base}:{base+n-1}]"
def sr(base, n=1):
    return f"s{base}" if n == 1 else f"s[{base}:{base+n-1}]"
def ur(idx, n):
    if idx < 256:
        assert idx + n <= 256
        return vr(idx, n)
    return ar(idx - 256, n)

def interleave(asm, mains, fillers):
    for i, m in enumerate(mains):
        asm(m)
        for f in fillers.get(i, []): asm(f)

WAIT_RE = re.compile(r'(vmcnt|lgkmcnt)\((\d+)\)')

def autowait(asm, verbose=False):
    out = []; lg = []; vm = []; smem = False
    for it in asm.items:
        if it[0] == 'x':
            if it[1] == 'forget_vm': vm = []
            continue
        if it[0] != 'i':
            out.append(it); continue
        c = it[1]
        if c.op == 's_waitcnt':
            for k, n in WAIT_RE.findall(c.text):
                n = int(n)
                if k == 'vmcnt': vm = vm[len(vm) - n:] if n < len(vm) else vm
                else:
                    lg = lg[len(lg) - n:] if n < len(lg) else lg
                    if n == 0: smem = False
            if 'vmcnt(0)' in c.text: vm = []
            if 'lgkmcnt(0)' in c.text: lg = []
            out.append(it); continue
        touch = vg(c.r | c.w)
        nl = None
        for i, d in enumerate(lg):
            if d & touch: nl = len(lg) - 1 - i
        nv = None
        for i, d in enumerate(vm):
            if d & touch: nv = len(vm) - 1 - i
        if nl is not None or nv is not None:
            s = 's_waitcnt'
            if nv is not None:
                nv = min(nv, 63); s += f' vmcnt({nv})'; vm = vm[len(vm) - nv:] if nv else []
            if nl is not None:
                if smem: nl = 0
                nl = min(nl, 15); s += f' lgkmcnt({nl})'; lg = lg[len(lg) - nl:] if nl else []
                if nl == 0: smem = False
            pos = len(out)
            if c.is_mfma:
                while pos > 0 and out[pos-1][0] == 'i' and len(out) - pos < 3:
                    q = out[pos-1][1]
                    if q.is_valu: pos -= 1
                    elif q.is_ds and nl is None: pos -= 1
                    elif q.is_ds and nl > 0 and not smem: nl -= 1; pos -= 1
                    elif q.is_vmem and nv is None: pos -= 1
                    else: break
                s = 's_waitcnt' + (f' vmcnt({nv})' if nv is not None else '') + (f' lgkmcnt({nl})' if nl is not None else '')
            out.insert(pos, ('i', Ins(s)))
            if verbose: print(f"{s}   before {c.text}")
        out.append(it)
        if c.is_ds: lg.append(vg(c.w))
        elif c.is_vmem and not c.op.startswith(('buffer_wbl2', 'buffer_inv')): vm.append(vg(c.w))
        elif c.op.startswith(('s_load', 's_memtime', 's_memrealtime', 's_atomic', 's_buffer_load')): smem = True
        if c.op in ('s_branch', 's_endpgm'): lg = []; vm = []; smem = False
    asm.items = out
```

```python
from common import *

MEMB = 131072
KB = (139264, 147456)
QB = 155648
KKB = QB + 4096
LDS_BYTES = 163840

V_LA, V_P1, V_MR1, V_MR2, V_MR3, V_QW, V_INB, V_QKR, V_WVO, V_OW, V_GATH, V_PST, V_PUB, V_IDX, V_SELX, V_FL = range(16)
V_ONES = 16
V_PB = 20
V_M = 24
V_AQ, V_AK, V_AV = 56, 64, 72
V_W = 80
V_VX = (112, 120)
WQ0, WK0, WV0, WO0 = 256, 384, 128, 192

def wq(t, s): return ur(WQ0 + (s * 2 + t) * 8, 8)
def wk(t, s): return ur(WK0 + (s * 2 + t) * 8, 8)
def wv_res(t, s): return ur(WV0 + ((s - 4) * 2 + t) * 8, 8)
def wo_res(t, kbo): return ur(WO0 + (t * 2 + kbo) * 8, 8)
def Mf(s): return vr(V_M + 4 * s, 4)
def Wb(j): return V_W + 8 * j

S_STEP = 30
S_MEMRD = 31
S_PST0, S_PST1 = 32, 33
S_INB0, S_INB1 = 34, 35
S_PUBN = 36
S_PUBC = 37
S_PH = 38
S_KPF, S_VPF = 39, 40
S_EXP = 41
S_FLP = 42
S_FLA = 43
S_AVAIL = 44
S_C = 45
S_LLO, S_LRG = 46, 47
S_SELM = 48
S_KM0 = 56
S_HB_PST, S_HB_INB, S_HB_PUB = 58, 59, 60
S_L0 = 66
S_TS = 62
S_ACC = 94

def smf(d, A, B): return f"v_smfmac_f32_16x16x64_bf16 {vr(d,4)}, {A}, {B}, v{V_IDX}"
def mf32(d, A, B, C): return f"v_mfma_f32_16x16x32_bf16 {vr(d,4)}, {A}, {B}, {C}"
def mf16(d, A, B, C): return f"v_mfma_f32_16x16x16_bf16 {vr(d,4)}, {A}, {B}, {C}"

def setup_lanes(a):
    L, T = 127, 126
    V_TID = 125
    a(f"v_mov_b32 v{V_TID}, v0")
    a(f"v_and_b32 v{L}, 63, v0")
    a(f"v_lshrrev_b32 v{T}, 6, v0")
    a(f"v_readfirstlane_b32 s{S_WV}, v{T}")
    a(f"v_lshlrev_b32 v{V_LA}, 4, v{L}")
    a(f"s_lshl_b32 s{S_T0}, s{S_WV}, 15")
    a(f"v_add_u32 v{V_WVO}, s{S_T0}, v{V_LA}")
    a(f"v_add_u32 v{V_LA}, {MEMB}, v{V_LA}")
    for j, r in enumerate((V_P1, V_MR1, V_MR2, V_MR3)):
        a(f"s_xor_b32 s{S_T0}, s{S_WV}, {j}")
        a(f"s_lshl_b32 s{S_T0}, s{S_T0}, 11")
        a(f"v_add_u32 v{r}, s{S_T0}, v{V_LA}")
    bitpat(a, V_QW, L, [(5, 1, 8), (0, 15, 1)], T)
    a(f"v_and_b32 v{V_QW}, 15, v{V_QW}")
    a(f"v_and_b32 v{T}, 48, v{L}")
    a(f"v_add_u32 v{V_QW}, v{V_QW}, v{T}")
    a(f"v_lshlrev_b32 v{V_QW}, 3, v{V_QW}")
    a(f"s_lshl_b32 s{S_T0}, s{S_WV}, 10")
    a(f"s_add_u32 s{S_T0}, s{S_T0}, {QB}")
    a(f"v_add_u32 v{V_QW}, s{S_T0}, v{V_QW}")
    bitpat(a, V_QKR, L, [(1, 1, 8), (2, 15, 1)], T)
    a(f"v_and_b32 v{V_QKR}, 15, v{V_QKR}")
    a(f"v_and_b32 v{T}, 3, v{L}")
    a(f"v_lshl_add_u32 v{V_QKR}, v{T}, 4, v{V_QKR}")
    a(f"v_lshlrev_b32 v{V_QKR}, 3, v{V_QKR}")
    a(f"v_add_u32 v{V_QKR}, {QB}, v{V_QKR}")
    bitpat(a, V_OW, L, [(4, 3, 256), (2, 3, 64), (0, 1, 32), (1, 1, 4096)], T, MEMB)
    a(f"s_lshr_b32 s{S_T0}, s{S_WV}, 1")
    a(f"s_lshl_b32 s{S_T0}, s{S_T0}, 10")
    a(f"s_and_b32 s{S_T1}, s{S_WV}, 1")
    a(f"s_lshl_b32 s{S_T1}, s{S_T1}, 4")
    a(f"s_add_u32 s{S_T0}, s{S_T0}, s{S_T1}")
    a(f"v_add_u32 v{V_OW}, s{S_T0}, v{V_OW}")
    bitpat(a, V_GATH, L, [(1, 7, 1024), (4, 3, 32), (0, 1, 16)], T)
    a(f"s_lshl_b32 s{S_T0}, s{S_WV}, 8")
    a(f"v_add_u32 v{V_GATH}, s{S_T0}, v{V_GATH}")
    bitpat(a, V_PST, L, [(4, 3, 8192), (0, 15, 16)], T)
    a(f"s_lshl_b32 s{S_T0}, s{S_WV}, 16")
    a(f"v_add_u32 v{V_PST}, s{S_T0}, v{V_PST}")
    bitpat(a, V_PUB, L, [(1, 3, 256), (0, 1, 32), (5, 1, 16), (4, 1, 8), (3, 1, OOB)], T)
    a(f"v_and_b32 v{T}, 1, v{L}")
    a(f"v_cmp_eq_u32 vcc, 1, v{T}")
    a(f"v_mov_b32 v{V_IDX}, 0x44444444")
    a(f"v_mov_b32 v{T}, 0xeeeeeeee")
    a(f"v_cndmask_b32 v{V_IDX}, v{V_IDX}, v{T}, vcc")
    a(f"v_mov_b32 v{V_SELX}, 0x3f80")
    a(f"v_mov_b32 v{T}, 0x3f800000")
    a(f"v_cndmask_b32 v{V_SELX}, v{V_SELX}, v{T}, vcc")
    a(f"v_bfe_u32 v{T}, v{L}, 1, 3")
    for r in range(4):
        a(f"v_cmp_eq_u32 s[{S_SELM+2*r}:{S_SELM+2*r+1}], {r}, v{T}")
    a(f"v_cmp_eq_u32 s[{S_L0}:{S_L0+1}], 64, v{V_TID}")
    for r in range(4):
        a(f"v_mov_b32 v{V_ONES+r}, 0x3f803f80")
        a(f"v_mov_b32 v{V_PB+r}, 0")

def load_weights(a, after_first):
    L, T = 127, 126
    V_SQ, V_SO, V_TR = 125, 124, 123
    TMP = V_M
    chunk_src_pattern(a, V_SQ, L, T, (1, 3, 2, 0), 8192)
    chunk_src_pattern(a, V_SO, L, T, (1, 5, 4, 0), 1024)
    chunk_tr_pattern(a, V_TR, L, T)
    a(f"s_lshl_b32 s{S_T3}, s{S_WV}, 15")
    a(f"v_add_u32 v{V_TR}, s{S_T3}, v{V_TR}")
    chunks = [('q', s) for s in range(8)] + [('k', s) for s in range(8)] + [('v', s) for s in range(4, 8)] \
        + [('o', (tp, kbo)) for tp in range(2) for kbo in range(2)] + [('v', s) for s in range(4)] \
        + [('o', (tp, kbo)) for tp in range(2, 4) for kbo in range(2)]
    cur = [None]
    S_A, S_B, S_Cc, S_Dd = 68, 72, 76, 80
    for base, ka in ((S_A, KA_WQ), (S_B, KA_WK), (S_Cc, KA_WV), (S_Dd, KA_WO)):
        srd(a, base, ka, 0x400000)
    desc = {'q': S_A, 'k': S_B, 'v': S_Cc, 'o': S_Dd}
    def issue(ci):
        kind, p = chunks[ci]
        a(f"s_add_u32 m0, s{S_T3}, {(ci & 7) * 4096}")
        if kind != 'o':
            a(f"s_xor_b32 s{S_T0}, s{S_WV}, {p >> 1}")
            a(f"s_lshl_b32 s{S_T0}, s{S_T0}, 20")
            a(f"s_lshl_b32 s{S_T1}, s{S_H}, 8")
            a(f"s_add_u32 s{S_T0}, s{S_T0}, s{S_T1}")
            a(f"s_lshl_b32 s{S_T1}, s{S_WV}, 6")
            a(f"s_add_u32 s{S_T0}, s{S_T0}, s{S_T1}")
            if p & 1: a(f"s_add_u32 s{S_T0}, s{S_T0}, {64 * 8192}")
            step, v = 16 * 8192 - 1024, V_SQ
        else:
            tp, kbo = p
            a(f"s_lshl_b32 s{S_T0}, s{S_H}, 17")
            a(f"s_lshl_b32 s{S_T1}, s{S_WV}, 8")
            a(f"s_add_u32 s{S_T0}, s{S_T0}, s{S_T1}")
            a(f"s_add_u32 s{S_T0}, s{S_T0}, {kbo * 65536 + tp * 64}")
            step, v = 4 * 1024 - 1024, V_SO
        d = desc[kind]
        for u in range(4):
            a(f"buffer_load_dwordx4 v{v}, s[{d}:{d+3}], s{S_T0} offen offset:{u*1024} lds")
            if u < 3: a(f"s_add_u32 s{S_T0}, s{S_T0}, {step}")
    for ci in range(8): issue(ci)
    for ci in range(32):
        kind, p = chunks[ci]
        left = min(7, 31 - ci)
        a(f"s_waitcnt vmcnt({4*left})")
        if ci == 0: after_first(a)
        for t in range(2):
            if ci >= 24: base = TMP + 8 * t
            elif kind == 'q': base = WQ0 + (p * 2 + t) * 8
            elif kind == 'k': base = WK0 + (p * 2 + t) * 8
            elif kind == 'v': base = WV0 + ((p - 4) * 2 + t) * 8
            else: base = WO0 + ((p[0] * 2 + t) * 2 + p[1]) * 8
            for pr in range(4):
                a(f"ds_read_b64_tr_b16 {ur(base + 2*pr, 2)}, v{V_TR} offset:{(ci & 7)*4096 + tr_off(t, pr)}")
        a("s_waitcnt lgkmcnt(0)")
        if ci >= 24:
            for q in range(4):
                a(f"ds_write_b128 v{V_WVO}, {vr(TMP + 4*q, 4)} offset:{(ci & 7)*4096 + q*1024}")
            a("s_waitcnt lgkmcnt(0)")
        if ci + 8 < 32: issue(ci + 8)

def lds_wv(s, t, h): return s * 4096 + t * 2048 + h * 1024
def lds_wo(t, kbo, h): return (4 + ((t >> 1) - 2) * 2 + kbo) * 4096 + (t & 1) * 2048 + h * 1024
def rd_wv(dst, s, t): return [f"ds_read_b128 {vr(dst + 4*h, 4)}, v{V_WVO} offset:{lds_wv(s, t, h)}" for h in range(2)]
def rd_wo(dst, t, kbo): return [f"ds_read_b128 {vr(dst + 4*h, 4)}, v{V_WVO} offset:{lds_wo(t, kbo, h)}" for h in range(2)]

def slot_regs(a):
    a(f"s_and_b32 s{S_T0}, s{S_STEP}, 3")
    a(f"s_lshl_b32 s{S_T1}, s{S_T0}, 13")
    a(f"s_add_u32 s{S_MEMRD}, s{S_T1}, {WS_MEMRING - MEMB}")
    a(f"s_add_u32 s{S_PUBC}, s{S_T1}, s{S_HB_PUB}")
    a(f"s_lshl_b32 s{S_T1}, s{S_T0}, 18")
    a(f"s_add_u32 s{S_PST0}, s{S_T1}, s{S_HB_PST}")
    a(f"s_add_u32 s{S_PST1}, s{S_PST0}, 32768")
    a(f"s_add_u32 s{S_INB0}, s{S_T1}, s{S_HB_INB}")
    a(f"s_add_u32 s{S_INB1}, s{S_INB0}, 4096")
    a(f"s_bfe_u32 s{S_PH}, s{S_STEP}, 0x10002")
    a(f"s_add_u32 s{S_T0}, s{S_STEP}, 1")
    a(f"s_and_b32 s{S_T0}, s{S_T0}, 3")
    a(f"s_lshl_b32 s{S_T0}, s{S_T0}, 13")
    a(f"s_add_u32 s{S_PUBN}, s{S_T0}, s{S_HB_PUB}")

def idle_a(a, par_next):
    for j in range(4):
        for x in rd_wv(Wb(j), j >> 1, j & 1): a(x)
    vn = V_VX[1 - par_next]
    for r in range(4): a(f"v_mov_b32 v{vn + r}, v{V_AK + r}")

def idle_b(a, par_next):
    vn = V_VX[1 - par_next]
    a(f"v_mov_b32 v{vn + 6}, s{S_STEP}")
    a(f"v_cndmask_b32 v{vn + 7}, v{V_ONES}, 0, s[{S_L0}:{S_L0+1}]")
    for r in list(range(V_AQ + 4, V_AQ + 8)) + list(range(V_AK, V_AK + 8)): a(f"v_mov_b32 v{r}, 0")

def idle_c(a, par_next):
    for r in list(range(V_AQ, V_AQ + 4)) + list(range(V_AV, V_AV + 8)): a(f"v_mov_b32 v{r}, 0")

def avail_check(a, tag):
    a(f"v_readfirstlane_b32 s{S_AVAIL}, v{V_FL}")
    a(f"s_add_u32 s{S_T0}, s{S_STEP}, 2")
    a(f"s_min_u32 s{S_T0}, s{S_T0}, 64")
    a(f"s_cmp_ge_u32 s{S_AVAIL}, s{S_T0}")
    a(f"s_cbranch_scc0 {tag}_slow")
    a.label(f"{tag}_ok")

def avail_slow(a, tag):
    a.label(f"{tag}_slow")
    a(f"buffer_load_dword v{V_FL}, off, s[{S_WS}:{S_WS+3}], s{S_FLP} sc1")
    a(f"s_add_u32 s{S_SPIN}, s{S_SPIN}, 1")
    a(f"s_cmp_gt_u32 s{S_SPIN}, {SPIN_LIMIT}")
    a("s_cbranch_scc1 L_abort")
    a("s_waitcnt vmcnt(0)")
    a(f"v_readfirstlane_b32 s{S_AVAIL}, v{V_FL}")
    a("s_nop 1")
    a(f"s_cmp_ge_u32 s{S_AVAIL}, s{S_T0}")
    a(f"s_cbranch_scc0 {tag}_slow")
    a(f"s_branch {tag}_ok")

def step(a, par, st, tag, opt):
    WS = f"s[{S_WS}:{S_WS+3}]"
    VXc, VXn = V_VX[par], V_VX[1 - par]
    Kc = KB[par] - MEMB
    T0, T1 = VXn + 4, VXn + 5
    stamp = opt.get('stamp') or (None, None)
    trace = opt.get('trace', [])
    def st_list(name):
        if name in trace:
            k = 68 + trace.index(name)
            return [f"s_memtime s[{S_TS}:{S_TS+1}]", "s_waitcnt lgkmcnt(0)", f"s_cmp_eq_u32 s{S_STEP}, {opt.get('tstep', 20) + (1 if name in ('join',) else 0)}",
                    f"s_cselect_b32 s{k}, s{S_TS}, s{k}"]
        if stamp[0] == name:
            return [f"s_memtime s[{S_TS}:{S_TS+1}]", "s_waitcnt lgkmcnt(0)"]
        if stamp[1] == name:
            return [f"s_memtime s[{S_TS+2}:{S_TS+3}]", "s_waitcnt lgkmcnt(0)", f"s_sub_u32 s{S_TS+2}, s{S_TS+2}, s{S_TS}",
                    f"s_add_u32 s{S_ACC}, s{S_ACC}, s{S_TS+2}"]
        return []
    def st_at(name):
        for x in st_list(name): a(x)
    a.label(f"{tag}_h1")
    a("s_waitcnt vmcnt(2)")
    a.label(f"{tag}_entry")
    st_at('entry')
    M = V_M
    a(f"v_max3_u32 v{T0}, v{M+1}, v{M+3}, v{M+5}")
    a(f"v_max_u32 v{T0}, v{T0}, v{M+7}")
    a(f"v_cmp_eq_u32 vcc, -1, v{T0}")
    a.label(f"{tag}_entry2")
    mains = []; F = {}
    nobg = opt.get('nobg', '')
    def add(i, *xs): F.setdefault(i, []).extend(xs)
    AQ = lambda t: V_AQ + 4 * t
    AK = lambda t: V_AK + 4 * t
    AV = lambda t: V_AV + 4 * t
    for s in range(2):
        for t in range(2): mains.append(smf(AQ(t), Mf(s), wq(t, s)))
    for s in range(2):
        for t in range(2): mains.append(smf(AK(t), Mf(s), wk(t, s)))
    for s in range(2):
        for t in range(2): mains.append(smf(AV(t), Mf(s), vr(Wb(2*s + t), 8)))
    M = V_M
    add(1, f"s_cbranch_vccnz {tag}_h1retry", f"ds_write_b128 v{V_P1}, {Mf(0)}")
    add(opt.get('w1', 4), f"ds_write_b128 v{V_P1}, {Mf(1)} offset:1024")
    B1 = opt.get('b1', 8)
    add(B1, "s_waitcnt lgkmcnt(0)", *st_list('prebar1'), "s_barrier", *st_list('bar1'))
    mr = (V_MR1, V_MR2, V_MR3)
    add(B1 + 4, "s_waitcnt vmcnt(0)")
    for j, s in enumerate(range(2, 8)):
        add(B1 + j, f"ds_read_b128 {Mf(s)}, v{mr[(s >> 1) - 1]} offset:{(s & 1) * 1024}")
    for s in range(2, 8):
        for t in range(2): mains.append(smf(AQ(t), Mf(s), wq(t, s)))
    wvr = [x for j in range(4) for x in rd_wv(Wb(j), 2 + (j >> 1), j & 1)]
    for i, x in enumerate(wvr): add(14 + i, x)
    for s in range(2, 4):
        for t in range(2): mains.append(smf(AV(t), Mf(s), vr(Wb(2*(s-2) + t), 8)))
    for s in range(2, 8):
        for t in range(2): mains.append(smf(AK(t), Mf(s), wk(t, s)))
    if 'k' not in nobg:
        add(5, f"s_mov_b32 m0, s{S_KM0 + (1 - par)}")
    if 'e' not in nobg:
        add(opt.get('exppos', 14), f"buffer_store_dwordx4 {vr(VXn,4)}, v{V_LA}, {WS}, s{S_EXP} offen sc1")
        add(opt.get('flagpos', 21), f"buffer_store_dword v{VXn+6}, v{VXn+7}, {WS}, s{S_FLA} offen sc1")
    add(31, f"s_add_u32 s{S_EXP}, s{S_EXP}, {32*4096}")
    bg = [f"buffer_load_dwordx4 v{V_P1}, {WS}, s{S_KPF} offen sc1 lds",
          f"buffer_load_dwordx4 v{V_P1}, {WS}, s{S_KPF} offen offset:1024 sc1 lds",
          f"buffer_load_dwordx4 {vr(VXn,4)}, v{V_P1}, {WS}, s{S_VPF} offen sc1",
          f"buffer_load_dwordx4 {vr(VXn+4,4)}, v{V_P1}, {WS}, s{S_VPF} offen offset:1024 sc1",
          f"buffer_load_dword v{V_FL}, off, {WS}, s{S_FLP} sc1"]
    for x, i in zip(bg, opt.get('bgpos', (16, 24, 25, 26, 30))):
        if 'k' not in nobg: add(i, x)
    add(31, f"s_add_u32 s{S_KPF}, s{S_KPF}, {32*8192}", f"s_add_u32 s{S_VPF}, s{S_VPF}, {32*8192}")
    QF, KF = Wb(0), Wb(2)
    KX = [V_M, V_M + 4, Wb(2), Wb(2) + 4, Wb(3), Wb(3) + 4, V_M + 8, V_M + 12]
    qtr = [f"ds_read_b64_tr_b16 {vr(QF + 4*i + 2*hh, 2)}, v{V_QKR} offset:{i*1024 + hh*512}" for i in range(4) for hh in range(2)]
    kxr = [f"ds_read_b128 {vr(KX[2*i + T], 4)}, v{V_LA} offset:{Kc + T*4096 + i*1024}" for i in range(4) for T in range(2)]
    q0, q1 = AQ(0), AQ(1)
    add(22, kxr[0]); add(23, kxr[1])
    add(24, f"v_add_f32 v{q0}, v{q0}, v{q0+1}")
    add(25, f"v_add_f32 v{q0+2}, v{q0+2}, v{q0+3}")
    add(26, f"v_cvt_pk_bf16_f32 v{q0}, v{q0}, v{q0+2}")
    add(27, f"ds_write_b32 v{V_QW}, v{q0}", f"v_add_f32 v{q1}, v{q1}, v{q1+1}")
    add(28, kxr[2], f"v_add_f32 v{q1+2}, v{q1+2}, v{q1+3}")
    add(29, kxr[3], f"v_cvt_pk_bf16_f32 v{q1}, v{q1}, v{q1+2}")
    add(30, f"ds_write_b32 v{V_QW}, v{q1} offset:512")
    add(31, kxr[4]); add(32, kxr[5]); add(33, kxr[6])
    B2 = opt.get('b2', 34)
    add(B2, "s_waitcnt lgkmcnt(3)", *st_list('prebar2'), "s_barrier", *st_list('bar2'))
    for j, x in enumerate(qtr): add(B2 + j, x)
    SX = lambda T: V_AQ + 4 * T
    for s in (4,):
        for t in range(2): mains.append(smf(AV(t), Mf(s), wv_res(t, s)))
    for i in range(4):
        for T in range(2):
            mains.append(mf32(SX(T), vr(KX[2*i + T], 4), vr(QF + 4*i, 4), "0" if i == 0 else vr(SX(T), 4)))
    k0, k1 = AK(0), AK(1)
    add(40, f"v_add_f32 v{k0}, v{k0}, v{k0+1}")
    add(41, f"v_add_f32 v{k0+2}, v{k0+2}, v{k0+3}")
    add(42, f"v_cvt_pk_bf16_f32 v{k0}, v{k0}, v{k0+2}", f"v_add_f32 v{k1}, v{k1}, v{k1+1}")
    add(43, f"ds_write_b32 v{V_QW}, v{k0} offset:4096", f"v_add_f32 v{k1+2}, v{k1+2}, v{k1+3}")
    add(44, kxr[7], f"v_cvt_pk_bf16_f32 v{k0+1}, v{k1}, v{k1+2}")
    add(45, f"ds_write_b32 v{V_QW}, v{k0+1} offset:4608")
    B3 = opt.get('b3', 49)
    add(B3, "s_waitcnt lgkmcnt(0)", *st_list('prebar3'), "s_barrier", *st_list('bar3'))
    ktr = [f"ds_read_b64_tr_b16 {vr(KF + 4*i + 2*hh, 2)}, v{V_QKR} offset:{4096 + i*1024 + hh*512}" for i in range(4) for hh in range(2)]
    for s in (5, 6, 7):
        for t in range(2): mains.append(smf(AV(t), Mf(s), wv_res(t, s)))
    for x, i in zip(ktr, opt.get('ktrpos', (49, 49, 50, 51, 52, 53, 54, 55))): add(i, x)
    ex = [f"v_exp_f32 v{V_AQ + r}, v{V_AQ + r}" for r in range(8)]
    for x, i in zip(ex, opt.get('expos', (50, 51, 52, 53, 54, 55, 56, 57))): add(i, x)
    SM = V_AK + 4
    for i in range(4):
        mains.append(mf32(SM, vr(KF + 4*i, 4), vr(QF + 4*i, 4), "0" if i == 0 else vr(SM, 4)))
    PX = V_AQ
    v0_, v1_ = AV(0), AV(1)
    add(58, f"v_cvt_pk_bf16_f32 v{PX}, v{V_AQ}, v{V_AQ+1}", f"v_cvt_pk_bf16_f32 v{PX+1}, v{V_AQ+2}, v{V_AQ+3}")
    add(59, f"v_cvt_pk_bf16_f32 v{PX+2}, v{V_AQ+4}, v{V_AQ+5}", f"v_cvt_pk_bf16_f32 v{PX+3}, v{V_AQ+6}, v{V_AQ+7}",
            f"v_add_f32 v{v0_}, v{v0_}, v{v0_+1}", f"v_add_f32 v{v0_+2}, v{v0_+2}, v{v0_+3}")
    OA, LA = V_M, V_M + 8
    mains.append(mf32(LA, vr(V_ONES, 4), vr(PX, 4), "0"))
    mains.append(mf32(OA, vr(VXc, 4), vr(PX, 4), "0"))
    mains.append(mf32(OA + 4, vr(VXc + 4, 4), vr(PX, 4), "0"))
    add(60, f"v_mul_f32 v{SM}, s{S_C}, v{SM}", f"v_mul_f32 v{SM+1}, s{S_C}, v{SM+1}")
    add(61, f"v_exp_f32 v{SM}, v{SM}", f"v_exp_f32 v{SM+1}, v{SM+1}")
    add(62, f"v_cvt_pk_bf16_f32 v{V_AK+2}, v{v0_}, v{v0_+2}", f"v_cvt_pk_bf16_f32 v{V_PB}, v{SM}, v{SM+1}",
            f"v_add_f32 v{v1_}, v{v1_}, v{v1_+1}", f"v_add_f32 v{v1_+2}, v{v1_+2}, v{v1_+3}")
    mains.append(mf16(LA, vr(V_ONES, 2), vr(V_PB, 2), vr(LA, 4)))
    add(63, f"v_cvt_pk_bf16_f32 v{V_AK+3}, v{v1_}, v{v1_+2}", f"v_cvt_pk_bf16_f32 v{V_PB+3}, v{SM}, v{SM+1}")
    mains.append(mf16(OA, vr(V_AK + 2, 2), vr(V_PB, 2), vr(OA, 4)))
    mains.append(mf16(OA + 4, vr(V_AK + 2, 2), vr(V_PB + 2, 2), vr(OA + 4, 4)))
    wo_order = [(t, kbo) for t in range(4, 8) for kbo in range(2)]
    wor = [x for j in range(4) for x in rd_wo(Wb(j), *wo_order[j])]
    npre = opt.get('npre', 4)
    for x, i in zip(wor[:npre], (64, 64, 65, 65, 65, 65, 65, 65)): add(i, x)
    drop = opt.get('drop', [])
    if drop:
        F = {i: [x for x in xs if not any(x.startswith(d) for d in drop)] for i, xs in F.items()}
    interleave(a, mains, F)
    st_at('pv')
    if par == 1:
        a(f"s_cmp_eq_u32 s{S_STEP}, 63")
        a(f"s_cbranch_scc1 L_chain_done")
    INV, OW = V_AQ + 0, V_AQ + 4
    a(f"v_rcp_f32 v{INV}, v{LA}")
    for hh in range(2):
        for r in range(4 * hh, 4 * hh + 4): a(f"v_mul_f32 v{OA+r}, v{OA+r}, v{INV}")
        for r in range(2 * hh, 2 * hh + 2): a(f"v_cvt_pk_bf16_f32 v{OW+r}, v{OA+2*r}, v{OA+2*r+1}")
        a(f"ds_write_b64 v{V_OW}, {vr(OW + 2*hh, 2)} offset:{8*hh}")
    a(f"v_subrev_u32 v{INV+1}, s{S_LLO}, v{LA}")
    a(f"v_cmp_le_u32 vcc, s{S_LRG}, v{INV+1}")
    zacc = lambda j: f"v_mfma_f32_32x32x8_bf16 {vr(V_M + 16*j, 16)}, {vr(V_PB+2,2)}, {vr(V_PB,2)}, 0"
    a(zacc(0))
    a(f"s_cbranch_vccnz {tag}_fallback")
    a.label(f"{tag}_fbdone")
    a("s_waitcnt lgkmcnt(0)")
    st_at('prebar4')
    a("s_barrier")
    st_at('bar4')
    OF = VXc
    a(f"ds_read_b128 {vr(OF,4)}, v{V_LA}")
    a(f"ds_read_b128 {vr(OF+4,4)}, v{V_LA} offset:1024")
    a(zacc(1))
    st_at('oex')
    mains = []; F = {}
    P = lambda t: V_M + 4 * t
    for t in range(4):
        for kbo in range(2): mains.append(smf(P(t), vr(OF + 4*kbo, 4), wo_res(t, kbo)))
    src = [Wb(0), Wb(1), Wb(2), Wb(3), V_AQ, V_AV, Wb(0), Wb(1)]
    for j, (t, kbo) in enumerate(wo_order): mains.append(smf(P(t), vr(OF + 4*kbo, 4), vr(src[j], 8)))
    late = wor[npre:] + [x for j in range(4, 8) for x in rd_wo(src[j], *wo_order[j])]
    lpos = list(range(0, 8 - npre)) + [8 - npre + j for j in range(4)]
    lpos = [min(p, 7) for p in lpos] + [8, 9, 9, 10]
    for x, i in zip(late, lpos): add(i, x)
    def fold(t, dst):
        p = P(t)
        return [f"v_add_f32 v{p}, v{p}, v{p+1}", f"v_add_f32 v{p+2}, v{p+2}, v{p+3}", f"v_cvt_pk_bf16_f32 v{dst}, v{p}, v{p+2}"]
    for t in range(6):
        y = fold(t, P(t & 4) + (t & 3))
        add(2 * t + 3, y[0]); add(2 * t + 4, y[1], y[2])
        if t & 3 == 0: add(2 * t + 5, f"v_and_or_b32 v{P(t)}, v{P(t)}, -2, s{S_PH}")
    add(11, f"buffer_store_dwordx4 {vr(P(0),4)}, v{V_PST}, {WS}, s{S_PST0} offen {st}")
    F[11] = [F[11][-1]] + F[11][:-1]
    y6 = fold(6, P(4) + 2); add(15, y6[0])
    interleave(a, mains, F)
    a(y6[1]); a(y6[2])
    for y in fold(7, P(4) + 3): a(y)
    a(f"buffer_store_dwordx4 {vr(P(4),4)}, v{V_PST}, {WS}, s{S_PST1} offen {st}")
    st_at('pst')
    SEL, RA = V_AQ, V_AV
    def h2_issue():
        for i in range(8):
            a(f"buffer_load_dwordx4 {Mf(i)}, v{V_LA}, {WS}, s{S_INB0 if i < 4 else S_INB1} offen offset:{(i & 3)*1024} sc1")
    a(f"s_cmp_ge_u32 s{S_WV}, 2")
    a(f"s_cbranch_scc1 {tag}_others")
    for r in range(4): a(f"v_cndmask_b32 v{SEL+r}, 0, v{V_SELX}, s[{S_SELM+2*r}:{S_SELM+2*r+1}]")
    idle_a(a, 1 - par)
    for _ in range(opt.get('h2pad', 0)): a("s_nop 7")
    a(f"s_cmp_eq_u32 s{S_WV}, 0")
    a(f"s_cbranch_scc1 {tag}_w0")
    idle_b(a, 1 - par)
    for _ in range(opt.get('h2gap', 0)): a("s_nop 7")
    h2_issue()
    a(f"s_branch {tag}_h2")
    a.label(f"{tag}_w0")
    h2_issue()
    idle_b(a, 1 - par)
    a.label(f"{tag}_h2")
    TG = RA + 4
    for i in range(8):
        a(mf32(RA, Mf(i), vr(SEL, 4), "0" if i == 0 else vr(RA, 4)))
        if i == 0: a(f"v_xor_b32 v{TG}, s{S_PH}, v{V_M}")
        else: a(f"v_bitop3_b32 v{TG}, v{TG}, v{V_M + 4*i}, s{S_PH} bitop3:0xf6")
    a(f"v_and_b32 v{TG}, 1, v{TG}")
    a(f"v_cmp_ne_u32 vcc, 0, v{TG}")
    a(f"v_cvt_pk_bf16_f32 v{RA+6}, v{RA}, v{RA+1}")
    a(f"v_cvt_pk_bf16_f32 v{RA+7}, v{RA+2}, v{RA+3}")
    a(f"s_cbranch_vccnz {tag}_h2r")
    a(f"buffer_store_dwordx2 {vr(RA+6,2)}, v{V_PUB}, {WS}, s{S_PUBN} offen {st}")
    st_at('pub')
    a(f"v_mov_b32 v{RA}, -1")
    a(f"v_mov_b32 v{RA+1}, -1")
    a(f"buffer_store_dwordx2 {vr(RA,2)}, v{V_PUB}, {WS}, s{S_PUBC} offen {st}")
    a(f"s_branch {tag}_join")
    a.label(f"{tag}_others")
    idle_a(a, 1 - par)
    idle_b(a, 1 - par)
    a("s_waitcnt vmcnt(2)")
    a.label(f"{tag}_join")
    a(f"s_add_u32 s{S_STEP}, s{S_STEP}, 1")
    slot_regs(a)
    avail_check(a, f"{tag}_av0")
    a("s_barrier")
    for _ in range(opt.get('h1pad', 0)): a("s_nop 7")
    h1_issue(a, 0)
    idle_c(a, 1 - par)
    for _ in range(opt.get('h1gap', 0)): a("s_nop 7")
    h1_issue(a, 3)
    st_at('join')
    return h2_issue

def h1_issue(a, j):
    WS = f"s[{S_WS}:{S_WS+3}]"
    a(f"buffer_load_dwordx4 {Mf(2*j)}, v{V_P1}, {WS}, s{S_MEMRD} offen sc1")
    a(f"buffer_load_dwordx4 {Mf(2*j + 1)}, v{V_P1}, {WS}, s{S_MEMRD} offen offset:1024 sc1")

def step_tails(a, par, tag, h2):
    WS = f"s[{S_WS}:{S_WS+3}]"
    VXc = V_VX[par]
    Kc = KB[par] - MEMB
    T0, T1 = V_VX[1 - par] + 4, V_VX[1 - par] + 5
    def spin(k):
        a(f"s_add_u32 s{S_SPIN}, s{S_SPIN}, 1")
        a(f"s_cmp_gt_u32 s{S_SPIN}, {SPIN_LIMIT}")
        a("s_cbranch_scc1 L_abort")
        a(f"s_add_u32 s{S_ACC+k}, s{S_ACC+k}, 1")
    a.label(f"{tag}_h1retry")
    h1_issue(a, 0)
    spin(1)
    a("s_nop 2")
    for r in range(8): a(f"v_mov_b32 v{V_AQ + r}, 0")
    a("s_waitcnt vmcnt(2)")
    M = V_M + 24
    a(f"v_max3_u32 v{T0}, v{M+1}, v{M+3}, v{M+5}")
    a(f"v_max_u32 v{T0}, v{T0}, v{M+7}")
    a(f"v_cmp_eq_u32 vcc, -1, v{T0}")
    a.items.append(('i', Ins("s_waitcnt vmcnt(63)")))
    a.items.append(('x', 'forget_vm'))
    for r in range(8): a(f"v_mov_b32 v{V_M + r}, v{M + r}")
    a("s_nop 0")
    a(f"s_cbranch_vccz {tag}_entry2")
    h1_issue(a, 3)
    spin(1)
    a(f"s_branch {tag}_h1")
    a.label(f"{tag}_h2r")
    h2()
    spin(2)
    a(f"s_branch {tag}_h2")
    avail_slow(a, f"{tag}_av0")
    a.label(f"{tag}_fallback")
    a("s_nop 7")
    a("s_nop 3")
    a("s_waitcnt lgkmcnt(0)")
    QF, KF = Wb(0), Wb(2)
    SX, SM = V_AV, V_AK + 4
    OA, LA = V_M, V_M + 8
    for i in range(4):
        for hh in range(2): a(f"ds_read_b64_tr_b16 {vr(QF + 4*i + 2*hh, 2)}, v{V_QKR} offset:{i*1024 + hh*512}")
    for T in range(2):
        for i in range(4): a(f"ds_read_b128 {vr(KF + 4*i, 4)}, v{V_LA} offset:{Kc + T*4096 + i*1024}")
        for i in range(4): a(mf32(SX + 4*T, vr(KF + 4*i, 4), vr(QF + 4*i, 4), "0" if i == 0 else vr(SX + 4*T, 4)))
        a("s_nop 7")
    for i in range(4):
        for hh in range(2): a(f"ds_read_b64_tr_b16 {vr(KF + 4*i + 2*hh, 2)}, v{V_QKR} offset:{4096 + i*1024 + hh*512}")
    for i in range(4): a(mf32(SM, vr(KF + 4*i, 4), vr(QF + 4*i, 4), "0" if i == 0 else vr(SM, 4)))
    a(f"v_mul_f32 v{SM}, s{S_C}, v{SM}")
    a(f"v_mul_f32 v{SM+1}, s{S_C}, v{SM+1}")
    MX, T2 = SM + 2, SM + 3
    a(f"v_max3_f32 v{MX}, v{SM}, v{SM+1}, v{SX}")
    for r in range(1, 7, 2): a(f"v_max3_f32 v{MX}, v{MX}, v{SX+r}, v{SX+r+1}")
    a(f"v_max_f32 v{MX}, v{MX}, v{SX+7}")
    for sw in ("v_permlane16_swap_b32", "v_permlane32_swap_b32"):
        a(f"v_mov_b32 v{T2}, v{MX}")
        a(f"{sw} v{MX}, v{T2}")
        a(f"v_max_f32 v{MX}, v{MX}, v{T2}")
    for r in list(range(SX, SX + 8)) + [SM, SM + 1]:
        a(f"v_sub_f32 v{r}, v{r}, v{MX}")
        a(f"v_exp_f32 v{r}, v{r}")
    PX = V_AQ
    for r in range(4): a(f"v_cvt_pk_bf16_f32 v{PX+r}, v{SX+2*r}, v{SX+2*r+1}")
    a(f"v_cvt_pk_bf16_f32 v{V_PB}, v{SM}, v{SM+1}")
    a(f"v_cvt_pk_bf16_f32 v{V_PB+3}, v{SM}, v{SM+1}")
    a(mf32(LA, vr(V_ONES, 4), vr(PX, 4), "0"))
    a(mf32(OA, vr(VXc, 4), vr(PX, 4), "0"))
    a(mf32(OA + 4, vr(VXc + 4, 4), vr(PX, 4), "0"))
    a(mf16(LA, vr(V_ONES, 2), vr(V_PB, 2), vr(LA, 4)))
    a(mf16(OA, vr(V_AK + 2, 2), vr(V_PB, 2), vr(OA, 4)))
    a(mf16(OA + 4, vr(V_AK + 2, 2), vr(V_PB + 2, 2), vr(OA + 4, 4)))
    wo_order = [(t, kbo) for t in range(4, 8) for kbo in range(2)]
    for j in range(4):
        for x in rd_wo(Wb(j), *wo_order[j]): a(x)
    INV, OW = V_AQ + 0, V_AQ + 4
    a(f"v_rcp_f32 v{INV}, v{LA}")
    for r in range(8): a(f"v_mul_f32 v{OA+r}, v{OA+r}, v{INV}")
    for r in range(4): a(f"v_cvt_pk_bf16_f32 v{OW+r}, v{OA+2*r}, v{OA+2*r+1}")
    a(f"ds_write_b128 v{V_OW}, {vr(OW,4)}")
    for r in range(16): a(f"v_mov_b32 v{V_M + r}, 0")
    a("s_waitcnt lgkmcnt(0)")
    a("s_nop 1")
    a(f"s_branch {tag}_fbdone")

def role_chain(a, opt):
    WS = f"s[{S_WS}:{S_WS+3}]"; DB = f"s[{S_D}:{S_D+3}]"
    setup_lanes(a)
    a(f"s_mov_b32 s{S_C}, {f32bits(CSCALE):#x}")
    a(f"s_mov_b32 s{S_LLO}, 0x21800000")
    a(f"s_mov_b32 s{S_LRG}, 0x3c000000")
    for r in range(S_ACC, S_ACC + 2 + 1): a(f"s_mov_b32 s{r}, 0")
    a(f"s_lshl_b32 s{S_T0}, s{S_H}, 8")
    a(f"s_add_u32 s{S_HB_PST}, s{S_T0}, {WS_PART}")
    a(f"s_lshl_b32 s{S_T0}, s{S_H}, 13")
    a(f"s_add_u32 s{S_HB_INB}, s{S_T0}, {WS_PART - MEMB}")
    a(f"s_add_u32 s{S_KPF}, s{S_T0}, {WS_KX - MEMB}")
    a(f"s_add_u32 s{S_VPF}, s{S_T0}, {WS_VX - MEMB}")
    a(f"s_and_b32 s{S_T0}, s{S_H}, 3")
    a(f"s_lshl_b32 s{S_T0}, s{S_T0}, 6")
    a(f"s_lshr_b32 s{S_T1}, s{S_H}, 2")
    a(f"s_lshl_b32 s{S_T1}, s{S_T1}, 10")
    a(f"s_add_u32 s{S_T0}, s{S_T0}, s{S_T1}")
    a(f"s_add_u32 s{S_HB_PUB}, s{S_T0}, {WS_MEMRING}")
    a(f"s_lshl_b32 s{S_T0}, s{S_H}, 12")
    a(f"s_lshl_b32 s{S_T1}, s{S_WV}, 10")
    a(f"s_add_u32 s{S_T0}, s{S_T0}, s{S_T1}")
    a(f"s_add_u32 s{S_EXP}, s{S_T0}, {WS_KVM - MEMB - 32*4096}")
    a(f"s_lshl_b32 s{S_T0}, s{S_H}, 7")
    a(f"s_add_u32 s{S_FLP}, s{S_T0}, {WS_FLAG + FLAG_P * 128}")
    a(f"s_add_u32 s{S_FLA}, s{S_T0}, {WS_FLAG + FLAG_A * 128}")
    a(f"s_lshl_b32 s{S_T0}, s{S_WV}, 11")
    a(f"s_add_u32 s{S_KM0}, s{S_T0}, {KB[0]}")
    a(f"s_add_u32 s{S_KM0+1}, s{S_T0}, {KB[1]}")
    SN = V_W
    for r in range(4): a(f"v_mov_b32 v{SN+r}, -1")
    a(f"v_mov_b32 v{SN+4}, 0")
    for sl in range(4):
        a(f"s_add_u32 s{S_T0}, s{S_HB_INB}, {sl << 18}")
        a(f"buffer_store_dwordx4 {vr(SN,4)}, v{V_P1}, {WS}, s{S_T0} offen sc1")
        a(f"buffer_store_dwordx4 {vr(SN,4)}, v{V_P1}, {WS}, s{S_T0} offen offset:1024 sc1")
        a(f"s_add_u32 s{S_T0}, s{S_HB_PUB}, {sl << 13}")
        a(f"buffer_store_dwordx2 {vr(SN,2)}, v{V_PUB}, {WS}, s{S_T0} offen sc1")
    a(f"buffer_store_dword v{SN+4}, off, {WS}, s{S_FLA} sc1")
    def after_first(a):
        register_wg(a, SN, "L_ch_noreg")
    load_weights(a, after_first)
    wait_init(a, V_M, opt.get('groups', [0]), "L_ch_init")
    a(f"s_mov_b32 s{S_STEP}, -1")
    a(f"v_mov_b32 v{V_FL}, 0")
    avail_check(a, "L_ch_av")
    a(f"s_mov_b32 m0, s{S_KM0}")
    a(f"s_mov_b32 s{S_STEP}, 0")
    a(f"buffer_load_dwordx4 v{V_P1}, {WS}, s{S_KPF} offen sc1 lds")
    a(f"buffer_load_dwordx4 v{V_P1}, {WS}, s{S_KPF} offen offset:1024 sc1 lds")
    a(f"buffer_load_dwordx4 {vr(V_VX[0],4)}, v{V_P1}, {WS}, s{S_VPF} offen sc1")
    a(f"buffer_load_dwordx4 {vr(V_VX[0]+4,4)}, v{V_P1}, {WS}, s{S_VPF} offen offset:1024 sc1")
    a(f"s_add_u32 s{S_KPF}, s{S_KPF}, {32*8192}")
    a(f"s_add_u32 s{S_VPF}, s{S_VPF}, {32*8192}")
    srd(a, S_W, KA_MEM0, 8192)
    a(f"buffer_load_dwordx4 {Mf(0)}, v{V_GATH}, s[{S_W}:{S_W+3}], 0 offen")
    a(f"buffer_load_dwordx4 {Mf(1)}, v{V_GATH}, s[{S_W}:{S_W+3}], 0 offen offset:128")
    slot_regs(a)
    avail_check(a, "L_ch_av2")
    idle_a(a, 0); idle_b(a, 0); idle_c(a, 0)
    for r in range(4): a(f"v_mov_b32 v{V_M + 8 + r}, 0")
    for j in range(2): a(f"ds_write_b128 v{V_P1}, {vr(V_M + 8, 4)} offset:{QB - MEMB + 1024*j}")
    a("s_waitcnt vmcnt(0) lgkmcnt(0)")
    for r in range(8): a(f"v_min_u32 v{V_M+r}, -2, v{V_M+r}")
    if opt.get('time'):
        a(f"s_memtime s[84:85]")
        a(f"s_memrealtime s[88:89]")
        a("s_waitcnt lgkmcnt(0)")
    a(f"s_cmp_eq_u32 s{S_MODE}, {opt.get('fastmode', 1)}")
    a("s_cbranch_scc0 L_S0_entry")
    a("s_branch L_F0_entry")
    for tag, st in (("L_F", ""), ("L_S", "sc1")):
        h20 = step(a, 0, st, tag + "0", opt)
        h21 = step(a, 1, st, tag + "1", opt)
        a(f"s_branch {tag}0_h1")
        step_tails(a, 0, tag + "0", h20)
        step_tails(a, 1, tag + "1", h21)
    avail_slow(a, "L_ch_av")
    avail_slow(a, "L_ch_av2")
    a.label("L_chain_done")
    a(f"buffer_store_dwordx4 {vr(V_AK,4)}, v{V_LA}, {WS}, s{S_EXP} offen sc1")
    a("s_nop 7")
    a("s_waitcnt vmcnt(0)")
    a("s_barrier")
    a(f"v_mov_b32 v{V_M}, 64")
    a(f"buffer_store_dword v{V_M}, off, {WS}, s{S_FLA} sc1")
    if opt.get('time'):
        a(f"s_memtime s[86:87]")
        a(f"s_memrealtime s[90:91]")
        a("s_waitcnt lgkmcnt(0)")
        a("s_sub_u32 s86, s86, s84")
        a(f"s_lshl_b32 s{S_T0}, s{S_H}, 2")
        a(f"s_add_u32 s{S_T0}, s{S_T0}, s{S_WV}")
        a(f"s_lshl_b32 s{S_T0}, s{S_T0}, 5")
        a(f"s_add_u32 s{S_T0}, s{S_T0}, {WS_STAMP}")
        for i, s in enumerate((86, S_ACC, S_ACC + 1, S_ACC + 2, 88, 90, 92, S_MODE)):
            a(f"v_mov_b32 v{V_M+i}, s{s}")
        a(f"buffer_store_dwordx4 {vr(V_M,4)}, off, {WS}, s{S_T0}")
        a(f"buffer_store_dwordx4 {vr(V_M+4,4)}, off, {WS}, s{S_T0} offset:16")
        a(f"s_add_u32 s{S_T0}, s{S_T0}, 0x8000")
        a("s_mov_b32 s75, s84")
        for i in range(8): a(f"v_mov_b32 v{V_M+8+i}, s{68+i}")
        a(f"buffer_store_dwordx4 {vr(V_M+8,4)}, off, {WS}, s{S_T0}")
        a(f"buffer_store_dwordx4 {vr(V_M+12,4)}, off, {WS}, s{S_T0} offset:16")
    a("s_endpgm")
```

```python
from asmlib import *

KNAME = "gated_mix__memory_aug_recurrent_mem_tr__geglu_ffn__prompt_kernel"

KA_X, KA_MEM0, KA_WQ, KA_WK, KA_WV, KA_WO = 0, 8, 16, 24, 32, 40
KA_WG, KA_WU, KA_WD, KA_GW, KA_OUT, KA_DBG, KA_WS = 64, 72, 80, 88, 96, 104, 112

WS_SIZE = 0x10000000
OOB = 0x10000000
WS_FLAG = 0x0000000
FLAG_P = 0
FLAG_A = 64
FLAG_F = 96
FLAG_G = 128
FLAG_C = 160
WS_MEMRING = 0x0040000
WS_G = 0x0050000
WS_STAMP = 0x0060000
WS_PART = 0x0100000
WS_KX = 0x1000000
WS_VX = 0x2000000
WS_KVM = 0x3100000
WS_FP = 0x4000000
WS_CP = 0x6000000

SPIN_LIMIT = 40000
CSCALE = (128 ** -0.5) * 1.4426950408889634

import struct
def f32bits(x): return struct.unpack('<I', struct.pack('<f', x))[0]

S_WS = 4
S_W = 8
S_D = 12
S_H = 16
S_WV = 17
S_SPIN = 18
S_T0, S_T1, S_T2, S_T3 = 19, 20, 21, 22
S_PTR = 24
S_MODE = 26

def srd(a, base, ka_off, size):
    a(f"s_load_dwordx2 s[{S_PTR}:{S_PTR+1}], s[0:1], {ka_off}")
    a("s_waitcnt lgkmcnt(0)")
    a(f"s_mov_b32 s{base}, s{S_PTR}")
    a(f"s_and_b32 s{base+1}, s{S_PTR+1}, 0xffff")
    a(f"s_mov_b32 s{base+2}, {size:#x}")
    a(f"s_mov_b32 s{base+3}, 0x20000")

def bitpat(a, dst, lane, terms, tmp, const=0):
    first = True
    for sh, mask, mul in terms:
        t = dst if first else tmp
        nb = mask.bit_length()
        assert mask == (1 << nb) - 1
        a(f"v_bfe_u32 v{t}, v{lane}, {sh}, {nb}")
        if mul & (mul - 1) == 0:
            if mul > 1: a(f"v_lshlrev_b32 v{t}, {mul.bit_length()-1}, v{t}")
        else:
            a(f"v_mul_u32_u24 v{t}, {mul}, v{t}")
        if not first: a(f"v_add_u32 v{dst}, v{dst}, v{t}")
        first = False
    if const: a(f"v_add_u32 v{dst}, {const}, v{dst}")

def chunk_src_pattern(a, dst, lane, tmp, rowbits, pitch):
    b5, b3, b2, b1 = rowbits
    bitpat(a, dst, lane, [(5, 1, pitch << b5), (3, 1, pitch << b3), (2, 1, pitch << b2), (1, 1, pitch << b1),
                          (4, 1, 32), (0, 1, 16)], tmp)

def chunk_tr_pattern(a, dst, lane, tmp):
    bitpat(a, dst, lane, [(5, 1, 1024), (3, 1, 128), (4, 1, 64), (2, 1, 32), (0, 3, 8)], tmp)

def tr_off(t, p): return (p >> 1) * 2048 + (p & 1) * 512 + t * 256

S_XG = 27
S_XCC = 28

def register_wg(a, vt, lab):
    DB = f"s[{S_D}:{S_D+3}]"
    a("s_barrier")
    a(f"s_cmp_lg_u32 s{S_WV}, 0")
    a(f"s_cbranch_scc1 {lab}")
    a(f"s_mul_i32 s{S_T0}, s{S_XCC}, s{S_XCC}")
    a(f"s_lshl_b32 s{S_T0}, s{S_T0}, 18")
    a(f"s_lshl_b32 s{S_T1}, s{S_XCC}, 9")
    a(f"s_add_u32 s{S_T0}, s{S_T0}, s{S_T1}")
    a(f"s_add_u32 s{S_T0}, s{S_T0}, 1")
    a(f"s_lshl_b32 s{S_T1}, s{S_XG}, 2")
    a("s_mov_b64 exec, 1")
    a(f"v_mov_b32 v{vt}, s{S_T0}")
    a(f"buffer_atomic_add v{vt}, off, {DB}, s{S_T1}")
    a("s_mov_b64 exec, -1")
    a.label(lab)

def wait_init(a, vt, groups, lab):
    DB = f"s[{S_D}:{S_D+3}]"
    a.label(lab)
    a(f"buffer_load_dwordx4 {vr(vt,4)}, off, {DB}, 0 sc1")
    a(f"buffer_load_dwordx4 {vr(vt+4,4)}, off, {DB}, 0 offset:16 sc1")
    a(f"s_lshl_b32 s{S_T1}, s{S_XG}, 2")
    a(f"buffer_load_dword v{vt+8}, off, {DB}, s{S_T1} sc1")
    a(f"s_add_u32 s{S_SPIN}, s{S_SPIN}, 1")
    a(f"s_cmp_gt_u32 s{S_SPIN}, {SPIN_LIMIT}")
    a("s_cbranch_scc1 L_abort")
    a("s_waitcnt vmcnt(0)")
    for g in groups:
        a(f"v_readfirstlane_b32 s{S_T0}, v{vt+g}")
        a(f"s_and_b32 s{S_T0}, s{S_T0}, 0x1ff")
        a(f"s_cmp_ge_u32 s{S_T0}, 32")
        a(f"s_cbranch_scc0 {lab}")
    a(f"v_readfirstlane_b32 s{S_T0}, v{vt+8}")
    a(f"s_mul_i32 s{S_T1}, s{S_XCC}, s{S_XCC}")
    a(f"s_lshl_b32 s{S_T1}, s{S_T1}, 18")
    a(f"s_lshl_b32 s{S_T2}, s{S_XCC}, 9")
    a(f"s_add_u32 s{S_T1}, s{S_T1}, s{S_T2}")
    a(f"s_add_u32 s{S_T1}, s{S_T1}, 1")
    a(f"s_lshl_b32 s{S_T1}, s{S_T1}, 5")
    a(f"s_cmp_eq_u32 s{S_T0}, s{S_T1}")
    a(f"s_cselect_b32 s{S_MODE}, 1, 0")
```

```python
import sys
from common import *
import chain, rolepf, rolec

def build(opt):
    a = Asm()
    nwg = opt.get('nwg', 32)
    a("s_cmp_ge_u32 s2, 256")
    a("s_cbranch_scc1 L_exit")
    if opt.get('time'):
        a("s_memrealtime s[92:93]")
    srd(a, S_WS, KA_WS, WS_SIZE)
    srd(a, S_D, KA_DBG, 256)
    a(f"s_mov_b32 s{S_SPIN}, 0")
    a(f"s_lshr_b32 s{S_H}, s2, 3")
    a(f"s_and_b32 s{S_XG}, s2, 7")
    a(f"s_getreg_b32 s{S_XCC}, hwreg(HW_REG_XCC_ID, 0, 4)")
    if opt.get('spread'):
        a(f"s_mov_b32 s{S_H}, s2")
        a(f"s_lshr_b32 s{S_XG}, s2, 5")
    full = opt.get('full', 0)
    if full:
        opt = dict(opt); opt['groups'] = list(range(8))
        a(f"s_cmp_eq_u32 s{S_XG}, 6")
        a("s_cbranch_scc1 L_role_p")
        a(f"s_cmp_eq_u32 s{S_XG}, 7")
        a("s_cbranch_scc1 L_role_fg")
        a(f"s_cmp_lg_u32 s{S_XG}, 0")
        a("s_cbranch_scc1 L_role_c")
    else:
        a(f"s_cmp_eq_u32 s{S_XG}, 0")
        a("s_cbranch_scc0 L_exit")
    chain.role_chain(a, opt)
    if full:
        a.label("L_role_p")
        rolepf.role_p(a, opt)
        a.label("L_role_fg")
        a(f"s_cmp_ge_u32 s{S_H}, 28")
        a("s_cbranch_scc1 L_role_g")
        rolepf.role_f(a, opt)
        a.label("L_role_g")
        rolepf.role_g(a, opt)
        a.label("L_role_c")
        rolec.role_c(a, opt)
    a.label("L_abort")
    a("s_mov_b64 exec, -1")
    a("v_mov_b32 v0, 0xdead")
    a(f"buffer_store_dword v0, off, s[{S_D}:{S_D+3}], 0 offset:60")
    a.label("L_exit")
    a("s_endpgm")
    autowait(a, opt.get('verbose'))
    a.pad(opt.get('verbose'))
    head = f"""; @launch grid=(256,1,1) block=(256,1,1) lds={chain.LDS_BYTES}
.amdgcn_target "amdgcn-amd-amdhsa--gfx950"
.text
.globl {KNAME}
.p2align 8
.type {KNAME},@function
{KNAME}:
"""
    tail = f""".section .rodata,"a"
.p2align 6
.amdhsa_kernel {KNAME}
  .amdhsa_next_free_vgpr 512
  .amdhsa_next_free_sgpr 102
  .amdhsa_accum_offset 256
  .amdhsa_group_segment_fixed_size 0
  .amdhsa_kernarg_size 120
  .amdhsa_user_sgpr_count 2
  .amdhsa_user_sgpr_kernarg_segment_ptr 1
  .amdhsa_system_sgpr_workgroup_id_x 1
  .amdhsa_float_denorm_mode_32 3
.end_amdhsa_kernel
"""
    return head + a.text() + tail

if __name__ == "__main__":
    opt = eval(sys.argv[2]) if len(sys.argv) > 2 else {}
    open(sys.argv[1], "w").write(build(opt))
```

```python
from stream import *
from rolepf import clear_flag, S_FLG

KXB = 73728
KMB = 81920
S_CNT = 43
S_C = 44
S_GRP = 45
S_KV = 46
S_KVM = 47
S_PST, S_INB = 48, 49
S_FP = 50
S_NEED = 51
S_FLPA = 52
S_FLC = 53
S_FLF = 54
S_OUTO = 55
S_GO = 56
S_PSTB, S_INBB = 57, 58
S_MASK = 60
S_SELM = 76
S_LM2 = 84
S_LM32 = 86
S_LMF = 88
S_O = 92

V_EXW, V_EXR, V_QRD, V_KMW, V_KMR, V_OWR, V_FLG, V_INB, V_INBF, V_OUT, V_GOF, V_SELX, V_VRD = range(9, 22)
V_ONES = 24
V_PB = 28
XF, AQ = 32, 48
QF = 64
KF = 80
VF = 128
VM = 144
KM = 148
SS = 152
OA = 164
HF = 184
AO = 216
TM = 232
WQ, WO = 256, 384

def role_c(a, opt):
    WS = f"s[{S_WS}:{S_WS+3}]"
    NG = opt.get('ng', 5)
    L, T = 127, 126
    setup(a)
    a(f"s_sub_u32 s{S_GRP}, s{S_XG}, 1")
    a(f"s_lshl_b32 s{S_T2}, s{S_GRP}, 5")
    a(f"s_add_u32 s{S_T2}, s{S_T2}, s{S_H}")
    clear_flag(a, FLAG_C, S_T2)
    srd(a, S_DESC[0], KA_WQ, 0x400000)
    srd(a, S_DESC[1], KA_WO, 0x400000)
    col = [f"s_lshl_b32 s{S_T0}, s{S_H}, 8", f"s_lshl_b32 s{S_T1}, s{S_WV}, 6", f"s_add_u32 s{S_T0}, s{S_T0}, s{S_T1}"]
    load_weights(a, proj_chunks(S_DESC[0], 8192, col, WQ) + out_chunks(S_DESC[1], [f"s_lshl_b32 s{S_T0}, s{S_H}, 17"], WO),
                 lambda a: register_wg(a, V_T1, "L_c_noreg"))
    srd(a, S_O, KA_OUT, 2048 * 1024)
    a(f"s_mov_b32 s{S_C}, {f32bits(CSCALE):#x}")
    a(f"v_add_u32 v{V_EXW}, {EXB}, v{V_P1K}")
    a(f"v_add_u32 v{V_EXR}, {EXB}, v{V_L16}")
    a(f"s_and_b32 s{S_T0}, s{S_WV}, 1")
    a(f"s_lshr_b32 s{S_T1}, s{S_WV}, 1")
    a(f"s_lshl_b32 s{S_T2}, s{S_T0}, 12")
    a(f"v_add_u32 v{V_QRD}, s{S_T2}, v{V_EXR}")
    a(f"s_lshl_b32 s{S_T3}, s{S_T1}, 11")
    a(f"v_add_u32 v{V_OWR}, s{S_T3}, v{V_QRD}")
    a(f"s_lshl_b32 s{S_T3}, s{S_T1}, 12")
    a(f"v_add_u32 v{V_VRD}, s{S_T3}, v{V_L16}")
    a(f"s_lshl_b32 s{S_T2}, s{S_T0}, 4")
    a(f"v_and_b32 v{V_T0}, 15, v{L}")
    a(f"v_add_u32 v{V_T0}, s{S_T2}, v{V_T0}")
    bitpat(a, V_T1, L, [(4, 3, 4)], T)
    a(f"v_sub_u32 v{V_T0}, v{V_T0}, v{V_T1}")
    for Tt in range(2):
        for r in range(4):
            k = S_MASK + 2 * (4 * Tt + r)
            a(f"v_cmp_le_i32 s[{k}:{k+1}], {16*Tt + r}, v{V_T0}")
    bitpat(a, V_KMW, L, [(5, 1, 8), (0, 15, 1)], T)
    a(f"v_and_b32 v{V_KMW}, 15, v{V_KMW}")
    a(f"v_and_b32 v{T}, 48, v{L}")
    a(f"v_add_u32 v{V_KMW}, v{V_KMW}, v{T}")
    a(f"v_lshlrev_b32 v{V_KMW}, 3, v{V_KMW}")
    a(f"s_lshl_b32 s{S_T0}, s{S_WV}, 10")
    a(f"s_add_u32 s{S_T0}, s{S_T0}, {KMB}")
    a(f"v_add_u32 v{V_KMW}, s{S_T0}, v{V_KMW}")
    bitpat(a, V_KMR, L, [(1, 1, 8), (2, 15, 1)], T)
    a(f"v_and_b32 v{V_KMR}, 15, v{V_KMR}")
    a(f"v_and_b32 v{T}, 3, v{L}")
    a(f"v_lshl_add_u32 v{V_KMR}, v{T}, 4, v{V_KMR}")
    a(f"v_lshlrev_b32 v{V_KMR}, 3, v{V_KMR}")
    a(f"v_add_u32 v{V_KMR}, {KMB}, v{V_KMR}")
    for r in range(4):
        a(f"v_mov_b32 v{V_ONES+r}, 0x3f803f80")
        a(f"v_mov_b32 v{V_PB+r}, 0")
    a(f"v_add_u32 v{V_T0}, {KMB}, v{V_P1K}")
    a(f"ds_write_b128 v{V_T0}, {vr(V_PB,4)}")
    a(f"v_lshlrev_b32 v{V_FLG}, 7, v{L}")
    a(f"v_cmp_gt_u32 s[{S_LM32}:{S_LM32+1}], 32, v{L}")
    a(f"s_lshl_b32 s{S_T0}, s{S_H}, 7")
    a(f"s_add_u32 s{S_FLPA}, s{S_T0}, {WS_FLAG + FLAG_P * 128}")
    a(f"s_lshl_b32 s{S_T0}, s{S_GRP}, 12")
    a(f"s_add_u32 s{S_FLC}, s{S_T0}, {WS_FLAG + FLAG_C * 128}")
    a(f"s_mov_b32 s{S_FLF}, {WS_FLAG + FLAG_F * 128}")
    a(f"s_mov_b64 s[{S_LM2}:{S_LM2+1}], 0")
    a(f"s_bitset1_b64 s[{S_LM2}:{S_LM2+1}], 0")
    bitpat(a, V_INB, L, [(4, 3, 1024), (0, 15, 16)], T)
    a(f"s_lshl_b32 s{S_T0}, s{S_WV}, 8")
    a(f"v_add_u32 v{V_INB}, s{S_T0}, v{V_INB}")
    bitpat(a, V_T0, L, [(5, 1, OOB)], T)
    a(f"v_add_u32 v{V_INBF}, v{V_T0}, v{V_INB}")
    bitpat(a, V_GOF, L, [(2, 1, 16), (0, 3, 1)], T)
    a(f"s_lshl_b32 s{S_T0}, s{S_WV}, 2")
    a(f"v_add_u32 v{V_GOF}, s{S_T0}, v{V_GOF}")
    bitpat(a, V_OUT, L, [(4, 3, 8), (3, 1, OOB)], T)
    a(f"v_lshl_add_u32 v{V_OUT}, v{V_GOF}, 10, v{V_OUT}")
    a(f"v_lshlrev_b32 v{V_GOF}, 2, v{V_GOF}")
    a(f"v_and_b32 v{T}, 1, v{L}")
    a(f"v_cmp_eq_u32 vcc, 1, v{T}")
    a(f"v_mov_b32 v{V_SELX}, 0x3f80")
    a(f"v_mov_b32 v{T}, 0x3f800000")
    a(f"v_cndmask_b32 v{V_SELX}, v{V_SELX}, v{T}, vcc")
    a(f"v_bfe_u32 v{T}, v{L}, 1, 3")
    for r in range(4):
        a(f"v_cmp_eq_u32 s[{S_SELM+2*r}:{S_SELM+2*r+1}], {r}, v{T}")
    a(f"s_lshl_b32 s{S_T0}, s{S_GRP}, 21")
    a(f"s_add_u32 s{S_T0}, s{S_T0}, {WS_CP}")
    a(f"s_lshl_b32 s{S_T1}, s{S_H}, 10")
    a(f"s_add_u32 s{S_PSTB}, s{S_T0}, s{S_T1}")
    a(f"s_lshl_b32 s{S_T1}, s{S_WV}, 18")
    a(f"s_add_u32 s{S_PSTB}, s{S_PSTB}, s{S_T1}")
    a(f"s_lshl_b32 s{S_T1}, s{S_H}, 15")
    a(f"s_add_u32 s{S_INBB}, s{S_T0}, s{S_T1}")
    a(f"s_mov_b32 s{S_SEG}, s{S_GRP}")
    a(f"s_mov_b32 s{S_CNT}, 0")
    x_issue(a, 0, S_SEG)
    wait_init(a, TM, opt['groups'], "L_c_init")
    a("s_waitcnt lgkmcnt(0)")
    a(f"s_cmp_eq_u32 s{S_MODE}, {opt.get('fastmode', 1)}")
    a("s_cbranch_scc0 L_cS_loop")
    for tag, st in (("L_cF", ""), ("L_cS", "sc1")):
        a.label(f"{tag}_loop")
        for par in range(2):
            segment(a, par, st, f"{tag}{par}", NG, opt)
            a(f"s_cmp_ge_u32 s{S_SEG}, 64")
            a("s_cbranch_scc1 L_exit")
        a(f"s_branch {tag}_loop")

def segment(a, par, st, tag, NG, opt):
    WS = f"s[{S_WS}:{S_WS+3}]"
    a("s_waitcnt vmcnt(0)")
    a("s_barrier")
    a(f"s_add_u32 s{S_T2}, s{S_SEG}, {NG}")
    a(f"s_min_u32 s{S_T2}, s{S_T2}, 63")
    x_issue(a, 1 - par, S_T2)
    a(f"s_lshl_b32 s{S_T0}, s{S_SEG}, 5")
    a(f"s_add_u32 s{S_T0}, s{S_T0}, s{S_H}")
    a(f"s_lshl_b32 s{S_KV}, s{S_T0}, 13")
    a(f"s_lshl_b32 s{S_KVM}, s{S_T0}, 12")
    a(f"s_add_u32 s{S_KVM}, s{S_KVM}, {WS_KVM}")
    a(f"s_add_u32 s{S_NEED}, s{S_SEG}, 1")
    def mm(ks, xf):
        o = []
        for t in range(2):
            for tt in range(2):
                d = AQ + (tt * 2 + t) * 4
                o.append(mf32(d, ur(WQ + (t * 16 + ks) * 4, 4), xf[tt], "0" if ks == 0 else vr(d, 4)))
        return o
    proj_phase(a, par, XF, mm)
    for tt in range(2):
        d = AQ + 8 * tt
        for r in range(4): a(f"v_cvt_pk_bf16_f32 v{d+r}, v{d+2*r}, v{d+2*r+1}")
        a(f"ds_write_b128 v{V_EXW}, {vr(d,4)} offset:{tt*4096}")
    poll_flags(a, f"{tag}_pp", TM, V_FLG, S_FLPA, S_NEED, S_LM2)
    a(f"s_lshl_b32 s{S_T0}, s{S_WV}, 10")
    a(f"s_add_u32 s{S_T1}, s{S_KV}, s{S_T0}")
    a(f"s_add_u32 s{S_T1}, s{S_T1}, {WS_KX}")
    a(f"s_lshl_b32 s{S_T0}, s{S_WV}, 11")
    a(f"s_add_u32 m0, s{S_T0}, {KXB}")
    a(f"s_add_u32 s{S_T2}, s{S_KV}, {WS_VX}")
    for j in range(2): a(f"buffer_load_dwordx4 v{V_P1K}, {WS}, s{S_T1} offen offset:{j*1024} sc1 lds")
    for j in range(4): a(f"buffer_load_dwordx4 {vr(VF + 4*j, 4)}, v{V_VRD}, {WS}, s{S_T2} offen offset:{j*1024} sc1")
    a(f"s_add_u32 s{S_T3}, s{S_FLPA}, {(FLAG_A - FLAG_P) * 128}")
    poll_flags(a, f"{tag}_pa", TM, V_FLG, S_T3, S_NEED, S_LM2)
    a(f"s_lshr_b32 s{S_T0}, s{S_WV}, 1")
    a(f"s_lshl_b32 s{S_T0}, s{S_T0}, 11")
    a(f"s_add_u32 s{S_T0}, s{S_T0}, s{S_KVM}")
    a(f"buffer_load_dwordx2 {vr(KM,2)}, v{V_P1K}, {WS}, s{S_KVM} offen sc1")
    for j in range(2): a(f"buffer_load_dwordx2 {vr(VM + 2*j, 2)}, v{V_L16}, {WS}, s{S_T0} offen offset:{j*1024 + 8} sc1")
    a(f"ds_write_b32 v{V_KMW}, v{KM}")
    a(f"ds_write_b32 v{V_KMW}, v{KM+1} offset:512")
    a("s_waitcnt lgkmcnt(0)")
    a("s_barrier")
    for i in range(4): a(f"ds_read_b128 {vr(QF + 4*i, 4)}, v{V_QRD} offset:{i*1024}")
    for j in range(8): a(f"ds_read_b128 {vr(KF + 4*j, 4)}, v{V_EXR} offset:{KXB - EXB + j*1024}")
    for i in range(4):
        for hh in range(2): a(f"ds_read_b64_tr_b16 {vr(KF + 32 + 4*i + 2*hh, 2)}, v{V_KMR} offset:{i*1024 + hh*512}")
    for i in range(4):
        for Tt in range(3):
            d = SS + 4 * Tt
            a(mf32(d, vr(KF + 16*Tt + 4*i, 4), vr(QF + 4*i, 4), "0" if i == 0 else vr(d, 4)))
    SM = SS + 8
    NEG, MX, T2 = TM, TM + 1, TM + 2
    a(f"v_mov_b32 v{NEG}, 0xff800000")
    for r in range(8): a(f"v_cndmask_b32 v{SS+r}, v{NEG}, v{SS+r}, s[{S_MASK+2*r}:{S_MASK+2*r+1}]")
    a(f"v_mul_f32 v{SM}, s{S_C}, v{SM}")
    a(f"v_mul_f32 v{SM+1}, s{S_C}, v{SM+1}")
    a(f"v_max3_f32 v{MX}, v{SM}, v{SM+1}, v{SS}")
    for r in range(1, 7, 2): a(f"v_max3_f32 v{MX}, v{MX}, v{SS+r}, v{SS+r+1}")
    a(f"v_max_f32 v{MX}, v{MX}, v{SS+7}")
    for sw in ("v_permlane16_swap_b32", "v_permlane32_swap_b32"):
        a(f"v_mov_b32 v{T2}, v{MX}")
        a(f"{sw} v{MX}, v{T2}")
        a(f"v_max_f32 v{MX}, v{MX}, v{T2}")
    for r in range(10): a(f"v_sub_f32 v{SS+r}, v{SS+r}, v{MX}")
    for r in range(10): a(f"v_exp_f32 v{SS+r}, v{SS+r}")
    for r in range(4): a(f"v_cvt_pk_bf16_f32 v{SS+r}, v{SS+2*r}, v{SS+2*r+1}")
    a(f"v_cvt_pk_bf16_f32 v{V_PB}, v{SM}, v{SM+1}")
    a(f"v_cvt_pk_bf16_f32 v{V_PB+3}, v{SM}, v{SM+1}")
    LA = OA + 16
    a(mf32(LA, vr(V_ONES, 4), vr(SS, 4), "0"))
    for j in range(4): a(mf32(OA + 4*j, vr(VF + 4*j, 4), vr(SS, 4), "0"))
    a(mf16(LA, vr(V_ONES, 2), vr(V_PB, 2), vr(LA, 4)))
    for j in range(4): a(mf16(OA + 4*j, vr(VM + 2*(j >> 1), 2), vr(V_PB + 2*(j & 1), 2), vr(OA + 4*j, 4)))
    if opt.get('dumpc'):
        a("s_nop 7")
        a(f"s_lshl_b32 s{S_T0}, s{S_GRP}, 5"); a(f"s_add_u32 s{S_T0}, s{S_T0}, s{S_H}"); a(f"s_lshl_b32 s{S_T0}, s{S_T0}, 2")
        a(f"s_add_u32 s{S_T0}, s{S_T0}, s{S_WV}"); a(f"s_lshl_b32 s{S_T0}, s{S_T0}, 14"); a(f"s_add_u32 s{S_T0}, s{S_T0}, 0x8000000")
        for j, r in enumerate((QF, KF, KF + 32, VF, SS, V_PB, OA, LA, VM, TM, V_ONES, SS + 8)):
            a(f"buffer_store_dwordx4 {vr(r,4)}, v{V_L16}, {WS}, s{S_T0} offen")
            a(f"s_add_u32 s{S_T0}, s{S_T0}, 1024")
    a(f"v_rcp_f32 v{T2}, v{LA}")
    for r in range(16): a(f"v_mul_f32 v{OA+r}, v{OA+r}, v{T2}")
    for r in range(8): a(f"v_cvt_pk_bf16_f32 v{OA+r}, v{OA+2*r}, v{OA+2*r+1}")
    a("s_barrier")
    for j in range(2): a(f"ds_write_b128 v{V_OWR}, {vr(OA + 4*j, 4)} offset:{j*1024}")
    a(f"s_and_b32 s{S_T0}, s{S_CNT}, 1")
    a(f"s_lshl_b32 s{S_T0}, s{S_T0}, 20")
    a(f"s_add_u32 s{S_PST}, s{S_PSTB}, s{S_T0}")
    a(f"s_add_u32 s{S_INB}, s{S_INBB}, s{S_T0}")
    a(f"s_add_u32 s{S_CNT}, s{S_CNT}, 1")
    a("s_waitcnt lgkmcnt(0)")
    a("s_barrier")
    for j in range(8): a(f"ds_read_b128 {vr(HF + 4*j, 4)}, v{V_EXR} offset:{j*1024}")
    def store(ct, reg):
        return f"s_add_u32 s{S_T0}, s{S_PST}, {ct * 32768}\nbuffer_store_dwordx4 {vr(reg,4)}, v{V_L16}, {WS}, s{S_T0} offen {st}"
    out_phase(a, HF, WO, AO, store)
    a("s_waitcnt vmcnt(0)")
    a("s_barrier")
    flag_store(a, TM, S_CNT, S_FLG, f"{tag}_nf", st)
    SEL, RA, RB, GV = TM + 4, TM + 8, TM + 12, TM + 3
    for r in range(4): a(f"v_cndmask_b32 v{SEL+r}, 0, v{V_SELX}, s[{S_SELM+2*r}:{S_SELM+2*r+1}]")
    a(f"s_and_b32 s{S_T0}, s{S_SEG}, 1")
    a(f"s_mul_i32 s{S_T0}, s{S_T0}, 14")
    a(f"s_lshl_b64 s[{S_LMF}:{S_LMF+1}], 0x3fff, s{S_T0}")
    a(f"s_or_b32 s{S_LMF}, s{S_LMF}, 0xf0000000")
    a(f"s_lshr_b32 s{S_NEED}, s{S_SEG}, 1")
    a(f"s_add_u32 s{S_NEED}, s{S_NEED}, 1")
    poll_flags(a, f"{tag}_pf", TM, V_FLG, S_FLF, S_NEED, S_LMF)
    a(f"s_lshl_b32 s{S_FP}, s{S_SEG}, 19")
    a(f"s_lshl_b32 s{S_T0}, s{S_H}, 14")
    a(f"s_add_u32 s{S_FP}, s{S_FP}, s{S_T0}")
    a(f"s_add_u32 s{S_FP}, s{S_FP}, {WS_FP}")
    for i in range(4):
        a(f"buffer_load_dwordx4 {vr(KF + 4*i, 4)}, v{V_INBF if i == 3 else V_INB}, {WS}, s{S_FP} offen sc1")
        if i < 3: a(f"s_add_u32 s{S_FP}, s{S_FP}, 4096")
    a(f"s_lshl_b32 s{S_GO}, s{S_SEG}, 7")
    a(f"s_add_u32 s{S_GO}, s{S_GO}, {WS_G}")
    a(f"buffer_load_dword v{GV}, v{V_GOF}, {WS}, s{S_GO} offen sc1")
    poll_flags(a, f"{tag}_pc", TM, V_FLG, S_FLC, S_CNT, S_LM32)
    for i in range(8):
        a(f"buffer_load_dwordx4 {vr(HF + 4*i, 4)}, v{V_INB}, {WS}, s{S_INB} offen sc1")
        if i < 7: a(f"s_add_u32 s{S_INB}, s{S_INB}, 4096")
    for i in range(4): a(mf32(RB, vr(KF + 4*i, 4), vr(SEL, 4), "0" if i == 0 else vr(RB, 4)))
    OM = TM
    a(f"v_sub_f32 v{OM}, 1.0, v{GV}")
    a(f"v_cvt_pk_bf16_f32 v{OM}, v{OM}, v{OM}")
    a(f"v_and_b32 v{OM}, 0xffff0000, v{OM}")
    def rnd(R):
        a(f"v_cvt_pk_bf16_f32 v{R}, v{R}, v{R+1}")
        a(f"v_cvt_pk_bf16_f32 v{R+2}, v{R+2}, v{R+3}")
        for q in (0, 2):
            a(f"v_and_b32 v{R+q+1}, 0xffff0000, v{R+q}")
            a(f"v_lshlrev_b32 v{R+q}, 16, v{R+q}")
    rnd(RB)
    for r in range(4): a(f"v_mul_f32 v{RB+r}, v{RB+r}, v{OM}")
    rnd(RB)
    for i in range(8): a(mf32(RA, vr(HF + 4*i, 4), vr(SEL, 4), "0" if i == 0 else vr(RA, 4)))
    rnd(RA)
    for r in range(4): a(f"v_mul_f32 v{RA+r}, v{RA+r}, v{GV}")
    rnd(RA)
    for r in range(4): a(f"v_add_f32 v{RA+r}, v{RA+r}, v{RB+r}")
    a(f"v_cvt_pk_bf16_f32 v{RA}, v{RA}, v{RA+1}")
    a(f"v_cvt_pk_bf16_f32 v{RA+1}, v{RA+2}, v{RA+3}")
    a(f"s_lshl_b32 s{S_OUTO}, s{S_SEG}, 15")
    a(f"s_lshl_b32 s{S_T0}, s{S_H}, 5")
    a(f"s_add_u32 s{S_OUTO}, s{S_OUTO}, s{S_T0}")
    a(f"buffer_store_dwordx2 {vr(RA,2)}, v{V_OUT}, s[{S_O}:{S_O+3}], s{S_OUTO} offen")
    a(f"s_add_u32 s{S_SEG}, s{S_SEG}, {NG}")
```

```python
from stream import *

S_FLG = 40
S_OUT0, S_OUT1 = 41, 42
S_CNT = 43
S_C = 44

def clear_flag(a, line_base, idx_sgpr):
    WS = f"s[{S_WS}:{S_WS+3}]"
    a(f"s_lshl_b32 s{S_FLG}, s{idx_sgpr}, 7")
    a(f"s_add_u32 s{S_FLG}, s{S_FLG}, {WS_FLAG + line_base * 128}")
    a(f"v_mov_b32 v{V_T0}, 0")
    a(f"buffer_store_dword v{V_T0}, off, {WS}, s{S_FLG} sc1")

def role_p(a, opt):
    WS = f"s[{S_WS}:{S_WS+3}]"
    setup(a)
    clear_flag(a, FLAG_P, S_H)
    srd(a, S_DESC[0], KA_WK, 0x400000)
    srd(a, S_DESC[1], KA_WV, 0x400000)
    col = [f"s_lshl_b32 s{S_T0}, s{S_H}, 8", f"s_lshl_b32 s{S_T1}, s{S_WV}, 6", f"s_add_u32 s{S_T0}, s{S_T0}, s{S_T1}"]
    WK, WVv = 256, 384
    load_weights(a, proj_chunks(S_DESC[0], 8192, col, WK) + proj_chunks(S_DESC[1], 8192, col, WVv),
                 lambda a: register_wg(a, V_T1, "L_p_noreg"))
    a(f"s_mov_b32 s{S_C}, {f32bits(CSCALE):#x}")
    a(f"s_lshl_b32 s{S_T0}, s{S_H}, 13")
    a(f"s_add_u32 s{S_OUT0}, s{S_T0}, {WS_KX}")
    a(f"s_lshl_b32 s{S_T1}, s{S_WV}, 10")
    a(f"s_add_u32 s{S_T0}, s{S_T0}, s{S_T1}")
    a(f"s_add_u32 s{S_OUT1}, s{S_T0}, {WS_VX}")
    a(f"s_mov_b32 s{S_SEG}, 0")
    x_issue(a, 0, S_SEG)
    a("s_waitcnt vmcnt(0)")
    XF, AK, AV = 16, 32, 48
    a.label("L_p_loop")
    for par in range(2):
        a("s_waitcnt vmcnt(4)")
        a("s_barrier")
        a(f"s_add_u32 s{S_T2}, s{S_SEG}, 1")
        a(f"s_min_u32 s{S_T2}, s{S_T2}, 63")
        x_issue(a, 1 - par, S_T2)
        a(f"s_sub_u32 s{S_CNT}, s{S_SEG}, 1")
        a(f"s_max_i32 s{S_CNT}, s{S_CNT}, 0")
        flag_store(a, V_T0, S_CNT, S_FLG, f"L_p_nf{par}")
        def mm(ks, xf):
            o = []
            for t in range(2):
                for tt in range(2):
                    d = AK + (tt * 2 + t) * 4
                    o.append(mf32(d, ur(WK + (t * 16 + ks) * 4, 4), xf[tt], "0" if ks == 0 else vr(d, 4)))
            for t in range(2):
                for tt in range(2):
                    d = AV + (t * 2 + tt) * 4
                    o.append(mf32(d, xf[tt], ur(WVv + (t * 16 + ks) * 4, 4), "0" if ks == 0 else vr(d, 4)))
            return o
        proj_phase(a, par, XF, mm)
        for tt in range(2):
            d = AK + tt * 8
            for r in range(8): a(f"v_mul_f32 v{d+r}, s{S_C}, v{d+r}")
            for r in range(4): a(f"v_cvt_pk_bf16_f32 v{d+r}, v{d+2*r}, v{d+2*r+1}")
            if tt: a(f"s_add_u32 s{S_T0}, s{S_OUT0}, 4096")
            a(f"buffer_store_dwordx4 {vr(d,4)}, v{V_P1K}, {WS}, s{S_T0 if tt else S_OUT0} offen sc1")
        for t in range(2):
            d = AV + t * 8
            for r in range(4): a(f"v_cvt_pk_bf16_f32 v{d+r}, v{d+2*r}, v{d+2*r+1}")
            a(f"buffer_store_dwordx4 {vr(d,4)}, v{V_P1K}, {WS}, s{S_OUT1} offen offset:{t*1024} sc1")
        a(f"s_add_u32 s{S_OUT0}, s{S_OUT0}, {32*8192}")
        a(f"s_add_u32 s{S_OUT1}, s{S_OUT1}, {32*8192}")
        a(f"s_add_u32 s{S_SEG}, s{S_SEG}, 1")
    a(f"s_cmp_lt_u32 s{S_SEG}, 64")
    a("s_cbranch_scc1 L_p_loop")
    a("s_waitcnt vmcnt(0)")
    a("s_barrier")
    flag_store(a, V_T0, S_SEG, S_FLG, "L_p_nfe")
    a("s_endpgm")

def role_f(a, opt):
    WS = f"s[{S_WS}:{S_WS+3}]"
    S_F, S_R = 45, 46
    S_GA, S_GB = 47, 48
    setup(a)
    clear_flag(a, FLAG_F, S_H)
    a(f"s_cmp_ge_u32 s{S_H}, 14")
    a(f"s_cselect_b32 s{S_R}, 1, 0")
    a(f"s_cselect_b32 s{S_T0}, 14, 0")
    a(f"s_sub_u32 s{S_F}, s{S_H}, s{S_T0}")
    srd(a, S_DESC[0], KA_WG, 512 * 3584)
    srd(a, S_DESC[1], KA_WU, 512 * 3584)
    srd(a, S_DESC[2], KA_WD, 1792 * 1024)
    col = [f"s_lshl_b32 s{S_T0}, s{S_F}, 8", f"s_lshl_b32 s{S_T1}, s{S_WV}, 6", f"s_add_u32 s{S_T0}, s{S_T0}, s{S_T1}"]
    WG, WU, WD = 256, 384, 128
    load_weights(a, proj_chunks(S_DESC[0], 3584, col, WG) + proj_chunks(S_DESC[1], 3584, col, WU)
                 + out_chunks(S_DESC[2], [f"s_lshl_b32 s{S_T0}, s{S_F}, 17"], WD),
                 lambda a: register_wg(a, V_T1, "L_f_noreg"))
    k = -2.0 * (2.0 / 3.141592653589793) ** 0.5 * 1.4426950408889634
    a(f"s_mov_b32 s{S_GA}, {f32bits(0.044715 * k):#x}")
    a(f"s_mov_b32 s{S_GB}, {f32bits(k):#x}")
    a(f"s_lshl_b32 s{S_OUT0}, s{S_R}, 19")
    a(f"s_lshl_b32 s{S_T0}, s{S_WV}, 17")
    a(f"s_add_u32 s{S_OUT0}, s{S_OUT0}, s{S_T0}")
    a(f"s_lshl_b32 s{S_T0}, s{S_F}, 10")
    a(f"s_add_u32 s{S_OUT0}, s{S_OUT0}, s{S_T0}")
    a(f"s_add_u32 s{S_OUT0}, s{S_OUT0}, {WS_FP}")
    a(f"s_mov_b32 s{S_SEG}, s{S_R}")
    a(f"s_mov_b32 s{S_CNT}, -1")
    V_GB = 9
    a(f"v_mov_b32 v{V_GB}, s{S_GB}")
    V_EXW, V_EXR = 10, 11
    a(f"v_add_u32 v{V_EXW}, {EXB}, v{V_P1K}")
    a(f"v_add_u32 v{V_EXR}, {EXB}, v{V_L16}")
    x_issue(a, 0, S_SEG)
    a("s_waitcnt vmcnt(0)")
    XF, AG, AU, HF, AO, TM = 16, 32, 48, 64, 96, 112
    a.label("L_f_loop")
    for par in range(2):
        a("s_waitcnt vmcnt(8)")
        a("s_barrier")
        a(f"s_add_u32 s{S_T2}, s{S_SEG}, 2")
        a(f"s_min_u32 s{S_T2}, s{S_T2}, 63")
        x_issue(a, 1 - par, S_T2)
        a(f"s_max_i32 s{S_T2}, s{S_CNT}, 0")
        flag_store(a, V_T0, S_T2, S_FLG, f"L_f_nf{par}")
        a(f"s_add_u32 s{S_CNT}, s{S_CNT}, 1")
        def mm(ks, xf):
            o = []
            for base, W in ((AG, WG), (AU, WU)):
                for t in range(2):
                    for tt in range(2):
                        d = base + (tt * 2 + t) * 4
                        o.append(mf32(d, ur(W + (t * 16 + ks) * 4, 4), xf[tt], "0" if ks == 0 else vr(d, 4)))
            return o
        proj_phase(a, par, XF, mm)
        for tt in range(2):
            G, U = AG + 8 * tt, AU + 8 * tt
            for r in range(4): a(f"v_cvt_pk_bf16_f32 v{TM+r}, v{G+2*r}, v{G+2*r+1}")
            for r in range(4): a(f"v_cvt_pk_bf16_f32 v{TM+4+r}, v{U+2*r}, v{U+2*r+1}")
            for r in range(4):
                a(f"v_lshlrev_b32 v{G+2*r}, 16, v{TM+r}")
                a(f"v_and_b32 v{G+2*r+1}, 0xffff0000, v{TM+r}")
                a(f"v_lshlrev_b32 v{U+2*r}, 16, v{TM+4+r}")
                a(f"v_and_b32 v{U+2*r+1}, 0xffff0000, v{TM+4+r}")
            for r in range(8): a(f"v_mul_f32 v{TM+r}, v{G+r}, v{G+r}")
            for r in range(8): a(f"v_fma_f32 v{TM+r}, v{TM+r}, s{S_GA}, v{V_GB}")
            for r in range(8): a(f"v_mul_f32 v{TM+r}, v{TM+r}, v{G+r}")
            for r in range(8): a(f"v_exp_f32 v{TM+r}, v{TM+r}")
            for r in range(8): a(f"v_add_f32 v{TM+r}, 1.0, v{TM+r}")
            for r in range(8): a(f"v_rcp_f32 v{TM+r}, v{TM+r}")
            for r in range(8): a(f"v_mul_f32 v{G+r}, v{G+r}, v{TM+r}")
            for r in range(4): a(f"v_cvt_pk_bf16_f32 v{TM+r}, v{G+2*r}, v{G+2*r+1}")
            for r in range(4):
                a(f"v_lshlrev_b32 v{G+2*r}, 16, v{TM+r}")
                a(f"v_and_b32 v{G+2*r+1}, 0xffff0000, v{TM+r}")
            for r in range(8): a(f"v_mul_f32 v{G+r}, v{G+r}, v{U+r}")
            for r in range(4): a(f"v_cvt_pk_bf16_f32 v{G+r}, v{G+2*r}, v{G+2*r+1}")
            a(f"ds_write_b128 v{V_EXW}, {vr(G,4)} offset:{tt*4096}")
        a("s_waitcnt lgkmcnt(0)")
        a("s_barrier")
        for j in range(8): a(f"ds_read_b128 {vr(HF + 4*j, 4)}, v{V_EXR} offset:{j*1024}")
        def st(ct, reg):
            return f"s_add_u32 s{S_T0}, s{S_OUT0}, {ct * 16384}\nbuffer_store_dwordx4 {vr(reg,4)}, v{V_L16}, {WS}, s{S_T0} offen sc1"
        out_phase(a, HF, WD, AO, st)
        a(f"s_add_u32 s{S_OUT0}, s{S_OUT0}, {2 << 19}")
        a(f"s_add_u32 s{S_SEG}, s{S_SEG}, 2")
    a(f"s_cmp_lt_u32 s{S_SEG}, 64")
    a("s_cbranch_scc1 L_f_loop")
    a("s_waitcnt vmcnt(0)")
    a("s_barrier")
    a(f"s_mov_b32 s{S_T2}, 32")
    flag_store(a, V_T0, S_T2, S_FLG, "L_f_nfe")
    a("s_endpgm")

def role_g(a, opt):
    WS = f"s[{S_WS}:{S_WS+3}]"
    L, T = 127, 126
    a(f"v_and_b32 v{L}, 63, v0")
    a(f"v_lshrrev_b32 v{T}, 6, v0")
    a(f"v_readfirstlane_b32 s{S_WV}, v{T}")
    a(f"v_lshlrev_b32 v{V_L16}, 4, v{L}")
    clear_flag(a, FLAG_F, S_H)
    srd(a, S_X, KA_X, 2048 * 1024)
    srd(a, S_DESC[0], KA_GW, 1024)
    GW, XR, P, ACC = 8, 32, 16, 28
    a(f"buffer_load_dwordx4 {vr(P,4)}, v{V_L16}, s[{S_DESC[0]}:{S_DESC[0]+3}], 0 offen")
    a("s_waitcnt vmcnt(0)")
    register_wg(a, V_T1, "L_g_noreg")
    for r in range(4):
        a(f"v_lshlrev_b32 v{GW+2*r}, 16, v{P+r}")
        a(f"v_and_b32 v{GW+2*r+1}, 0xffff0000, v{P+r}")
    a(f"s_sub_u32 s{S_T0}, s{S_H}, 28")
    a(f"s_lshl_b32 s{S_T0}, s{S_T0}, 2")
    a(f"s_add_u32 s{S_T0}, s{S_T0}, s{S_WV}")
    a(f"s_lshl_b32 s{S_XOFF}, s{S_T0}, 17")
    a(f"s_lshl_b32 s{S_OUT0}, s{S_T0}, 9")
    a(f"s_add_u32 s{S_OUT0}, s{S_OUT0}, {WS_G}")
    a(f"s_mov_b32 s{S_SEG}, 0")
    a.label("L_g_loop")
    for blk in range(4):
        for j in range(16):
            if j % 4 == 0 and (blk or j): a(f"s_add_u32 s{S_XOFF}, s{S_XOFF}, 4096")
            a(f"buffer_load_dwordx4 {vr(XR + 4*j, 4)}, v{V_L16}, s[{S_X}:{S_X+3}], s{S_XOFF} offen offset:{(j & 3) * 1024}")
        for j in range(16):
            x = XR + 4 * j
            for r in range(4):
                a(f"v_lshlrev_b32 v{P+2*r}, 16, v{x+r}")
                a(f"v_and_b32 v{P+2*r+1}, 0xffff0000, v{x+r}")
            for r in range(8): a(f"v_mul_f32 v{P+r}, v{P+r}, v{GW+r}")
            for r in range(4): a(f"v_cvt_pk_bf16_f32 v{x+r}, v{P+2*r}, v{P+2*r+1}")
            for r in range(4):
                a(f"v_lshlrev_b32 v{P+2*r}, 16, v{x+r}")
                a(f"v_and_b32 v{P+2*r+1}, 0xffff0000, v{x+r}")
            for r in range(4): a(f"v_add_f32 v{P+r}, v{P+r}, v{P+4+r}")
            for r in range(2): a(f"v_add_f32 v{P+r}, v{P+r}, v{P+2+r}")
            a(f"v_add_f32 v{P}, v{P}, v{P+1}")
            for sh in (1, 2, 4, 8):
                a(f"v_add_f32_dpp v{P}, v{P}, v{P} row_ror:{sh} row_mask:0xf bank_mask:0xf")
            for sw in ("v_permlane16_swap_b32", "v_permlane32_swap_b32"):
                a(f"v_mov_b32 v{P+1}, v{P}")
                a(f"{sw} v{P}, v{P+1}")
                a(f"v_add_f32 v{P}, v{P}, v{P+1}")
            a(f"v_cmp_eq_u32 vcc, {blk * 16 + j}, v{L}")
            a(f"v_cndmask_b32 v{ACC}, v{ACC}, v{P}, vcc")
    a(f"s_add_u32 s{S_XOFF}, s{S_XOFF}, 4096")
    a(f"v_cvt_pk_bf16_f32 v{ACC}, v{ACC}, v{ACC}")
    a(f"v_and_b32 v{ACC}, 0xffff0000, v{ACC}")
    a(f"v_mul_f32 v{ACC}, {f32bits(-1.4426950408889634):#x}, v{ACC}")
    a(f"v_exp_f32 v{ACC}, v{ACC}")
    a(f"v_add_f32 v{ACC}, 1.0, v{ACC}")
    a(f"v_rcp_f32 v{ACC}, v{ACC}")
    a(f"v_cvt_pk_bf16_f32 v{ACC}, v{ACC}, v{ACC}")
    a(f"v_and_b32 v{ACC}, 0xffff0000, v{ACC}")
    a(f"v_lshlrev_b32 v{P}, 2, v{L}")
    a(f"buffer_store_dword v{ACC}, v{P}, {WS}, s{S_OUT0} offen sc1")
    a(f"s_add_u32 s{S_OUT0}, s{S_OUT0}, 256")
    a(f"s_add_u32 s{S_SEG}, s{S_SEG}, 1")
    a(f"s_cmp_lt_u32 s{S_SEG}, 2")
    a("s_cbranch_scc1 L_g_loop")
    a("s_waitcnt vmcnt(0)")
    a("s_barrier")
    a(f"s_mov_b32 s{S_T2}, 32")
    flag_store(a, V_T0, S_T2, S_FLG, "L_g_nfe")
    a("s_endpgm")
```

```python
from common import *

XB = (0, 32768)
EXB = 65536
V_L16, V_XR, V_XS, V_T0, V_T1, V_P1K = 0, 1, 5, 6, 7, 8
S_X = 32
S_SEG = 30
S_XOFF = 31
S_M0 = 36
S_DESC = (68, 72, 76)

def mf32(d, A, B, C): return f"v_mfma_f32_16x16x32_bf16 {vr(d,4)}, {A}, {B}, {C}"
def mf16(d, A, B, C): return f"v_mfma_f32_16x16x16_bf16 {vr(d,4)}, {A}, {B}, {C}"

def setup(a, L=127, T=126):
    a(f"v_and_b32 v{L}, 63, v0")
    a(f"v_lshrrev_b32 v{T}, 6, v0")
    a(f"v_readfirstlane_b32 s{S_WV}, v{T}")
    a(f"v_lshlrev_b32 v{V_L16}, 4, v{L}")
    for k in range(4):
        bitpat(a, V_XR + k, L, [(4, 3, 1)], T, 4 * k)
        a(f"v_and_b32 v{T}, 15, v{L}")
        a(f"v_xor_b32 v{V_XR+k}, v{V_XR+k}, v{T}")
        a(f"v_lshlrev_b32 v{V_XR+k}, 4, v{V_XR+k}")
        a(f"v_lshl_add_u32 v{V_XR+k}, v{T}, 10, v{V_XR+k}")
    a(f"s_and_b32 s{S_T0}, s{S_WV}, 1")
    a(f"s_lshl_b32 s{S_T0}, s{S_T0}, 7")
    a(f"v_xor_b32 v{V_XS}, s{S_T0}, v{V_L16}")
    a(f"s_lshl_b32 s{S_T0}, s{S_WV}, 10")
    a(f"v_add_u32 v{V_P1K}, s{S_T0}, v{V_L16}")
    srd(a, S_X, KA_X, 2048 * 1024)

def x_issue(a, buf, seg_expr_sgpr):
    a(f"s_lshl_b32 s{S_XOFF}, s{seg_expr_sgpr}, 15")
    a(f"s_lshl_b32 s{S_M0}, s{S_WV}, 13")
    a(f"s_add_u32 s{S_XOFF}, s{S_XOFF}, s{S_M0}")
    if XB[buf]: a(f"s_add_u32 s{S_M0}, s{S_M0}, {XB[buf]}")
    for j in range(8):
        t = V_T0 + (j & 1)
        a(f"v_xor_b32 v{t}, {16 * j}, v{V_XS}")
        if j % 4 == 0:
            a(f"s_add_u32 m0, s{S_M0}, {j * 1024}")
            if j: a(f"s_add_u32 s{S_XOFF}, s{S_XOFF}, 4096")
        a(f"buffer_load_dwordx4 v{t}, s[{S_X}:{S_X+3}], s{S_XOFF} offen offset:{(j & 3) * 1024} lds")

def x_read(dst, buf, tt, ks):
    return f"ds_read_b128 {vr(dst,4)}, v{V_XR + (ks & 3)} offset:{XB[buf] + tt * 16384 + (ks >> 2) * 256}"

def load_weights(a, chunks, after_first, L=127, T=126):
    V_TR = 125
    pats = {}
    nxt = [124]
    for d, kind, pitch, off, dest in chunks:
        if (kind, pitch) not in pats:
            pats[(kind, pitch)] = nxt[0]
            chunk_src_pattern(a, nxt[0], L, T, (2, 1, 3, 0) if kind == 'proj' else (4, 1, 2, 0), pitch)
            nxt[0] -= 1
    chunk_tr_pattern(a, V_TR, L, T)
    a(f"s_lshl_b32 s{S_T3}, s{S_WV}, 15")
    a(f"v_add_u32 v{V_TR}, s{S_T3}, v{V_TR}")
    n = len(chunks)
    def issue(ci):
        d, kind, pitch, off, dest = chunks[ci]
        a(f"s_add_u32 m0, s{S_T3}, {(ci & 7) * 4096}")
        for x in off: a(x)
        rows = [0, 16, 32, 48] if kind == 'proj' else [0, 8, 32, 40]
        for u in range(4):
            a(f"buffer_load_dwordx4 v{pats[(kind, pitch)]}, s[{d}:{d+3}], s{S_T0} offen offset:{u*1024} lds")
            if u < 3: a(f"s_add_u32 s{S_T0}, s{S_T0}, {(rows[u+1] - rows[u]) * pitch - 1024}")
    for ci in range(min(8, n)): issue(ci)
    for ci in range(n):
        left = min(7, n - 1 - ci)
        a(f"s_waitcnt vmcnt({4*left})")
        if ci == 0: after_first(a)
        for t in range(2):
            for pr in range(4):
                a(f"ds_read_b64_tr_b16 {ur(chunks[ci][4](t, pr), 2)}, v{V_TR} offset:{(ci & 7)*4096 + tr_off(t, pr)}")
        a("s_waitcnt lgkmcnt(0)")
        if ci + 8 < n: issue(ci + 8)
    a("s_barrier")

def proj_chunks(desc, pitch, colbyte_lines, wbase):
    out = []
    for kb in range(8):
        off = list(colbyte_lines) + ([f"s_add_u32 s{S_T0}, s{S_T0}, {kb * 64 * pitch}"] if kb else [])
        out.append((desc, 'proj', pitch, off, (lambda kb: lambda t, pr: wbase + (t * 16 + 2 * kb + (pr >> 1)) * 4 + 2 * (pr & 1))(kb)))
    return out

def out_chunks(desc, rowbase_lines, wbase):
    out = []
    for tp in range(4):
        for kb in range(2):
            off = list(rowbase_lines) + [f"s_lshl_b32 s{S_T1}, s{S_WV}, 8", f"s_add_u32 s{S_T0}, s{S_T0}, s{S_T1}",
                                         f"s_add_u32 s{S_T0}, s{S_T0}, {kb * 65536 + tp * 64}"]
            out.append((desc, 'out', 1024, off, (lambda tp, kb: lambda t, pr: wbase + ((2 * tp + t) * 4 + 2 * kb + (pr >> 1)) * 4 + 2 * (pr & 1))(tp, kb)))
    return out

def proj_phase(a, buf, xregs, mfmas):
    for tt in range(2): a(x_read(xregs + 4 * tt, buf, tt, 0))
    for ks in range(16):
        cur = xregs + 8 * (ks & 1); nx = xregs + 8 * (1 - (ks & 1))
        ms = mfmas(ks, [vr(cur, 4), vr(cur + 4, 4)])
        for i, m in enumerate(ms):
            a(m)
            if ks < 15 and i < 2: a(x_read(nx + 4 * i, buf, i, ks + 1))

def exchange(a, src, pos_sgpr_free, dst_all=None):
    pass

def out_phase(a, HF, wbase, acc, store):
    pend = None
    for ct in range(8):
        A = acc + 8 * (ct & 1)
        k = 0
        for i in range(4):
            for tt in range(2):
                a(mf32(A + 4 * tt, vr(HF + (tt * 4 + i) * 4, 4), ur(wbase + (ct * 4 + i) * 4, 4), "0" if i == 0 else vr(A + 4 * tt, 4)))
                if pend and k >= 2 and pend: a(pend.pop(0))
                k += 1
        pend = [f"v_cvt_pk_bf16_f32 v{A + r}, v{A + 2*r}, v{A + 2*r + 1}" for r in range(4)] + [store(ct, A)]
    for x in pend: a(x)

def poll_flags(a, lab, vt, voff, soff_sgpr, need_sgpr, lanes_mask=None):
    WS = f"s[{S_WS}:{S_WS+3}]"
    a.label(lab)
    a(f"buffer_load_dword v{vt}, v{voff}, {WS}, s{soff_sgpr} offen sc1")
    a(f"s_add_u32 s{S_SPIN}, s{S_SPIN}, 1")
    a(f"s_cmp_gt_u32 s{S_SPIN}, {SPIN_LIMIT}")
    a("s_cbranch_scc1 L_abort")
    a("s_waitcnt vmcnt(0)")
    a(f"v_cmp_gt_u32 vcc, s{need_sgpr}, v{vt}")
    if lanes_mask is not None: a(f"s_and_b64 vcc, vcc, s[{lanes_mask}:{lanes_mask+1}]")
    a(f"s_cbranch_vccz {lab}_ok")
    a("s_sleep 2")
    a(f"s_branch {lab}")
    a.label(f"{lab}_ok")

def flag_store(a, vt, val_sgpr, off_sgpr, lab, st="sc1"):
    WS = f"s[{S_WS}:{S_WS+3}]"
    a(f"s_cmp_lg_u32 s{S_WV}, 0")
    a(f"s_cbranch_scc1 {lab}")
    a("s_mov_b64 exec, 1")
    a(f"v_mov_b32 v{vt}, s{val_sgpr}")
    a(f"buffer_store_dword v{vt}, off, {WS}, s{off_sgpr} {st}")
    a("s_mov_b64 exec, -1")
    a.label(lab)
```

```python
import sys, gen
opt = eval(sys.argv[2]) if len(sys.argv) > 2 else {}
opt['full'] = 1
ref = open('gated_mix__memory_aug_recurrent_mem_tr__geglu_ffn__prompt.s.ref').read()
hdr = ref[:ref.index('; @launch')]
doc = """;
"""
open(sys.argv[1], 'w').write(hdr + doc + gen.build(opt))
```

```python
from common import *

MEMB = 131072
KB = (139264, 147456)
QB = 155648
KKB = QB + 4096
LDS_BYTES = 163840

V_LA, V_P1, V_MR1, V_MR2, V_MR3, V_QW, V_L4, V_QKR, V_WVO, V_OW, V_GATH, V_PST, V_PUB, V_IDX, V_SELX, V_FL = range(16)
V_ONES = 16
V_PB = 20
V_M = 24
V_AQ, V_AK, V_AV = 56, 64, 72
V_W = 80
V_VX = (112, 120)
WQ0, WK0, WV0, WO0 = 256, 384, 128, 192

def wq(t, s): return ur(WQ0 + (s * 2 + t) * 8, 8)
def wk(t, s): return ur(WK0 + (s * 2 + t) * 8, 8)
def wv_res(t, s): return ur(WV0 + ((s - 4) * 2 + t) * 8, 8)
def wo_res(t, kbo): return ur(WO0 + (t * 2 + kbo) * 8, 8)
def Mf(s): return vr(V_M + 4 * s, 4)
def Wb(j): return V_W + 8 * j

S_STEP = 30
S_MEMRD = 31
S_PST0, S_PST1 = 32, 33
S_INB0, S_INB1 = 34, 35
S_PUBN = 36
S_PUBC = 37
S_PH = 38
S_KPF, S_VPF = 39, 40
S_EXP = 41
S_FLP = 42
S_FLA = 43
S_AVAIL = 44
S_C = 45
S_LLO, S_LRG = 46, 47
S_SELM = 48
S_KM0 = 56
S_HB_PST, S_HB_INB, S_HB_PUB = 58, 59, 60
S_SPIN2 = 61
S_HST, S_HLD = 23, 29
S_L0 = 66
S_TS = 62
S_ACC = 94

def smf(d, A, B): return f"v_smfmac_f32_16x16x64_bf16 {vr(d,4)}, {A}, {B}, v{V_IDX}"
def mf32(d, A, B, C): return f"v_mfma_f32_16x16x32_bf16 {vr(d,4)}, {A}, {B}, {C}"
def mf16(d, A, B, C): return f"v_mfma_f32_16x16x16_bf16 {vr(d,4)}, {A}, {B}, {C}"

V_TID = 123
S_KA = 84

def setup_lanes(a):
    L, T = 127, 126
    a(f"v_lshlrev_b32 v{V_LA}, 4, v{L}")
    a(f"s_lshl_b32 s{S_T0}, s{S_WV}, 13")
    a(f"v_add_u32 v{V_WVO}, s{S_T0}, v{V_LA}")
    a(f"v_add_u32 v{V_LA}, {MEMB}, v{V_LA}")
    for j, r in enumerate((V_P1, V_MR1, V_MR2, V_MR3)):
        a(f"s_xor_b32 s{S_T0}, s{S_WV}, {j}")
        a(f"s_lshl_b32 s{S_T0}, s{S_T0}, 11")
        a(f"v_add_u32 v{r}, s{S_T0}, v{V_LA}")
    bitpat(a, V_QW, L, [(5, 1, 8), (0, 15, 1)], T)
    a(f"v_and_b32 v{V_QW}, 15, v{V_QW}")
    a(f"v_and_b32 v{T}, 48, v{L}")
    a(f"v_add_u32 v{V_QW}, v{V_QW}, v{T}")
    a(f"v_lshlrev_b32 v{V_QW}, 3, v{V_QW}")
    a(f"s_lshl_b32 s{S_T0}, s{S_WV}, 10")
    a(f"s_add_u32 s{S_T0}, s{S_T0}, {QB}")
    a(f"v_add_u32 v{V_QW}, s{S_T0}, v{V_QW}")
    bitpat(a, V_QKR, L, [(1, 1, 8), (2, 15, 1)], T)
    a(f"v_and_b32 v{V_QKR}, 15, v{V_QKR}")
    a(f"v_and_b32 v{T}, 3, v{L}")
    a(f"v_lshl_add_u32 v{V_QKR}, v{T}, 4, v{V_QKR}")
    a(f"v_lshlrev_b32 v{V_QKR}, 3, v{V_QKR}")
    a(f"v_add_u32 v{V_QKR}, {QB}, v{V_QKR}")
    bitpat(a, V_OW, L, [(4, 3, 256), (2, 3, 64), (0, 1, 32), (1, 1, 4096)], T, MEMB)
    a(f"s_lshr_b32 s{S_T0}, s{S_WV}, 1")
    a(f"s_lshl_b32 s{S_T0}, s{S_T0}, 10")
    a(f"s_and_b32 s{S_T1}, s{S_WV}, 1")
    a(f"s_lshl_b32 s{S_T1}, s{S_T1}, 4")
    a(f"s_add_u32 s{S_T0}, s{S_T0}, s{S_T1}")
    a(f"v_add_u32 v{V_OW}, s{S_T0}, v{V_OW}")
    bitpat(a, T, L, [(1, 1, 16)], T)
    a(f"v_xor_b32 v{V_OW}, v{V_OW}, v{T}")
    bitpat(a, V_L4, L, [(0, 31, 4), (5, 1, OOB)], T)
    bitpat(a, V_GATH, L, [(0, 7, 128), (3, 7, OOB >> 3), (3, 1, OOB), (4, 1, OOB), (5, 1, OOB)], T)
    a(f"s_cmp_eq_u32 s{S_WV}, 3")
    a(f"s_cselect_b64 vcc, -1, 0")
    a(f"v_cndmask_b32 v{V_L4}, v{V_L4}, v{V_GATH}, vcc")
    a(f"s_lshl_b32 s{S_T0}, s{S_H}, 2")
    a(f"s_add_u32 s{S_T0}, s{S_T0}, {WS_HINT}")
    a(f"s_cmp_eq_u32 s{S_WV}, 3")
    a(f"s_cselect_b32 s{S_HST}, s{S_T0}, {OOB}")
    a(f"s_and_b32 s{S_T0}, s{S_H}, 7")
    a(f"s_lshl_b32 s{S_T0}, s{S_T0}, 7")
    a(f"s_add_u32 s{S_T0}, s{S_T0}, {WS_HINT}")
    a(f"s_cmp_eq_u32 s{S_WV}, 0")
    a(f"s_cselect_b32 s{S_HLD}, s{S_T0}, {OOB}")
    bitpat(a, V_GATH, L, [(1, 7, 1024), (4, 3, 32), (0, 1, 16)], T)
    a(f"s_lshl_b32 s{S_T0}, s{S_WV}, 8")
    a(f"v_add_u32 v{V_GATH}, s{S_T0}, v{V_GATH}")
    bitpat(a, V_PST, L, [(4, 3, 8192), (0, 15, 16)], T)
    a(f"s_lshl_b32 s{S_T0}, s{S_WV}, 16")
    a(f"v_add_u32 v{V_PST}, s{S_T0}, v{V_PST}")
    bitpat(a, V_PUB, L, [(1, 3, 256), (0, 1, 32), (5, 1, 16), (4, 1, 8), (3, 1, OOB)], T)
    a(f"v_and_b32 v{T}, 1, v{L}")
    a(f"v_cmp_eq_u32 vcc, 1, v{T}")
    a(f"v_mov_b32 v{V_IDX}, 0x44444444")
    a(f"v_mov_b32 v{T}, 0xeeeeeeee")
    a(f"v_cndmask_b32 v{V_IDX}, v{V_IDX}, v{T}, vcc")
    a(f"v_mov_b32 v{V_SELX}, 0x3f80")
    a(f"v_mov_b32 v{T}, 0x3f800000")
    a(f"v_cndmask_b32 v{V_SELX}, v{V_SELX}, v{T}, vcc")
    a(f"v_bfe_u32 v{T}, v{L}, 1, 3")
    for r in range(4):
        a(f"v_cmp_eq_u32 s[{S_SELM+2*r}:{S_SELM+2*r+1}], {r}, v{T}")
    a(f"v_cmp_eq_u32 s[{S_L0}:{S_L0+1}], 64, v{V_TID}")
    for r in range(4):
        a(f"v_mov_b32 v{V_ONES+r}, 0x3f803f80")
        a(f"v_mov_b32 v{V_PB+r}, 0")

PSTAMP = [-1]
CODEPF = [0]
S_DQ = (68, 72, 76, 80)
V_SQ, V_SO = 125, 124
ROUNDS = [('q', s) for s in (0, 1, 4, 5)] + [('k', s) for s in (0, 1, 4, 5)] + [('v', 4), ('v', 5), ('o', (0, 0)), ('o', (0, 1))] \
    + [('v', 0), ('v', 1), ('o', (1, 0)), ('o', (1, 1))]

def src_pattern(a, dst, L, T, bits, pitch):
    bitpat(a, dst, L, [(3, 1, pitch << bits[0]), (4, 1, pitch << bits[1]), (5, 1, pitch << bits[2]), (0, 1, 16)], T)
    for sh, bit in ((2, 4), (4, 2)):
        a(f"v_lshrrev_b32 v{T}, {sh}, v{L}")
        a(f"v_xor_b32 v{T}, v{T}, v{L}")
        a(f"v_and_b32 v{T}, {bit}, v{T}")
        a(f"v_lshl_add_u32 v{dst}, v{T}, 4, v{dst}")

class VmQueue:
    def __init__(self): self.q = []
    def add(self, tag, n=1): self.q += [tag] * n
    def wait(self, a, tag):
        last = max(i for i, t in enumerate(self.q) if t == tag)
        a(f"s_waitcnt vmcnt({len(self.q) - 1 - last})")
        self.q = self.q[last + 1:]
    def done(self, tag): return tag not in self.q

def issue_round(a, i, vq):
    kind, p = ROUNDS[i]
    if kind != 'o':
        a(f"s_xor_b32 s{S_T0}, s{S_WV}, {p >> 1}")
        a(f"s_lshl_b32 s{S_T0}, s{S_T0}, 20")
        a(f"s_add_u32 s{S_T0}, s{S_T0}, s{S_T2}")
        if p & 1: a(f"s_add_u32 s{S_T0}, s{S_T0}, {64 * 8192}")
        rows, pitch, v = (16, 2, 32), 8192, V_SQ
    else:
        a(f"s_lshl_b32 s{S_T0}, s{S_H}, 17")
        a(f"s_lshl_b32 s{S_T1}, s{S_WV}, 8")
        a(f"s_add_u32 s{S_T0}, s{S_T0}, s{S_T1}")
        a(f"s_add_u32 s{S_T0}, s{S_T0}, {p[1] * 65536 + p[0] * 128}")
        rows, pitch, v = (4, 2, 8), 1024, V_SO
    d = S_DQ['qkvo'.index(kind)]
    prev = 0
    for u in range(8):
        off = sum(rows[b] for b in range(3) if u >> b & 1) * pitch - (u & 3) * 1024
        if u & 3 == 0: a(f"s_add_u32 m0, s{S_T3}, {(i & 3) * 32768 + (u >> 2) * 4096}")
        if off != prev: a(f"s_add_u32 s{S_T0}, s{S_T0}, {(off - prev) & 0xffffffff:#x}")
        prev = off
        a(f"buffer_load_dwordx4 v{v}, s[{d}:{d+3}], s{S_T0} offen offset:{(u & 3)*1024} lds")
    vq.add(('w', i), 8)

def start_weights(a, vq):
    L, T = 127, 126
    a(f"v_mov_b32 v{V_TID}, v0")
    a(f"v_and_b32 v{L}, 63, v0")
    a(f"v_lshrrev_b32 v{T}, 6, v0")
    a(f"v_readfirstlane_b32 s{S_WV}, v{T}")
    if CODEPF[0]:
        a("s_getpc_b64 s[8:9]")
        a.label("L_pc")
        a("s_and_b32 s9, s9, 0xffff")
        a("s_mov_b32 s10, L_code_end-L_pc")
        a("s_mov_b32 s11, 0x20000")
        a(f"s_lshl_b32 s{S_T0}, s{S_H}, 12")
        a(f"v_lshlrev_b32 v{T}, 4, v0")
        a(f"buffer_load_dwordx4 v[24:27], v{T}, s[8:11], s{S_T0} offen")
        vq.add('code')
    src_pattern(a, V_SQ, L, T, (0, 3, 2), 8192)
    a(f"s_lshl_b32 s{S_T3}, s{S_WV}, 13")
    a(f"s_lshr_b32 s{S_T1}, s{S_WV}, 1")
    a(f"s_lshl_b32 s{S_T1}, s{S_T1}, 7")
    a(f"s_lshl_b32 s{S_T2}, s{S_H}, 8")
    a(f"s_add_u32 s{S_T2}, s{S_T2}, s{S_T1}")
    a("s_waitcnt lgkmcnt(0)")
    for j, d in enumerate(S_DQ):
        a(f"s_mov_b32 s{d}, s{S_KA + 2*j}")
        a(f"s_and_b32 s{d+1}, s{S_KA + 2*j + 1}, 0xffff")
        a(f"s_mov_b32 s{d+2}, 0x400000")
        a(f"s_mov_b32 s{d+3}, 0x20000")
        if j == 0:
            for i in range(3): issue_round(a, i, vq)

def load_weights(a, hooks, vq):
    L, T = 127, 126
    TQ, TO = V_AQ, V_AQ + 4
    TMP = V_W
    S_CB = 64
    a(f"s_mov_b32 s{S_CB}, s{S_T2}")
    src_pattern(a, V_SO, L, T, (0, 5, 4), 1024)
    bitpat(a, TO, L, [(5, 1, 1024), (4, 1, 512 + 32), (3, 1, 256 + 64), (2, 1, 128), (0, 3, 8)], T)
    a(f"s_lshl_b32 s{S_T0}, s{S_WV}, 13")
    a(f"v_add_u32 v{TO}, s{S_T0}, v{TO}")
    for j in range(1, 4): a(f"v_xor_b32 v{TO + j}, {32 * j}, v{TO}")
    a(f"s_and_b32 s{S_T0}, s{S_WV}, 1")
    a(f"s_lshl_b32 s{S_T0}, s{S_T0}, 6")
    a(f"v_xor_b32 v{TQ}, s{S_T0}, v{TO}")
    a(f"v_xor_b32 v{TQ+1}, 32, v{TQ}")
    a(f"v_xor_b32 v{TQ+2}, 8192, v{TQ}")
    a(f"v_xor_b32 v{TQ+3}, 8192, v{TQ+1}")
    for i in range(16):
        kind, p = ROUNDS[i]
        vq.wait(a, ('w', i))
        a("s_barrier")
        if i + 3 < 16:
            a(f"s_mov_b32 s{S_T2}, s{S_CB}")
            a(f"s_lshl_b32 s{S_T3}, s{S_WV}, 13")
            issue_round(a, i + 3, vq)
        if i in hooks: hooks[i](a)
        if i == PSTAMP[0]:
            a("s_memrealtime s[62:63]"); a("s_waitcnt lgkmcnt(0)"); a(f"s_sub_u32 s{S_ACC}, s62, s92"); a(f"s_lshl_b32 s{S_ACC}, s{S_ACC}, 2")
        if i and i % 2 == 0:
            for j in range(8): a(f"v_xor_b32 v{TQ + j}, 0x10000, v{TQ + j}")
        for j in range(2):
            for t in range(2):
                if i >= 12: base = TMP + 16 * j + 8 * t
                elif kind == 'q': base = WQ0 + ((p + 2 * j) * 2 + t) * 8
                elif kind == 'k': base = WK0 + ((p + 2 * j) * 2 + t) * 8
                elif kind == 'v': base = WV0 + ((p + 2 * j - 4) * 2 + t) * 8
                else: base = WO0 + ((2 * j + t) * 2 + p[1]) * 8
                ad = (TO if kind == 'o' else TQ) + 2 * j + t
                for pr in range(4):
                    a(f"ds_read_b64_tr_b16 {ur(base + 2*pr, 2)}, v{ad} offset:{(i & 1)*32768 + (pr >> 1)*4096 + (pr & 1)*2048}")
            a("s_waitcnt lgkmcnt(0)")
        if i >= 12:
            a("s_barrier")
            if i == 14: a(f"v_xor_b32 v{V_WVO}, 0x10000, v{V_WVO}")
            for q in range(8):
                a(f"ds_write_b128 v{V_WVO}, {vr(TMP + 4*q, 4)} offset:{(i & 1)*32768 + q*1024}")
            a("s_waitcnt lgkmcnt(0)")
    a(f"v_xor_b32 v{V_WVO}, 0x10000, v{V_WVO}")

def lds_wv(s, t, h): return (s & 1) * 32768 + (s >> 1) * 4096 + t * 2048 + h * 1024
def lds_wo(t, kbo, h): return kbo * 32768 + ((t >> 1) - 2) * 4096 + (t & 1) * 2048 + h * 1024
FLIP = f"v_xor_b32 v{V_WVO}, 0x10000, v{V_WVO}"
def rd_wv(dst, s, t): return [f"ds_read_b128 {vr(dst + 4*h, 4)}, v{V_WVO} offset:{lds_wv(s, t, h)}" for h in range(2)]
def rd_wo(dst, t, kbo): return [f"ds_read_b128 {vr(dst + 4*h, 4)}, v{V_WVO} offset:{lds_wo(t, kbo, h)}" for h in range(2)]

def slot_lines():
    return [
        f"s_and_b32 s{S_T0}, s{S_STEP}, 3",
        f"s_lshl_b32 s{S_T1}, s{S_T0}, 13",
        f"s_add_u32 s{S_PUBC}, s{S_T1}, s{S_HB_PUB}",
        f"s_lshl_b32 s{S_T1}, s{S_T0}, 18",
        f"s_add_u32 s{S_PST0}, s{S_T1}, s{S_HB_PST}",
        f"s_add_u32 s{S_PST1}, s{S_PST0}, 32768",
        f"s_add_u32 s{S_INB0}, s{S_T1}, s{S_HB_INB}",
        f"s_add_u32 s{S_INB1}, s{S_INB0}, 4096",
        f"s_bfe_u32 s{S_PH}, s{S_STEP}, 0x10002",
        f"s_add_u32 s{S_T0}, s{S_STEP}, 1",
        f"s_and_b32 s{S_T0}, s{S_T0}, 3",
        f"s_lshl_b32 s{S_T0}, s{S_T0}, 13",
        f"s_add_u32 s{S_PUBN}, s{S_T0}, s{S_HB_PUB}",
        f"s_add_u32 s{S_MEMRD}, s{S_T0}, {WS_MEMRING - MEMB}"]

def idle_a(a, par_next):
    for j in range(4):
        for x in rd_wv(Wb(j), j >> 1, j & 1): a(x)
    vn = V_VX[1 - par_next]
    for r in range(4): a(f"v_mov_b32 v{vn + r}, v{V_AK + r}")

def idle_b(a, par_next, tag, young):
    for r in list(range(V_AQ + 4, V_AQ + 8)) + list(range(V_AK, V_AK + 4)): a(f"v_mov_b32 v{r}, 0")
    a(f"s_waitcnt vmcnt({young})")
    avail_check(a, tag)

def idle_c(a, par_next):
    for r in list(range(V_AQ, V_AQ + 4)) + list(range(V_AV, V_AV + 8)): a(f"v_mov_b32 v{r}, 0")
    a("s_waitcnt vmcnt(2)")
    for r in range(V_AK + 4, V_AK + 8): a(f"v_mov_b32 v{r}, 0")

def avail_check(a, tag):
    a(f"v_readfirstlane_b32 s{S_AVAIL}, v{V_FL}")
    a(f"s_lshr_b32 s{S_T0}, s{S_AVAIL}, 16")
    a(f"s_and_b32 s{S_AVAIL}, s{S_AVAIL}, 0xffff")
    a(f"s_min_u32 s{S_AVAIL}, s{S_AVAIL}, s{S_T0}")
    a(f"s_add_u32 s{S_T0}, s{S_STEP}, 2")
    a(f"s_min_u32 s{S_T0}, s{S_T0}, 64")
    a(f"s_cmp_ge_u32 s{S_AVAIL}, s{S_T0}")
    a(f"s_cbranch_scc0 {tag}_slow")
    a.label(f"{tag}_ok")

def avail_slow(a, tag):
    a.label(f"{tag}_slow")
    a(f"buffer_load_dword v{V_FL}, off, s[{S_WS}:{S_WS+3}], s{S_FLP} sc1")
    a(f"s_add_u32 s{S_SPIN}, s{S_SPIN}, 1")
    a(f"s_cmp_gt_u32 s{S_SPIN}, {SPIN_LIMIT}")
    a("s_cbranch_scc1 L_abort")
    a("s_waitcnt vmcnt(0)")
    a(f"v_readfirstlane_b32 s{S_AVAIL}, v{V_FL}")
    a(f"s_lshr_b32 s{S_T1}, s{S_AVAIL}, 16")
    a(f"s_and_b32 s{S_AVAIL}, s{S_AVAIL}, 0xffff")
    a(f"s_min_u32 s{S_AVAIL}, s{S_AVAIL}, s{S_T1}")
    a(f"s_cmp_ge_u32 s{S_AVAIL}, s{S_T0}")
    a(f"s_cbranch_scc0 {tag}_slow")
    a(f"s_branch {tag}_ok")

def step(a, par, st, tag, opt):
    WS = f"s[{S_WS}:{S_WS+3}]"
    VXc, VXn = V_VX[par], V_VX[1 - par]
    Kc = KB[par] - MEMB
    T0 = V_PB + 3
    stamp = opt.get('stamp') or (None, None)
    trace = opt.get('trace', [])
    def st_list(name):
        if name in trace:
            k = 68 + trace.index(name)
            return [f"s_memtime s[{S_TS}:{S_TS+1}]", "s_waitcnt lgkmcnt(0)", f"s_cmp_eq_u32 s{S_STEP}, {opt.get('tstep', 20) + (1 if name in ('join', 'pub', 'h2iss', 'h1iss', 'pst', 'oex') else 0) + (1 if name == 'entry' and opt.get('nextentry') else 0)}",
                    f"s_cselect_b32 s{k}, s{S_TS}, s{k}"]
        if stamp[0] == name:
            return [f"s_memtime s[{S_TS}:{S_TS+1}]", "s_waitcnt lgkmcnt(0)"]
        if stamp[1] == name:
            return [f"s_memtime s[{S_TS+2}:{S_TS+3}]", "s_waitcnt lgkmcnt(0)", f"s_sub_u32 s{S_TS+2}, s{S_TS+2}, s{S_TS}",
                    f"s_add_u32 s{S_ACC}, s{S_ACC}, s{S_TS+2}", f"s_max_u32 s74, s74, s{S_TS+2}", f"s_min_u32 s73, s73, s{S_TS+2}",
                    f"s_cmp_gt_u32 s{S_TS+2}, {opt.get('thr', 100000)}", "s_addc_u32 s72, s72, 0"]
        return []
    def st_at(name):
        for x in st_list(name): a(x)
    a.label(f"{tag}_h1")
    a("s_waitcnt vmcnt(0)")
    a.label(f"{tag}_entry")
    st_at('entry')
    M = V_M
    a(f"v_max3_u32 v{T0}, v{M+1}, v{M+3}, v{M+5}")
    a(f"v_max_u32 v{T0}, v{T0}, v{M+7}")
    a(f"v_cmp_eq_u32 vcc, -1, v{T0}")
    a.label(f"{tag}_entry2")
    mains = []; F = {}
    nobg = opt.get('nobg', '')
    def add(i, *xs): F.setdefault(i, []).extend(xs)
    AQ = lambda t: V_AQ + 4 * t
    AK = lambda t: V_AK + 4 * t
    AV = lambda t: V_AV + 4 * t
    for s in range(2):
        for t in range(2): mains.append(smf(AQ(t), Mf(s), wq(t, s)))
    for s in range(2):
        for t in range(2): mains.append(smf(AK(t), Mf(s), wk(t, s)))
    for s in range(2):
        for t in range(2): mains.append(smf(AV(t), Mf(s), vr(Wb(2*s + t), 8)))
    M = V_M
    add(1, f"s_cbranch_vccnz {tag}_h1retry", f"ds_write_b128 v{V_P1}, {Mf(0)}")
    add(opt.get('w1', 4), f"ds_write_b128 v{V_P1}, {Mf(1)} offset:1024")
    B1 = opt.get('b1', 8)
    add(B1, "s_waitcnt lgkmcnt(0)", *st_list('prebar1'), "s_barrier", *st_list('bar1'))
    mr = (V_MR1, V_MR2, V_MR3)
    for j, s in enumerate(range(2, 8)):
        add(B1 + j, f"ds_read_b128 {Mf(s)}, v{mr[(s >> 1) - 1]} offset:{(s & 1) * 1024}")
    for s in range(2, 8):
        for t in range(2): mains.append(smf(AQ(t), Mf(s), wq(t, s)))
    wvr = [x for j in range(4) for x in rd_wv(Wb(j), 2 + (j >> 1), j & 1)]
    for i, x in enumerate(wvr): add(14 + i, x)
    for s in range(2, 4):
        for t in range(2): mains.append(smf(AV(t), Mf(s), vr(Wb(2*(s-2) + t), 8)))
    for s in range(2, 8):
        for t in range(2): mains.append(smf(AK(t), Mf(s), wk(t, s)))
    ex4 = [f"buffer_store_dwordx4 {vr(VXn,4)}, v{V_LA}, {WS}, s{S_EXP} offen sc1"]
    bg = [f"buffer_load_dwordx4 v{V_P1}, {WS}, s{S_KPF} offen sc1 lds",
          f"buffer_load_dwordx4 v{V_P1}, {WS}, s{S_KPF} offen offset:1024 sc1 lds",
          f"buffer_load_dwordx4 {vr(VXn+4,4)}, v{V_P1}, {WS}, s{S_VPF} offen offset:1024 sc1",
          f"buffer_load_dwordx4 {vr(VXn,4)}, v{V_P1}, {WS}, s{S_VPF} offen sc1",
          f"buffer_load_dword v{V_FL}, off, {WS}, s{S_FLP} sc1"]
    vpos = opt.get('vpos', (2, 3, 5, 6, 7, 13))
    add(1, f"s_mov_b32 m0, s{S_KM0 + (1 - par)}")
    F[1] = [F[1][0], F[1][2], F[1][1]]
    for x, i in zip(ex4 + bg, vpos): add(i, x)
    add(20, f"s_sub_u32 s{S_T2}, s{S_STEP}, 1", f"s_max_i32 s{S_T2}, s{S_T2}, 0")
    add(21, f"v_mov_b32 v{V_PB}, s{S_T2}")
    add(23, f"buffer_store_dword v{V_PB}, v{V_GATH}, {WS}, s{S_FLA} offen sc1")
    sal = slot_lines() + [f"s_add_u32 s{S_EXP}, s{S_EXP}, {32*4096}", f"s_add_u32 s{S_KPF}, s{S_KPF}, {32*8192}", f"s_add_u32 s{S_VPF}, s{S_VPF}, {32*8192}"]
    if opt.get('samekv'): sal = sal[:-2]
    if opt.get('sameexp'): sal = [x for x in sal if f"s{S_EXP}," not in x]
    for j, x in enumerate(sal): F.setdefault(24 + j, []).insert(0, x)
    QF, KF = Wb(0), Wb(2)
    KX = [V_M, V_M + 4, Wb(2), Wb(2) + 4, Wb(3), Wb(3) + 4, V_M + 8, V_M + 12]
    qtr = [f"ds_read_b64_tr_b16 {vr(QF + 4*i + 2*hh, 2)}, v{V_QKR} offset:{i*1024 + hh*512}" for i in range(4) for hh in range(2)]
    kxr = [f"ds_read_b128 {vr(KX[2*i + T], 4)}, v{V_LA} offset:{Kc + T*4096 + i*1024}" for i in range(4) for T in range(2)]
    q0, q1 = AQ(0), AQ(1)
    add(22, kxr[0]); add(23, kxr[1])
    add(24, f"v_add_f32 v{q0}, v{q0}, v{q0+1}")
    add(25, f"v_add_f32 v{q0+2}, v{q0+2}, v{q0+3}")
    add(26, f"v_cvt_pk_bf16_f32 v{q0}, v{q0}, v{q0+2}")
    add(27, f"ds_write_b32 v{V_QW}, v{q0}", f"v_add_f32 v{q1}, v{q1}, v{q1+1}")
    add(28, kxr[2], f"v_add_f32 v{q1+2}, v{q1+2}, v{q1+3}")
    add(29, kxr[3], f"v_cvt_pk_bf16_f32 v{q1}, v{q1}, v{q1+2}")
    add(30, f"ds_write_b32 v{V_QW}, v{q1} offset:512")
    add(31, kxr[4]); add(32, kxr[5]); add(33, kxr[6])
    add(33, FLIP)
    B2 = opt.get('b2', 34)
    add(B2, "s_waitcnt lgkmcnt(3)", *st_list('prebar2'), "s_barrier", *st_list('bar2'))
    for j, x in enumerate(qtr): add(B2 + j, x)
    SX = lambda T: V_AQ + 4 * T
    for s in (4,):
        for t in range(2): mains.append(smf(AV(t), Mf(s), wv_res(t, s)))
    for i in range(4):
        for T in range(2):
            mains.append(mf32(SX(T), vr(KX[2*i + T], 4), vr(QF + 4*i, 4), "0" if i == 0 else vr(SX(T), 4)))
    k0, k1 = AK(0), AK(1)
    add(40, f"v_add_f32 v{k0}, v{k0}, v{k0+1}")
    add(41, f"v_add_f32 v{k0+2}, v{k0+2}, v{k0+3}")
    add(42, f"v_cvt_pk_bf16_f32 v{k0}, v{k0}, v{k0+2}", f"v_add_f32 v{k1}, v{k1}, v{k1+1}")
    add(43, f"ds_write_b32 v{V_QW}, v{k0} offset:4096", f"v_add_f32 v{k1+2}, v{k1+2}, v{k1+3}")
    add(44, kxr[7], f"v_cvt_pk_bf16_f32 v{k0+1}, v{k1}, v{k1+2}")
    add(45, f"ds_write_b32 v{V_QW}, v{k0+1} offset:4608")
    B3 = opt.get('b3', 49)
    add(B3, "s_waitcnt lgkmcnt(0)", *st_list('prebar3'), "s_barrier", *st_list('bar3'))
    ktr = [f"ds_read_b64_tr_b16 {vr(KF + 4*i + 2*hh, 2)}, v{V_QKR} offset:{4096 + i*1024 + hh*512}" for i in range(4) for hh in range(2)]
    for s in (5, 6, 7):
        for t in range(2): mains.append(smf(AV(t), Mf(s), wv_res(t, s)))
    for x, i in zip(ktr, opt.get('ktrpos', (49, 49, 50, 51, 52, 53, 54, 55))): add(i, x)
    ex = [f"v_exp_f32 v{V_AQ + r}, v{V_AQ + r}" for r in range(8)]
    for x, i in zip(ex, opt.get('expos', (50, 51, 52, 53, 54, 55, 56, 57))): add(i, x)
    SM = V_AK + 4
    for i in range(4):
        mains.append(mf32(SM, vr(KF + 4*i, 4), vr(QF + 4*i, 4), "0" if i == 0 else vr(SM, 4)))
    PX = V_AQ
    v0_, v1_ = AV(0), AV(1)
    add(58, f"v_cvt_pk_bf16_f32 v{PX}, v{V_AQ}, v{V_AQ+1}", f"v_cvt_pk_bf16_f32 v{PX+1}, v{V_AQ+2}, v{V_AQ+3}")
    add(59, f"v_cvt_pk_bf16_f32 v{PX+2}, v{V_AQ+4}, v{V_AQ+5}", f"v_cvt_pk_bf16_f32 v{PX+3}, v{V_AQ+6}, v{V_AQ+7}",
            f"v_add_f32 v{v0_}, v{v0_}, v{v0_+1}", f"v_add_f32 v{v0_+2}, v{v0_+2}, v{v0_+3}")
    OA, LA = V_M, V_M + 8
    mains.append(mf32(LA, vr(V_ONES, 4), vr(PX, 4), "0"))
    mains.append(mf32(OA, vr(VXc, 4), vr(PX, 4), "0"))
    mains.append(mf32(OA + 4, vr(VXc + 4, 4), vr(PX, 4), "0"))
    add(60, f"v_mul_f32 v{SM}, s{S_C}, v{SM}", f"v_mul_f32 v{SM+1}, s{S_C}, v{SM+1}")
    add(61, f"v_exp_f32 v{SM}, v{SM}", f"v_exp_f32 v{SM+1}, v{SM+1}")
    add(62, f"v_cvt_pk_bf16_f32 v{V_AK+2}, v{v0_}, v{v0_+2}", f"v_cvt_pk_bf16_f32 v{V_PB}, v{SM}, v{SM+1}",
            f"v_add_f32 v{v1_}, v{v1_}, v{v1_+1}", f"v_add_f32 v{v1_+2}, v{v1_+2}, v{v1_+3}")
    mains.append(mf16(LA, vr(V_ONES, 2), vr(V_PB, 2), vr(LA, 4)))
    add(63, f"v_cvt_pk_bf16_f32 v{V_AK+3}, v{v1_}, v{v1_+2}", f"v_cvt_pk_bf16_f32 v{V_PB+3}, v{SM}, v{SM+1}")
    mains.append(mf16(OA, vr(V_AK + 2, 2), vr(V_PB, 2), vr(OA, 4)))
    mains.append(mf16(OA + 4, vr(V_AK + 2, 2), vr(V_PB + 2, 2), vr(OA + 4, 4)))
    wo_order = [(t, kbo) for t in range(4, 8) for kbo in range(2)]
    wor = [x for j in range(4) for x in rd_wo(Wb(j), *wo_order[j])]
    npre = opt.get('npre', 4)
    for x, i in zip(wor[:npre], (64, 64, 65, 65, 65, 65, 65, 65)): add(i, x)
    drop = opt.get('drop', [])
    if drop:
        F = {i: [x for x in xs if not any(x.startswith(d) for d in drop)] for i, xs in F.items()}
    interleave(a, mains, F)
    st_at('pv')
    if par == 1:
        a(f"s_cmp_eq_u32 s{S_STEP}, 63")
        a(f"s_cbranch_scc1 L_chain_done")
    INV, OW = V_AQ + 0, V_AQ + 4
    a(f"v_rcp_f32 v{INV}, v{LA}")
    for hh in range(2):
        for r in range(4 * hh, 4 * hh + 4): a(f"v_mul_f32 v{OA+r}, v{OA+r}, v{INV}")
        for r in range(2 * hh, 2 * hh + 2): a(f"v_cvt_pk_bf16_f32 v{OW+r}, v{OA+2*r}, v{OA+2*r+1}")
        if not opt.get('ow128'): a(f"ds_write_b64 v{V_OW}, {vr(OW + 2*hh, 2)} offset:{8*hh}")
    if opt.get('ow128'): a(f"ds_write_b128 v{V_OW}, {vr(OW, 4)}")
    a(f"v_subrev_u32 v{INV+1}, s{S_LLO}, v{LA}")
    a(f"v_cmp_le_u32 vcc, s{S_LRG}, v{INV+1}")
    zacc = lambda t: mf16(V_M + 4*t, vr(V_PB + 2, 2), vr(V_PB, 2), "0")
    for t in range(opt.get('z1', 4)): a(zacc(t))
    a(f"s_cbranch_vccnz {tag}_fallback")
    a.label(f"{tag}_fbdone")
    a("s_waitcnt lgkmcnt(0)")
    st_at('prebar4')
    a("s_barrier")
    st_at('bar4')
    OF = VXc
    a(f"ds_read_b128 {vr(OF,4)}, v{V_LA}")
    a(f"ds_read_b128 {vr(OF+4,4)}, v{V_LA} offset:1024")
    HV = V_AK + 4
    a(f"s_add_u32 s{S_STEP}, s{S_STEP}, 1")
    for t in range(opt.get('z1', 4), 8):
        a(zacc(t))
        if t == 4: a(f"v_mov_b32 v{HV}, s{S_STEP}")
    st_at('oex')
    mains = []; F = {}
    P = lambda t: V_M + 4 * t
    for t in range(4):
        for kbo in range(2): mains.append(smf(P(t), vr(OF + 4*kbo, 4), wo_res(t, kbo)))
    src = [Wb(0), Wb(1), Wb(2), Wb(3), V_AQ, V_AV, Wb(0), Wb(1)]
    for j, (t, kbo) in enumerate(wo_order): mains.append(smf(P(t), vr(OF + 4*kbo, 4), vr(src[j], 8)))
    late = wor[npre:] + [x for j in range(4, 8) for x in rd_wo(src[j], *wo_order[j])]
    lpos = list(range(0, 8 - npre)) + [8 - npre + j for j in range(4)]
    lpos = [min(p, 7) for p in lpos] + [8, 9, 9, 10]
    for x, i in zip(late, lpos): add(i, x)
    def fold(t, dst):
        p = P(t)
        return [f"v_add_f32 v{p}, v{p}, v{p+1}", f"v_add_f32 v{p+2}, v{p+2}, v{p+3}", f"v_cvt_pk_bf16_f32 v{dst}, v{p}, v{p+2}"]
    for t in range(6):
        y = fold(t, P(t & 4) + (t & 3))
        add(2 * t + 3, y[0]); add(2 * t + 4, y[1], y[2])
        if t & 3 == 0: add(2 * t + 5, f"v_and_or_b32 v{P(t)}, v{P(t)}, -2, s{S_PH}")
    add(11, FLIP)
    y6 = fold(6, P(4) + 2); add(15, y6[0])
    sp = opt.get('st0', 15)
    F[sp].insert(0, f"buffer_store_dwordx4 {vr(P(0),4)}, v{V_PST}, {WS}, s{S_PST0} offen {st}")
    probes = opt.get('probes', (9, 12, 14))
    F.setdefault(opt.get('hintpos', 4), []).insert(0, f"buffer_store_dword v{HV}, v{V_L4}, {WS}, s{S_HST} offen {st}")
    probe = lambda j: f"buffer_load_dword v{HV + 1 + j % 3}, v{V_L4}, {WS}, s{S_HLD} offen sc1"
    for j, g in enumerate(probes):
        if g < 16: F[g].insert(0, probe(j))
    interleave(a, mains, F)
    a(y6[1]); a(y6[2])
    for j, g in enumerate(probes):
        if g == 16: a(probe(j))
    for y in fold(7, P(4) + 3): a(y)
    a(f"buffer_store_dwordx4 {vr(P(4),4)}, v{V_PST}, {WS}, s{S_PST1} offen {st}")
    st_at('pst')
    SEL, RA = V_AQ, V_AV
    def h2_issue():
        for i in range(8):
            a(f"buffer_load_dwordx4 {Mf(i)}, v{V_LA}, {WS}, s{S_INB0 if i < 4 else S_INB1} offen offset:{(i & 3)*1024} sc1")
    FLG = QB + 4 - MEMB
    a(f"s_cmp_lg_u32 s{S_WV}, 0")
    a(f"s_cbranch_scc1 {tag}_others")
    for r in range(4): a(f"v_cndmask_b32 v{SEL+r}, 0, v{V_SELX}, s[{S_SELM+2*r}:{S_SELM+2*r+1}]")
    def check(j):
        a(f"v_cmp_gt_u32 vcc, s{S_STEP}, v{HV + 1 + j % 3}")
        a(f"s_cmp_eq_u32 vcc_lo, 0")
        a(f"s_cbranch_scc1 {tag}_go")
    n = len(probes)
    extra = 0
    for j in range(n, 3):
        a(probe(j)); extra += 1
    for j, g in enumerate(probes):
        young = sum(1 for q in probes if q > g) + 1 + (1 if sp >= g else 0) + extra
        a(f"s_waitcnt vmcnt({young})")
        check(j)
        a(probe(j)); extra += 1
    a.label(f"{tag}_hl")
    for j in range(3):
        a("s_waitcnt vmcnt(2)")
        check(n + j)
        a(probe(n + j))
        a(f"s_add_u32 s{S_ACC+3}, s{S_ACC+3}, 1")
    a(f"s_add_u32 s{S_SPIN}, s{S_SPIN}, 1")
    a(f"s_cmp_gt_u32 s{S_SPIN}, {SPIN_LIMIT}")
    a(f"s_cbranch_scc0 {tag}_hl")
    a("s_branch L_abort")
    a.label(f"{tag}_go")
    for _ in range(opt.get('h2pad', 0)): a("s_nop 7")
    st_at('h2iss')
    h2_issue()
    idle_a(a, 1 - par)
    idle_b(a, 1 - par, f"{tag}_av0", 10 + len(probes))
    a.label(f"{tag}_h2")
    TG = RA + 4
    for i in range(8):
        a(mf32(RA, Mf(i), vr(SEL, 4), "0" if i == 0 else vr(RA, 4)))
        if i == 0: a(f"v_xor_b32 v{TG}, s{S_PH}, v{V_M}")
        else: a(f"v_bitop3_b32 v{TG}, v{TG}, v{V_M + 4*i}, s{S_PH} bitop3:0xf6")
    a(f"v_and_b32 v{TG}, 1, v{TG}")
    a(f"v_cmp_ne_u32 vcc, 0, v{TG}")
    a(f"v_mov_b32 v{TG}, s{S_STEP}")
    a(f"v_mov_b32 v{TG+1}, {MEMB}")
    a(f"v_cvt_pk_bf16_f32 v{RA+6}, v{RA}, v{RA+1}")
    a(f"v_cvt_pk_bf16_f32 v{RA+7}, v{RA+2}, v{RA+3}")
    a(f"s_cbranch_vccnz {tag}_h2r")
    a(f"buffer_store_dwordx2 {vr(RA+6,2)}, v{V_PUB}, {WS}, s{S_PUBN} offen {st}")
    st_at('pub')
    a(f"ds_write_b32 v{TG+1}, v{TG} offset:{FLG}")
    a(f"v_mov_b32 v{RA}, -1")
    a(f"v_mov_b32 v{RA+1}, -1")
    a(f"buffer_store_dwordx2 {vr(RA,2)}, v{V_PUB}, {WS}, s{S_PUBC} offen {st}")
    for _ in range(opt.get('h1pad', 0)): a("s_nop 7")
    a(f"s_branch {tag}_join")
    a.label(f"{tag}_others")
    idle_a(a, 1 - par)
    idle_b(a, 1 - par, f"{tag}_av2", 2 + len(probes))
    a(f"v_mov_b32 v{TG+1}, {MEMB}")
    a.label(f"{tag}_lw")
    a(f"ds_read_b32 v{TG}, v{TG+1} offset:{FLG}")
    a(f"s_add_u32 s{S_SPIN2}, s{S_SPIN2}, 1")
    a(f"s_cmp_gt_u32 s{S_SPIN2}, {SPIN_LIMIT * 64}")
    a("s_cbranch_scc1 L_abort")
    a("s_waitcnt lgkmcnt(0)")
    a(f"v_cmp_ne_u32 vcc, s{S_STEP}, v{TG}")
    a(f"s_cbranch_vccnz {tag}_lw")
    for _ in range(opt.get('h1pado', 0)): a("s_nop 7")
    a.label(f"{tag}_join")
    st_at('h1iss')
    h1_issue(a, 0)
    idle_c(a, 1 - par)
    a("s_waitcnt lgkmcnt(0)")
    st_at('join')
    return h2_issue

def h1_issue(a, j):
    WS = f"s[{S_WS}:{S_WS+3}]"
    a(f"buffer_load_dwordx4 {Mf(2*j)}, v{V_P1}, {WS}, s{S_MEMRD} offen sc1")
    a(f"buffer_load_dwordx4 {Mf(2*j + 1)}, v{V_P1}, {WS}, s{S_MEMRD} offen offset:1024 sc1")

def step_tails(a, par, tag, h2, opt):
    WS = f"s[{S_WS}:{S_WS+3}]"
    VXc = V_VX[par]
    Kc = KB[par] - MEMB
    T0 = V_PB + 3
    def spin(k):
        a(f"s_add_u32 s{S_SPIN}, s{S_SPIN}, 1")
        a(f"s_cmp_gt_u32 s{S_SPIN}, {SPIN_LIMIT}")
        a("s_cbranch_scc1 L_abort")
        a(f"s_add_u32 s{S_ACC+k}, s{S_ACC+k}, 1")
    a.label(f"{tag}_h1retry")
    a("s_mov_b64 exec, vcc")
    h1_issue(a, 0)
    a("s_mov_b64 exec, -1")
    spin(1)
    a("s_nop 2")
    for r in range(8): a(f"v_mov_b32 v{V_AQ + r}, 0")
    a(f"s_branch {tag}_h1")
    a.label(f"{tag}_h2r")
    a("s_mov_b64 exec, vcc")
    h2()
    a("s_mov_b64 exec, -1")
    spin(2)
    a(f"s_branch {tag}_h2")
    for j in (0, 2): avail_slow(a, f"{tag}_av{j}")
    a.label(f"{tag}_fallback")
    a("s_nop 7")
    a("s_nop 3")
    a("s_waitcnt lgkmcnt(0)")
    QF, KF = Wb(0), Wb(2)
    SX, SM = V_AV, V_AK + 4
    OA, LA = V_M, V_M + 8
    for i in range(4):
        for hh in range(2): a(f"ds_read_b64_tr_b16 {vr(QF + 4*i + 2*hh, 2)}, v{V_QKR} offset:{i*1024 + hh*512}")
    for T in range(2):
        for i in range(4): a(f"ds_read_b128 {vr(KF + 4*i, 4)}, v{V_LA} offset:{Kc + T*4096 + i*1024}")
        for i in range(4): a(mf32(SX + 4*T, vr(KF + 4*i, 4), vr(QF + 4*i, 4), "0" if i == 0 else vr(SX + 4*T, 4)))
        a("s_nop 7")
    for i in range(4):
        for hh in range(2): a(f"ds_read_b64_tr_b16 {vr(KF + 4*i + 2*hh, 2)}, v{V_QKR} offset:{4096 + i*1024 + hh*512}")
    for i in range(4): a(mf32(SM, vr(KF + 4*i, 4), vr(QF + 4*i, 4), "0" if i == 0 else vr(SM, 4)))
    a(f"v_mul_f32 v{SM}, s{S_C}, v{SM}")
    a(f"v_mul_f32 v{SM+1}, s{S_C}, v{SM+1}")
    MX, T2 = SM + 2, SM + 3
    a(f"v_max3_f32 v{MX}, v{SM}, v{SM+1}, v{SX}")
    for r in range(1, 7, 2): a(f"v_max3_f32 v{MX}, v{MX}, v{SX+r}, v{SX+r+1}")
    a(f"v_max_f32 v{MX}, v{MX}, v{SX+7}")
    for sw in ("v_permlane16_swap_b32", "v_permlane32_swap_b32"):
        a(f"v_mov_b32 v{T2}, v{MX}")
        a(f"{sw} v{MX}, v{T2}")
        a(f"v_max_f32 v{MX}, v{MX}, v{T2}")
    for r in list(range(SX, SX + 8)) + [SM, SM + 1]:
        a(f"v_sub_f32 v{r}, v{r}, v{MX}")
        a(f"v_exp_f32 v{r}, v{r}")
    PX = V_AQ
    for r in range(4): a(f"v_cvt_pk_bf16_f32 v{PX+r}, v{SX+2*r}, v{SX+2*r+1}")
    a(f"v_cvt_pk_bf16_f32 v{V_PB}, v{SM}, v{SM+1}")
    a(f"v_cvt_pk_bf16_f32 v{V_PB+3}, v{SM}, v{SM+1}")
    a(mf32(LA, vr(V_ONES, 4), vr(PX, 4), "0"))
    a(mf32(OA, vr(VXc, 4), vr(PX, 4), "0"))
    a(mf32(OA + 4, vr(VXc + 4, 4), vr(PX, 4), "0"))
    a(mf16(LA, vr(V_ONES, 2), vr(V_PB, 2), vr(LA, 4)))
    a(mf16(OA, vr(V_AK + 2, 2), vr(V_PB, 2), vr(OA, 4)))
    a(mf16(OA + 4, vr(V_AK + 2, 2), vr(V_PB + 2, 2), vr(OA + 4, 4)))
    wo_order = [(t, kbo) for t in range(4, 8) for kbo in range(2)]
    for j in range(4):
        for x in rd_wo(Wb(j), *wo_order[j]): a(x)
    INV, OW = V_AQ + 0, V_AQ + 4
    a(f"v_rcp_f32 v{INV}, v{LA}")
    for r in range(8): a(f"v_mul_f32 v{OA+r}, v{OA+r}, v{INV}")
    for r in range(4): a(f"v_cvt_pk_bf16_f32 v{OW+r}, v{OA+2*r}, v{OA+2*r+1}")
    a(f"ds_write_b128 v{V_OW}, {vr(OW,4)}")
    for r in range(16): a(f"v_mov_b32 v{V_M + r}, 0")
    a("s_waitcnt lgkmcnt(0)")
    a("s_nop 1")
    a(f"s_branch {tag}_fbdone")

def role_chain(a, opt):
    WS = f"s[{S_WS}:{S_WS+3}]"; DB = f"s[{S_D}:{S_D+3}]"
    vq = VmQueue()
    CODEPF[0] = opt.get('codepf', 0)
    start_weights(a, vq)
    a(f"s_mov_b32 s65, s{S_T2}")
    common_srds(a)
    setup_lanes(a)
    a(f"s_mov_b32 s{S_C}, {f32bits(CSCALE):#x}")
    a(f"s_mov_b32 s{S_LLO}, 0x21800000")
    a(f"s_mov_b32 s{S_LRG}, 0x3c000000")
    for r in range(S_ACC, S_ACC + 4): a(f"s_mov_b32 s{r}, 0")
    a(f"s_lshl_b32 s{S_T0}, s{S_H}, 8")
    a(f"s_add_u32 s{S_HB_PST}, s{S_T0}, {WS_PART}")
    a(f"s_lshl_b32 s{S_T0}, s{S_H}, 13")
    a(f"s_add_u32 s{S_HB_INB}, s{S_T0}, {WS_PART - MEMB}")
    a(f"s_add_u32 s{S_KPF}, s{S_T0}, {WS_KX - MEMB}")
    a(f"s_add_u32 s{S_VPF}, s{S_T0}, {WS_VX - MEMB}")
    a(f"s_and_b32 s{S_T0}, s{S_H}, 3")
    a(f"s_lshl_b32 s{S_T0}, s{S_T0}, 6")
    a(f"s_lshr_b32 s{S_T1}, s{S_H}, 2")
    a(f"s_lshl_b32 s{S_T1}, s{S_T1}, 10")
    a(f"s_add_u32 s{S_T0}, s{S_T0}, s{S_T1}")
    a(f"s_add_u32 s{S_HB_PUB}, s{S_T0}, {WS_MEMRING}")
    a(f"s_lshl_b32 s{S_T0}, s{S_H}, 12")
    a(f"s_lshl_b32 s{S_T1}, s{S_WV}, 10")
    a(f"s_add_u32 s{S_T0}, s{S_T0}, s{S_T1}")
    a(f"s_add_u32 s{S_EXP}, s{S_T0}, {WS_KVM - MEMB - 32*4096}")
    a(f"s_lshl_b32 s{S_T0}, s{S_H}, 7")
    a(f"s_add_u32 s{S_FLP}, s{S_T0}, {WS_FLAG + FLAG_P * 128}")
    a(f"s_add_u32 s{S_FLA}, s{S_T0}, {WS_FLAG + FLAG_A * 128}")
    a(f"s_lshl_b32 s{S_T0}, s{S_WV}, 11")
    a(f"s_add_u32 s{S_KM0}, s{S_T0}, {KB[0]}")
    a(f"s_add_u32 s{S_KM0+1}, s{S_T0}, {KB[1]}")
    SN = V_W
    for r in range(4): a(f"v_mov_b32 v{SN+r}, -1")
    a(f"v_mov_b32 v{SN+4}, 0")
    def arm(st):
        for sl in range(4):
            a(f"s_add_u32 s{S_T0}, s{S_HB_INB}, {sl << 18}")
            a(f"buffer_store_dwordx4 {vr(SN,4)}, v{V_P1}, {WS}, s{S_T0} offen {st}")
            a(f"buffer_store_dwordx4 {vr(SN,4)}, v{V_P1}, {WS}, s{S_T0} offen offset:1024 {st}")
            a(f"s_add_u32 s{S_T0}, s{S_HB_PUB}, {sl << 13}")
            a(f"buffer_store_dwordx2 {vr(SN,2)}, v{V_PUB}, {WS}, s{S_T0} offen {st}")
        a(f"buffer_store_dword v{SN+4}, v{V_L4}, {WS}, s{S_HST} offen {st}")
    po = opt.get('ponly', '')
    if 'a' not in po: arm("")
    if 'f' not in po: a(f"buffer_store_dword v{SN+4}, off, {WS}, s{S_FLA} sc1")
    vq.add('arm', (0 if 'a' in po else 13) + (0 if 'f' in po else 1))
    a(f"s_mov_b32 s{S_T2}, s65")
    S_OK = S_AVAIL
    PSTAMP[0] = opt.get('pstamp', -1)
    groups = [g for g in opt.get('groups', [0]) if g == 0 or g >= 5]
    IV = V_M + 16
    srd(a, S_W, KA_MEM0, 8192)
    def seg0_loads():
        a(f"s_mov_b32 m0, s{S_KM0}")
        a("s_nop 0")
        a(f"buffer_load_dwordx4 v{V_P1}, {WS}, s{S_KPF} offen sc1 lds")
        a(f"buffer_load_dwordx4 v{V_P1}, {WS}, s{S_KPF} offen offset:1024 sc1 lds")
        a(f"buffer_load_dwordx4 {vr(V_VX[0],4)}, v{V_P1}, {WS}, s{S_VPF} offen sc1")
        a(f"buffer_load_dwordx4 {vr(V_VX[0]+4,4)}, v{V_P1}, {WS}, s{S_VPF} offen offset:1024 sc1")
    def h0(a):
        assert vq.done('arm')
        register_wg(a, SN, "L_ch_noreg", barrier=False)
    def h8(a):
        init_issue(a, IV); vq.add('init', 3)
        a(f"s_mov_b32 s{S_OK}, 0")
    def h16(a):
        assert vq.done('init')
        vq.add('fl')
        a.items.append(('x', 'forget_vm'))
        init_check(a, IV, groups, "L_ch_h16")
        a(f"s_mov_b32 s{S_OK}, 1")
        a.label("L_ch_h16")
        a(f"buffer_load_dword v{V_FL}, off, {WS}, s{S_FLP} sc1")
    def h24(a):
        assert vq.done('fl')
        vq.add('mem0', 2)
        a.items.append(('x', 'forget_vm'))
        a(f"buffer_load_dwordx4 {Mf(0)}, v{V_GATH}, s[{S_W}:{S_W+3}], 0 offen")
        a(f"buffer_load_dwordx4 {Mf(1)}, v{V_GATH}, s[{S_W}:{S_W+3}], 0 offen offset:128")
        a(f"v_readfirstlane_b32 s{S_T0}, v{V_FL}")
        a(f"s_lshr_b32 s{S_T1}, s{S_T0}, 16")
        a(f"s_and_b32 s{S_T0}, s{S_T0}, 0xffff")
        a(f"s_min_u32 s{S_T0}, s{S_T0}, s{S_T1}")
        a(f"s_cmp_ge_u32 s{S_T0}, 2")
        a(f"s_cselect_b32 s{S_T0}, s{S_OK}, 0")
        a(f"s_lshl_b32 s{S_OK}, s{S_T0}, 1")
        a(f"s_cmp_eq_u32 s{S_OK}, 0")
        a("s_cbranch_scc1 L_ch_h24")
        seg0_loads()
        a.label("L_ch_h24")
    load_weights(a, dict(zip(opt.get('hooks', (3, 6, 10, 14)), (h0, h8, h16, h24))), vq)
    if opt.get('ptime') and 'pstamp' not in opt:
        a("s_memrealtime s[62:63]"); a("s_waitcnt lgkmcnt(0)"); a(f"s_sub_u32 s{S_ACC}, s62, s92"); a(f"s_lshl_b32 s{S_ACC}, s{S_ACC}, 2"); a(f"s_add_u32 s{S_ACC}, s{S_ACC}, s{S_OK}")
    if opt.get('ponly'):
        a(f"s_lshl_b32 s{S_T0}, s{S_H}, 2"); a(f"s_add_u32 s{S_T0}, s{S_T0}, s{S_WV}"); a(f"s_lshl_b32 s{S_T0}, s{S_T0}, 5"); a(f"s_add_u32 s{S_T0}, s{S_T0}, {WS_STAMP + 4}")
        a(f"v_mov_b32 v{V_M}, s{S_ACC}")
        a(f"buffer_store_dword v{V_M}, off, {WS}, s{S_T0}")
        a("s_endpgm")
    a(f"s_mov_b32 s{S_STEP}, 0")
    a(f"s_cmp_lg_u32 s{S_OK}, 0")
    a("s_cbranch_scc1 L_ch_ready")
    wait_init(a, IV, groups, "L_ch_init")
    a(f"v_mov_b32 v{V_FL}, 0")
    avail_check(a, "L_ch_av")
    seg0_loads()
    a.label("L_ch_ready")
    if opt.get('nokv'):
        a(f"s_mov_b32 m0, s{S_KM0+1}")
        a(f"s_nop 0")
        a(f"buffer_load_dwordx4 v{V_P1}, {WS}, s{S_KPF} offen sc1 lds")
        a(f"buffer_load_dwordx4 v{V_P1}, {WS}, s{S_KPF} offen offset:1024 sc1 lds")
        a(f"buffer_load_dwordx4 {vr(V_VX[1]+4,4)}, v{V_P1}, {WS}, s{S_VPF} offen offset:1024 sc1")
    a(f"s_add_u32 s{S_KPF}, s{S_KPF}, {32*8192}")
    a(f"s_add_u32 s{S_VPF}, s{S_VPF}, {32*8192}")
    idle_a(a, 0)
    for r in range(24): a(f"v_mov_b32 v{V_AQ + r}, 0")
    a(f"s_mov_b32 s{S_SPIN2}, 0")
    a(f"s_mov_b32 s{S_MEMRD}, {WS_MEMRING - MEMB}")
    a(f"v_cndmask_b32 v{V_GATH}, v{V_ONES}, 0, s[{S_L0}:{S_L0+1}]")
    for r in range(4): a(f"v_mov_b32 v{V_M + 8 + r}, 0")
    for j in range(2): a(f"ds_write_b128 v{V_P1}, {vr(V_M + 8, 4)} offset:{QB - MEMB + 1024*j}")
    a("s_waitcnt vmcnt(0) lgkmcnt(0)")
    for r in range(8): a(f"v_min_u32 v{V_M+r}, -2, v{V_M+r}")
    if opt.get('time'):
        a("s_mov_b32 s74, 0"); a("s_mov_b32 s73, -1"); a("s_mov_b32 s72, 0")
        a(f"s_memtime s[84:85]")
        a(f"s_memrealtime s[88:89]")
        a("s_waitcnt lgkmcnt(0)")
    a(f"s_cmp_eq_u32 s{S_MODE}, {opt.get('fastmode', 1)}")
    a("s_cbranch_scc1 L_F0_entry")
    SN = V_M + 8
    for r in range(4): a(f"v_mov_b32 v{SN+r}, -1")
    a(f"v_mov_b32 v{SN+4}, 0")
    arm("sc1")
    a("s_waitcnt vmcnt(0)")
    a("s_barrier")
    a(f"v_mov_b32 v{SN}, 1")
    a(f"buffer_atomic_add v{SN}, v{V_GATH}, {DB}, 0 offen offset:32")
    a.label("L_ch_rearm")
    a("s_sleep 4")
    a(f"buffer_load_dword v{SN}, off, {DB}, 0 offset:32 sc1")
    a(f"s_add_u32 s{S_SPIN}, s{S_SPIN}, 1")
    a(f"s_cmp_gt_u32 s{S_SPIN}, {SPIN_LIMIT}")
    a("s_cbranch_scc1 L_abort")
    a("s_waitcnt vmcnt(0)")
    a(f"v_readfirstlane_b32 s{S_T0}, v{SN}")
    a(f"s_cmp_ge_u32 s{S_T0}, 32")
    a("s_cbranch_scc0 L_ch_rearm")
    a("s_branch L_S0_entry")
    for tag, st in (("L_F", ""), ("L_S", "sc1")):
        h20 = step(a, 0, st, tag + "0", opt)
        h21 = step(a, 1, st, tag + "1", opt)
        a(f"s_branch {tag}0_h1")
        step_tails(a, 0, tag + "0", h20, opt)
        step_tails(a, 1, tag + "1", h21, opt)
    avail_slow(a, "L_ch_av")
    a.label("L_chain_done")
    a(f"buffer_store_dwordx4 {vr(V_AK,4)}, v{V_LA}, {WS}, s{S_EXP} offen sc1")
    a("s_nop 7")
    a("s_waitcnt vmcnt(0)")
    a("s_barrier")
    a(f"v_mov_b32 v{V_M}, 64")
    a(f"buffer_store_dword v{V_M}, off, {WS}, s{S_FLA} sc1")
    if opt.get('time'):
        a(f"s_memtime s[86:87]")
        a(f"s_memrealtime s[90:91]")
        a("s_waitcnt lgkmcnt(0)")
        a("s_sub_u32 s86, s86, s84")
        a(f"s_lshl_b32 s{S_T0}, s{S_H}, 2")
        a(f"s_add_u32 s{S_T0}, s{S_T0}, s{S_WV}")
        a(f"s_lshl_b32 s{S_T0}, s{S_T0}, 5")
        a(f"s_add_u32 s{S_T0}, s{S_T0}, {WS_STAMP}")
        for i, s in enumerate((86, S_ACC, S_ACC + 1, S_ACC + 2, 88, 90, 92, S_ACC + 3)):
            a(f"v_mov_b32 v{V_M+i}, s{s}")
        a(f"buffer_store_dwordx4 {vr(V_M,4)}, off, {WS}, s{S_T0}")
        a(f"buffer_store_dwordx4 {vr(V_M+4,4)}, off, {WS}, s{S_T0} offset:16")
        a(f"s_add_u32 s{S_T0}, s{S_T0}, 0x8000")
        a("s_mov_b32 s75, s84")
        for i in range(8): a(f"v_mov_b32 v{V_M+8+i}, s{68+i}")
        a(f"buffer_store_dwordx4 {vr(V_M+8,4)}, off, {WS}, s{S_T0}")
        a(f"buffer_store_dwordx4 {vr(V_M+12,4)}, off, {WS}, s{S_T0} offset:16")
    a("s_endpgm")
```

```python
from asmlib import *

KNAME = "gated_mix__memory_aug_recurrent_mem_tr__geglu_ffn__prompt_kernel"

KA_X, KA_MEM0, KA_WQ, KA_WK, KA_WV, KA_WO = 0, 8, 16, 24, 32, 40
KA_WG, KA_WU, KA_WD, KA_GW, KA_OUT, KA_DBG, KA_WS = 64, 72, 80, 88, 96, 104, 112

WS_SIZE = 0x10000000
OOB = 0x10000000
WS_FLAG = 0x0000000
FLAG_P = 0
FLAG_A = 64
FLAG_F = 96
FLAG_G = 128
FLAG_C = 160
WS_HINT = 0x0030000
WS_MEMRING = 0x0040000
WS_G = 0x0050000
WS_STAMP = 0x0060000
WS_PART = 0x0100000
WS_KX = 0x1000000
WS_VX = 0x2000000
WS_KVM = 0x3100000
WS_FP = 0x4000000
WS_CP = 0x6000000

SPIN_LIMIT = 40000
CSCALE = (128 ** -0.5) * 1.4426950408889634

import struct
def f32bits(x): return struct.unpack('<I', struct.pack('<f', x))[0]

S_WS = 4
S_W = 8
S_D = 12
S_H = 16
S_WV = 17
S_SPIN = 18
S_T0, S_T1, S_T2, S_T3 = 19, 20, 21, 22
S_PTR = 24
S_MODE = 26

def srd(a, base, ka_off, size):
    a(f"s_load_dwordx2 s[{S_PTR}:{S_PTR+1}], s[0:1], {ka_off}")
    a("s_waitcnt lgkmcnt(0)")
    a(f"s_mov_b32 s{base}, s{S_PTR}")
    a(f"s_and_b32 s{base+1}, s{S_PTR+1}, 0xffff")
    a(f"s_mov_b32 s{base+2}, {size:#x}")
    a(f"s_mov_b32 s{base+3}, 0x20000")

def bitpat(a, dst, lane, terms, tmp, const=0):
    first = True
    for sh, mask, mul in terms:
        t = dst if first else tmp
        nb = mask.bit_length()
        assert mask == (1 << nb) - 1
        a(f"v_bfe_u32 v{t}, v{lane}, {sh}, {nb}")
        if mul & (mul - 1) == 0:
            if mul > 1: a(f"v_lshlrev_b32 v{t}, {mul.bit_length()-1}, v{t}")
        else:
            a(f"v_mul_u32_u24 v{t}, {mul}, v{t}")
        if not first: a(f"v_add_u32 v{dst}, v{dst}, v{t}")
        first = False
    if const: a(f"v_add_u32 v{dst}, {const}, v{dst}")

def chunk_src_pattern(a, dst, lane, tmp, rowbits, pitch):
    bp, brh, bg, brl = rowbits
    bitpat(a, dst, lane, [(5, 1, pitch << bp), (4, 1, pitch << bg), (3, 1, pitch << brh), (2, 1, pitch << brl), (0, 1, 16)], tmp)
    a(f"v_lshrrev_b32 v{tmp}, 3, v{lane}")
    a(f"v_xor_b32 v{tmp}, v{tmp}, v{lane}")
    a(f"v_and_b32 v{tmp}, 2, v{tmp}")
    a(f"v_lshl_add_u32 v{dst}, v{tmp}, 4, v{dst}")

def chunk_tr_pattern(a, dst, lane, tmp):
    bitpat(a, dst, lane, [(5, 1, 1024), (4, 1, 256 + 32), (3, 1, 128), (2, 1, 64), (0, 3, 8)], tmp)

def tr_off(p): return (p >> 1) * 2048 + (p & 1) * 512

S_XG = 27
S_XCC = 28

def common_srds(a):
    srd(a, S_WS, KA_WS, WS_SIZE)
    srd(a, S_D, KA_DBG, 256)

def register_wg(a, vt, lab, barrier=True):
    DB = f"s[{S_D}:{S_D+3}]"
    if barrier: a("s_barrier")
    a(f"s_cmp_lg_u32 s{S_WV}, 0")
    a(f"s_cbranch_scc1 {lab}")
    a(f"s_mul_i32 s{S_T0}, s{S_XCC}, s{S_XCC}")
    a(f"s_lshl_b32 s{S_T0}, s{S_T0}, 18")
    a(f"s_lshl_b32 s{S_T1}, s{S_XCC}, 9")
    a(f"s_add_u32 s{S_T0}, s{S_T0}, s{S_T1}")
    a(f"s_add_u32 s{S_T0}, s{S_T0}, 1")
    a(f"s_lshl_b32 s{S_T1}, s{S_XG}, 2")
    a("s_mov_b64 exec, 1")
    a(f"v_mov_b32 v{vt}, s{S_T0}")
    a(f"buffer_atomic_add v{vt}, off, {DB}, s{S_T1}")
    a("s_mov_b64 exec, -1")
    a.label(lab)

def init_issue(a, vt):
    DB = f"s[{S_D}:{S_D+3}]"
    a(f"buffer_load_dwordx4 {vr(vt,4)}, off, {DB}, 0 sc1")
    a(f"buffer_load_dwordx4 {vr(vt+4,4)}, off, {DB}, 0 offset:16 sc1")
    a(f"s_lshl_b32 s{S_T1}, s{S_XG}, 2")
    a(f"buffer_load_dword v{vt+8}, off, {DB}, s{S_T1} sc1")

def init_check(a, vt, groups, fail):
    for g in groups:
        a(f"v_readfirstlane_b32 s{S_T0}, v{vt+g}")
        a(f"s_and_b32 s{S_T0}, s{S_T0}, 0x1ff")
        a(f"s_cmp_ge_u32 s{S_T0}, 32")
        a(f"s_cbranch_scc0 {fail}")
    a(f"v_readfirstlane_b32 s{S_T0}, v{vt+8}")
    a(f"s_mul_i32 s{S_T1}, s{S_XCC}, s{S_XCC}")
    a(f"s_lshl_b32 s{S_T1}, s{S_T1}, 18")
    a(f"s_lshl_b32 s{S_T2}, s{S_XCC}, 9")
    a(f"s_add_u32 s{S_T1}, s{S_T1}, s{S_T2}")
    a(f"s_add_u32 s{S_T1}, s{S_T1}, 1")
    a(f"s_lshl_b32 s{S_T1}, s{S_T1}, 5")
    a(f"s_cmp_eq_u32 s{S_T0}, s{S_T1}")
    a(f"s_cselect_b32 s{S_MODE}, 1, 0")

def wait_init(a, vt, groups, lab, pause=16):
    a(f"s_branch {lab}_first")
    a.label(lab)
    a(f"s_sleep {pause}")
    a.label(f"{lab}_first")
    init_issue(a, vt)
    a(f"s_add_u32 s{S_SPIN}, s{S_SPIN}, 1")
    a(f"s_cmp_gt_u32 s{S_SPIN}, {SPIN_LIMIT}")
    a("s_cbranch_scc1 L_abort")
    a("s_waitcnt vmcnt(0)")
    init_check(a, vt, groups, lab)
```

```python
import sys
from common import *
import chain, rolepf, rolec

def build(opt):
    a = Asm()
    nwg = opt.get('nwg', 32)
    a("s_cmp_ge_u32 s2, 256")
    a("s_cbranch_scc1 L_exit")
    if opt.get('time'):
        a("s_memrealtime s[92:93]")
        a("s_waitcnt lgkmcnt(0)")
        a("s_mov_b32 s98, s92"); a("s_mov_b32 s99, 0"); a("s_mov_b32 s100, 0")
    a(f"s_load_dwordx8 s[{chain.S_KA}:{chain.S_KA+7}], s[0:1], {KA_WQ}")
    a(f"s_mov_b32 s{S_SPIN}, 0")
    a(f"s_lshr_b32 s{S_H}, s2, 3")
    a(f"s_and_b32 s{S_XG}, s2, 7")
    a(f"s_getreg_b32 s{S_XCC}, hwreg(HW_REG_XCC_ID, 0, 4)")
    if opt.get('hxor'): a(f"s_xor_b32 s{S_H}, s{S_H}, {opt['hxor']}")
    if opt.get('spread'):
        a(f"s_mov_b32 s{S_H}, s2")
        a(f"s_lshr_b32 s{S_XG}, s2, 5")
    full = opt.get('full', 0)
    if full:
        opt = dict(opt); opt['groups'] = list(range(8))
        a(f"s_cmp_ge_u32 s{S_XG}, 5")
        a("s_cbranch_scc1 L_role_mix")
        a(f"s_cmp_lg_u32 s{S_XG}, 0")
        a("s_cbranch_scc1 L_role_c")
    else:
        a(f"s_cmp_eq_u32 s{S_XG}, 0")
        a("s_cbranch_scc0 L_exit")
    chain.role_chain(a, opt)
    if full:
        a.label("L_role_mix")
        common_srds(a)
        a(f"s_mul_i32 s{S_H}, s{S_H}, 3")
        a(f"s_add_u32 s{S_H}, s{S_H}, s{S_XG}")
        a(f"s_sub_u32 s{S_H}, s{S_H}, 5")
        a(f"s_lshr_b32 s{S_T0}, s{S_H}, 5")
        a(f"s_and_b32 s{S_H}, s{S_H}, 31")
        a(f"s_cmp_eq_u32 s{S_T0}, 1")
        a("s_cbranch_scc1 L_role_pv")
        a(f"s_cmp_eq_u32 s{S_T0}, 2")
        a("s_cbranch_scc1 L_role_fg")
        rolepf.role_p(a, opt, 'k')
        a.label("L_role_pv")
        rolepf.role_p(a, opt, 'v')
        a.label("L_role_fg")
        a(f"s_cmp_ge_u32 s{S_H}, 28")
        a("s_cbranch_scc1 L_role_g")
        rolepf.role_f(a, opt)
        a.label("L_role_g")
        rolepf.role_g(a, opt)
        a.label("L_role_c")
        common_srds(a)
        rolec.role_c(a, opt)
    a.label("L_abort")
    a("s_mov_b64 exec, -1")
    a("v_mov_b32 v0, 0xdead")
    a(f"buffer_store_dword v0, off, s[{S_D}:{S_D+3}], 0 offset:60")
    a.label("L_exit")
    a("s_endpgm")
    a.label("L_done")
    if opt.get('time'):
        a("s_waitcnt vmcnt(0)")
        a("s_memrealtime s[96:97]")
        a("s_waitcnt lgkmcnt(0)")
        a("s_lshl_b32 s19, s2, 4")
        a(f"s_add_u32 s19, s19, {WS_STAMP + 0x10000}")
        a("v_mov_b32 v0, s96"); a("v_mov_b32 v1, s98"); a("v_mov_b32 v2, s99"); a("v_mov_b32 v3, s100")
        a(f"buffer_store_dwordx4 v[0:3], off, s[{S_WS}:{S_WS+3}], s19")
    a("s_endpgm")
    a.label("L_code_end")
    autowait(a, opt.get('verbose'))
    a.pad(opt.get('verbose'))
    head = f"""; @launch grid=(256,1,1) block=(256,1,1) lds={chain.LDS_BYTES}
.amdgcn_target "amdgcn-amd-amdhsa--gfx950"
.text
.globl {KNAME}
.p2align 8
.type {KNAME},@function
{KNAME}:
"""
    tail = f""".section .rodata,"a"
.p2align 6
.amdhsa_kernel {KNAME}
  .amdhsa_next_free_vgpr 512
  .amdhsa_next_free_sgpr 102
  .amdhsa_accum_offset 256
  .amdhsa_group_segment_fixed_size 0
  .amdhsa_kernarg_size 120
  .amdhsa_user_sgpr_count 2
  .amdhsa_user_sgpr_kernarg_segment_ptr 1
  .amdhsa_system_sgpr_workgroup_id_x 1
  .amdhsa_float_denorm_mode_32 3
.end_amdhsa_kernel
"""
    return head + a.text() + tail

if __name__ == "__main__":
    opt = eval(sys.argv[2]) if len(sys.argv) > 2 else {}
    open(sys.argv[1], "w").write(build(opt))
```

```python
from stream import *
from rolepf import clear_flag, late_start, S_FLG

KXB = 73728
KMB = 81920
S_CNT = 43
S_C = 44
S_GRP = 45
S_KV = 46
S_KVM = 47
S_PST, S_INB = 48, 49
S_FP = 50
S_NEED = 51
S_FLPA = 52
S_FLC = 53
S_FLF = 54
S_OUTO = 55
S_GO = 56
S_PSTB, S_INBB = 57, 58
S_MASK = 60
S_SELM = 76
S_LM2 = 84
S_LM32 = 86
S_LMF = 88
S_O = 92

V_EXW, V_EXR, V_QRD, V_KMW, V_KMR, V_OWR, V_FLG, V_INB, V_INBF, V_OUT, V_GOF, V_SELX, V_VRD, V_L4 = range(9, 23)
V_ONES = 24
V_PB = 28
XF, AQ = 32, 48
QF = 64
KF = 80
VF = 128
VM = 144
KM = 148
SS = 152
OA = 164
HF = 184
AO = 216
TM = 232
WQ, WO = 256, 384

def role_c(a, opt):
    WS = f"s[{S_WS}:{S_WS+3}]"
    NG = opt.get('ng', 4)
    L, T = 127, 126
    if opt.get('warm_llc', 1):
        a(f"v_lshlrev_b32 v1, 4, v0")
        a(f"s_sub_u32 s{S_T0}, s{S_XG}, 1")
        a(f"s_lshl_b32 s{S_T1}, s{S_H}, 2")
        a(f"s_add_u32 s{S_T0}, s{S_T0}, s{S_T1}")
        a(f"s_lshl_b32 s{S_T0}, s{S_T0}, 12")
        for j in range(4):
            d = S_DESC[0]
            a(f"s_mov_b32 s{d}, s{84 + 2*j}")
            a(f"s_and_b32 s{d+1}, s{85 + 2*j}, 0xffff")
            a(f"s_mov_b32 s{d+2}, 0x400000")
            a(f"s_mov_b32 s{d+3}, 0x20000")
            a(f"s_mov_b32 s{S_T1}, s{S_T0}")
            for u in range(8):
                a(f"buffer_load_dwordx4 {vr(128 + 4 * (8*j + u), 4)}, v1, s[{d}:{d+3}], s{S_T1} offen")
                if u < 7: a(f"s_add_u32 s{S_T1}, s{S_T1}, {128 * 4096}")
    setup(a)
    a(f"s_sub_u32 s{S_GRP}, s{S_XG}, 1")
    a(f"s_lshl_b32 s{S_T2}, s{S_GRP}, 5")
    a(f"s_add_u32 s{S_T2}, s{S_T2}, s{S_H}")
    clear_flag(a, FLAG_C, S_T2)
    late_start(a, opt, "L_c")
    srd(a, S_DESC[0], KA_WQ, 0x400000)
    srd(a, S_DESC[1], KA_WO, 0x400000)
    col = [f"s_lshl_b32 s{S_T0}, s{S_H}, 8", f"s_lshl_b32 s{S_T1}, s{S_WV}, 6", f"s_add_u32 s{S_T0}, s{S_T0}, s{S_T1}"]
    load_weights(a, proj_chunks(S_DESC[0], 8192, col, WQ) + out_chunks(S_DESC[1], [f"s_lshl_b32 s{S_T0}, s{S_H}, 17"], WO),
                 lambda a: None)
    srd(a, S_O, KA_OUT, 2048 * 1024)
    a(f"s_mov_b32 s{S_C}, {f32bits(CSCALE):#x}")
    a(f"v_add_u32 v{V_EXW}, {EXB}, v{V_P1K}")
    a(f"v_add_u32 v{V_EXR}, {EXB}, v{V_L16}")
    a(f"s_and_b32 s{S_T0}, s{S_WV}, 1")
    a(f"s_lshr_b32 s{S_T1}, s{S_WV}, 1")
    a(f"s_lshl_b32 s{S_T2}, s{S_T0}, 12")
    a(f"v_add_u32 v{V_QRD}, s{S_T2}, v{V_EXR}")
    a(f"s_lshl_b32 s{S_T3}, s{S_T1}, 11")
    a(f"v_add_u32 v{V_OWR}, s{S_T3}, v{V_QRD}")
    a(f"s_lshl_b32 s{S_T3}, s{S_T1}, 12")
    a(f"v_add_u32 v{V_VRD}, s{S_T3}, v{V_L16}")
    a(f"s_lshl_b32 s{S_T2}, s{S_T0}, 4")
    a(f"v_and_b32 v{V_T0}, 15, v{L}")
    a(f"v_add_u32 v{V_T0}, s{S_T2}, v{V_T0}")
    bitpat(a, V_T1, L, [(4, 3, 4)], T)
    a(f"v_sub_u32 v{V_T0}, v{V_T0}, v{V_T1}")
    for Tt in range(2):
        for r in range(4):
            k = S_MASK + 2 * (4 * Tt + r)
            a(f"v_cmp_le_i32 s[{k}:{k+1}], {16*Tt + r}, v{V_T0}")
    bitpat(a, V_KMW, L, [(5, 1, 8), (0, 15, 1)], T)
    a(f"v_and_b32 v{V_KMW}, 15, v{V_KMW}")
    a(f"v_and_b32 v{T}, 48, v{L}")
    a(f"v_add_u32 v{V_KMW}, v{V_KMW}, v{T}")
    a(f"v_lshlrev_b32 v{V_KMW}, 3, v{V_KMW}")
    a(f"s_lshl_b32 s{S_T0}, s{S_WV}, 10")
    a(f"s_add_u32 s{S_T0}, s{S_T0}, {KMB}")
    a(f"v_add_u32 v{V_KMW}, s{S_T0}, v{V_KMW}")
    bitpat(a, V_KMR, L, [(1, 1, 8), (2, 15, 1)], T)
    a(f"v_and_b32 v{V_KMR}, 15, v{V_KMR}")
    a(f"v_and_b32 v{T}, 3, v{L}")
    a(f"v_lshl_add_u32 v{V_KMR}, v{T}, 4, v{V_KMR}")
    a(f"v_lshlrev_b32 v{V_KMR}, 3, v{V_KMR}")
    a(f"v_add_u32 v{V_KMR}, {KMB}, v{V_KMR}")
    for r in range(4):
        a(f"v_mov_b32 v{V_ONES+r}, 0x3f803f80")
        a(f"v_mov_b32 v{V_PB+r}, 0")
    a(f"v_add_u32 v{V_T0}, {KMB}, v{V_P1K}")
    a(f"ds_write_b128 v{V_T0}, {vr(V_PB,4)}")
    a(f"v_lshlrev_b32 v{V_FLG}, 7, v{L}")
    a(f"v_lshlrev_b32 v{V_L4}, 2, v{L}")
    a(f"v_cmp_gt_u32 s[{S_LM32}:{S_LM32+1}], 32, v{L}")
    a(f"s_lshl_b32 s{S_T0}, s{S_H}, 7")
    a(f"s_add_u32 s{S_FLPA}, s{S_T0}, {WS_FLAG + FLAG_P * 128}")
    a(f"s_lshl_b32 s{S_T0}, s{S_GRP}, 12")
    a(f"s_add_u32 s{S_FLC}, s{S_T0}, {WS_FLAG + FLAG_C * 128}")
    a(f"s_mov_b32 s{S_FLF}, {WS_FLAG + FLAG_F * 128}")
    a(f"s_mov_b64 s[{S_LM2}:{S_LM2+1}], 0")
    a(f"s_bitset1_b64 s[{S_LM2}:{S_LM2+1}], 0")
    bitpat(a, V_INB, L, [(4, 3, 1024), (0, 15, 16)], T)
    a(f"s_lshl_b32 s{S_T0}, s{S_WV}, 8")
    a(f"v_add_u32 v{V_INB}, s{S_T0}, v{V_INB}")
    bitpat(a, V_T0, L, [(5, 1, OOB)], T)
    a(f"v_add_u32 v{V_INBF}, v{V_T0}, v{V_INB}")
    bitpat(a, V_GOF, L, [(2, 1, 16), (0, 3, 1)], T)
    a(f"s_lshl_b32 s{S_T0}, s{S_WV}, 2")
    a(f"v_add_u32 v{V_GOF}, s{S_T0}, v{V_GOF}")
    bitpat(a, V_OUT, L, [(4, 3, 8), (3, 1, OOB)], T)
    a(f"v_lshl_add_u32 v{V_OUT}, v{V_GOF}, 10, v{V_OUT}")
    a(f"v_lshlrev_b32 v{V_GOF}, 2, v{V_GOF}")
    a(f"v_and_b32 v{T}, 1, v{L}")
    a(f"v_cmp_eq_u32 vcc, 1, v{T}")
    a(f"v_mov_b32 v{V_SELX}, 0x3f80")
    a(f"v_mov_b32 v{T}, 0x3f800000")
    a(f"v_cndmask_b32 v{V_SELX}, v{V_SELX}, v{T}, vcc")
    a(f"v_bfe_u32 v{T}, v{L}, 1, 3")
    for r in range(4):
        a(f"v_cmp_eq_u32 s[{S_SELM+2*r}:{S_SELM+2*r+1}], {r}, v{T}")
    a(f"s_lshl_b32 s{S_T0}, s{S_GRP}, 21")
    a(f"s_add_u32 s{S_T0}, s{S_T0}, {WS_CP}")
    a(f"s_lshl_b32 s{S_T1}, s{S_H}, 10")
    a(f"s_add_u32 s{S_PSTB}, s{S_T0}, s{S_T1}")
    a(f"s_lshl_b32 s{S_T1}, s{S_WV}, 18")
    a(f"s_add_u32 s{S_PSTB}, s{S_PSTB}, s{S_T1}")
    a(f"s_lshl_b32 s{S_T1}, s{S_H}, 15")
    a(f"s_add_u32 s{S_INBB}, s{S_T0}, s{S_T1}")
    a(f"s_mov_b32 s{S_SEG}, s{S_GRP}")
    a(f"s_mov_b32 s{S_CNT}, 0")
    x_issue(a, 0, S_SEG)
    wait_init(a, TM, opt['groups'], "L_c_init2")
    a("s_waitcnt lgkmcnt(0)")
    a(f"s_cmp_eq_u32 s{S_MODE}, {opt.get('fastmode', 1)}")
    a("s_cbranch_scc0 L_cS_loop")
    for tag, st in (("L_cF", ""), ("L_cS", "sc1")):
        a.label(f"{tag}_loop")
        for par in range(2):
            segment(a, par, st, f"{tag}{par}", NG, opt)
            a(f"s_cmp_ge_u32 s{S_SEG}, 64")
            a("s_cbranch_scc1 L_done")
        a(f"s_branch {tag}_loop")

def segment(a, par, st, tag, NG, opt):
    WS = f"s[{S_WS}:{S_WS+3}]"
    a("s_waitcnt vmcnt(0)")
    a("s_barrier")
    a(f"s_add_u32 s{S_T2}, s{S_SEG}, {NG}")
    a(f"s_min_u32 s{S_T2}, s{S_T2}, 63")
    xi = x_issue_groups(1 - par, S_T2)
    a(f"s_lshl_b32 s{S_T0}, s{S_SEG}, 5")
    a(f"s_add_u32 s{S_T0}, s{S_T0}, s{S_H}")
    a(f"s_lshl_b32 s{S_KV}, s{S_T0}, 13")
    a(f"s_lshl_b32 s{S_KVM}, s{S_T0}, 12")
    a(f"s_add_u32 s{S_KVM}, s{S_KVM}, {WS_KVM}")
    a(f"s_add_u32 s{S_NEED}, s{S_SEG}, 1")
    def mm(ks, xf):
        o = []
        for t in range(2):
            for tt in range(2):
                d = AQ + (tt * 2 + t) * 4
                o.append(mf32(d, ur(WQ + (t * 16 + ks) * 4, 4), xf[tt], "0" if ks == 0 else vr(d, 4)))
        if ks < len(xi): o[2] += "\n" + xi[ks]
        return o
    proj_phase(a, par, XF, mm)
    for tt in range(2):
        d = AQ + 8 * tt
        for r in range(4): a(f"v_cvt_pk_bf16_f32 v{d+r}, v{d+2*r}, v{d+2*r+1}")
        a(f"ds_write_b128 v{V_EXW}, {vr(d,4)} offset:{tt*4096}")
    poll_flags(a, f"{tag}_pp", TM, V_FLG, S_FLPA, S_NEED, S_LM2, halves=True)
    a(f"s_lshl_b32 s{S_T0}, s{S_WV}, 10")
    a(f"s_add_u32 s{S_T1}, s{S_KV}, s{S_T0}")
    a(f"s_add_u32 s{S_T1}, s{S_T1}, {WS_KX}")
    a(f"s_lshl_b32 s{S_T0}, s{S_WV}, 11")
    a(f"s_add_u32 m0, s{S_T0}, {KXB}")
    a(f"s_add_u32 s{S_T2}, s{S_KV}, {WS_VX}")
    for j in range(2): a(f"buffer_load_dwordx4 v{V_P1K}, {WS}, s{S_T1} offen offset:{j*1024} sc1 lds")
    for j in range(4): a(f"buffer_load_dwordx4 {vr(VF + 4*j, 4)}, v{V_VRD}, {WS}, s{S_T2} offen offset:{j*1024} sc1")
    a(f"s_add_u32 s{S_T3}, s{S_FLPA}, {(FLAG_A - FLAG_P) * 128}")
    poll_flags(a, f"{tag}_pa", TM, V_FLG, S_T3, S_NEED, S_LM2)
    if opt.get('time'):
        a("s_memrealtime s[96:97]"); a("s_waitcnt lgkmcnt(0)"); a("s_mov_b32 s99, s96")
    a(f"s_lshr_b32 s{S_T0}, s{S_WV}, 1")
    a(f"s_lshl_b32 s{S_T0}, s{S_T0}, 11")
    a(f"s_add_u32 s{S_T0}, s{S_T0}, s{S_KVM}")
    a(f"buffer_load_dwordx2 {vr(KM,2)}, v{V_P1K}, {WS}, s{S_KVM} offen sc1")
    for j in range(2): a(f"buffer_load_dwordx2 {vr(VM + 2*j, 2)}, v{V_L16}, {WS}, s{S_T0} offen offset:{j*1024 + 8} sc1")
    a(f"ds_write_b32 v{V_KMW}, v{KM}")
    a(f"ds_write_b32 v{V_KMW}, v{KM+1} offset:512")
    a("s_waitcnt lgkmcnt(0)")
    a("s_barrier")
    for i in range(4): a(f"ds_read_b128 {vr(QF + 4*i, 4)}, v{V_QRD} offset:{i*1024}")
    for j in range(8): a(f"ds_read_b128 {vr(KF + 4*j, 4)}, v{V_EXR} offset:{KXB - EXB + j*1024}")
    for i in range(4):
        for hh in range(2): a(f"ds_read_b64_tr_b16 {vr(KF + 32 + 4*i + 2*hh, 2)}, v{V_KMR} offset:{i*1024 + hh*512}")
    for i in range(4):
        for Tt in range(3):
            d = SS + 4 * Tt
            a(mf32(d, vr(KF + 16*Tt + 4*i, 4), vr(QF + 4*i, 4), "0" if i == 0 else vr(d, 4)))
    SM = SS + 8
    NEG, MX, T2 = TM, TM + 1, TM + 2
    a(f"v_mov_b32 v{NEG}, 0xff800000")
    for r in range(8): a(f"v_cndmask_b32 v{SS+r}, v{NEG}, v{SS+r}, s[{S_MASK+2*r}:{S_MASK+2*r+1}]")
    a(f"v_mul_f32 v{SM}, s{S_C}, v{SM}")
    a(f"v_mul_f32 v{SM+1}, s{S_C}, v{SM+1}")
    a(f"v_max3_f32 v{MX}, v{SM}, v{SM+1}, v{SS}")
    for r in range(1, 7, 2): a(f"v_max3_f32 v{MX}, v{MX}, v{SS+r}, v{SS+r+1}")
    a(f"v_max_f32 v{MX}, v{MX}, v{SS+7}")
    for sw in ("v_permlane16_swap_b32", "v_permlane32_swap_b32"):
        a(f"v_mov_b32 v{T2}, v{MX}")
        a(f"{sw} v{MX}, v{T2}")
        a(f"v_max_f32 v{MX}, v{MX}, v{T2}")
    for r in range(10): a(f"v_sub_f32 v{SS+r}, v{SS+r}, v{MX}")
    for r in range(10): a(f"v_exp_f32 v{SS+r}, v{SS+r}")
    for r in range(4): a(f"v_cvt_pk_bf16_f32 v{SS+r}, v{SS+2*r}, v{SS+2*r+1}")
    a(f"v_cvt_pk_bf16_f32 v{V_PB}, v{SM}, v{SM+1}")
    a(f"v_cvt_pk_bf16_f32 v{V_PB+3}, v{SM}, v{SM+1}")
    LA = OA + 16
    a(mf32(LA, vr(V_ONES, 4), vr(SS, 4), "0"))
    for j in range(4): a(mf32(OA + 4*j, vr(VF + 4*j, 4), vr(SS, 4), "0"))
    a(mf16(LA, vr(V_ONES, 2), vr(V_PB, 2), vr(LA, 4)))
    for j in range(4): a(mf16(OA + 4*j, vr(VM + 2*(j >> 1), 2), vr(V_PB + 2*(j & 1), 2), vr(OA + 4*j, 4)))
    if opt.get('dumpc'):
        a("s_nop 7")
        a(f"s_lshl_b32 s{S_T0}, s{S_GRP}, 5"); a(f"s_add_u32 s{S_T0}, s{S_T0}, s{S_H}"); a(f"s_lshl_b32 s{S_T0}, s{S_T0}, 2")
        a(f"s_add_u32 s{S_T0}, s{S_T0}, s{S_WV}"); a(f"s_lshl_b32 s{S_T0}, s{S_T0}, 14"); a(f"s_add_u32 s{S_T0}, s{S_T0}, 0x8000000")
        for j, r in enumerate((QF, KF, KF + 32, VF, SS, V_PB, OA, LA, VM, TM, V_ONES, SS + 8)):
            a(f"buffer_store_dwordx4 {vr(r,4)}, v{V_L16}, {WS}, s{S_T0} offen")
            a(f"s_add_u32 s{S_T0}, s{S_T0}, 1024")
    a(f"v_rcp_f32 v{T2}, v{LA}")
    for r in range(16): a(f"v_mul_f32 v{OA+r}, v{OA+r}, v{T2}")
    for r in range(8): a(f"v_cvt_pk_bf16_f32 v{OA+r}, v{OA+2*r}, v{OA+2*r+1}")
    a("s_barrier")
    for j in range(2): a(f"ds_write_b128 v{V_OWR}, {vr(OA + 4*j, 4)} offset:{j*1024}")
    a(f"s_and_b32 s{S_T0}, s{S_CNT}, 1")
    a(f"s_lshl_b32 s{S_T0}, s{S_T0}, 20")
    a(f"s_add_u32 s{S_PST}, s{S_PSTB}, s{S_T0}")
    a(f"s_add_u32 s{S_INB}, s{S_INBB}, s{S_T0}")
    a(f"s_add_u32 s{S_CNT}, s{S_CNT}, 1")
    a("s_waitcnt lgkmcnt(0)")
    a("s_barrier")
    for j in range(8): a(f"ds_read_b128 {vr(HF + 4*j, 4)}, v{V_EXR} offset:{j*1024}")
    def store(ct, reg):
        return f"s_add_u32 s{S_T0}, s{S_PST}, {ct * 32768}\nbuffer_store_dwordx4 {vr(reg,4)}, v{V_L16}, {WS}, s{S_T0} offen {st}"
    out_phase(a, HF, WO, AO, store)
    a("s_waitcnt vmcnt(0)")
    a("s_barrier")
    flag_store(a, TM, S_CNT, S_FLG, f"{tag}_nf", st)
    if opt.get('time'):
        a("s_memrealtime s[96:97]"); a("s_waitcnt lgkmcnt(0)"); a("s_mov_b32 s100, s96")
    SEL, RA, RB, GV = TM + 4, TM + 8, TM + 12, TM + 3
    for r in range(4): a(f"v_cndmask_b32 v{SEL+r}, 0, v{V_SELX}, s[{S_SELM+2*r}:{S_SELM+2*r+1}]")
    a(f"s_and_b32 s{S_T0}, s{S_SEG}, 1")
    a(f"s_mul_i32 s{S_T0}, s{S_T0}, 14")
    a(f"s_lshl_b64 s[{S_LMF}:{S_LMF+1}], 0x3fff, s{S_T0}")
    a(f"s_or_b32 s{S_LMF}, s{S_LMF}, 0xf0000000")
    a(f"s_lshr_b32 s{S_NEED}, s{S_SEG}, 1")
    a(f"s_add_u32 s{S_NEED}, s{S_NEED}, 1")
    poll_flags(a, f"{tag}_pf", TM, V_FLG, S_FLF, S_NEED, S_LMF)
    a(f"s_lshl_b32 s{S_FP}, s{S_SEG}, 19")
    a(f"s_lshl_b32 s{S_T0}, s{S_H}, 14")
    a(f"s_add_u32 s{S_FP}, s{S_FP}, s{S_T0}")
    a(f"s_add_u32 s{S_FP}, s{S_FP}, {WS_FP}")
    for i in range(4):
        a(f"buffer_load_dwordx4 {vr(KF + 4*i, 4)}, v{V_INBF if i == 3 else V_INB}, {WS}, s{S_FP} offen sc1")
        if i < 3: a(f"s_add_u32 s{S_FP}, s{S_FP}, 4096")
    a(f"s_lshl_b32 s{S_GO}, s{S_SEG}, 7")
    a(f"s_add_u32 s{S_GO}, s{S_GO}, {WS_G}")
    a(f"buffer_load_dword v{GV}, v{V_GOF}, {WS}, s{S_GO} offen sc1")
    poll_flags(a, f"{tag}_pc", TM, V_FLG, S_FLC, S_CNT, S_LM32)
    for i in range(8):
        a(f"buffer_load_dwordx4 {vr(HF + 4*i, 4)}, v{V_INB}, {WS}, s{S_INB} offen sc1")
        if i < 7: a(f"s_add_u32 s{S_INB}, s{S_INB}, 4096")
    for i in range(4): a(mf32(RB, vr(KF + 4*i, 4), vr(SEL, 4), "0" if i == 0 else vr(RB, 4)))
    OM = TM
    a(f"v_sub_f32 v{OM}, 1.0, v{GV}")
    a(f"v_cvt_pk_bf16_f32 v{OM}, v{OM}, v{OM}")
    a(f"v_and_b32 v{OM}, 0xffff0000, v{OM}")
    def rnd(R):
        a(f"v_cvt_pk_bf16_f32 v{R}, v{R}, v{R+1}")
        a(f"v_cvt_pk_bf16_f32 v{R+2}, v{R+2}, v{R+3}")
        for q in (0, 2):
            a(f"v_and_b32 v{R+q+1}, 0xffff0000, v{R+q}")
            a(f"v_lshlrev_b32 v{R+q}, 16, v{R+q}")
    rnd(RB)
    for r in range(4): a(f"v_mul_f32 v{RB+r}, v{RB+r}, v{OM}")
    rnd(RB)
    for i in range(8): a(mf32(RA, vr(HF + 4*i, 4), vr(SEL, 4), "0" if i == 0 else vr(RA, 4)))
    rnd(RA)
    for r in range(4): a(f"v_mul_f32 v{RA+r}, v{RA+r}, v{GV}")
    rnd(RA)
    for r in range(4): a(f"v_add_f32 v{RA+r}, v{RA+r}, v{RB+r}")
    a(f"v_cvt_pk_bf16_f32 v{RA}, v{RA}, v{RA+1}")
    a(f"v_cvt_pk_bf16_f32 v{RA+1}, v{RA+2}, v{RA+3}")
    a(f"s_lshl_b32 s{S_OUTO}, s{S_SEG}, 15")
    a(f"s_lshl_b32 s{S_T0}, s{S_H}, 5")
    a(f"s_add_u32 s{S_OUTO}, s{S_OUTO}, s{S_T0}")
    a(f"buffer_store_dwordx2 {vr(RA,2)}, v{V_OUT}, s[{S_O}:{S_O+3}], s{S_OUTO} offen")
    a(f"s_add_u32 s{S_SEG}, s{S_SEG}, {NG}")
```

```python
from stream import *

S_FLG = 40
S_OUT0, S_OUT1 = 41, 42
S_CNT = 43
S_C = 44

def clear_flag(a, line_base, idx_sgpr):
    WS = f"s[{S_WS}:{S_WS+3}]"
    a(f"s_lshl_b32 s{S_FLG}, s{idx_sgpr}, 7")
    a(f"s_add_u32 s{S_FLG}, s{S_FLG}, {WS_FLAG + line_base * 128}")
    a(f"v_mov_b32 v{V_T0}, 0")
    a(f"buffer_store_dword v{V_T0}, off, {WS}, s{S_FLG} sc1")

def role_p(a, opt, kind):
    WS = f"s[{S_WS}:{S_WS+3}]"
    K = kind == 'k'
    tg = f"L_p{kind}"
    half = 0 if K else 2
    setup(a)
    a(f"s_lshl_b32 s{S_FLG}, s{S_H}, 7")
    a(f"s_add_u32 s{S_FLG}, s{S_FLG}, {WS_FLAG + FLAG_P * 128 + half}")
    a(f"v_mov_b32 v{V_T0}, 0")
    a(f"buffer_store_short v{V_T0}, off, {WS}, s{S_FLG} sc1")
    srd(a, S_DESC[0], KA_WK if K else KA_WV, 0x400000)
    col = [f"s_lshl_b32 s{S_T0}, s{S_H}, 8", f"s_lshl_b32 s{S_T1}, s{S_WV}, 6", f"s_add_u32 s{S_T0}, s{S_T0}, s{S_T1}"]
    W = 128
    a(f"s_mov_b32 s{S_SEG}, 0")
    load_weights(a, proj_chunks(S_DESC[0], 8192, col, W), lambda a: register_wg(a, V_T1, f"{tg}_noreg"))
    x_issue(a, 0, S_SEG)
    a(f"s_mov_b32 s{S_C}, {f32bits(CSCALE):#x}")
    a(f"s_lshl_b32 s{S_T0}, s{S_H}, 13")
    if K:
        a(f"s_add_u32 s{S_OUT0}, s{S_T0}, {WS_KX}")
    else:
        a(f"s_lshl_b32 s{S_T1}, s{S_WV}, 10")
        a(f"s_add_u32 s{S_T0}, s{S_T0}, s{S_T1}")
        a(f"s_add_u32 s{S_OUT0}, s{S_T0}, {WS_VX}")
    a("s_waitcnt vmcnt(0)")
    XF, AC = 16, 32
    if opt.get('time'):
        a("s_memrealtime s[96:97]"); a("s_waitcnt lgkmcnt(0)"); a("s_mov_b32 s99, s96")
    a.label(f"{tg}_loop")
    for par in range(2):
        a("s_waitcnt vmcnt(2)")
        a("s_barrier")
        a(f"s_add_u32 s{S_T2}, s{S_SEG}, 1")
        a(f"s_min_u32 s{S_T2}, s{S_T2}, 63")
        xi = x_issue_groups(1 - par, S_T2)
        def mm(ks, xf):
            o = []
            for t in range(2):
                for tt in range(2):
                    w = ur(W + (t * 16 + ks) * 4, 4)
                    d = AC + ((tt * 2 + t) if K else (t * 2 + tt)) * 4
                    c = "0" if ks == 0 else vr(d, 4)
                    o.append(mf32(d, w, xf[tt], c) if K else mf32(d, xf[tt], w, c))
            if ks < len(xi): o[2] += "\n" + xi[ks]
            return o
        proj_phase(a, par, XF, mm)
        a("s_waitcnt vmcnt(8)")
        a("s_barrier")
        flag_store(a, V_T0, S_SEG, S_FLG, f"{tg}_nf{par}", op="buffer_store_short")
        for j in range(2):
            d = AC + j * 8
            if K:
                for r in range(8): a(f"v_mul_f32 v{d+r}, s{S_C}, v{d+r}")
            for r in range(4): a(f"v_cvt_pk_bf16_f32 v{d+r}, v{d+2*r}, v{d+2*r+1}")
            if K and j: a(f"s_add_u32 s{S_T0}, s{S_OUT0}, 4096")
            if K: a(f"buffer_store_dwordx4 {vr(d,4)}, v{V_P1K}, {WS}, s{S_T0 if j else S_OUT0} offen sc1")
            else: a(f"buffer_store_dwordx4 {vr(d,4)}, v{V_P1K}, {WS}, s{S_OUT0} offen offset:{j*1024} sc1")
        a(f"s_add_u32 s{S_OUT0}, s{S_OUT0}, {32*8192}")
        a(f"s_add_u32 s{S_SEG}, s{S_SEG}, 1")
    a(f"s_cmp_lt_u32 s{S_SEG}, 64")
    a(f"s_cbranch_scc1 {tg}_loop")
    a("s_waitcnt vmcnt(0)")
    a("s_barrier")
    flag_store(a, V_T0, S_SEG, S_FLG, f"{tg}_nfe", op="buffer_store_short")
    a("s_branch L_done")

def late_start(a, opt, tag):
    WS = f"s[{S_WS}:{S_WS+3}]"
    a("s_waitcnt vmcnt(0)")
    register_wg(a, V_T1, f"{tag}_noreg")
    if not opt.get('late', 0): return
    a(f"s_cmp_lg_u32 s{S_WV}, 0")
    a(f"s_cbranch_scc1 {tag}_go")
    wait_init(a, 16, [5, 6, 7], f"{tag}_init", 64)
    a(f"s_and_b32 s{S_T0}, s{S_H}, 31")
    a(f"s_lshl_b32 s{S_T0}, s{S_T0}, 7")
    a(f"s_add_u32 s{S_T3}, s{S_T0}, {WS_FLAG + FLAG_P * 128}")
    a.label(f"{tag}_late")
    a(f"buffer_load_dword v16, off, {WS}, s{S_T3} sc1")
    a(f"s_add_u32 s{S_SPIN}, s{S_SPIN}, 1")
    a(f"s_cmp_gt_u32 s{S_SPIN}, {SPIN_LIMIT}")
    a("s_cbranch_scc1 L_abort")
    a("s_waitcnt vmcnt(0)")
    a(f"v_readfirstlane_b32 s{S_T0}, v16")
    a(f"s_cmp_lg_u32 s{S_T0}, 0")
    a(f"s_cbranch_scc1 {tag}_go")
    a("s_sleep 32")
    a(f"s_branch {tag}_late")
    a.label(f"{tag}_go")
    a("s_barrier")

def role_f(a, opt):
    WS = f"s[{S_WS}:{S_WS+3}]"
    S_F, S_R = 45, 46
    S_GA, S_GB = 47, 48
    setup(a)
    clear_flag(a, FLAG_F, S_H)
    a(f"s_cmp_ge_u32 s{S_H}, 14")
    a(f"s_cselect_b32 s{S_R}, 1, 0")
    a(f"s_cselect_b32 s{S_T0}, 14, 0")
    a(f"s_sub_u32 s{S_F}, s{S_H}, s{S_T0}")
    late_start(a, opt, "L_f")
    srd(a, S_DESC[0], KA_WG, 512 * 3584)
    srd(a, S_DESC[1], KA_WU, 512 * 3584)
    srd(a, S_DESC[2], KA_WD, 1792 * 1024)
    col = [f"s_lshl_b32 s{S_T0}, s{S_F}, 8", f"s_lshl_b32 s{S_T1}, s{S_WV}, 6", f"s_add_u32 s{S_T0}, s{S_T0}, s{S_T1}"]
    WG, WU, WD = 256, 384, 128
    load_weights(a, proj_chunks(S_DESC[0], 3584, col, WG) + proj_chunks(S_DESC[1], 3584, col, WU)
                 + out_chunks(S_DESC[2], [f"s_lshl_b32 s{S_T0}, s{S_F}, 17"], WD),
                 lambda a: None)
    k = -2.0 * (2.0 / 3.141592653589793) ** 0.5 * 1.4426950408889634
    a(f"s_mov_b32 s{S_GA}, {f32bits(0.044715 * k):#x}")
    a(f"s_mov_b32 s{S_GB}, {f32bits(k):#x}")
    a(f"s_lshl_b32 s{S_OUT0}, s{S_R}, 19")
    a(f"s_lshl_b32 s{S_T0}, s{S_WV}, 17")
    a(f"s_add_u32 s{S_OUT0}, s{S_OUT0}, s{S_T0}")
    a(f"s_lshl_b32 s{S_T0}, s{S_F}, 10")
    a(f"s_add_u32 s{S_OUT0}, s{S_OUT0}, s{S_T0}")
    a(f"s_add_u32 s{S_OUT0}, s{S_OUT0}, {WS_FP}")
    a(f"s_mov_b32 s{S_SEG}, s{S_R}")
    a(f"s_mov_b32 s{S_CNT}, -1")
    V_GB = 9
    a(f"v_mov_b32 v{V_GB}, s{S_GB}")
    V_EXW, V_EXR = 10, 11
    a(f"v_add_u32 v{V_EXW}, {EXB}, v{V_P1K}")
    a(f"v_add_u32 v{V_EXR}, {EXB}, v{V_L16}")
    x_issue(a, 0, S_SEG)
    a("s_waitcnt vmcnt(0)")
    XF, AG, AU, HF, AO, TM = 16, 32, 48, 64, 96, 112
    if opt.get('time'):
        a("s_memrealtime s[96:97]"); a("s_waitcnt lgkmcnt(0)"); a("s_mov_b32 s99, s96")
    a.label("L_f_loop")
    for par in range(2):
        a("s_waitcnt vmcnt(8)")
        a("s_barrier")
        a(f"s_add_u32 s{S_T2}, s{S_SEG}, 2")
        a(f"s_min_u32 s{S_T2}, s{S_T2}, 63")
        a(f"s_max_i32 s{S_T3}, s{S_CNT}, 0")
        flag_store(a, V_T0, S_T3, S_FLG, f"L_f_nf{par}")
        xi = x_issue_groups(1 - par, S_T2)
        a(f"s_add_u32 s{S_CNT}, s{S_CNT}, 1")
        def mm(ks, xf):
            o = []
            for base, W in ((AG, WG), (AU, WU)):
                for t in range(2):
                    for tt in range(2):
                        d = base + (tt * 2 + t) * 4
                        o.append(mf32(d, ur(W + (t * 16 + ks) * 4, 4), xf[tt], "0" if ks == 0 else vr(d, 4)))
            if ks < len(xi): o[3] += "\n" + xi[ks]
            return o
        proj_phase(a, par, XF, mm)
        for tt in range(2):
            G, U = AG + 8 * tt, AU + 8 * tt
            for r in range(4): a(f"v_cvt_pk_bf16_f32 v{TM+r}, v{G+2*r}, v{G+2*r+1}")
            for r in range(4): a(f"v_cvt_pk_bf16_f32 v{TM+4+r}, v{U+2*r}, v{U+2*r+1}")
            for r in range(4):
                a(f"v_lshlrev_b32 v{G+2*r}, 16, v{TM+r}")
                a(f"v_and_b32 v{G+2*r+1}, 0xffff0000, v{TM+r}")
                a(f"v_lshlrev_b32 v{U+2*r}, 16, v{TM+4+r}")
                a(f"v_and_b32 v{U+2*r+1}, 0xffff0000, v{TM+4+r}")
            for r in range(8): a(f"v_mul_f32 v{TM+r}, v{G+r}, v{G+r}")
            for r in range(8): a(f"v_fma_f32 v{TM+r}, v{TM+r}, s{S_GA}, v{V_GB}")
            for r in range(8): a(f"v_mul_f32 v{TM+r}, v{TM+r}, v{G+r}")
            for r in range(8): a(f"v_exp_f32 v{TM+r}, v{TM+r}")
            for r in range(8): a(f"v_add_f32 v{TM+r}, 1.0, v{TM+r}")
            for r in range(8): a(f"v_rcp_f32 v{TM+r}, v{TM+r}")
            for r in range(8): a(f"v_mul_f32 v{G+r}, v{G+r}, v{TM+r}")
            for r in range(4): a(f"v_cvt_pk_bf16_f32 v{TM+r}, v{G+2*r}, v{G+2*r+1}")
            for r in range(4):
                a(f"v_lshlrev_b32 v{G+2*r}, 16, v{TM+r}")
                a(f"v_and_b32 v{G+2*r+1}, 0xffff0000, v{TM+r}")
            for r in range(8): a(f"v_mul_f32 v{G+r}, v{G+r}, v{U+r}")
            for r in range(4): a(f"v_cvt_pk_bf16_f32 v{G+r}, v{G+2*r}, v{G+2*r+1}")
            a(f"ds_write_b128 v{V_EXW}, {vr(G,4)} offset:{tt*4096}")
        a("s_waitcnt lgkmcnt(0)")
        a("s_barrier")
        for j in range(8): a(f"ds_read_b128 {vr(HF + 4*j, 4)}, v{V_EXR} offset:{j*1024}")
        def st(ct, reg):
            return f"s_add_u32 s{S_T0}, s{S_OUT0}, {ct * 16384}\nbuffer_store_dwordx4 {vr(reg,4)}, v{V_L16}, {WS}, s{S_T0} offen sc1"
        out_phase(a, HF, WD, AO, st)
        a(f"s_add_u32 s{S_OUT0}, s{S_OUT0}, {2 << 19}")
        a(f"s_add_u32 s{S_SEG}, s{S_SEG}, 2")
    a(f"s_cmp_lt_u32 s{S_SEG}, 64")
    a("s_cbranch_scc1 L_f_loop")
    a("s_waitcnt vmcnt(0)")
    a("s_barrier")
    a(f"s_mov_b32 s{S_T2}, 32")
    flag_store(a, V_T0, S_T2, S_FLG, "L_f_nfe")
    a("s_branch L_done")

def role_g(a, opt):
    WS = f"s[{S_WS}:{S_WS+3}]"
    L, T = 127, 126
    a(f"v_and_b32 v{L}, 63, v0")
    a(f"v_lshrrev_b32 v{T}, 6, v0")
    a(f"v_readfirstlane_b32 s{S_WV}, v{T}")
    a(f"v_lshlrev_b32 v{V_L16}, 4, v{L}")
    clear_flag(a, FLAG_F, S_H)
    srd(a, S_X, KA_X, 2048 * 1024)
    srd(a, S_DESC[0], KA_GW, 1024)
    GW, XR, P, ACC = 8, 32, 16, 28
    a(f"buffer_load_dwordx4 {vr(P,4)}, v{V_L16}, s[{S_DESC[0]}:{S_DESC[0]+3}], 0 offen")
    a("s_waitcnt vmcnt(0)")
    register_wg(a, V_T1, "L_g_noreg")
    for r in range(4):
        a(f"v_lshlrev_b32 v{GW+2*r}, 16, v{P+r}")
        a(f"v_and_b32 v{GW+2*r+1}, 0xffff0000, v{P+r}")
    a(f"s_sub_u32 s{S_T0}, s{S_H}, 28")
    a(f"s_lshl_b32 s{S_T0}, s{S_T0}, 2")
    a(f"s_add_u32 s{S_T0}, s{S_T0}, s{S_WV}")
    a(f"s_lshl_b32 s{S_XOFF}, s{S_T0}, 17")
    a(f"s_lshl_b32 s{S_OUT0}, s{S_T0}, 9")
    a(f"s_add_u32 s{S_OUT0}, s{S_OUT0}, {WS_G}")
    a(f"s_mov_b32 s{S_SEG}, 0")
    a.label("L_g_loop")
    for blk in range(4):
        for j in range(16):
            if j % 4 == 0 and (blk or j): a(f"s_add_u32 s{S_XOFF}, s{S_XOFF}, 4096")
            a(f"buffer_load_dwordx4 {vr(XR + 4*j, 4)}, v{V_L16}, s[{S_X}:{S_X+3}], s{S_XOFF} offen offset:{(j & 3) * 1024}")
        for j in range(16):
            x = XR + 4 * j
            for r in range(4):
                a(f"v_lshlrev_b32 v{P+2*r}, 16, v{x+r}")
                a(f"v_and_b32 v{P+2*r+1}, 0xffff0000, v{x+r}")
            for r in range(8): a(f"v_mul_f32 v{P+r}, v{P+r}, v{GW+r}")
            for r in range(4): a(f"v_cvt_pk_bf16_f32 v{x+r}, v{P+2*r}, v{P+2*r+1}")
            for r in range(4):
                a(f"v_lshlrev_b32 v{P+2*r}, 16, v{x+r}")
                a(f"v_and_b32 v{P+2*r+1}, 0xffff0000, v{x+r}")
            for r in range(4): a(f"v_add_f32 v{P+r}, v{P+r}, v{P+4+r}")
            for r in range(2): a(f"v_add_f32 v{P+r}, v{P+r}, v{P+2+r}")
            a(f"v_add_f32 v{P}, v{P}, v{P+1}")
            for sh in (1, 2, 4, 8):
                a(f"v_add_f32_dpp v{P}, v{P}, v{P} row_ror:{sh} row_mask:0xf bank_mask:0xf")
            for sw in ("v_permlane16_swap_b32", "v_permlane32_swap_b32"):
                a(f"v_mov_b32 v{P+1}, v{P}")
                a(f"{sw} v{P}, v{P+1}")
                a(f"v_add_f32 v{P}, v{P}, v{P+1}")
            a(f"v_cmp_eq_u32 vcc, {blk * 16 + j}, v{L}")
            a(f"v_cndmask_b32 v{ACC}, v{ACC}, v{P}, vcc")
    a(f"s_add_u32 s{S_XOFF}, s{S_XOFF}, 4096")
    a(f"v_cvt_pk_bf16_f32 v{ACC}, v{ACC}, v{ACC}")
    a(f"v_and_b32 v{ACC}, 0xffff0000, v{ACC}")
    a(f"v_mul_f32 v{ACC}, {f32bits(-1.4426950408889634):#x}, v{ACC}")
    a(f"v_exp_f32 v{ACC}, v{ACC}")
    a(f"v_add_f32 v{ACC}, 1.0, v{ACC}")
    a(f"v_rcp_f32 v{ACC}, v{ACC}")
    a(f"v_cvt_pk_bf16_f32 v{ACC}, v{ACC}, v{ACC}")
    a(f"v_and_b32 v{ACC}, 0xffff0000, v{ACC}")
    a(f"v_lshlrev_b32 v{P}, 2, v{L}")
    a(f"buffer_store_dword v{ACC}, v{P}, {WS}, s{S_OUT0} offen sc1")
    a(f"s_add_u32 s{S_OUT0}, s{S_OUT0}, 256")
    a(f"s_add_u32 s{S_SEG}, s{S_SEG}, 1")
    a(f"s_cmp_lt_u32 s{S_SEG}, 2")
    a("s_cbranch_scc1 L_g_loop")
    a("s_waitcnt vmcnt(0)")
    a("s_barrier")
    a(f"s_mov_b32 s{S_T2}, 32")
    flag_store(a, V_T0, S_T2, S_FLG, "L_g_nfe")
    a("s_branch L_done")
```

```python
from common import *

XB = (0, 32768)
EXB = 65536
V_L16, V_XR, V_XS, V_T0, V_T1, V_P1K = 0, 1, 5, 6, 7, 8
S_X = 32
S_SEG = 30
S_XOFF = 31
S_M0 = 36
S_DESC = (68, 72, 76)

def mf32(d, A, B, C): return f"v_mfma_f32_16x16x32_bf16 {vr(d,4)}, {A}, {B}, {C}"
def mf16(d, A, B, C): return f"v_mfma_f32_16x16x16_bf16 {vr(d,4)}, {A}, {B}, {C}"

def setup(a, L=127, T=126):
    a(f"v_and_b32 v{L}, 63, v0")
    a(f"v_lshrrev_b32 v{T}, 6, v0")
    a(f"v_readfirstlane_b32 s{S_WV}, v{T}")
    a(f"v_lshlrev_b32 v{V_L16}, 4, v{L}")
    for k in range(4):
        bitpat(a, V_XR + k, L, [(4, 3, 1)], T, 4 * k)
        a(f"v_and_b32 v{T}, 15, v{L}")
        a(f"v_xor_b32 v{V_XR+k}, v{V_XR+k}, v{T}")
        a(f"v_lshlrev_b32 v{V_XR+k}, 4, v{V_XR+k}")
        a(f"v_lshl_add_u32 v{V_XR+k}, v{T}, 10, v{V_XR+k}")
    a(f"s_and_b32 s{S_T0}, s{S_WV}, 1")
    a(f"s_lshl_b32 s{S_T0}, s{S_T0}, 7")
    a(f"v_xor_b32 v{V_XS}, s{S_T0}, v{V_L16}")
    a(f"s_lshl_b32 s{S_T0}, s{S_WV}, 10")
    a(f"v_add_u32 v{V_P1K}, s{S_T0}, v{V_L16}")
    srd(a, S_X, KA_X, 2048 * 1024)

def x_issue_groups(buf, seg):
    g = [f"s_lshl_b32 s{S_XOFF}, s{seg}, 15\ns_lshl_b32 s{S_M0}, s{S_WV}, 13\ns_add_u32 s{S_XOFF}, s{S_XOFF}, s{S_M0}"
         + (f"\ns_add_u32 s{S_M0}, s{S_M0}, {XB[buf]}" if XB[buf] else "")]
    for j in range(8):
        t = V_T0 + (j & 1)
        x = ""
        if j % 4 == 0:
            x += f"s_add_u32 m0, s{S_M0}, {j * 1024}\n"
            if j: x += f"s_add_u32 s{S_XOFF}, s{S_XOFF}, 4096\n"
        x += f"v_xor_b32 v{t}, {16 * j}, v{V_XS}\n"
        x += f"buffer_load_dwordx4 v{t}, s[{S_X}:{S_X+3}], s{S_XOFF} offen offset:{(j & 3) * 1024} lds"
        g.append(x)
    return g

def x_issue(a, buf, seg):
    for x in x_issue_groups(buf, seg): a(x)

def x_read(dst, buf, tt, ks):
    return f"ds_read_b128 {vr(dst,4)}, v{V_XR + (ks & 3)} offset:{XB[buf] + tt * 16384 + (ks >> 2) * 256}"

def load_weights(a, chunks, after_first, L=127, T=126):
    V_TR = 125
    pats = {}
    nxt = [123]
    for d, kind, pitch, off, dest in chunks:
        if (kind, pitch) not in pats:
            pats[(kind, pitch)] = nxt[0]
            chunk_src_pattern(a, nxt[0], L, T, (2, 1, 3, 0) if kind == 'proj' else (4, 1, 2, 0), pitch)
            nxt[0] -= 1
    chunk_tr_pattern(a, V_TR, L, T)
    a(f"s_lshl_b32 s{S_T3}, s{S_WV}, 15")
    a(f"v_add_u32 v{V_TR}, s{S_T3}, v{V_TR}")
    a(f"v_xor_b32 v{V_TR-1}, 32, v{V_TR}")
    n = len(chunks)
    def issue(ci):
        d, kind, pitch, off, dest = chunks[ci]
        a(f"s_add_u32 m0, s{S_T3}, {(ci & 7) * 4096}")
        for x in off: a(x)
        rows = [0, 16, 32, 48] if kind == 'proj' else [0, 8, 32, 40]
        for u in range(4):
            a(f"buffer_load_dwordx4 v{pats[(kind, pitch)]}, s[{d}:{d+3}], s{S_T0} offen offset:{u*1024} lds")
            if u < 3: a(f"s_add_u32 s{S_T0}, s{S_T0}, {(rows[u+1] - rows[u]) * pitch - 1024}")
    for ci in range(min(8, n)): issue(ci)
    for ci in range(n):
        left = min(7, n - 1 - ci)
        a(f"s_waitcnt vmcnt({4*left})")
        if ci == 0: after_first(a)
        for t in range(2):
            for pr in range(4):
                a(f"ds_read_b64_tr_b16 {ur(chunks[ci][4](t, pr), 2)}, v{V_TR - t} offset:{(ci & 7)*4096 + tr_off(pr)}")
        a("s_waitcnt lgkmcnt(0)")
        if ci + 8 < n: issue(ci + 8)
    a("s_barrier")

def proj_chunks(desc, pitch, colbyte_lines, wbase):
    out = []
    for kb in range(8):
        off = list(colbyte_lines) + ([f"s_add_u32 s{S_T0}, s{S_T0}, {kb * 64 * pitch}"] if kb else [])
        out.append((desc, 'proj', pitch, off, (lambda kb: lambda t, pr: wbase + (t * 16 + 2 * kb + (pr >> 1)) * 4 + 2 * (pr & 1))(kb)))
    return out

def out_chunks(desc, rowbase_lines, wbase):
    out = []
    for tp in range(4):
        for kb in range(2):
            off = list(rowbase_lines) + [f"s_lshl_b32 s{S_T1}, s{S_WV}, 8", f"s_add_u32 s{S_T0}, s{S_T0}, s{S_T1}",
                                         f"s_add_u32 s{S_T0}, s{S_T0}, {kb * 65536 + tp * 64}"]
            out.append((desc, 'out', 1024, off, (lambda tp, kb: lambda t, pr: wbase + ((2 * tp + t) * 4 + 2 * kb + (pr >> 1)) * 4 + 2 * (pr & 1))(tp, kb)))
    return out

def proj_phase(a, buf, xregs, mfmas):
    for tt in range(2): a(x_read(xregs + 4 * tt, buf, tt, 0))
    for ks in range(16):
        cur = xregs + 8 * (ks & 1); nx = xregs + 8 * (1 - (ks & 1))
        ms = mfmas(ks, [vr(cur, 4), vr(cur + 4, 4)])
        for i, m in enumerate(ms):
            a(m)
            if ks < 15 and i < 2: a(x_read(nx + 4 * i, buf, i, ks + 1))

def exchange(a, src, pos_sgpr_free, dst_all=None):
    pass

def out_phase(a, HF, wbase, acc, store):
    pend = None
    for ct in range(8):
        A = acc + 8 * (ct & 1)
        k = 0
        for i in range(4):
            for tt in range(2):
                a(mf32(A + 4 * tt, vr(HF + (tt * 4 + i) * 4, 4), ur(wbase + (ct * 4 + i) * 4, 4), "0" if i == 0 else vr(A + 4 * tt, 4)))
                if pend and k >= 2 and pend: a(pend.pop(0))
                k += 1
        pend = [f"v_cvt_pk_bf16_f32 v{A + r}, v{A + 2*r}, v{A + 2*r + 1}" for r in range(4)] + [store(ct, A)]
    for x in pend: a(x)

def poll_flags(a, lab, vt, voff, soff_sgpr, need_sgpr, lanes_mask=None, halves=False):
    WS = f"s[{S_WS}:{S_WS+3}]"
    a.label(lab)
    a(f"buffer_load_dword v{vt}, v{voff}, {WS}, s{soff_sgpr} offen sc1")
    a(f"s_add_u32 s{S_SPIN}, s{S_SPIN}, 1")
    a(f"s_cmp_gt_u32 s{S_SPIN}, {SPIN_LIMIT}")
    a("s_cbranch_scc1 L_abort")
    a("s_waitcnt vmcnt(0)")
    if halves:
        a(f"v_lshrrev_b32 v{vt+1}, 16, v{vt}")
        a(f"v_and_b32 v{vt}, 0xffff, v{vt}")
        a(f"v_min_u32 v{vt}, v{vt}, v{vt+1}")
    a(f"v_cmp_gt_u32 vcc, s{need_sgpr}, v{vt}")
    if lanes_mask is not None: a(f"s_and_b64 vcc, vcc, s[{lanes_mask}:{lanes_mask+1}]")
    a(f"s_cbranch_vccz {lab}_ok")
    a("s_sleep 2")
    a(f"s_branch {lab}")
    a.label(f"{lab}_ok")

def flag_store(a, vt, val_sgpr, off_sgpr, lab, st="sc1", op="buffer_store_dword"):
    WS = f"s[{S_WS}:{S_WS+3}]"
    a(f"s_cmp_lg_u32 s{S_WV}, 0")
    a(f"s_cbranch_scc1 {lab}")
    a("s_mov_b64 exec, 1")
    a(f"v_mov_b32 v{vt}, s{val_sgpr}")
    a(f"{op} v{vt}, off, {WS}, s{off_sgpr} {st}")
    a("s_mov_b64 exec, -1")
    a.label(lab)
```

```python
from common import *

MEMB = 131072
KB = (139264, 147456)
QB = 155648
KKB = QB + 4096
LDS_BYTES = 163840

V_LA, V_P1, V_MR1, V_MR2, V_MR3, V_QW, V_L4, V_QKR, V_WVO, V_OW, V_GATH, V_PST, V_PUB, V_IDX, V_SELX, V_FL = range(16)
V_ONES = 16
V_PB = 20
V_M = 24
V_AQ, V_AK, V_AV = 56, 64, 72
V_W = 80
V_VX = (112, 120)
WQ0, WK0, WV0, WO0 = 256, 384, 128, 192

def wq(t, s): return ur(WQ0 + (s * 2 + t) * 8, 8)
def wk(t, s): return ur(WK0 + (s * 2 + t) * 8, 8)
def wv_res(t, s): return ur(WV0 + ((s - 4) * 2 + t) * 8, 8)
def wo_res(t, kbo): return ur(WO0 + (t * 2 + kbo) * 8, 8)
def Mf(s): return vr(V_M + 4 * s, 4)
def Wb(j): return V_W + 8 * j

S_STEP = 30
S_MEMRD = 31
S_PST0, S_PST1 = 32, 33
S_INB0, S_INB1 = 34, 35
S_PUBN = 36
S_PUBC = 37
S_PH = 38
S_KPF, S_VPF = 39, 40
S_EXP = 41
S_FLP = 42
S_FLA = 43
S_AVAIL = 44
S_C = 45
S_LLO, S_LRG = 46, 47
S_SELM = 48
S_KM0 = 56
S_HB_PST, S_HB_INB, S_HB_PUB = 58, 59, 60
S_SPIN2 = 61
S_HST, S_HLD = 23, 29
S_L0 = 66
S_TS = 62
S_ACC = 94

def smf(d, A, B): return f"v_smfmac_f32_16x16x64_bf16 {vr(d,4)}, {A}, {B}, v{V_IDX}"
def mf32(d, A, B, C): return f"v_mfma_f32_16x16x32_bf16 {vr(d,4)}, {A}, {B}, {C}"
def mf16(d, A, B, C): return f"v_mfma_f32_16x16x16_bf16 {vr(d,4)}, {A}, {B}, {C}"

V_TID = 123
S_KA = 84

def setup_lanes(a):
    L, T = 127, 126
    a(f"v_lshlrev_b32 v{V_LA}, 4, v{L}")
    a(f"s_lshl_b32 s{S_T0}, s{S_WV}, 13")
    a(f"v_add_u32 v{V_WVO}, s{S_T0}, v{V_LA}")
    a(f"v_add_u32 v{V_LA}, {MEMB}, v{V_LA}")
    for j, r in enumerate((V_P1, V_MR1, V_MR2, V_MR3)):
        a(f"s_xor_b32 s{S_T0}, s{S_WV}, {j}")
        a(f"s_lshl_b32 s{S_T0}, s{S_T0}, 11")
        a(f"v_add_u32 v{r}, s{S_T0}, v{V_LA}")
    bitpat(a, V_QW, L, [(5, 1, 8), (0, 15, 1)], T)
    a(f"v_and_b32 v{V_QW}, 15, v{V_QW}")
    a(f"v_and_b32 v{T}, 48, v{L}")
    a(f"v_add_u32 v{V_QW}, v{V_QW}, v{T}")
    a(f"v_lshlrev_b32 v{V_QW}, 3, v{V_QW}")
    a(f"s_lshl_b32 s{S_T0}, s{S_WV}, 10")
    a(f"s_add_u32 s{S_T0}, s{S_T0}, {QB}")
    a(f"v_add_u32 v{V_QW}, s{S_T0}, v{V_QW}")
    bitpat(a, V_QKR, L, [(1, 1, 8), (2, 15, 1)], T)
    a(f"v_and_b32 v{V_QKR}, 15, v{V_QKR}")
    a(f"v_and_b32 v{T}, 3, v{L}")
    a(f"v_lshl_add_u32 v{V_QKR}, v{T}, 4, v{V_QKR}")
    a(f"v_lshlrev_b32 v{V_QKR}, 3, v{V_QKR}")
    a(f"v_add_u32 v{V_QKR}, {QB}, v{V_QKR}")
    bitpat(a, V_OW, L, [(4, 3, 256), (2, 3, 64), (0, 1, 32), (1, 1, 4096)], T, MEMB)
    a(f"s_lshr_b32 s{S_T0}, s{S_WV}, 1")
    a(f"s_lshl_b32 s{S_T0}, s{S_T0}, 10")
    a(f"s_and_b32 s{S_T1}, s{S_WV}, 1")
    a(f"s_lshl_b32 s{S_T1}, s{S_T1}, 4")
    a(f"s_add_u32 s{S_T0}, s{S_T0}, s{S_T1}")
    a(f"v_add_u32 v{V_OW}, s{S_T0}, v{V_OW}")
    bitpat(a, T, L, [(1, 1, 16)], T)
    a(f"v_xor_b32 v{V_OW}, v{V_OW}, v{T}")
    bitpat(a, V_L4, L, [(0, 31, 4), (5, 1, OOB)], T)
    bitpat(a, V_GATH, L, [(0, 7, 128), (3, 7, OOB >> 3), (3, 1, OOB), (4, 1, OOB), (5, 1, OOB)], T)
    a(f"s_cmp_eq_u32 s{S_WV}, 3")
    a(f"s_cselect_b64 vcc, -1, 0")
    a(f"v_cndmask_b32 v{V_L4}, v{V_L4}, v{V_GATH}, vcc")
    a(f"s_lshl_b32 s{S_T0}, s{S_H}, 2")
    a(f"s_add_u32 s{S_T0}, s{S_T0}, {WS_HINT}")
    a(f"s_cmp_eq_u32 s{S_WV}, 3")
    a(f"s_cselect_b32 s{S_HST}, s{S_T0}, {OOB}")
    a(f"s_and_b32 s{S_T0}, s{S_H}, 7")
    a(f"s_lshl_b32 s{S_T0}, s{S_T0}, 7")
    a(f"s_add_u32 s{S_T0}, s{S_T0}, {WS_HINT}")
    a(f"s_cmp_eq_u32 s{S_WV}, 0")
    a(f"s_cselect_b32 s{S_HLD}, s{S_T0}, {OOB}")
    bitpat(a, V_GATH, L, [(1, 7, 1024), (4, 3, 32), (0, 1, 16)], T)
    a(f"s_lshl_b32 s{S_T0}, s{S_WV}, 8")
    a(f"v_add_u32 v{V_GATH}, s{S_T0}, v{V_GATH}")
    bitpat(a, V_PST, L, [(4, 3, 8192), (0, 15, 16)], T)
    a(f"s_lshl_b32 s{S_T0}, s{S_WV}, 16")
    a(f"v_add_u32 v{V_PST}, s{S_T0}, v{V_PST}")
    bitpat(a, V_PUB, L, [(1, 3, 256), (0, 1, 32), (5, 1, 16), (4, 1, 8), (3, 1, OOB)], T)
    a(f"v_and_b32 v{T}, 1, v{L}")
    a(f"v_cmp_eq_u32 vcc, 1, v{T}")
    a(f"v_mov_b32 v{V_IDX}, 0x44444444")
    a(f"v_mov_b32 v{T}, 0xeeeeeeee")
    a(f"v_cndmask_b32 v{V_IDX}, v{V_IDX}, v{T}, vcc")
    a(f"v_mov_b32 v{V_SELX}, 0x3f80")
    a(f"v_mov_b32 v{T}, 0x3f800000")
    a(f"v_cndmask_b32 v{V_SELX}, v{V_SELX}, v{T}, vcc")
    a(f"v_bfe_u32 v{T}, v{L}, 1, 3")
    for r in range(4):
        a(f"v_cmp_eq_u32 s[{S_SELM+2*r}:{S_SELM+2*r+1}], {r}, v{T}")
    a(f"v_cmp_eq_u32 s[{S_L0}:{S_L0+1}], 64, v{V_TID}")
    for r in range(4):
        a(f"v_mov_b32 v{V_ONES+r}, 0x3f803f80")
        a(f"v_mov_b32 v{V_PB+r}, 0")

PSTAMP = [-1]
CODEPF = [0]
S_DQ = (68, 72, 76, 80)
V_SQ, V_SO = 125, 124
ROUNDS = [('q', s) for s in (0, 1, 4, 5)] + [('k', s) for s in (0, 1, 4, 5)] + [('v', 4), ('v', 5), ('o', (0, 0)), ('o', (0, 1))] \
    + [('v', 0), ('v', 1), ('o', (1, 0)), ('o', (1, 1))]

def src_pattern(a, dst, L, T, bits, pitch):
    bitpat(a, dst, L, [(3, 1, pitch << bits[0]), (4, 1, pitch << bits[1]), (5, 1, pitch << bits[2]), (0, 1, 16)], T)
    for sh, bit in ((2, 4), (4, 2)):
        a(f"v_lshrrev_b32 v{T}, {sh}, v{L}")
        a(f"v_xor_b32 v{T}, v{T}, v{L}")
        a(f"v_and_b32 v{T}, {bit}, v{T}")
        a(f"v_lshl_add_u32 v{dst}, v{T}, 4, v{dst}")

class VmQueue:
    def __init__(self): self.q = []
    def add(self, tag, n=1): self.q += [tag] * n
    def wait(self, a, tag):
        last = max(i for i, t in enumerate(self.q) if t == tag)
        a(f"s_waitcnt vmcnt({len(self.q) - 1 - last})")
        self.q = self.q[last + 1:]
    def done(self, tag): return tag not in self.q

def issue_round(a, i, vq):
    kind, p = ROUNDS[i]
    if kind != 'o':
        a(f"s_xor_b32 s{S_T0}, s{S_WV}, {p >> 1}")
        a(f"s_lshl_b32 s{S_T0}, s{S_T0}, 20")
        a(f"s_add_u32 s{S_T0}, s{S_T0}, s{S_T2}")
        if p & 1: a(f"s_add_u32 s{S_T0}, s{S_T0}, {64 * 8192}")
        rows, pitch, v = (16, 2, 32), 8192, V_SQ
    else:
        a(f"s_lshl_b32 s{S_T0}, s{S_H}, 17")
        a(f"s_lshl_b32 s{S_T1}, s{S_WV}, 8")
        a(f"s_add_u32 s{S_T0}, s{S_T0}, s{S_T1}")
        a(f"s_add_u32 s{S_T0}, s{S_T0}, {p[1] * 65536 + p[0] * 128}")
        rows, pitch, v = (4, 2, 8), 1024, V_SO
    d = S_DQ['qkvo'.index(kind)]
    prev = 0
    for u in range(8):
        off = sum(rows[b] for b in range(3) if u >> b & 1) * pitch - (u & 3) * 1024
        if u & 3 == 0: a(f"s_add_u32 m0, s{S_T3}, {(i & 3) * 32768 + (u >> 2) * 4096}")
        if off != prev: a(f"s_add_u32 s{S_T0}, s{S_T0}, {(off - prev) & 0xffffffff:#x}")
        prev = off
        a(f"buffer_load_dwordx4 v{v}, s[{d}:{d+3}], s{S_T0} offen offset:{(u & 3)*1024} lds")
    vq.add(('w', i), 8)

def start_weights(a, vq):
    L, T = 127, 126
    a(f"v_mov_b32 v{V_TID}, v0")
    a(f"v_and_b32 v{L}, 63, v0")
    a(f"v_lshrrev_b32 v{T}, 6, v0")
    a(f"v_readfirstlane_b32 s{S_WV}, v{T}")
    if CODEPF[0]:
        a("s_getpc_b64 s[8:9]")
        a.label("L_pc")
        a("s_and_b32 s9, s9, 0xffff")
        a("s_mov_b32 s10, L_code_end-L_pc")
        a("s_mov_b32 s11, 0x20000")
        a(f"s_lshl_b32 s{S_T0}, s{S_H}, 12")
        a(f"v_lshlrev_b32 v{T}, 4, v0")
        a(f"buffer_load_dwordx4 v[24:27], v{T}, s[8:11], s{S_T0} offen")
        vq.add('code')
    src_pattern(a, V_SQ, L, T, (0, 3, 2), 8192)
    a(f"s_lshl_b32 s{S_T3}, s{S_WV}, 13")
    a(f"s_lshr_b32 s{S_T1}, s{S_WV}, 1")
    a(f"s_lshl_b32 s{S_T1}, s{S_T1}, 7")
    a(f"s_lshl_b32 s{S_T2}, s{S_H}, 8")
    a(f"s_add_u32 s{S_T2}, s{S_T2}, s{S_T1}")
    a("s_waitcnt lgkmcnt(0)")
    for j, d in enumerate(S_DQ):
        a(f"s_mov_b32 s{d}, s{S_KA + 2*j}")
        a(f"s_and_b32 s{d+1}, s{S_KA + 2*j + 1}, 0xffff")
        a(f"s_mov_b32 s{d+2}, 0x400000")
        a(f"s_mov_b32 s{d+3}, 0x20000")
        if j == 0:
            for i in range(3): issue_round(a, i, vq)

def load_weights(a, hooks, vq):
    L, T = 127, 126
    TQ, TO = V_AQ, V_AQ + 4
    TMP = V_W
    S_CB = 64
    a(f"s_mov_b32 s{S_CB}, s{S_T2}")
    src_pattern(a, V_SO, L, T, (0, 5, 4), 1024)
    bitpat(a, TO, L, [(5, 1, 1024), (4, 1, 512 + 32), (3, 1, 256 + 64), (2, 1, 128), (0, 3, 8)], T)
    a(f"s_lshl_b32 s{S_T0}, s{S_WV}, 13")
    a(f"v_add_u32 v{TO}, s{S_T0}, v{TO}")
    for j in range(1, 4): a(f"v_xor_b32 v{TO + j}, {32 * j}, v{TO}")
    a(f"s_and_b32 s{S_T0}, s{S_WV}, 1")
    a(f"s_lshl_b32 s{S_T0}, s{S_T0}, 6")
    a(f"v_xor_b32 v{TQ}, s{S_T0}, v{TO}")
    a(f"v_xor_b32 v{TQ+1}, 32, v{TQ}")
    a(f"v_xor_b32 v{TQ+2}, 8192, v{TQ}")
    a(f"v_xor_b32 v{TQ+3}, 8192, v{TQ+1}")
    for i in range(16):
        kind, p = ROUNDS[i]
        vq.wait(a, ('w', i))
        a("s_barrier")
        if i + 3 < 16:
            a(f"s_mov_b32 s{S_T2}, s{S_CB}")
            a(f"s_lshl_b32 s{S_T3}, s{S_WV}, 13")
            issue_round(a, i + 3, vq)
        if i in hooks: hooks[i](a)
        if i == PSTAMP[0]:
            a("s_memrealtime s[62:63]"); a("s_waitcnt lgkmcnt(0)"); a(f"s_sub_u32 s{S_ACC}, s62, s92"); a(f"s_lshl_b32 s{S_ACC}, s{S_ACC}, 2")
        if i and i % 2 == 0:
            for j in range(8): a(f"v_xor_b32 v{TQ + j}, 0x10000, v{TQ + j}")
        for j in range(2):
            for t in range(2):
                if i >= 12: base = TMP + 16 * j + 8 * t
                elif kind == 'q': base = WQ0 + ((p + 2 * j) * 2 + t) * 8
                elif kind == 'k': base = WK0 + ((p + 2 * j) * 2 + t) * 8
                elif kind == 'v': base = WV0 + ((p + 2 * j - 4) * 2 + t) * 8
                else: base = WO0 + ((2 * j + t) * 2 + p[1]) * 8
                ad = (TO if kind == 'o' else TQ) + 2 * j + t
                for pr in range(4):
                    a(f"ds_read_b64_tr_b16 {ur(base + 2*pr, 2)}, v{ad} offset:{(i & 1)*32768 + (pr >> 1)*4096 + (pr & 1)*2048}")
            a("s_waitcnt lgkmcnt(0)")
        if i >= 12:
            a("s_barrier")
            if i == 14: a(f"v_xor_b32 v{V_WVO}, 0x10000, v{V_WVO}")
            for q in range(8):
                a(f"ds_write_b128 v{V_WVO}, {vr(TMP + 4*q, 4)} offset:{(i & 1)*32768 + q*1024}")
            a("s_waitcnt lgkmcnt(0)")
    a(f"v_xor_b32 v{V_WVO}, 0x10000, v{V_WVO}")

def lds_wv(s, t, h): return (s & 1) * 32768 + (s >> 1) * 4096 + t * 2048 + h * 1024
def lds_wo(t, kbo, h): return kbo * 32768 + ((t >> 1) - 2) * 4096 + (t & 1) * 2048 + h * 1024
FLIP = f"v_xor_b32 v{V_WVO}, 0x10000, v{V_WVO}"
def rd_wv(dst, s, t): return [f"ds_read_b128 {vr(dst + 4*h, 4)}, v{V_WVO} offset:{lds_wv(s, t, h)}" for h in range(2)]
def rd_wo(dst, t, kbo): return [f"ds_read_b128 {vr(dst + 4*h, 4)}, v{V_WVO} offset:{lds_wo(t, kbo, h)}" for h in range(2)]

def slot_lines():
    return [
        f"s_and_b32 s{S_T0}, s{S_STEP}, 3",
        f"s_lshl_b32 s{S_T1}, s{S_T0}, 13",
        f"s_add_u32 s{S_PUBC}, s{S_T1}, s{S_HB_PUB}",
        f"s_lshl_b32 s{S_T1}, s{S_T0}, 18",
        f"s_add_u32 s{S_PST0}, s{S_T1}, s{S_HB_PST}",
        f"s_add_u32 s{S_PST1}, s{S_PST0}, 32768",
        f"s_add_u32 s{S_INB0}, s{S_T1}, s{S_HB_INB}",
        f"s_add_u32 s{S_INB1}, s{S_INB0}, 4096",
        f"s_bfe_u32 s{S_PH}, s{S_STEP}, 0x10002",
        f"s_add_u32 s{S_T0}, s{S_STEP}, 1",
        f"s_and_b32 s{S_T0}, s{S_T0}, 3",
        f"s_lshl_b32 s{S_T0}, s{S_T0}, 13",
        f"s_add_u32 s{S_PUBN}, s{S_T0}, s{S_HB_PUB}",
        f"s_add_u32 s{S_MEMRD}, s{S_T0}, {WS_MEMRING - MEMB}"]

def idle_a(a, par_next):
    for j in range(4):
        for x in rd_wv(Wb(j), j >> 1, j & 1): a(x)
    vn = V_VX[1 - par_next]
    for r in range(4): a(f"v_mov_b32 v{vn + r}, v{V_AK + r}")

def idle_b(a, par_next, tag, young):
    for r in list(range(V_AQ + 4, V_AQ + 8)) + list(range(V_AK, V_AK + 4)): a(f"v_mov_b32 v{r}, 0")
    a(f"s_waitcnt vmcnt({young})")
    avail_check(a, tag)

def idle_c(a, par_next):
    for r in list(range(V_AQ, V_AQ + 4)) + list(range(V_AV, V_AV + 8)): a(f"v_mov_b32 v{r}, 0")
    a("s_waitcnt vmcnt(2)")
    for r in range(V_AK + 4, V_AK + 8): a(f"v_mov_b32 v{r}, 0")

def avail_check(a, tag):
    a(f"v_readfirstlane_b32 s{S_AVAIL}, v{V_FL}")
    a(f"s_lshr_b32 s{S_T0}, s{S_AVAIL}, 16")
    a(f"s_and_b32 s{S_AVAIL}, s{S_AVAIL}, 0xffff")
    a(f"s_min_u32 s{S_AVAIL}, s{S_AVAIL}, s{S_T0}")
    a(f"s_add_u32 s{S_T0}, s{S_STEP}, 2")
    a(f"s_min_u32 s{S_T0}, s{S_T0}, 64")
    a(f"s_cmp_ge_u32 s{S_AVAIL}, s{S_T0}")
    a(f"s_cbranch_scc0 {tag}_slow")
    a.label(f"{tag}_ok")

def avail_slow(a, tag):
    a.label(f"{tag}_slow")
    a(f"buffer_load_dword v{V_FL}, off, s[{S_WS}:{S_WS+3}], s{S_FLP} sc1")
    a(f"s_add_u32 s{S_SPIN}, s{S_SPIN}, 1")
    a(f"s_cmp_gt_u32 s{S_SPIN}, {SPIN_LIMIT}")
    a("s_cbranch_scc1 L_abort")
    a("s_waitcnt vmcnt(0)")
    a(f"v_readfirstlane_b32 s{S_AVAIL}, v{V_FL}")
    a(f"s_lshr_b32 s{S_T1}, s{S_AVAIL}, 16")
    a(f"s_and_b32 s{S_AVAIL}, s{S_AVAIL}, 0xffff")
    a(f"s_min_u32 s{S_AVAIL}, s{S_AVAIL}, s{S_T1}")
    a(f"s_cmp_ge_u32 s{S_AVAIL}, s{S_T0}")
    a(f"s_cbranch_scc0 {tag}_slow")
    a(f"s_branch {tag}_ok")

def step(a, par, st, tag, opt):
    WS = f"s[{S_WS}:{S_WS+3}]"
    VXc, VXn = V_VX[par], V_VX[1 - par]
    Kc = KB[par] - MEMB
    T0 = V_PB + 3
    stamp = opt.get('stamp') or (None, None)
    trace = opt.get('trace', [])
    def st_list(name):
        if name in trace:
            k = 68 + trace.index(name)
            return [f"s_memtime s[{S_TS}:{S_TS+1}]", "s_waitcnt lgkmcnt(0)", f"s_cmp_eq_u32 s{S_STEP}, {opt.get('tstep', 20) + (1 if name in ('join', 'pub', 'h2iss', 'h1iss', 'pst', 'oex') else 0) + (1 if name == 'entry' and opt.get('nextentry') else 0)}",
                    f"s_cselect_b32 s{k}, s{S_TS}, s{k}"]
        if stamp[0] == name:
            return [f"s_memtime s[{S_TS}:{S_TS+1}]", "s_waitcnt lgkmcnt(0)"]
        if stamp[1] == name:
            return [f"s_memtime s[{S_TS+2}:{S_TS+3}]", "s_waitcnt lgkmcnt(0)", f"s_sub_u32 s{S_TS+2}, s{S_TS+2}, s{S_TS}",
                    f"s_add_u32 s{S_ACC}, s{S_ACC}, s{S_TS+2}", f"s_max_u32 s74, s74, s{S_TS+2}", f"s_min_u32 s73, s73, s{S_TS+2}",
                    f"s_cmp_gt_u32 s{S_TS+2}, {opt.get('thr', 100000)}", "s_addc_u32 s72, s72, 0"]
        return []
    def st_at(name):
        for x in st_list(name): a(x)
    a.label(f"{tag}_h1")
    a("s_waitcnt vmcnt(0)")
    a.label(f"{tag}_entry")
    st_at('entry')
    M = V_M
    a(f"v_max3_u32 v{T0}, v{M+1}, v{M+3}, v{M+5}")
    a(f"v_max_u32 v{T0}, v{T0}, v{M+7}")
    a(f"v_cmp_eq_u32 vcc, -1, v{T0}")
    a.label(f"{tag}_entry2")
    mains = []; F = {}
    nobg = opt.get('nobg', '')
    def add(i, *xs): F.setdefault(i, []).extend(xs)
    AQ = lambda t: V_AQ + 4 * t
    AK = lambda t: V_AK + 4 * t
    AV = lambda t: V_AV + 4 * t
    for s in range(2):
        for t in range(2): mains.append(smf(AQ(t), Mf(s), wq(t, s)))
    for s in range(2):
        for t in range(2): mains.append(smf(AK(t), Mf(s), wk(t, s)))
    for s in range(2):
        for t in range(2): mains.append(smf(AV(t), Mf(s), vr(Wb(2*s + t), 8)))
    M = V_M
    add(1, f"s_cbranch_vccnz {tag}_h1retry", f"ds_write_b128 v{V_P1}, {Mf(0)}")
    add(opt.get('w1', 4), f"ds_write_b128 v{V_P1}, {Mf(1)} offset:1024")
    B1 = opt.get('b1', 8)
    add(B1, "s_waitcnt lgkmcnt(0)", *st_list('prebar1'), "s_barrier", *st_list('bar1'))
    mr = (V_MR1, V_MR2, V_MR3)
    for j, s in enumerate(range(2, 8)):
        add(B1 + j, f"ds_read_b128 {Mf(s)}, v{mr[(s >> 1) - 1]} offset:{(s & 1) * 1024}")
    for s in range(2, 8):
        for t in range(2): mains.append(smf(AQ(t), Mf(s), wq(t, s)))
    wvr = [x for j in range(4) for x in rd_wv(Wb(j), 2 + (j >> 1), j & 1)]
    for i, x in enumerate(wvr): add(14 + i, x)
    for s in range(2, 4):
        for t in range(2): mains.append(smf(AV(t), Mf(s), vr(Wb(2*(s-2) + t), 8)))
    for s in range(2, 8):
        for t in range(2): mains.append(smf(AK(t), Mf(s), wk(t, s)))
    ex4 = [f"buffer_store_dwordx4 {vr(VXn,4)}, v{V_LA}, {WS}, s{S_EXP} offen sc1"]
    bg = [f"buffer_load_dwordx4 v{V_P1}, {WS}, s{S_KPF} offen sc1 lds",
          f"buffer_load_dwordx4 v{V_P1}, {WS}, s{S_KPF} offen offset:1024 sc1 lds",
          f"buffer_load_dwordx4 {vr(VXn+4,4)}, v{V_P1}, {WS}, s{S_VPF} offen offset:1024 sc1",
          f"buffer_load_dwordx4 {vr(VXn,4)}, v{V_P1}, {WS}, s{S_VPF} offen sc1",
          f"buffer_load_dword v{V_FL}, off, {WS}, s{S_FLP} sc1"]
    vpos = opt.get('vpos', (2, 3, 5, 6, 7, 13))
    add(1, f"s_mov_b32 m0, s{S_KM0 + (1 - par)}")
    F[1] = [F[1][0], F[1][2], F[1][1]]
    for x, i in zip(ex4 + bg, vpos): add(i, x)
    add(20, f"s_sub_u32 s{S_T2}, s{S_STEP}, 1", f"s_max_i32 s{S_T2}, s{S_T2}, 0")
    add(21, f"v_mov_b32 v{V_PB}, s{S_T2}")
    add(23, f"buffer_store_dword v{V_PB}, v{V_GATH}, {WS}, s{S_FLA} offen sc1")
    sal = slot_lines() + [f"s_add_u32 s{S_EXP}, s{S_EXP}, {32*4096}", f"s_add_u32 s{S_KPF}, s{S_KPF}, {32*8192}", f"s_add_u32 s{S_VPF}, s{S_VPF}, {32*8192}"]
    if opt.get('samekv'): sal = sal[:-2]
    if opt.get('sameexp'): sal = [x for x in sal if f"s{S_EXP}," not in x]
    for j, x in enumerate(sal): F.setdefault(24 + j, []).insert(0, x)
    QF, KF = Wb(0), Wb(2)
    KX = [V_M, V_M + 4, Wb(2), Wb(2) + 4, Wb(3), Wb(3) + 4, V_M + 8, V_M + 12]
    qtr = [f"ds_read_b64_tr_b16 {vr(QF + 4*i + 2*hh, 2)}, v{V_QKR} offset:{i*1024 + hh*512}" for i in range(4) for hh in range(2)]
    kxr = [f"ds_read_b128 {vr(KX[2*i + T], 4)}, v{V_LA} offset:{Kc + T*4096 + i*1024}" for i in range(4) for T in range(2)]
    q0, q1 = AQ(0), AQ(1)
    add(22, kxr[0]); add(23, kxr[1])
    add(24, f"v_add_f32 v{q0}, v{q0}, v{q0+1}")
    add(25, f"v_add_f32 v{q0+2}, v{q0+2}, v{q0+3}")
    add(26, f"v_cvt_pk_bf16_f32 v{q0}, v{q0}, v{q0+2}")
    add(27, f"ds_write_b32 v{V_QW}, v{q0}", f"v_add_f32 v{q1}, v{q1}, v{q1+1}")
    add(28, kxr[2], f"v_add_f32 v{q1+2}, v{q1+2}, v{q1+3}")
    add(29, kxr[3], f"v_cvt_pk_bf16_f32 v{q1}, v{q1}, v{q1+2}")
    add(30, f"ds_write_b32 v{V_QW}, v{q1} offset:512")
    add(31, kxr[4]); add(32, kxr[5]); add(33, kxr[6])
    add(33, FLIP)
    B2 = opt.get('b2', 34)
    add(B2, "s_waitcnt lgkmcnt(3)", *st_list('prebar2'), "s_barrier", *st_list('bar2'))
    for j, x in enumerate(qtr): add(B2 + j, x)
    SX = lambda T: V_AQ + 4 * T
    for s in (4,):
        for t in range(2): mains.append(smf(AV(t), Mf(s), wv_res(t, s)))
    for i in range(4):
        for T in range(2):
            mains.append(mf32(SX(T), vr(KX[2*i + T], 4), vr(QF + 4*i, 4), "0" if i == 0 else vr(SX(T), 4)))
    k0, k1 = AK(0), AK(1)
    add(40, f"v_add_f32 v{k0}, v{k0}, v{k0+1}")
    add(41, f"v_add_f32 v{k0+2}, v{k0+2}, v{k0+3}")
    add(42, f"v_cvt_pk_bf16_f32 v{k0}, v{k0}, v{k0+2}", f"v_add_f32 v{k1}, v{k1}, v{k1+1}")
    add(43, f"ds_write_b32 v{V_QW}, v{k0} offset:4096", f"v_add_f32 v{k1+2}, v{k1+2}, v{k1+3}")
    add(44, kxr[7], f"v_cvt_pk_bf16_f32 v{k0+1}, v{k1}, v{k1+2}")
    add(45, f"ds_write_b32 v{V_QW}, v{k0+1} offset:4608")
    B3 = opt.get('b3', 49)
    add(B3, "s_waitcnt lgkmcnt(0)", *st_list('prebar3'), "s_barrier", *st_list('bar3'))
    ktr = [f"ds_read_b64_tr_b16 {vr(KF + 4*i + 2*hh, 2)}, v{V_QKR} offset:{4096 + i*1024 + hh*512}" for i in range(4) for hh in range(2)]
    for s in (5, 6, 7):
        for t in range(2): mains.append(smf(AV(t), Mf(s), wv_res(t, s)))
    for x, i in zip(ktr, opt.get('ktrpos', (49, 49, 50, 51, 52, 53, 54, 55))): add(i, x)
    ex = [f"v_exp_f32 v{V_AQ + r}, v{V_AQ + r}" for r in range(8)]
    for x, i in zip(ex, opt.get('expos', (50, 51, 52, 53, 54, 55, 56, 57))): add(i, x)
    SM = V_AK + 4
    for i in range(4):
        mains.append(mf32(SM, vr(KF + 4*i, 4), vr(QF + 4*i, 4), "0" if i == 0 else vr(SM, 4)))
    PX = V_AQ
    v0_, v1_ = AV(0), AV(1)
    add(58, f"v_cvt_pk_bf16_f32 v{PX}, v{V_AQ}, v{V_AQ+1}", f"v_cvt_pk_bf16_f32 v{PX+1}, v{V_AQ+2}, v{V_AQ+3}")
    add(59, f"v_cvt_pk_bf16_f32 v{PX+2}, v{V_AQ+4}, v{V_AQ+5}", f"v_cvt_pk_bf16_f32 v{PX+3}, v{V_AQ+6}, v{V_AQ+7}",
            f"v_add_f32 v{v0_}, v{v0_}, v{v0_+1}", f"v_add_f32 v{v0_+2}, v{v0_+2}, v{v0_+3}")
    OA, LA = V_M, V_M + 8
    mains.append(mf32(LA, vr(V_ONES, 4), vr(PX, 4), "0"))
    mains.append(mf32(OA, vr(VXc, 4), vr(PX, 4), "0"))
    mains.append(mf32(OA + 4, vr(VXc + 4, 4), vr(PX, 4), "0"))
    add(60, f"v_mul_f32 v{SM}, s{S_C}, v{SM}", f"v_mul_f32 v{SM+1}, s{S_C}, v{SM+1}")
    add(61, f"v_exp_f32 v{SM}, v{SM}", f"v_exp_f32 v{SM+1}, v{SM+1}")
    add(62, f"v_cvt_pk_bf16_f32 v{V_AK+2}, v{v0_}, v{v0_+2}", f"v_cvt_pk_bf16_f32 v{V_PB}, v{SM}, v{SM+1}",
            f"v_add_f32 v{v1_}, v{v1_}, v{v1_+1}", f"v_add_f32 v{v1_+2}, v{v1_+2}, v{v1_+3}")
    mains.append(mf16(LA, vr(V_ONES, 2), vr(V_PB, 2), vr(LA, 4)))
    add(63, f"v_cvt_pk_bf16_f32 v{V_AK+3}, v{v1_}, v{v1_+2}", f"v_cvt_pk_bf16_f32 v{V_PB+3}, v{SM}, v{SM+1}")
    mains.append(mf16(OA, vr(V_AK + 2, 2), vr(V_PB, 2), vr(OA, 4)))
    mains.append(mf16(OA + 4, vr(V_AK + 2, 2), vr(V_PB + 2, 2), vr(OA + 4, 4)))
    wo_order = [(t, kbo) for t in range(4, 8) for kbo in range(2)]
    wor = [x for j in range(4) for x in rd_wo(Wb(j), *wo_order[j])]
    npre = opt.get('npre', 4)
    for x, i in zip(wor[:npre], (64, 64, 65, 65, 65, 65, 65, 65)): add(i, x)
    drop = opt.get('drop', [])
    if drop:
        F = {i: [x for x in xs if not any(x.startswith(d) for d in drop)] for i, xs in F.items()}
    interleave(a, mains, F)
    st_at('pv')
    if par == 1:
        a(f"s_cmp_eq_u32 s{S_STEP}, 63")
        a(f"s_cbranch_scc1 L_chain_done")
    INV, OW = V_AQ + 0, V_AQ + 4
    a(f"v_rcp_f32 v{INV}, v{LA}")
    for hh in range(2):
        for r in range(4 * hh, 4 * hh + 4): a(f"v_mul_f32 v{OA+r}, v{OA+r}, v{INV}")
        for r in range(2 * hh, 2 * hh + 2): a(f"v_cvt_pk_bf16_f32 v{OW+r}, v{OA+2*r}, v{OA+2*r+1}")
        if not opt.get('ow128'): a(f"ds_write_b64 v{V_OW}, {vr(OW + 2*hh, 2)} offset:{8*hh}")
    if opt.get('ow128'): a(f"ds_write_b128 v{V_OW}, {vr(OW, 4)}")
    a(f"v_subrev_u32 v{INV+1}, s{S_LLO}, v{LA}")
    a(f"v_cmp_le_u32 vcc, s{S_LRG}, v{INV+1}")
    zacc = lambda t: mf16(V_M + 4*t, vr(V_PB + 2, 2), vr(V_PB, 2), "0")
    for t in range(opt.get('z1', 4)): a(zacc(t))
    a(f"s_cbranch_vccnz {tag}_fallback")
    a.label(f"{tag}_fbdone")
    a("s_waitcnt lgkmcnt(0)")
    st_at('prebar4')
    a("s_barrier")
    st_at('bar4')
    OF = VXc
    a(f"ds_read_b128 {vr(OF,4)}, v{V_LA}")
    a(f"ds_read_b128 {vr(OF+4,4)}, v{V_LA} offset:1024")
    HV = V_AK + 4
    a(f"s_add_u32 s{S_STEP}, s{S_STEP}, 1")
    for t in range(opt.get('z1', 4), 8):
        a(zacc(t))
        if t == 4: a(f"v_mov_b32 v{HV}, s{S_STEP}")
    st_at('oex')
    mains = []; F = {}
    P = lambda t: V_M + 4 * t
    for t in range(4):
        for kbo in range(2): mains.append(smf(P(t), vr(OF + 4*kbo, 4), wo_res(t, kbo)))
    src = [Wb(0), Wb(1), Wb(2), Wb(3), V_AQ, V_AV, Wb(0), Wb(1)]
    for j, (t, kbo) in enumerate(wo_order): mains.append(smf(P(t), vr(OF + 4*kbo, 4), vr(src[j], 8)))
    late = wor[npre:] + [x for j in range(4, 8) for x in rd_wo(src[j], *wo_order[j])]
    lpos = list(range(0, 8 - npre)) + [8 - npre + j for j in range(4)]
    lpos = [min(p, 7) for p in lpos] + [8, 9, 9, 10]
    for x, i in zip(late, lpos): add(i, x)
    def fold(t, dst):
        p = P(t)
        return [f"v_add_f32 v{p}, v{p}, v{p+1}", f"v_add_f32 v{p+2}, v{p+2}, v{p+3}", f"v_cvt_pk_bf16_f32 v{dst}, v{p}, v{p+2}"]
    for t in range(6):
        y = fold(t, P(t & 4) + (t & 3))
        add(2 * t + 3, y[0]); add(2 * t + 4, y[1], y[2])
        if t & 3 == 0: add(2 * t + 5, f"v_and_or_b32 v{P(t)}, v{P(t)}, -2, s{S_PH}")
    add(11, FLIP)
    y6 = fold(6, P(4) + 2); add(15, y6[0])
    sp = opt.get('st0', 15)
    F[sp].insert(0, f"buffer_store_dwordx4 {vr(P(0),4)}, v{V_PST}, {WS}, s{S_PST0} offen {st}")
    probes = opt.get('probes', (9, 12, 14))
    F.setdefault(opt.get('hintpos', 4), []).insert(0, f"buffer_store_dword v{HV}, v{V_L4}, {WS}, s{S_HST} offen {st}")
    probe = lambda j: f"buffer_load_dword v{HV + 1 + j % 3}, v{V_L4}, {WS}, s{S_HLD} offen sc1"
    for j, g in enumerate(probes):
        if g < 16: F[g].insert(0, probe(j))
    interleave(a, mains, F)
    a(y6[1]); a(y6[2])
    for j, g in enumerate(probes):
        if g == 16: a(probe(j))
    for y in fold(7, P(4) + 3): a(y)
    a(f"buffer_store_dwordx4 {vr(P(4),4)}, v{V_PST}, {WS}, s{S_PST1} offen {st}")
    st_at('pst')
    SEL, RA = V_AQ, V_AV
    def h2_issue():
        for i in range(8):
            a(f"buffer_load_dwordx4 {Mf(i)}, v{V_LA}, {WS}, s{S_INB0 if i < 4 else S_INB1} offen offset:{(i & 3)*1024} sc1")
    FLG = QB + 4 - MEMB
    a(f"s_cmp_lg_u32 s{S_WV}, 0")
    a(f"s_cbranch_scc1 {tag}_others")
    for r in range(4): a(f"v_cndmask_b32 v{SEL+r}, 0, v{V_SELX}, s[{S_SELM+2*r}:{S_SELM+2*r+1}]")
    def check(j):
        a(f"v_cmp_gt_u32 vcc, s{S_STEP}, v{HV + 1 + j % 3}")
        a(f"s_cmp_eq_u32 vcc_lo, 0")
        a(f"s_cbranch_scc1 {tag}_go")
    n = len(probes)
    extra = 0
    for j in range(n, 3):
        a(probe(j)); extra += 1
    for j, g in enumerate(probes):
        young = sum(1 for q in probes if q > g) + 1 + (1 if sp >= g else 0) + extra
        a(f"s_waitcnt vmcnt({young})")
        check(j)
        a(probe(j)); extra += 1
    a.label(f"{tag}_hl")
    for j in range(3):
        a("s_waitcnt vmcnt(2)")
        check(n + j)
        a(probe(n + j))
        a(f"s_add_u32 s{S_ACC+3}, s{S_ACC+3}, 1")
    a(f"s_add_u32 s{S_SPIN}, s{S_SPIN}, 1")
    a(f"s_cmp_gt_u32 s{S_SPIN}, {SPIN_LIMIT}")
    a(f"s_cbranch_scc0 {tag}_hl")
    a("s_branch L_abort")
    a.label(f"{tag}_go")
    for _ in range(opt.get('h2pad', 0)): a("s_nop 7")
    st_at('h2iss')
    h2_issue()
    idle_a(a, 1 - par)
    idle_b(a, 1 - par, f"{tag}_av0", 10 + len(probes))
    a.label(f"{tag}_h2")
    TG = RA + 4
    for i in range(8):
        a(mf32(RA, Mf(i), vr(SEL, 4), "0" if i == 0 else vr(RA, 4)))
        if i == 0: a(f"v_xor_b32 v{TG}, s{S_PH}, v{V_M}")
        else: a(f"v_bitop3_b32 v{TG}, v{TG}, v{V_M + 4*i}, s{S_PH} bitop3:0xf6")
    a(f"v_and_b32 v{TG}, 1, v{TG}")
    a(f"v_cmp_ne_u32 vcc, 0, v{TG}")
    a(f"v_mov_b32 v{TG}, s{S_STEP}")
    a(f"v_mov_b32 v{TG+1}, {MEMB}")
    a(f"v_cvt_pk_bf16_f32 v{RA+6}, v{RA}, v{RA+1}")
    a(f"v_cvt_pk_bf16_f32 v{RA+7}, v{RA+2}, v{RA+3}")
    a(f"s_cbranch_vccnz {tag}_h2r")
    a(f"buffer_store_dwordx2 {vr(RA+6,2)}, v{V_PUB}, {WS}, s{S_PUBN} offen {st}")
    st_at('pub')
    a(f"ds_write_b32 v{TG+1}, v{TG} offset:{FLG}")
    a(f"v_mov_b32 v{RA}, -1")
    a(f"v_mov_b32 v{RA+1}, -1")
    a(f"buffer_store_dwordx2 {vr(RA,2)}, v{V_PUB}, {WS}, s{S_PUBC} offen {st}")
    for _ in range(opt.get('h1pad', 0)): a("s_nop 7")
    a(f"s_branch {tag}_join")
    a.label(f"{tag}_others")
    idle_a(a, 1 - par)
    idle_b(a, 1 - par, f"{tag}_av2", 2 + len(probes))
    a(f"v_mov_b32 v{TG+1}, {MEMB}")
    a.label(f"{tag}_lw")
    a(f"ds_read_b32 v{TG}, v{TG+1} offset:{FLG}")
    a(f"s_add_u32 s{S_SPIN2}, s{S_SPIN2}, 1")
    a(f"s_cmp_gt_u32 s{S_SPIN2}, {SPIN_LIMIT * 8}")
    a("s_cbranch_scc1 L_abort")
    a("s_waitcnt lgkmcnt(0)")
    a(f"v_cmp_ne_u32 vcc, s{S_STEP}, v{TG}")
    a(f"s_cbranch_vccnz {tag}_lw")
    for _ in range(opt.get('h1pado', 0)): a("s_nop 7")
    a.label(f"{tag}_join")
    st_at('h1iss')
    h1_issue(a, 0)
    idle_c(a, 1 - par)
    a("s_waitcnt lgkmcnt(0)")
    st_at('join')
    return h2_issue

def h1_issue(a, j):
    WS = f"s[{S_WS}:{S_WS+3}]"
    a(f"buffer_load_dwordx4 {Mf(2*j)}, v{V_P1}, {WS}, s{S_MEMRD} offen sc1")
    a(f"buffer_load_dwordx4 {Mf(2*j + 1)}, v{V_P1}, {WS}, s{S_MEMRD} offen offset:1024 sc1")

def step_tails(a, par, tag, h2, opt):
    WS = f"s[{S_WS}:{S_WS+3}]"
    VXc = V_VX[par]
    Kc = KB[par] - MEMB
    T0 = V_PB + 3
    def spin(k):
        a(f"s_add_u32 s{S_SPIN}, s{S_SPIN}, 1")
        a(f"s_cmp_gt_u32 s{S_SPIN}, {SPIN_LIMIT}")
        a("s_cbranch_scc1 L_abort")
        a(f"s_add_u32 s{S_ACC+k}, s{S_ACC+k}, 1")
    a.label(f"{tag}_h1retry")
    a("s_mov_b64 exec, vcc")
    h1_issue(a, 0)
    a("s_mov_b64 exec, -1")
    spin(1)
    a("s_nop 2")
    for r in range(8): a(f"v_mov_b32 v{V_AQ + r}, 0")
    a(f"s_branch {tag}_h1")
    a.label(f"{tag}_h2r")
    a("s_mov_b64 exec, vcc")
    h2()
    a("s_mov_b64 exec, -1")
    spin(2)
    a(f"s_branch {tag}_h2")
    for j in (0, 2): avail_slow(a, f"{tag}_av{j}")
    a.label(f"{tag}_fallback")
    a("s_nop 7")
    a("s_nop 3")
    a("s_waitcnt lgkmcnt(0)")
    QF, KF = Wb(0), Wb(2)
    SX, SM = V_AV, V_AK + 4
    OA, LA = V_M, V_M + 8
    for i in range(4):
        for hh in range(2): a(f"ds_read_b64_tr_b16 {vr(QF + 4*i + 2*hh, 2)}, v{V_QKR} offset:{i*1024 + hh*512}")
    for T in range(2):
        for i in range(4): a(f"ds_read_b128 {vr(KF + 4*i, 4)}, v{V_LA} offset:{Kc + T*4096 + i*1024}")
        for i in range(4): a(mf32(SX + 4*T, vr(KF + 4*i, 4), vr(QF + 4*i, 4), "0" if i == 0 else vr(SX + 4*T, 4)))
        a("s_nop 7")
    for i in range(4):
        for hh in range(2): a(f"ds_read_b64_tr_b16 {vr(KF + 4*i + 2*hh, 2)}, v{V_QKR} offset:{4096 + i*1024 + hh*512}")
    for i in range(4): a(mf32(SM, vr(KF + 4*i, 4), vr(QF + 4*i, 4), "0" if i == 0 else vr(SM, 4)))
    a(f"v_mul_f32 v{SM}, s{S_C}, v{SM}")
    a(f"v_mul_f32 v{SM+1}, s{S_C}, v{SM+1}")
    MX, T2 = SM + 2, SM + 3
    a(f"v_max3_f32 v{MX}, v{SM}, v{SM+1}, v{SX}")
    for r in range(1, 7, 2): a(f"v_max3_f32 v{MX}, v{MX}, v{SX+r}, v{SX+r+1}")
    a(f"v_max_f32 v{MX}, v{MX}, v{SX+7}")
    for sw in ("v_permlane16_swap_b32", "v_permlane32_swap_b32"):
        a(f"v_mov_b32 v{T2}, v{MX}")
        a(f"{sw} v{MX}, v{T2}")
        a(f"v_max_f32 v{MX}, v{MX}, v{T2}")
    for r in list(range(SX, SX + 8)) + [SM, SM + 1]:
        a(f"v_sub_f32 v{r}, v{r}, v{MX}")
        a(f"v_exp_f32 v{r}, v{r}")
    PX = V_AQ
    for r in range(4): a(f"v_cvt_pk_bf16_f32 v{PX+r}, v{SX+2*r}, v{SX+2*r+1}")
    a(f"v_cvt_pk_bf16_f32 v{V_PB}, v{SM}, v{SM+1}")
    a(f"v_cvt_pk_bf16_f32 v{V_PB+3}, v{SM}, v{SM+1}")
    a(mf32(LA, vr(V_ONES, 4), vr(PX, 4), "0"))
    a(mf32(OA, vr(VXc, 4), vr(PX, 4), "0"))
    a(mf32(OA + 4, vr(VXc + 4, 4), vr(PX, 4), "0"))
    a(mf16(LA, vr(V_ONES, 2), vr(V_PB, 2), vr(LA, 4)))
    a(mf16(OA, vr(V_AK + 2, 2), vr(V_PB, 2), vr(OA, 4)))
    a(mf16(OA + 4, vr(V_AK + 2, 2), vr(V_PB + 2, 2), vr(OA + 4, 4)))
    wo_order = [(t, kbo) for t in range(4, 8) for kbo in range(2)]
    for j in range(4):
        for x in rd_wo(Wb(j), *wo_order[j]): a(x)
    INV, OW = V_AQ + 0, V_AQ + 4
    a(f"v_rcp_f32 v{INV}, v{LA}")
    for r in range(8): a(f"v_mul_f32 v{OA+r}, v{OA+r}, v{INV}")
    for r in range(4): a(f"v_cvt_pk_bf16_f32 v{OW+r}, v{OA+2*r}, v{OA+2*r+1}")
    a(f"ds_write_b128 v{V_OW}, {vr(OW,4)}")
    for r in range(16): a(f"v_mov_b32 v{V_M + r}, 0")
    a("s_waitcnt lgkmcnt(0)")
    a("s_nop 1")
    a(f"s_branch {tag}_fbdone")

def role_chain(a, opt):
    WS = f"s[{S_WS}:{S_WS+3}]"; DB = f"s[{S_D}:{S_D+3}]"
    vq = VmQueue()
    CODEPF[0] = opt.get('codepf', 0)
    start_weights(a, vq)
    a(f"s_mov_b32 s65, s{S_T2}")
    common_srds(a)
    if opt.get('dbgtime'):
        a("s_not_b32 s96, s98"); a("s_mov_b64 exec, 1"); a("v_mov_b32 v126, s96"); a(f"buffer_atomic_umax v126, off, s[{S_D}:{S_D+3}], 0 offset:36"); a("s_mov_b64 exec, -1"); vq.add('x')
    setup_lanes(a)
    a(f"s_mov_b32 s{S_C}, {f32bits(CSCALE):#x}")
    a(f"s_mov_b32 s{S_LLO}, 0x21800000")
    a(f"s_mov_b32 s{S_LRG}, 0x3c000000")
    for r in range(S_ACC, S_ACC + 4): a(f"s_mov_b32 s{r}, 0")
    a(f"s_lshl_b32 s{S_T0}, s{S_H}, 8")
    a(f"s_add_u32 s{S_HB_PST}, s{S_T0}, {WS_PART}")
    a(f"s_lshl_b32 s{S_T0}, s{S_H}, 13")
    a(f"s_add_u32 s{S_HB_INB}, s{S_T0}, {WS_PART - MEMB}")
    a(f"s_add_u32 s{S_KPF}, s{S_T0}, {WS_KX - MEMB}")
    a(f"s_add_u32 s{S_VPF}, s{S_T0}, {WS_VX - MEMB}")
    a(f"s_and_b32 s{S_T0}, s{S_H}, 3")
    a(f"s_lshl_b32 s{S_T0}, s{S_T0}, 6")
    a(f"s_lshr_b32 s{S_T1}, s{S_H}, 2")
    a(f"s_lshl_b32 s{S_T1}, s{S_T1}, 10")
    a(f"s_add_u32 s{S_T0}, s{S_T0}, s{S_T1}")
    a(f"s_add_u32 s{S_HB_PUB}, s{S_T0}, {WS_MEMRING}")
    a(f"s_lshl_b32 s{S_T0}, s{S_H}, 12")
    a(f"s_lshl_b32 s{S_T1}, s{S_WV}, 10")
    a(f"s_add_u32 s{S_T0}, s{S_T0}, s{S_T1}")
    a(f"s_add_u32 s{S_EXP}, s{S_T0}, {WS_KVM - MEMB - 32*4096}")
    a(f"s_lshl_b32 s{S_T0}, s{S_H}, 7")
    a(f"s_add_u32 s{S_FLP}, s{S_T0}, {WS_FLAG + FLAG_P * 128}")
    a(f"s_add_u32 s{S_FLA}, s{S_T0}, {WS_FLAG + FLAG_A * 128}")
    a(f"s_lshl_b32 s{S_T0}, s{S_WV}, 11")
    a(f"s_add_u32 s{S_KM0}, s{S_T0}, {KB[0]}")
    a(f"s_add_u32 s{S_KM0+1}, s{S_T0}, {KB[1]}")
    SN = V_W
    for r in range(4): a(f"v_mov_b32 v{SN+r}, -1")
    a(f"v_mov_b32 v{SN+4}, 0")
    def arm(st):
        for sl in range(4):
            a(f"s_add_u32 s{S_T0}, s{S_HB_INB}, {sl << 18}")
            a(f"buffer_store_dwordx4 {vr(SN,4)}, v{V_P1}, {WS}, s{S_T0} offen {st}")
            a(f"buffer_store_dwordx4 {vr(SN,4)}, v{V_P1}, {WS}, s{S_T0} offen offset:1024 {st}")
            a(f"s_add_u32 s{S_T0}, s{S_HB_PUB}, {sl << 13}")
            a(f"buffer_store_dwordx2 {vr(SN,2)}, v{V_PUB}, {WS}, s{S_T0} offen {st}")
        a(f"buffer_store_dword v{SN+4}, v{V_L4}, {WS}, s{S_HST} offen {st}")
    po = opt.get('ponly', '')
    if 'a' not in po: arm("")
    if 'f' not in po: a(f"buffer_store_dword v{SN+4}, off, {WS}, s{S_FLA} sc1")
    vq.add('arm', (0 if 'a' in po else 13) + (0 if 'f' in po else 1))
    a(f"s_mov_b32 s{S_T2}, s65")
    S_OK = S_AVAIL
    PSTAMP[0] = opt.get('pstamp', -1)
    groups = [g for g in opt.get('groups', [0]) if g == 0 or g >= 5]
    IV = V_M + 16
    srd(a, S_W, KA_MEM0, 8192)
    def seg0_loads():
        a(f"s_mov_b32 m0, s{S_KM0}")
        a("s_nop 0")
        a(f"buffer_load_dwordx4 v{V_P1}, {WS}, s{S_KPF} offen sc1 lds")
        a(f"buffer_load_dwordx4 v{V_P1}, {WS}, s{S_KPF} offen offset:1024 sc1 lds")
        a(f"buffer_load_dwordx4 {vr(V_VX[0],4)}, v{V_P1}, {WS}, s{S_VPF} offen sc1")
        a(f"buffer_load_dwordx4 {vr(V_VX[0]+4,4)}, v{V_P1}, {WS}, s{S_VPF} offen offset:1024 sc1")
    def h0(a):
        assert vq.done('arm')
        register_wg(a, SN, "L_ch_noreg", barrier=False)
    def h8(a):
        init_issue(a, IV); vq.add('init', 3)
        a(f"s_mov_b32 s{S_OK}, 0")
    def h16(a):
        assert vq.done('init')
        vq.add('fl')
        a.items.append(('x', 'forget_vm'))
        init_check(a, IV, groups, "L_ch_h16")
        a(f"s_mov_b32 s{S_OK}, 1")
        a.label("L_ch_h16")
        a(f"buffer_load_dword v{V_FL}, off, {WS}, s{S_FLP} sc1")
    def h24(a):
        assert vq.done('fl')
        vq.add('mem0', 2)
        a.items.append(('x', 'forget_vm'))
        a(f"buffer_load_dwordx4 {Mf(0)}, v{V_GATH}, s[{S_W}:{S_W+3}], 0 offen")
        a(f"buffer_load_dwordx4 {Mf(1)}, v{V_GATH}, s[{S_W}:{S_W+3}], 0 offen offset:128")
        a(f"v_readfirstlane_b32 s{S_T0}, v{V_FL}")
        a(f"s_lshr_b32 s{S_T1}, s{S_T0}, 16")
        a(f"s_and_b32 s{S_T0}, s{S_T0}, 0xffff")
        a(f"s_min_u32 s{S_T0}, s{S_T0}, s{S_T1}")
        a(f"s_cmp_ge_u32 s{S_T0}, 2")
        a(f"s_cselect_b32 s{S_T0}, s{S_OK}, 0")
        a(f"s_lshl_b32 s{S_OK}, s{S_T0}, 1")
        a(f"s_cmp_eq_u32 s{S_OK}, 0")
        a("s_cbranch_scc1 L_ch_h24")
        seg0_loads()
        a.label("L_ch_h24")
    load_weights(a, dict(zip(opt.get('hooks', (3, 6, 10, 14)), (h0, h8, h16, h24))), vq)
    if opt.get('ptime') and 'pstamp' not in opt:
        a("s_memrealtime s[62:63]"); a("s_waitcnt lgkmcnt(0)"); a(f"s_sub_u32 s{S_ACC}, s62, s92"); a(f"s_lshl_b32 s{S_ACC}, s{S_ACC}, 2"); a(f"s_add_u32 s{S_ACC}, s{S_ACC}, s{S_OK}")
    if opt.get('ponly'):
        a(f"s_lshl_b32 s{S_T0}, s{S_H}, 2"); a(f"s_add_u32 s{S_T0}, s{S_T0}, s{S_WV}"); a(f"s_lshl_b32 s{S_T0}, s{S_T0}, 5"); a(f"s_add_u32 s{S_T0}, s{S_T0}, {WS_STAMP + 4}")
        a(f"v_mov_b32 v{V_M}, s{S_ACC}")
        a(f"buffer_store_dword v{V_M}, off, {WS}, s{S_T0}")
        a("s_endpgm")
    a(f"s_mov_b32 s{S_STEP}, 0")
    a(f"s_cmp_lg_u32 s{S_OK}, 0")
    a("s_cbranch_scc1 L_ch_ready")
    wait_init(a, IV, groups, "L_ch_init")
    a(f"v_mov_b32 v{V_FL}, 0")
    avail_check(a, "L_ch_av")
    seg0_loads()
    a.label("L_ch_ready")
    if opt.get('nokv'):
        a(f"s_mov_b32 m0, s{S_KM0+1}")
        a(f"s_nop 0")
        a(f"buffer_load_dwordx4 v{V_P1}, {WS}, s{S_KPF} offen sc1 lds")
        a(f"buffer_load_dwordx4 v{V_P1}, {WS}, s{S_KPF} offen offset:1024 sc1 lds")
        a(f"buffer_load_dwordx4 {vr(V_VX[1]+4,4)}, v{V_P1}, {WS}, s{S_VPF} offen offset:1024 sc1")
    a(f"s_add_u32 s{S_KPF}, s{S_KPF}, {32*8192}")
    a(f"s_add_u32 s{S_VPF}, s{S_VPF}, {32*8192}")
    idle_a(a, 0)
    for r in range(24): a(f"v_mov_b32 v{V_AQ + r}, 0")
    a(f"s_mov_b32 s{S_SPIN2}, 0")
    a(f"s_mov_b32 s{S_MEMRD}, {WS_MEMRING - MEMB}")
    a(f"v_cndmask_b32 v{V_GATH}, v{V_ONES}, 0, s[{S_L0}:{S_L0+1}]")
    for r in range(4): a(f"v_mov_b32 v{V_M + 8 + r}, 0")
    for j in range(2): a(f"ds_write_b128 v{V_P1}, {vr(V_M + 8, 4)} offset:{QB - MEMB + 1024*j}")
    a("s_waitcnt vmcnt(0) lgkmcnt(0)")
    for r in range(8): a(f"v_min_u32 v{V_M+r}, -2, v{V_M+r}")
    if opt.get('time'):
        a("s_mov_b32 s74, 0"); a("s_mov_b32 s73, -1"); a("s_mov_b32 s72, 0")
        a(f"s_memtime s[84:85]")
        a(f"s_memrealtime s[88:89]")
        a("s_waitcnt lgkmcnt(0)")
    if opt.get('dbgtime'): dbg_stamp(a, 11, vt=V_M + 30); a("s_waitcnt vmcnt(0)")
    a(f"s_cmp_eq_u32 s{S_MODE}, {opt.get('fastmode', 1)}")
    a("s_cbranch_scc1 L_F0_entry")
    SN = V_M + 8
    for r in range(4): a(f"v_mov_b32 v{SN+r}, -1")
    a(f"v_mov_b32 v{SN+4}, 0")
    arm("sc1")
    a("s_waitcnt vmcnt(0)")
    a("s_barrier")
    a(f"v_mov_b32 v{SN}, 1")
    a(f"buffer_atomic_add v{SN}, v{V_GATH}, {DB}, 0 offen offset:32")
    a.label("L_ch_rearm")
    a("s_sleep 4")
    a(f"buffer_load_dword v{SN}, off, {DB}, 0 offset:32 sc1")
    a(f"s_add_u32 s{S_SPIN}, s{S_SPIN}, 1")
    a(f"s_cmp_gt_u32 s{S_SPIN}, {SPIN_LIMIT}")
    a("s_cbranch_scc1 L_abort")
    a("s_waitcnt vmcnt(0)")
    a(f"v_readfirstlane_b32 s{S_T0}, v{SN}")
    a(f"s_cmp_ge_u32 s{S_T0}, 32")
    a("s_cbranch_scc0 L_ch_rearm")
    a("s_branch L_S0_entry")
    for tag, st in (("L_F", ""), ("L_S", "sc1")):
        h20 = step(a, 0, st, tag + "0", opt)
        h21 = step(a, 1, st, tag + "1", opt)
        a(f"s_branch {tag}0_h1")
        step_tails(a, 0, tag + "0", h20, opt)
        step_tails(a, 1, tag + "1", h21, opt)
    avail_slow(a, "L_ch_av")
    a.label("L_chain_done")
    a(f"buffer_store_dwordx4 {vr(V_AK,4)}, v{V_LA}, {WS}, s{S_EXP} offen sc1")
    a("s_nop 7")
    a("s_waitcnt vmcnt(0)")
    a("s_barrier")
    a(f"v_mov_b32 v{V_M}, 64")
    a(f"buffer_store_dword v{V_M}, off, {WS}, s{S_FLA} sc1")
    if opt.get('dbgtime'): dbg_stamp(a, 12, vt=V_M + 30)
    if opt.get('time'):
        a(f"s_memtime s[86:87]")
        a(f"s_memrealtime s[90:91]")
        a("s_waitcnt lgkmcnt(0)")
        a("s_sub_u32 s86, s86, s84")
        a(f"s_lshl_b32 s{S_T0}, s{S_H}, 2")
        a(f"s_add_u32 s{S_T0}, s{S_T0}, s{S_WV}")
        a(f"s_lshl_b32 s{S_T0}, s{S_T0}, 5")
        a(f"s_add_u32 s{S_T0}, s{S_T0}, {WS_STAMP}")
        for i, s in enumerate((86, S_ACC, S_ACC + 1, S_ACC + 2, 88, 90, 92, S_ACC + 3)):
            a(f"v_mov_b32 v{V_M+i}, s{s}")
        a(f"buffer_store_dwordx4 {vr(V_M,4)}, off, {WS}, s{S_T0}")
        a(f"buffer_store_dwordx4 {vr(V_M+4,4)}, off, {WS}, s{S_T0} offset:16")
        a(f"s_add_u32 s{S_T0}, s{S_T0}, 0x8000")
        a("s_mov_b32 s75, s84")
        for i in range(8): a(f"v_mov_b32 v{V_M+8+i}, s{68+i}")
        a(f"buffer_store_dwordx4 {vr(V_M+8,4)}, off, {WS}, s{S_T0}")
        a(f"buffer_store_dwordx4 {vr(V_M+12,4)}, off, {WS}, s{S_T0} offset:16")
    a("s_endpgm")
```

```python
from asmlib import *

KNAME = "gated_mix__memory_aug_recurrent_mem_tr__geglu_ffn__prompt_kernel"

KA_X, KA_MEM0, KA_WQ, KA_WK, KA_WV, KA_WO = 0, 8, 16, 24, 32, 40
KA_WG, KA_WU, KA_WD, KA_GW, KA_OUT, KA_DBG, KA_WS = 64, 72, 80, 88, 96, 104, 112

WS_SIZE = 0x10000000
OOB = 0x10000000
WS_FLAG = 0x0000000
FLAG_P = 0
FLAG_A = 64
FLAG_F = 96
FLAG_G = 128
FLAG_C = 160
WS_HINT = 0x0030000
WS_MEMRING = 0x0040000
WS_G = 0x0050000
WS_STAMP = 0x0060000
WS_PART = 0x0100000
WS_KX = 0x1000000
WS_VX = 0x2000000
WS_KVM = 0x3100000
WS_FP = 0x4000000
WS_CP = 0x6000000

import os
SPIN_LIMIT = int(os.environ.get('SPINLIM', 200000))
CSCALE = (128 ** -0.5) * 1.4426950408889634

import struct
def f32bits(x): return struct.unpack('<I', struct.pack('<f', x))[0]

S_WS = 4
S_W = 8
S_D = 12
S_H = 16
S_WV = 17
S_SPIN = 18
S_T0, S_T1, S_T2, S_T3 = 19, 20, 21, 22
S_PTR = 24
S_MODE = 26

def srd(a, base, ka_off, size):
    a(f"s_load_dwordx2 s[{S_PTR}:{S_PTR+1}], s[0:1], {ka_off}")
    a("s_waitcnt lgkmcnt(0)")
    a(f"s_mov_b32 s{base}, s{S_PTR}")
    a(f"s_and_b32 s{base+1}, s{S_PTR+1}, 0xffff")
    a(f"s_mov_b32 s{base+2}, {size:#x}")
    a(f"s_mov_b32 s{base+3}, 0x20000")

def bitpat(a, dst, lane, terms, tmp, const=0):
    first = True
    for sh, mask, mul in terms:
        t = dst if first else tmp
        nb = mask.bit_length()
        assert mask == (1 << nb) - 1
        a(f"v_bfe_u32 v{t}, v{lane}, {sh}, {nb}")
        if mul & (mul - 1) == 0:
            if mul > 1: a(f"v_lshlrev_b32 v{t}, {mul.bit_length()-1}, v{t}")
        else:
            a(f"v_mul_u32_u24 v{t}, {mul}, v{t}")
        if not first: a(f"v_add_u32 v{dst}, v{dst}, v{t}")
        first = False
    if const: a(f"v_add_u32 v{dst}, {const}, v{dst}")

def chunk_src_pattern(a, dst, lane, tmp, rowbits, pitch):
    bp, brh, bg, brl = rowbits
    bitpat(a, dst, lane, [(5, 1, pitch << bp), (4, 1, pitch << bg), (3, 1, pitch << brh), (2, 1, pitch << brl), (0, 1, 16)], tmp)
    a(f"v_lshrrev_b32 v{tmp}, 3, v{lane}")
    a(f"v_xor_b32 v{tmp}, v{tmp}, v{lane}")
    a(f"v_and_b32 v{tmp}, 2, v{tmp}")
    a(f"v_lshl_add_u32 v{dst}, v{tmp}, 4, v{dst}")

def chunk_tr_pattern(a, dst, lane, tmp):
    bitpat(a, dst, lane, [(5, 1, 1024), (4, 1, 256 + 32), (3, 1, 128), (2, 1, 64), (0, 3, 8)], tmp)

def tr_off(p): return (p >> 1) * 2048 + (p & 1) * 512

S_XG = 27
S_XCC = 28

def common_srds(a):
    srd(a, S_WS, KA_WS, WS_SIZE)
    srd(a, S_D, KA_DBG, 256)

def register_wg(a, vt, lab, barrier=True):
    DB = f"s[{S_D}:{S_D+3}]"
    if barrier: a("s_barrier")
    a(f"s_cmp_lg_u32 s{S_WV}, 0")
    a(f"s_cbranch_scc1 {lab}")
    a(f"s_mul_i32 s{S_T0}, s{S_XCC}, s{S_XCC}")
    a(f"s_lshl_b32 s{S_T0}, s{S_T0}, 18")
    a(f"s_lshl_b32 s{S_T1}, s{S_XCC}, 9")
    a(f"s_add_u32 s{S_T0}, s{S_T0}, s{S_T1}")
    a(f"s_add_u32 s{S_T0}, s{S_T0}, 1")
    a(f"s_lshl_b32 s{S_T1}, s{S_XG}, 2")
    a("s_mov_b64 exec, 1")
    a(f"v_mov_b32 v{vt}, s{S_T0}")
    a(f"buffer_atomic_add v{vt}, off, {DB}, s{S_T1}")
    a("s_mov_b64 exec, -1")
    a.label(lab)

def init_issue(a, vt):
    DB = f"s[{S_D}:{S_D+3}]"
    a(f"buffer_load_dwordx4 {vr(vt,4)}, off, {DB}, 0 sc1")
    a(f"buffer_load_dwordx4 {vr(vt+4,4)}, off, {DB}, 0 offset:16 sc1")
    a(f"s_lshl_b32 s{S_T1}, s{S_XG}, 2")
    a(f"buffer_load_dword v{vt+8}, off, {DB}, s{S_T1} sc1")

def init_check(a, vt, groups, fail):
    for g in groups:
        a(f"v_readfirstlane_b32 s{S_T0}, v{vt+g}")
        a(f"s_and_b32 s{S_T0}, s{S_T0}, 0x1ff")
        a(f"s_cmp_ge_u32 s{S_T0}, 32")
        a(f"s_cbranch_scc0 {fail}")
    a(f"v_readfirstlane_b32 s{S_T0}, v{vt+8}")
    a(f"s_and_b32 s{S_T1}, s{S_T0}, 0x1ff")
    a(f"s_cmp_ge_u32 s{S_T1}, 32")
    a(f"s_cbranch_scc0 {fail}")
    a(f"s_mul_i32 s{S_T1}, s{S_XCC}, s{S_XCC}")
    a(f"s_lshl_b32 s{S_T1}, s{S_T1}, 18")
    a(f"s_lshl_b32 s{S_T2}, s{S_XCC}, 9")
    a(f"s_add_u32 s{S_T1}, s{S_T1}, s{S_T2}")
    a(f"s_add_u32 s{S_T1}, s{S_T1}, 1")
    a(f"s_lshl_b32 s{S_T1}, s{S_T1}, 5")
    a(f"s_cmp_eq_u32 s{S_T0}, s{S_T1}")
    a(f"s_cselect_b32 s{S_MODE}, 1, 0")

def wait_init(a, vt, groups, lab, pause=16):
    a(f"s_branch {lab}_first")
    a.label(lab)
    a(f"s_sleep {pause}")
    a.label(f"{lab}_first")
    init_issue(a, vt)
    a(f"s_add_u32 s{S_SPIN}, s{S_SPIN}, 1")
    a(f"s_cmp_gt_u32 s{S_SPIN}, {SPIN_LIMIT}")
    a("s_cbranch_scc1 L_abort")
    a("s_waitcnt vmcnt(0)")
    init_check(a, vt, groups, lab)

def dbg_stamp(a, word, neg=False, vt=126):
    a("s_memrealtime s[96:97]")
    a("s_waitcnt lgkmcnt(0)")
    if neg: a("s_not_b32 s96, s96")
    a("s_mov_b64 exec, 1")
    a(f"v_mov_b32 v{vt}, s96")
    a(f"buffer_atomic_umax v{vt}, off, s[{S_D}:{S_D+3}], 0 offset:{4*word}")
    a("s_mov_b64 exec, -1")
```

```python
import sys
from common import *
import chain, rolepf, rolec

def build(opt):
    a = Asm()
    nwg = opt.get('nwg', 32)
    a("s_cmp_ge_u32 s2, 256")
    a("s_cbranch_scc1 L_exit")
    if opt.get('time') or opt.get('dbgtime'):
        a("s_memrealtime s[92:93]")
        a("s_waitcnt lgkmcnt(0)")
        a("s_mov_b32 s98, s92"); a("s_mov_b32 s99, 0"); a("s_mov_b32 s100, 0")
    a(f"s_load_dwordx8 s[{chain.S_KA}:{chain.S_KA+7}], s[0:1], {KA_WQ}")
    a(f"s_mov_b32 s{S_SPIN}, 0")
    a(f"s_lshr_b32 s{S_H}, s2, 3")
    a(f"s_and_b32 s{S_XG}, s2, 7")
    a(f"s_getreg_b32 s{S_XCC}, hwreg(HW_REG_XCC_ID, 0, 4)")
    if opt.get('hxor'): a(f"s_xor_b32 s{S_H}, s{S_H}, {opt['hxor']}")
    if opt.get('spread'):
        a(f"s_mov_b32 s{S_H}, s2")
        a(f"s_lshr_b32 s{S_XG}, s2, 5")
    full = opt.get('full', 0)
    if full:
        opt = dict(opt); opt['groups'] = list(range(8))
        a(f"s_cmp_ge_u32 s{S_XG}, 5")
        a("s_cbranch_scc1 L_role_mix")
        a(f"s_cmp_lg_u32 s{S_XG}, 0")
        a("s_cbranch_scc1 L_role_c")
    else:
        a(f"s_cmp_eq_u32 s{S_XG}, 0")
        a("s_cbranch_scc0 L_exit")
    chain.role_chain(a, opt)
    if full:
        a.label("L_role_mix")
        common_srds(a)
        a(f"s_mul_i32 s{S_H}, s{S_H}, 3")
        a(f"s_add_u32 s{S_H}, s{S_H}, s{S_XG}")
        a(f"s_sub_u32 s{S_H}, s{S_H}, 5")
        a(f"s_lshr_b32 s{S_T0}, s{S_H}, 5")
        a(f"s_and_b32 s{S_H}, s{S_H}, 31")
        a(f"s_cmp_eq_u32 s{S_T0}, 1")
        a("s_cbranch_scc1 L_role_pv")
        a(f"s_cmp_eq_u32 s{S_T0}, 2")
        a("s_cbranch_scc1 L_role_fg")
        rolepf.role_p(a, opt, 'k')
        a.label("L_role_pv")
        rolepf.role_p(a, opt, 'v')
        a.label("L_role_fg")
        a(f"s_cmp_ge_u32 s{S_H}, 28")
        a("s_cbranch_scc1 L_role_g")
        rolepf.role_f(a, opt)
        a.label("L_role_g")
        rolepf.role_g(a, opt)
        a.label("L_role_c")
        common_srds(a)
        rolec.role_c(a, opt)
    a.label("L_abort")
    a("s_mov_b64 exec, -1")
    a("v_mov_b32 v0, 0xdead")
    a(f"buffer_store_dword v0, off, s[{S_D}:{S_D+3}], 0 offset:60")
    a.label("L_exit")
    a("s_endpgm")
    a.label("L_done")
    if opt.get('dbgtime'):
        a("s_waitcnt vmcnt(0)")
        dbg_stamp(a, 10)
    if opt.get('time'):
        a("s_waitcnt vmcnt(0)")
        a("s_memrealtime s[96:97]")
        a("s_waitcnt lgkmcnt(0)")
        a("s_lshl_b32 s19, s2, 4")
        a(f"s_add_u32 s19, s19, {WS_STAMP + 0x10000}")
        a("v_mov_b32 v0, s96"); a("v_mov_b32 v1, s98"); a("v_mov_b32 v2, s99"); a("v_mov_b32 v3, s100")
        a(f"buffer_store_dwordx4 v[0:3], off, s[{S_WS}:{S_WS+3}], s19")
    a("s_endpgm")
    a.label("L_code_end")
    autowait(a, opt.get('verbose'))
    a.pad(opt.get('verbose'))
    head = f"""; @launch grid=(256,1,1) block=(256,1,1) lds={chain.LDS_BYTES}
.amdgcn_target "amdgcn-amd-amdhsa--gfx950"
.text
.globl {KNAME}
.p2align 8
.type {KNAME},@function
{KNAME}:
"""
    tail = f""".section .rodata,"a"
.p2align 6
.amdhsa_kernel {KNAME}
  .amdhsa_next_free_vgpr 512
  .amdhsa_next_free_sgpr 102
  .amdhsa_accum_offset 256
  .amdhsa_group_segment_fixed_size 0
  .amdhsa_kernarg_size 120
  .amdhsa_user_sgpr_count 2
  .amdhsa_user_sgpr_kernarg_segment_ptr 1
  .amdhsa_system_sgpr_workgroup_id_x 1
  .amdhsa_float_denorm_mode_32 3
.end_amdhsa_kernel
"""
    return head + a.text() + tail

if __name__ == "__main__":
    opt = eval(sys.argv[2]) if len(sys.argv) > 2 else {}
    open(sys.argv[1], "w").write(build(opt))
```

```python
import sys
from common import *
import chain, rolepf, rolec

def build(opt):
    a = Asm()
    import stream
    stream.SPOL[0] = opt.get('spol', '')
    nwg = opt.get('nwg', 32)
    a("s_cmp_ge_u32 s2, 256")
    a("s_cbranch_scc1 L_exit")
    if opt.get('time') or opt.get('dbgtime') or opt.get('probe_t'):
        a("s_memrealtime s[92:93]")
        a("s_waitcnt lgkmcnt(0)")
        a("s_mov_b32 s98, s92"); a("s_mov_b32 s99, 0"); a("s_mov_b32 s100, 0")
    a(f"s_load_dwordx8 s[{chain.S_KA}:{chain.S_KA+7}], s[0:1], {KA_WQ}")
    a(f"s_load_dwordx4 s[{chain.S_KA+8}:{chain.S_KA+11}], s[0:1], {KA_DBG}")
    a(f"s_mov_b32 s{S_SPIN}, 0")
    a(f"s_lshr_b32 s{S_H}, s2, 3")
    a(f"s_and_b32 s{S_XG}, s2, 7")
    a(f"s_getreg_b32 s{S_XCC}, hwreg(HW_REG_XCC_ID, 0, 4)")
    if opt.get('hxor'): a(f"s_xor_b32 s{S_H}, s{S_H}, {opt['hxor']}")
    if opt.get('spread'):
        a(f"s_mov_b32 s{S_H}, s2")
        a(f"s_lshr_b32 s{S_XG}, s2, 5")
    full = opt.get('full', 0)
    if full:
        opt = dict(opt); opt['groups'] = list(range(8))
        a(f"s_cmp_ge_u32 s{S_XG}, 5")
        a("s_cbranch_scc1 L_role_mix")
        a(f"s_cmp_lg_u32 s{S_XG}, 0")
        a("s_cbranch_scc1 L_role_c")
    else:
        a(f"s_cmp_eq_u32 s{S_XG}, 0")
        a("s_cbranch_scc0 L_exit")
    chain.role_chain(a, opt)
    if full:
        a.label("L_role_mix")
        common_srds(a)
        a(f"s_mul_i32 s{S_H}, s{S_H}, 3")
        a(f"s_add_u32 s{S_H}, s{S_H}, s{S_XG}")
        a(f"s_sub_u32 s{S_H}, s{S_H}, 5")
        a(f"s_lshr_b32 s{S_T0}, s{S_H}, 5")
        a(f"s_and_b32 s{S_H}, s{S_H}, 31")
        a(f"s_cmp_eq_u32 s{S_T0}, 1")
        a("s_cbranch_scc1 L_role_pv")
        a(f"s_cmp_eq_u32 s{S_T0}, 2")
        a("s_cbranch_scc1 L_role_fg")
        rolepf.role_p(a, opt, 'k')
        a.label("L_role_pv")
        rolepf.role_p(a, opt, 'v')
        a.label("L_role_fg")
        a(f"s_cmp_ge_u32 s{S_H}, 28")
        a("s_cbranch_scc1 L_role_g")
        rolepf.role_f(a, opt)
        a.label("L_role_g")
        rolepf.role_spare(a, opt)
        a.label("L_role_c")
        common_srds(a)
        rolec.role_c(a, opt)
    a.label("L_abort")
    a("s_mov_b64 exec, -1")
    a("v_mov_b32 v0, 0xdead")
    a(f"buffer_store_dword v0, off, s[{S_D}:{S_D+3}], 0 offset:60")
    if opt.get('abortinfo'):
        a("s_lshl_b32 s19, s2, 2"); a(f"s_add_u32 s19, s19, s{S_WV}"); a("s_lshl_b32 s19, s19, 5"); a(f"s_add_u32 s19, s19, {WS_STAMP + 0x20000}")
        for i, r in enumerate((30, 26, 28, 95, 96, 97, 61, 18)): a(f"v_mov_b32 v{i}, s{r}")
        a(f"buffer_store_dwordx4 v[0:3], off, s[{S_WS}:{S_WS+3}], s19")
        a(f"buffer_store_dwordx4 v[4:7], off, s[{S_WS}:{S_WS+3}], s19 offset:16")
    a.label("L_exit")
    a("s_endpgm")
    a.label("L_done")
    if opt.get('dbgtime'):
        a("s_waitcnt vmcnt(0)")
        dbg_stamp(a, 15)
    if opt.get('time'):
        a("s_waitcnt vmcnt(0)")
        a("s_memrealtime s[96:97]")
        a("s_waitcnt lgkmcnt(0)")
        a("s_lshl_b32 s19, s2, 4")
        a(f"s_add_u32 s19, s19, {WS_STAMP + 0x10000}")
        a("v_mov_b32 v0, s96"); a("v_mov_b32 v1, s98"); a("v_mov_b32 v2, s99"); a("v_mov_b32 v3, s100")
        a(f"buffer_store_dwordx4 v[0:3], off, s[{S_WS}:{S_WS+3}], s19")
    a("s_endpgm")
    a.label("L_code_end")
    autowait(a, opt.get('verbose'))
    a.pad(opt.get('verbose'))
    head = f"""; @launch grid=(256,1,1) block=(256,1,1) lds={chain.LDS_BYTES}
.amdgcn_target "amdgcn-amd-amdhsa--gfx950"
.text
.globl {KNAME}
.p2align 8
.type {KNAME},@function
{KNAME}:
"""
    tail = f""".section .rodata,"a"
.p2align 6
.amdhsa_kernel {KNAME}
  .amdhsa_next_free_vgpr 512
  .amdhsa_next_free_sgpr 102
  .amdhsa_accum_offset 256
  .amdhsa_group_segment_fixed_size 0
  .amdhsa_kernarg_size 120
  .amdhsa_user_sgpr_count 2
  .amdhsa_user_sgpr_kernarg_segment_ptr 1
  .amdhsa_system_sgpr_workgroup_id_x 1
  .amdhsa_float_denorm_mode_32 3
.end_amdhsa_kernel
"""
    return head + a.text() + tail

if __name__ == "__main__":
    opt = eval(sys.argv[2]) if len(sys.argv) > 2 else {}
    open(sys.argv[1], "w").write(build(opt))
```

```python
import re

REG_RE = re.compile(r'^(-)?(\|)?(abs\()?([vas])(\d+|\[(\d+):(\d+)\])\)?\|?$')

def regs_of(tok):
    tok = tok.strip()
    if tok in ('vcc',): return {('s', 'vcc')}
    if tok in ('vcc_lo', 'vcc_hi'): return {('s', 'vcc')}
    if tok in ('exec', 'exec_lo', 'exec_hi'): return {('s', 'exec')}
    if tok == 'm0': return {('s', 'm0')}
    m = REG_RE.match(tok)
    if not m: return set()
    k = m.group(4)
    if m.group(6) is not None:
        return {(k, i) for i in range(int(m.group(6)), int(m.group(7)) + 1)}
    return {(k, int(m.group(5)))}

TRANS = ('v_exp_f32', 'v_log_f32', 'v_rcp_f32', 'v_rsq_f32', 'v_sqrt_f32', 'v_sin_f32', 'v_cos_f32')

class Ins:
    def __init__(self, text):
        self.text = text
        t = text.split(';')[0].strip()
        parts = t.split(None, 1)
        self.op = parts[0]
        rest = parts[1] if len(parts) > 1 else ''
        rest = re.sub(r'(op_sel\w*|neg_\w+|quad_perm):\[([^\]]*)\]', lambda m: m.group(1) + ':' + m.group(2).replace(',', '_'), rest)
        self.ops = [x.strip() for x in rest.split(',')] if rest else []
        self.mods = ''
        if self.ops:
            last = self.ops[-1].split(None, 1)
            self.ops[-1] = last[0]
            self.mods = last[1] if len(last) > 1 else ''
        op = self.op
        self.is_mfma = op.startswith('v_mfma') or op.startswith('v_smfmac')
        self.is_valu = op.startswith('v_') and not self.is_mfma
        self.is_ds = op.startswith('ds_')
        self.is_vmem = op.startswith('buffer_') or op.startswith('global_')
        self.is_salu = op.startswith('s_')
        self.w = set(); self.r = set()
        self.A = self.B = self.C = set()
        R = [regs_of(x) for x in self.ops]
        if self.is_mfma:
            self.w = R[0]; self.A = R[1]; self.B = R[2]
            if op.startswith('v_smfmac'):
                self.C = R[0]; self.B = R[2] | R[3]
            else:
                self.C = R[3]
            self.r = self.A | self.B | self.C
            self.passes = 8 if '32x32' in op else 4
        elif self.is_valu:
            if 'permlane' in op and 'swap' in op:
                self.w = R[0] | R[1]; self.r = R[0] | R[1]
            elif op.startswith('v_cmpx'):
                self.w = R[0] | {('s', 'exec')}; self.r = set().union(*R[1:])
            elif op.startswith(('v_add_co', 'v_sub_co', 'v_addc_co', 'v_subb_co')):
                self.w = R[0] | R[1]; self.r = set().union(*R[2:])
            else:
                self.w = R[0]; self.r = set().union(*R[1:]) if len(R) > 1 else set()
                if op.startswith(('v_fmac', 'v_writelane')) or 'dpp' in op or 'dpp' in self.mods or 'row_' in self.mods:
                    self.r = self.r | R[0]
        elif self.is_ds:
            if op.startswith('ds_read') or op.startswith('ds_bpermute') or op.startswith('ds_swizzle'):
                self.w = R[0]; self.r = set().union(*R[1:])
            else:
                self.r = set().union(*R)
        elif self.is_vmem:
            lds = re.search(r'\blds\b', self.mods) is not None
            self.lds = lds
            if 'load' in op and not lds:
                self.w = R[0]; self.r = set().union(*R[1:])
            elif 'atomic' in op and 'sc0' in self.mods.split():
                self.w = R[0]; self.r = set().union(*R)
            else:
                self.r = set().union(*R) if R else set()
            if lds: self.r = self.r | {('s', 'm0')}
            self.wide_store = ('store' in op) and op.endswith(('x3', 'x4'))
            self.data = set()
            if self.wide_store:
                self.data = R[0] if op.startswith('buffer') else R[1]
        elif self.is_salu:
            if op.startswith(('s_cmp', 's_cbranch', 's_branch', 's_waitcnt', 's_barrier', 's_nop', 's_endpgm', 's_sleep', 's_setprio', 's_bitcmp')):
                self.r = set().union(*R) if R else set()
            else:
                self.w = R[0] if R else set(); self.r = set().union(*R[1:]) if len(R) > 1 else set()
                if 'saveexec' in op: self.w = self.w | {('s', 'exec')}
        self.states = 1
        if op == 's_nop': self.states = int(self.ops[0], 0) + 1

def vg(s): return {x for x in s if x[0] in 'va'}
def sg(s): return {x for x in s if x[0] == 's'}

def need(p, c):
    n = 0
    if p.is_valu:
        wv = vg(p.w); ws = sg(p.w)
        if c.is_mfma and wv & c.r: n = max(n, 2)
        if c.is_mfma and ('s', 'exec') in ws: n = max(n, 4)
        if c.is_valu:
            if 'permlane' in c.op and wv & c.r: n = max(n, 2)
            if ('dpp' in c.op or 'row_' in c.mods or 'quad_perm' in c.mods) and wv & c.r: n = max(n, 2)
            if c.op.startswith(('v_readlane', 'v_readfirstlane')) and wv & c.r: n = max(n, 1)
            if p.op.startswith(TRANS) and wv & (c.r) and not c.op.startswith(TRANS): n = max(n, 1)
            if p.op.startswith(TRANS) and wv & (c.r): n = max(n, 1)
            if ws & sg(c.r): n = max(n, 2)
            if ws and c.op.startswith('v_cndmask') and len(c.ops) == 4 and False: pass
            if ('s', 'exec') in ws and c.op.startswith(('v_readlane', 'v_readfirstlane', 'v_writelane')) : n = max(n, 4)
            if ('s', 'exec') in ws and 'permlane' in c.op: n = max(n, 4)
            if ('s', 'exec') in ws and ('dpp' in c.op or 'row_' in c.mods): n = max(n, 5)
            if ws & sg(c.r) and c.op.startswith(('v_readlane', 'v_writelane')): n = max(n, 4)
        if (c.is_vmem) and ws & sg(c.r): n = max(n, 5)
        if (c.is_vmem or c.is_ds) and p.op.startswith(TRANS) and wv & c.r: n = max(n, 1)
        if c.is_salu and ws & sg(c.r) and not c.op.startswith('s_cbranch'): n = max(n, 1)
    if p.is_mfma:
        big = {4: 8, 8: 12}[p.passes]; part = {4: 6, 8: 10}[p.passes]; war = {4: 3, 8: 7}[p.passes]
        if c.is_mfma:
            if p.w & (c.A | c.B): n = max(n, big)
            if p.w & c.C:
                if not (p.w == c.C and p.op == c.op): n = max(n, part)
            if p.w & c.w and not (p.w & c.C):
                n = max(n, part)
        elif c.is_valu:
            if p.w & (c.r | c.w): n = max(n, big)
            if p.C & c.w: n = max(n, war)
        elif c.is_ds or c.is_vmem:
            if p.w & (c.r | c.w): n = max(n, big)
    if p.is_vmem and getattr(p, 'wide_store', False):
        if (c.is_valu or c.is_mfma) and p.data & c.w: n = max(n, 2)
        elif p.data & c.w: n = max(n, 1)
    if p.is_salu and ('s', 'm0') in p.w:
        if (c.is_vmem and getattr(c, 'lds', False)): n = max(n, 1)
    return n

def distance(seq, c):
    p = seq[0]
    if not p.is_mfma:
        return sum(x.states for x in seq[1:])
    t = 0; last = 0; lastp = p.passes
    prev = p
    for x in seq[1:] + [c]:
        t += prev.states
        if x.is_mfma:
            t = max(t, last + lastp); last = t; lastp = x.passes
        prev = x
    return t - 1

class Asm:
    def __init__(self):
        self.items = []
        self.uid = 0
    def __call__(self, text):
        for ln in text.strip().split('\n'):
            ln = ln.strip()
            if not ln: continue
            if ln.startswith(';'):
                self.items.append(('c', ln))
            elif ln.endswith(':'):
                self.items.append(('l', ln[:-1]))
            elif ln.startswith('.'):
                self.items.append(('d', ln))
            else:
                self.items.append(('i', Ins(ln)))
    def label(self, n): self.items.append(('l', n))
    def newlabel(self, base):
        self.uid += 1
        return f"{base}_{self.uid}"
    def pad(self, verbose=False):
        out = []; win = []
        npad = 0
        for it in self.items:
            if it[0] != 'i':
                out.append(it); continue
            c = it[1]
            req = 0
            for j in range(len(win) - 1, -1, -1):
                k = need(win[j], c)
                if k:
                    while distance(win[j:] + ([Ins(f"s_nop {req-1}")] if req else []), c) < k: req += 1
            if req > 0:
                nop = Ins(f"s_nop {req-1}")
                out.append(('i', nop)); win.append(nop); npad += 1
                if verbose: print(f"pad {req} before: {c.text}")
            out.append(it); win.append(c)
            if c.op in ('s_branch', 's_endpgm', 's_setpc_b64'): win = []
            win = win[-24:]
        self.items = out
        self.check_branches()
        return npad
    def check_branches(self):
        idx = {it[1]: i for i, it in enumerate(self.items) if it[0] == 'l'}
        for i, it in enumerate(self.items):
            if it[0] != 'i': continue
            b = it[1]
            if not (b.op.startswith('s_cbranch') or b.op == 's_branch'): continue
            tgt = b.ops[0]
            if tgt not in idx: continue
            tail = []
            j = i
            while j >= 0 and len(tail) < 24:
                if self.items[j][0] == 'i':
                    if j != i and self.items[j][1].op in ('s_branch', 's_endpgm'): break
                    tail.append(self.items[j][1])
                j -= 1
            head = []
            j = idx[tgt]
            while j < len(self.items) and len(head) < 24:
                if self.items[j][0] == 'i':
                    head.append(self.items[j][1])
                    if self.items[j][1].op in ('s_branch', 's_endpgm'): break
                j += 1
            dh = 0
            for c in head:
                dist = dh
                for p in tail:
                    if need(p, c) > dist:
                        raise RuntimeError(f"branch hazard via {b.text}: '{p.text}' -> '{c.text}' needs {need(p,c)} has {dist}")
                    dist += p.states
                    if dist > 20: break
                dh += c.states
                if dh > 20: break
    def text(self):
        o = []
        for k, v in self.items:
            if k == 'i': o.append('    ' + v.text)
            elif k == 'l': o.append(v + ':')
            else: o.append(('    ' if k == 'c' else '') + v)
        return '\n'.join(o) + '\n'

def vr(base, n=1):
    return f"v{base}" if n == 1 else f"v[{base}:{base+n-1}]"
def ar(base, n=1):
    return f"a{base}" if n == 1 else f"a[{base}:{base+n-1}]"
def sr(base, n=1):
    return f"s{base}" if n == 1 else f"s[{base}:{base+n-1}]"
def ur(idx, n):
    if idx < 256:
        assert idx + n <= 256
        return vr(idx, n)
    return ar(idx - 256, n)

def interleave(asm, mains, fillers):
    for i, m in enumerate(mains):
        asm(m)
        for f in fillers.get(i, []): asm(f)

WAIT_RE = re.compile(r'(vmcnt|lgkmcnt)\((\d+)\)')

def autowait(asm, verbose=False):
    out = []; lg = []; vm = []; smem = False
    for it in asm.items:
        if it[0] == 'x':
            if it[1] == 'forget_vm': vm = []
            if it[1] == 'set_vm': vm = list(it[2])
            if it[1] == 'drop_last_vm':
                k = max(i for i, d in enumerate(vm) if not d); vm = vm[:k] + vm[k+1:]
            continue
        if it[0] != 'i':
            out.append(it); continue
        c = it[1]
        if c.op == 's_waitcnt':
            for k, n in WAIT_RE.findall(c.text):
                n = int(n)
                if k == 'vmcnt': vm = vm[len(vm) - n:] if n < len(vm) else vm
                else:
                    lg = lg[len(lg) - n:] if n < len(lg) else lg
                    if n == 0: smem = False
            if 'vmcnt(0)' in c.text: vm = []
            if 'lgkmcnt(0)' in c.text: lg = []
            out.append(it); continue
        touch = vg(c.r | c.w)
        nl = None
        for i, d in enumerate(lg):
            if d & touch: nl = len(lg) - 1 - i
        nv = None
        for i, d in enumerate(vm):
            if d & touch: nv = len(vm) - 1 - i
        if nl is not None or nv is not None:
            s = 's_waitcnt'
            if nv is not None:
                nv = min(nv, 63); s += f' vmcnt({nv})'; vm = vm[len(vm) - nv:] if nv else []
            if nl is not None:
                if smem: nl = 0
                nl = min(nl, 15); s += f' lgkmcnt({nl})'; lg = lg[len(lg) - nl:] if nl else []
                if nl == 0: smem = False
            pos = len(out)
            if c.is_mfma:
                while pos > 0 and out[pos-1][0] == 'i' and len(out) - pos < 3:
                    q = out[pos-1][1]
                    if q.is_valu: pos -= 1
                    elif q.is_ds and nl is None: pos -= 1
                    elif q.is_ds and nl > 0 and not smem: nl -= 1; pos -= 1
                    elif q.is_vmem and nv is None: pos -= 1
                    else: break
                s = 's_waitcnt' + (f' vmcnt({nv})' if nv is not None else '') + (f' lgkmcnt({nl})' if nl is not None else '')
            out.insert(pos, ('i', Ins(s)))
            if verbose: print(f"{s}   before {c.text}")
        out.append(it)
        if c.is_ds: lg.append(vg(c.w))
        elif c.is_vmem and not c.op.startswith(('buffer_wbl2', 'buffer_inv')): vm.append(vg(c.w))
        elif c.op.startswith(('s_load', 's_memtime', 's_memrealtime', 's_atomic', 's_buffer_load')): smem = True
        if c.op in ('s_branch', 's_endpgm'): lg = []; vm = []; smem = False
    asm.items = out
```

```python
from common import *

MEMB = 131072
KB = (139264, 147456)
QB = 155648
KKB = QB + 4096
LDS_BYTES = 163840

V_LA, V_P1, V_MR1, V_MR2, V_MR3, V_QW, V_L4, V_QKR, V_WVO, V_OW, V_GATH, V_PST, V_PUB, V_IDX, V_SELX, V_FL = range(16)
V_ONES = 16
V_PB = 20
V_M = 24
V_AQ, V_AK, V_AV = 56, 64, 72
V_W = 80
V_VX = (112, 120)
WQ0, WK0, WV0, WO0 = 256, 384, 128, 192

def wq(t, s): return ur(WQ0 + (s * 2 + t) * 8, 8)
def wk(t, s): return ur(WK0 + (s * 2 + t) * 8, 8)
def wv_res(t, s): return ur(WV0 + ((s - 4) * 2 + t) * 8, 8)
def wo_res(t, kbo): return ur(WO0 + (t * 2 + kbo) * 8, 8)
def Mf(s): return vr(V_M + 4 * s, 4)
def Wb(j): return V_W + 8 * j

S_STEP = 30
S_MEMRD = 31
S_PST0, S_PST1 = 32, 33
S_INB0, S_INB1 = 34, 35
S_PUBN = 36
S_PUBC = 37
S_PH = 38
S_KPF, S_VPF = 39, 40
S_EXP = 41
S_FLP = 42
S_FLA = 43
S_AVAIL = 44
S_C = 45
S_LLO, S_LRG = 46, 47
S_SELM = 48
S_KM0 = 56
S_HB_PST, S_HB_INB, S_HB_PUB = 58, 59, 60
S_SPIN2 = 61
S_HST, S_HLD = 23, 29
S_HST2, S_HLD2 = 64, 65
S_L0 = 66
S_TS = 76
S_ACC = 94

def smf(d, A, B): return f"v_smfmac_f32_16x16x64_bf16 {vr(d,4)}, {A}, {B}, v{V_IDX}"
def mf32(d, A, B, C): return f"v_mfma_f32_16x16x32_bf16 {vr(d,4)}, {A}, {B}, {C}"
def mf16(d, A, B, C): return f"v_mfma_f32_16x16x16_bf16 {vr(d,4)}, {A}, {B}, {C}"

V_TID = 123
HINT_STRIDE = [4]
S_KA = 40

def setup_lanes(a):
    L, T = 127, 126
    a(f"v_lshlrev_b32 v{V_LA}, 4, v{L}")
    a(f"s_lshl_b32 s{S_T0}, s{S_WV}, 13")
    a(f"v_add_u32 v{V_WVO}, s{S_T0}, v{V_LA}")
    a(f"v_add_u32 v{V_LA}, {MEMB}, v{V_LA}")
    for j, r in enumerate((V_P1, V_MR1, V_MR2, V_MR3)):
        a(f"s_xor_b32 s{S_T0}, s{S_WV}, {j}")
        a(f"s_lshl_b32 s{S_T0}, s{S_T0}, 11")
        a(f"v_add_u32 v{r}, s{S_T0}, v{V_LA}")
    bitpat(a, V_QW, L, [(5, 1, 8), (0, 15, 1)], T)
    a(f"v_and_b32 v{V_QW}, 15, v{V_QW}")
    a(f"v_and_b32 v{T}, 48, v{L}")
    a(f"v_add_u32 v{V_QW}, v{V_QW}, v{T}")
    a(f"v_lshlrev_b32 v{V_QW}, 3, v{V_QW}")
    a(f"s_lshl_b32 s{S_T0}, s{S_WV}, 10")
    a(f"s_add_u32 s{S_T0}, s{S_T0}, {QB}")
    a(f"v_add_u32 v{V_QW}, s{S_T0}, v{V_QW}")
    bitpat(a, V_QKR, L, [(1, 1, 8), (2, 15, 1)], T)
    a(f"v_and_b32 v{V_QKR}, 15, v{V_QKR}")
    a(f"v_and_b32 v{T}, 3, v{L}")
    a(f"v_lshl_add_u32 v{V_QKR}, v{T}, 4, v{V_QKR}")
    a(f"v_lshlrev_b32 v{V_QKR}, 3, v{V_QKR}")
    a(f"v_add_u32 v{V_QKR}, {QB}, v{V_QKR}")
    bitpat(a, V_OW, L, [(4, 3, 256), (2, 3, 64), (0, 1, 32), (1, 1, 4096)], T, MEMB)
    a(f"s_lshr_b32 s{S_T0}, s{S_WV}, 1")
    a(f"s_lshl_b32 s{S_T0}, s{S_T0}, 10")
    a(f"s_and_b32 s{S_T1}, s{S_WV}, 1")
    a(f"s_lshl_b32 s{S_T1}, s{S_T1}, 4")
    a(f"s_add_u32 s{S_T0}, s{S_T0}, s{S_T1}")
    a(f"v_add_u32 v{V_OW}, s{S_T0}, v{V_OW}")
    bitpat(a, T, L, [(1, 1, 16)], T)
    a(f"v_xor_b32 v{V_OW}, v{V_OW}, v{T}")
    HS = HINT_STRIDE[0]
    bitpat(a, V_L4, L, [(0, 31, HS), (5, 1, OOB)], T)
    if HS == 4: bitpat(a, V_GATH, L, [(0, 7, 128), (3, 1, OOB), (4, 1, OOB), (5, 1, OOB)], T)
    elif HS == 32: bitpat(a, V_GATH, L, [(3, 7, 1024), (0, 7, 4)], T)
    else: bitpat(a, V_GATH, L, [(4, 3, 2048), (0, 15, 4)], T)
    a(f"s_cmp_eq_u32 s{S_WV}, 3")
    a(f"s_cselect_b64 vcc, -1, 0")
    a(f"v_cndmask_b32 v{V_L4}, v{V_L4}, v{V_GATH}, vcc")
    a(f"s_mul_i32 s{S_T0}, s{S_H}, {HS}")
    a(f"s_add_u32 s{S_T0}, s{S_T0}, {WS_HINT}")
    a(f"s_cmp_eq_u32 s{S_WV}, 3")
    a(f"s_cselect_b32 s{S_HST}, s{S_T0}, {OOB}")
    a(f"s_and_b32 s{S_T0}, s{S_H}, {3 if HS == 64 else 7}")
    a(f"s_mul_i32 s{S_T0}, s{S_T0}, {32 * HS}")
    a(f"s_add_u32 s{S_T0}, s{S_T0}, {WS_HINT}")
    a(f"s_cmp_eq_u32 s{S_WV}, 0")
    a(f"s_cselect_b32 s{S_HLD}, s{S_T0}, {OOB}")
    bitpat(a, V_GATH, L, [(1, 7, 1024), (4, 3, 32), (0, 1, 16)], T)
    a(f"s_lshl_b32 s{S_T0}, s{S_WV}, 8")
    a(f"v_add_u32 v{V_GATH}, s{S_T0}, v{V_GATH}")
    bitpat(a, V_PST, L, [(4, 3, 8192), (0, 15, 16)], T)
    a(f"s_lshl_b32 s{S_T0}, s{S_WV}, 16")
    a(f"v_add_u32 v{V_PST}, s{S_T0}, v{V_PST}")
    bitpat(a, V_PUB, L, [(1, 3, 256), (0, 1, 32), (5, 1, 16), (4, 1, 8), (3, 1, OOB)], T)
    a(f"v_and_b32 v{T}, 1, v{L}")
    a(f"v_cmp_eq_u32 vcc, 1, v{T}")
    a(f"v_mov_b32 v{V_IDX}, 0x44444444")
    a(f"v_mov_b32 v{T}, 0xeeeeeeee")
    a(f"v_cndmask_b32 v{V_IDX}, v{V_IDX}, v{T}, vcc")
    a(f"v_mov_b32 v{V_SELX}, 0x3f80")
    a(f"v_mov_b32 v{T}, 0x3f800000")
    a(f"v_cndmask_b32 v{V_SELX}, v{V_SELX}, v{T}, vcc")
    a(f"v_bfe_u32 v{T}, v{L}, 1, 3")
    for r in range(4):
        a(f"v_cmp_eq_u32 s[{S_SELM+2*r}:{S_SELM+2*r+1}], {r}, v{T}")
    a(f"v_cmp_eq_u32 s[{S_L0}:{S_L0+1}], 64, v{V_TID}")
    for r in range(4):
        a(f"v_mov_b32 v{V_ONES+r}, 0x3f803f80")
        a(f"v_mov_b32 v{V_PB+r}, 0")

PSTAMP = [-1]
CODEPF = [0]
S_DQ = (68, 72, 76, 80)
V_SQ, V_SO = 125, 124
ROUNDS = [('q', s) for s in (0, 1, 4, 5)] + [('k', s) for s in (0, 1, 4, 5)] + [('v', 4), ('v', 5), ('o', (0, 0)), ('o', (0, 1))] \
    + [('v', 0), ('v', 1), ('o', (1, 0)), ('o', (1, 1))]

def src_pattern(a, dst, L, T, bits, pitch):
    bitpat(a, dst, L, [(3, 1, pitch << bits[0]), (4, 1, pitch << bits[1]), (5, 1, pitch << bits[2]), (0, 1, 16)], T)
    for sh, bit in ((2, 4), (4, 2)):
        a(f"v_lshrrev_b32 v{T}, {sh}, v{L}")
        a(f"v_xor_b32 v{T}, v{T}, v{L}")
        a(f"v_and_b32 v{T}, {bit}, v{T}")
        a(f"v_lshl_add_u32 v{dst}, v{T}, 4, v{dst}")

class VmQueue:
    def __init__(self): self.q = []
    def add(self, tag, n=1): self.q += [tag] * n
    def wait(self, a, tag):
        last = max(i for i, t in enumerate(self.q) if t == tag)
        a(f"s_waitcnt vmcnt({len(self.q) - 1 - last})")
        self.q = self.q[last + 1:]
    def done(self, tag): return tag not in self.q

def issue_round(a, i, vq):
    kind, p = ROUNDS[i]
    if kind != 'o':
        a(f"s_xor_b32 s{S_T0}, s{S_WV}, {p >> 1}")
        a(f"s_lshl_b32 s{S_T0}, s{S_T0}, 20")
        a(f"s_add_u32 s{S_T0}, s{S_T0}, s{S_T2}")
        if p & 1: a(f"s_add_u32 s{S_T0}, s{S_T0}, {64 * 8192}")
        rows, pitch, v = (16, 2, 32), 8192, V_SQ
    else:
        a(f"s_lshl_b32 s{S_T0}, s{S_H}, 17")
        a(f"s_lshl_b32 s{S_T1}, s{S_WV}, 8")
        a(f"s_add_u32 s{S_T0}, s{S_T0}, s{S_T1}")
        a(f"s_add_u32 s{S_T0}, s{S_T0}, {p[1] * 65536 + p[0] * 128}")
        rows, pitch, v = (4, 2, 8), 1024, V_SO
    d = S_DQ['qkvo'.index(kind)]
    prev = 0
    for u in range(8):
        off = sum(rows[b] for b in range(3) if u >> b & 1) * pitch - (u & 3) * 1024
        if u & 3 == 0: a(f"s_add_u32 m0, s{S_T3}, {(i & 3) * 32768 + (u >> 2) * 4096}")
        if off != prev: a(f"s_add_u32 s{S_T0}, s{S_T0}, {(off - prev) & 0xffffffff:#x}")
        prev = off
        a(f"buffer_load_dwordx4 v{v}, s[{d}:{d+3}], s{S_T0} offen offset:{(u & 3)*1024} lds")
    vq.add(('w', i), 8)

def start_weights(a, vq):
    L, T = 127, 126
    a(f"v_mov_b32 v{V_TID}, v0")
    a(f"v_and_b32 v{L}, 63, v0")
    a(f"v_lshrrev_b32 v{T}, 6, v0")
    a(f"v_readfirstlane_b32 s{S_WV}, v{T}")
    if CODEPF[0]:
        a("s_getpc_b64 s[8:9]")
        a.label("L_pc")
        a("s_and_b32 s9, s9, 0xffff")
        a("s_mov_b32 s10, L_code_end-L_pc")
        a("s_mov_b32 s11, 0x20000")
        a(f"s_lshl_b32 s{S_T0}, s{S_H}, 12")
        a(f"v_lshlrev_b32 v{T}, 4, v0")
        a(f"buffer_load_dwordx4 v[24:27], v{T}, s[8:11], s{S_T0} offen")
        vq.add('code')
    src_pattern(a, V_SQ, L, T, (0, 3, 2), 8192)
    a(f"s_lshl_b32 s{S_T3}, s{S_WV}, 13")
    a(f"s_lshr_b32 s{S_T1}, s{S_WV}, 1")
    a(f"s_lshl_b32 s{S_T1}, s{S_T1}, 7")
    a(f"s_lshl_b32 s{S_T2}, s{S_H}, 8")
    a(f"s_add_u32 s{S_T2}, s{S_T2}, s{S_T1}")
    a("s_waitcnt lgkmcnt(0)")
    for base, src, size in ((S_D, S_KA + 8, 256), (S_WS, S_KA + 10, WS_SIZE)):
        a(f"s_mov_b32 s{base}, s{src}")
        a(f"s_and_b32 s{base+1}, s{src+1}, 0xffff")
        a(f"s_mov_b32 s{base+2}, {size:#x}")
        a(f"s_mov_b32 s{base+3}, 0x20000")
    register_wg(a, V_W, "L_ch_noreg", barrier=False)
    for j, d in enumerate(S_DQ):
        a(f"s_mov_b32 s{d}, s{S_KA + 2*j}")
        a(f"s_and_b32 s{d+1}, s{S_KA + 2*j + 1}, 0xffff")
        a(f"s_mov_b32 s{d+2}, 0x400000")
        a(f"s_mov_b32 s{d+3}, 0x20000")
        if j == 0:
            for i in range(3): issue_round(a, i, vq)

def load_weights(a, hooks, vq):
    L, T = 127, 126
    TQ, TO = V_AQ, V_AQ + 4
    TMP = V_W
    S_CB = 64
    a(f"s_mov_b32 s{S_CB}, s{S_T2}")
    src_pattern(a, V_SO, L, T, (0, 5, 4), 1024)
    bitpat(a, TO, L, [(5, 1, 1024), (4, 1, 512 + 32), (3, 1, 256 + 64), (2, 1, 128), (0, 3, 8)], T)
    a(f"s_lshl_b32 s{S_T0}, s{S_WV}, 13")
    a(f"v_add_u32 v{TO}, s{S_T0}, v{TO}")
    for j in range(1, 4): a(f"v_xor_b32 v{TO + j}, {32 * j}, v{TO}")
    a(f"s_and_b32 s{S_T0}, s{S_WV}, 1")
    a(f"s_lshl_b32 s{S_T0}, s{S_T0}, 6")
    a(f"v_xor_b32 v{TQ}, s{S_T0}, v{TO}")
    a(f"v_xor_b32 v{TQ+1}, 32, v{TQ}")
    a(f"v_xor_b32 v{TQ+2}, 8192, v{TQ}")
    a(f"v_xor_b32 v{TQ+3}, 8192, v{TQ+1}")
    for i in range(16):
        kind, p = ROUNDS[i]
        vq.wait(a, ('w', i))
        a("s_barrier")
        if i + 3 < 16:
            a(f"s_mov_b32 s{S_T2}, s{S_CB}")
            a(f"s_lshl_b32 s{S_T3}, s{S_WV}, 13")
            issue_round(a, i + 3, vq)
        if i in hooks: hooks[i](a)
        if i == PSTAMP[0]:
            a("s_memrealtime s[62:63]"); a("s_waitcnt lgkmcnt(0)"); a(f"s_sub_u32 s{S_ACC}, s62, s92"); a(f"s_lshl_b32 s{S_ACC}, s{S_ACC}, 2")
        if i and i % 2 == 0:
            for j in range(8): a(f"v_xor_b32 v{TQ + j}, 0x10000, v{TQ + j}")
        for j in range(2):
            for t in range(2):
                if i >= 12: base = TMP + 16 * j + 8 * t
                elif kind == 'q': base = WQ0 + ((p + 2 * j) * 2 + t) * 8
                elif kind == 'k': base = WK0 + ((p + 2 * j) * 2 + t) * 8
                elif kind == 'v': base = WV0 + ((p + 2 * j - 4) * 2 + t) * 8
                else: base = WO0 + ((2 * j + t) * 2 + p[1]) * 8
                ad = (TO if kind == 'o' else TQ) + 2 * j + t
                for pr in range(4):
                    a(f"ds_read_b64_tr_b16 {ur(base + 2*pr, 2)}, v{ad} offset:{(i & 1)*32768 + (pr >> 1)*4096 + (pr & 1)*2048}")
            a("s_waitcnt lgkmcnt(0)")
        if i >= 12:
            a("s_barrier")
            if i == 14: a(f"v_xor_b32 v{V_WVO}, 0x10000, v{V_WVO}")
            for q in range(8):
                a(f"ds_write_b128 v{V_WVO}, {vr(TMP + 4*q, 4)} offset:{(i & 1)*32768 + q*1024}")
            a("s_waitcnt lgkmcnt(0)")
    a(f"v_xor_b32 v{V_WVO}, 0x10000, v{V_WVO}")

def lds_wv(s, t, h): return (s & 1) * 32768 + (s >> 1) * 4096 + t * 2048 + h * 1024
def lds_wo(t, kbo, h): return kbo * 32768 + ((t >> 1) - 2) * 4096 + (t & 1) * 2048 + h * 1024
FLIP = f"v_xor_b32 v{V_WVO}, 0x10000, v{V_WVO}"
def rd_wv(dst, s, t): return [f"ds_read_b128 {vr(dst + 4*h, 4)}, v{V_WVO} offset:{lds_wv(s, t, h)}" for h in range(2)]
def rd_wo(dst, t, kbo): return [f"ds_read_b128 {vr(dst + 4*h, 4)}, v{V_WVO} offset:{lds_wo(t, kbo, h)}" for h in range(2)]

def slot_lines():
    return [
        f"s_and_b32 s{S_T0}, s{S_STEP}, 3",
        f"s_lshl_b32 s{S_T1}, s{S_T0}, 13",
        f"s_add_u32 s{S_PUBC}, s{S_T1}, s{S_HB_PUB}",
        f"s_lshl_b32 s{S_T1}, s{S_T0}, 18",
        f"s_add_u32 s{S_PST0}, s{S_T1}, s{S_HB_PST}",
        f"s_add_u32 s{S_PST1}, s{S_PST0}, 32768",
        f"s_add_u32 s{S_INB0}, s{S_T1}, s{S_HB_INB}",
        f"s_add_u32 s{S_INB1}, s{S_INB0}, 4096",
        f"s_bfe_u32 s{S_PH}, s{S_STEP}, 0x10002",
        f"s_add_u32 s{S_T0}, s{S_STEP}, 1",
        f"s_and_b32 s{S_T0}, s{S_T0}, 3",
        f"s_lshl_b32 s{S_T0}, s{S_T0}, 13",
        f"s_add_u32 s{S_PUBN}, s{S_T0}, s{S_HB_PUB}",
        f"s_add_u32 s{S_MEMRD}, s{S_T0}, {WS_MEMRING - MEMB}"]

def idle_a(a, par_next):
    wv_preload(a)
    copy_export(a, par_next)

def wv_preload(a):
    for j in range(4):
        for x in rd_wv(Wb(j), j >> 1, j & 1): a(x)

def copy_export(a, par_next):
    vn = V_VX[1 - par_next]
    for r in range(4): a(f"v_mov_b32 v{vn + r}, v{V_AK + r}")

def zero_b(a):
    for r in list(range(V_AQ + 4, V_AQ + 8)) + list(range(V_AK, V_AK + 4)): a(f"v_mov_b32 v{r}, 0")

def idle_b(a, par_next, tag, young):
    zero_b(a)
    a(f"s_waitcnt vmcnt({young})")
    avail_check(a, tag)

def idle_c1(a):
    for r in list(range(V_AQ, V_AQ + 4)) + list(range(V_AV, V_AV + 8)): a(f"v_mov_b32 v{r}, 0")

def idle_c(a, par_next, done=False):
    if not done: idle_c1(a)
    a("s_waitcnt vmcnt(2)")
    for r in range(V_AK + 4, V_AK + 8): a(f"v_mov_b32 v{r}, 0")

def avail_check(a, tag):
    a(f"v_readfirstlane_b32 s{S_AVAIL}, v{V_FL}")
    a(f"s_lshr_b32 s{S_T0}, s{S_AVAIL}, 16")
    a(f"s_and_b32 s{S_AVAIL}, s{S_AVAIL}, 0xffff")
    a(f"s_min_u32 s{S_AVAIL}, s{S_AVAIL}, s{S_T0}")
    a(f"s_add_u32 s{S_T0}, s{S_STEP}, 2")
    a(f"s_min_u32 s{S_T0}, s{S_T0}, 64")
    a(f"s_cmp_ge_u32 s{S_AVAIL}, s{S_T0}")
    a(f"s_cbranch_scc0 {tag}_slow")
    a.label(f"{tag}_ok")

def avail_slow(a, tag):
    a.label(f"{tag}_slow")
    a(f"buffer_load_dword v{V_FL}, off, s[{S_WS}:{S_WS+3}], s{S_FLP} sc1")
    a(f"s_add_u32 s{S_SPIN}, s{S_SPIN}, 1")
    a(f"s_cmp_gt_u32 s{S_SPIN}, {SPIN_LIMIT}")
    a("s_cbranch_scc1 L_abort")
    a("s_waitcnt vmcnt(0)")
    a(f"v_readfirstlane_b32 s{S_AVAIL}, v{V_FL}")
    a(f"s_lshr_b32 s{S_T1}, s{S_AVAIL}, 16")
    a(f"s_and_b32 s{S_AVAIL}, s{S_AVAIL}, 0xffff")
    a(f"s_min_u32 s{S_AVAIL}, s{S_AVAIL}, s{S_T1}")
    a(f"s_cmp_ge_u32 s{S_AVAIL}, s{S_T0}")
    a(f"s_cbranch_scc0 {tag}_slow")
    a(f"s_branch {tag}_ok")

def step(a, par, st, tag, opt, nxt=None):
    WS = f"s[{S_WS}:{S_WS+3}]"
    VXc, VXn = V_VX[par], V_VX[1 - par]
    Kc = KB[par] - MEMB
    T0 = V_PB + 3
    stamp = opt.get('stamp') or (None, None)
    trace = opt.get('trace', [])
    def st_list(name):
        if opt.get('series') == name:
            return [f"s_memtime s[{S_TS}:{S_TS+1}]", f"s_lshl_b32 s{S_TS+2}, s{S_STEP}, 2", f"s_lshl_b32 s{S_TS+3}, s{S_H}, 8", f"s_add_u32 s{S_TS+2}, s{S_TS+2}, s{S_TS+3}",
                    f"s_add_u32 s{S_TS+2}, s{S_TS+2}, {WS_STAMP + 0x30000}", "s_waitcnt lgkmcnt(0)", f"v_mov_b32 v{V_PB}, s{S_TS}",
                    f"buffer_store_dword v{V_PB}, off, {WS}, s{S_TS+2}"]
        if name in trace:
            k = 68 + trace.index(name)
            return [f"s_memtime s[{S_TS}:{S_TS+1}]", "s_waitcnt lgkmcnt(0)", f"s_cmp_eq_u32 s{S_STEP}, {opt.get('tstep', 20) + (1 if name in ('join', 'pub', 'h2iss', 'h1iss', 'pst', 'oex') else 0) + (1 if name == 'entry' and opt.get('nextentry') else 0)}",
                    f"s_cselect_b32 s{k}, s{S_TS}, s{k}"]
        if stamp[0] == name:
            return [f"s_memtime s[{S_TS}:{S_TS+1}]", "s_waitcnt lgkmcnt(0)"]
        if stamp[1] == name:
            return [f"s_memtime s[{S_TS+2}:{S_TS+3}]", "s_waitcnt lgkmcnt(0)", f"s_sub_u32 s{S_TS+2}, s{S_TS+2}, s{S_TS}",
                    f"s_cmp_lt_u32 s{S_STEP}, 2", f"s_cselect_b32 s{S_TS+2}, 3000, s{S_TS+2}", f"s_cselect_b32 s{S_TS+3}, 3000, 0", f"s_sub_u32 s{S_ACC}, s{S_ACC}, s{S_TS+3}",
                    f"s_add_u32 s{S_ACC}, s{S_ACC}, s{S_TS+2}", f"s_max_u32 s74, s74, s{S_TS+2}", f"s_min_u32 s73, s73, s{S_TS+2}",
                    f"s_cmp_gt_u32 s{S_TS+2}, {opt.get('thr', 100000)}", "s_addc_u32 s72, s72, 0"]
        return []
    def st_at(name):
        for x in st_list(name): a(x)
    a.label(f"{tag}_h1")
    a("s_waitcnt vmcnt(0)")
    a.label(f"{tag}_entry")
    st_at('entry')
    M = V_M
    if opt.get('w0', 1): a(f"ds_write_b128 v{V_P1}, {Mf(0)}")
    a(f"v_max3_u32 v{T0}, v{M+1}, v{M+3}, v{M+5}")
    a(f"v_max_u32 v{T0}, v{T0}, v{M+7}")
    a(f"v_cmp_eq_u32 vcc, -1, v{T0}")
    a.label(f"{tag}_entry2")
    mains = []; F = {}
    nobg = opt.get('nobg', '')
    def add(i, *xs): F.setdefault(i, []).extend(xs)
    AQ = lambda t: V_AQ + 4 * t
    AK = lambda t: V_AK + 4 * t
    AV = lambda t: V_AV + 4 * t
    for s in range(2):
        for t in range(2): mains.append(smf(AQ(t), Mf(s), wq(t, s)))
    for s in range(2):
        for t in range(2): mains.append(smf(AK(t), Mf(s), wk(t, s)))
    for s in range(2):
        for t in range(2): mains.append(smf(AV(t), Mf(s), vr(Wb(2*s + t), 8)))
    M = V_M
    add(1, f"s_cbranch_vccnz {tag}_h1retry")
    if not opt.get('w0', 1): add(1, f"ds_write_b128 v{V_P1}, {Mf(0)}")
    add(opt.get('w1', 2), f"ds_write_b128 v{V_P1}, {Mf(1)} offset:1024")
    B1 = opt.get('b1', 6)
    add(B1, "s_waitcnt lgkmcnt(0)", *st_list('prebar1'), "s_barrier", *st_list('bar1'))
    mr = (V_MR1, V_MR2, V_MR3)
    for j, s in enumerate(range(2, 8)):
        add(B1 + j, f"ds_read_b128 {Mf(s)}, v{mr[(s >> 1) - 1]} offset:{(s & 1) * 1024}")
    for s in range(2, 8):
        for t in range(2): mains.append(smf(AQ(t), Mf(s), wq(t, s)))
    wvr = [x for j in range(4) for x in rd_wv(Wb(j), 2 + (j >> 1), j & 1)]
    for i, x in enumerate(wvr): add(14 + i, x)
    for s in range(2, 4):
        for t in range(2): mains.append(smf(AV(t), Mf(s), vr(Wb(2*(s-2) + t), 8)))
    for s in range(2, 8):
        for t in range(2): mains.append(smf(AK(t), Mf(s), wk(t, s)))
    ex4 = [f"buffer_store_dwordx4 {vr(VXn,4)}, v{V_LA}, {WS}, s{S_EXP} offen sc1"]
    bg = [f"buffer_load_dwordx4 v{V_P1}, {WS}, s{S_KPF} offen sc1 lds",
          f"buffer_load_dwordx4 v{V_P1}, {WS}, s{S_KPF} offen offset:1024 sc1 lds",
          f"buffer_load_dwordx4 {vr(VXn+4,4)}, v{V_P1}, {WS}, s{S_VPF} offen offset:1024 sc1",
          f"buffer_load_dwordx4 {vr(VXn,4)}, v{V_P1}, {WS}, s{S_VPF} offen sc1",
          f"buffer_load_dword v{V_FL}, off, {WS}, s{S_FLP} sc1"]
    vpos = opt.get('vpos', (13, 15, 17, 19, 21, 22))
    add(5, f"s_mov_b32 m0, s{S_KM0 + (1 - par)}")
    for x, i in zip(ex4 + bg, vpos): add(i, x)
    add(20, f"s_sub_u32 s{S_T2}, s{S_STEP}, 1", f"s_max_i32 s{S_T2}, s{S_T2}, 0")
    add(21, f"v_mov_b32 v{V_PB}, s{S_T2}")
    add(23, f"buffer_store_dword v{V_PB}, v{V_GATH}, {WS}, s{S_FLA} offen sc1")
    sal = slot_lines() + [f"s_add_u32 s{S_EXP}, s{S_EXP}, {32*4096}", f"s_add_u32 s{S_KPF}, s{S_KPF}, {32*8192}", f"s_add_u32 s{S_VPF}, s{S_VPF}, {32*8192}"]
    if opt.get('samekv'): sal = sal[:-2]
    if opt.get('sameexp'): sal = [x for x in sal if f"s{S_EXP}," not in x]
    for j, x in enumerate(sal): F.setdefault(24 + j, []).insert(0, x)
    QF, KF = Wb(0), Wb(2)
    KX = [V_M, V_M + 4, Wb(2), Wb(2) + 4, Wb(3), Wb(3) + 4, V_M + 8, V_M + 12]
    qtr = [f"ds_read_b64_tr_b16 {vr(QF + 4*i + 2*hh, 2)}, v{V_QKR} offset:{i*1024 + hh*512}" for i in range(4) for hh in range(2)]
    kxr = [f"ds_read_b128 {vr(KX[2*i + T], 4)}, v{V_LA} offset:{Kc + T*4096 + i*1024}" for i in range(4) for T in range(2)]
    q0, q1 = AQ(0), AQ(1)
    add(22, kxr[0]); add(23, kxr[1])
    add(24, f"v_add_f32 v{q0}, v{q0}, v{q0+1}")
    add(25, f"v_add_f32 v{q0+2}, v{q0+2}, v{q0+3}")
    add(26, f"v_cvt_pk_bf16_f32 v{q0}, v{q0}, v{q0+2}")
    add(27, f"ds_write_b32 v{V_QW}, v{q0}", f"v_add_f32 v{q1}, v{q1}, v{q1+1}")
    add(28, kxr[2], f"v_add_f32 v{q1+2}, v{q1+2}, v{q1+3}")
    add(29, kxr[3], f"v_cvt_pk_bf16_f32 v{q1}, v{q1}, v{q1+2}")
    add(30, f"ds_write_b32 v{V_QW}, v{q1} offset:512")
    add(31, kxr[4]); add(32, kxr[5]); add(33, kxr[6])
    add(33, FLIP)
    B2 = opt.get('b2', 34)
    add(B2, "s_waitcnt lgkmcnt(3)", *st_list('prebar2'), "s_barrier", *st_list('bar2'))
    for j, x in enumerate(qtr): add(B2 + j, x)
    SX = lambda T: V_AQ + 4 * T
    for s in (4,):
        for t in range(2): mains.append(smf(AV(t), Mf(s), wv_res(t, s)))
    for i in range(4):
        for T in range(2):
            mains.append(mf32(SX(T), vr(KX[2*i + T], 4), vr(QF + 4*i, 4), "0" if i == 0 else vr(SX(T), 4)))
    k0, k1 = AK(0), AK(1)
    add(40, f"v_add_f32 v{k0}, v{k0}, v{k0+1}")
    add(41, f"v_add_f32 v{k0+2}, v{k0+2}, v{k0+3}")
    add(42, f"v_cvt_pk_bf16_f32 v{k0}, v{k0}, v{k0+2}", f"v_add_f32 v{k1}, v{k1}, v{k1+1}")
    add(43, f"ds_write_b32 v{V_QW}, v{k0} offset:4096", f"v_add_f32 v{k1+2}, v{k1+2}, v{k1+3}")
    add(44, kxr[7], f"v_cvt_pk_bf16_f32 v{k0+1}, v{k1}, v{k1+2}")
    add(45, f"ds_write_b32 v{V_QW}, v{k0+1} offset:4608")
    B3 = opt.get('b3', 49)
    add(B3, "s_waitcnt lgkmcnt(0)", *st_list('prebar3'), "s_barrier", *st_list('bar3'))
    ktr = [f"ds_read_b64_tr_b16 {vr(KF + 4*i + 2*hh, 2)}, v{V_QKR} offset:{4096 + i*1024 + hh*512}" for i in range(4) for hh in range(2)]
    for s in (5, 6, 7):
        for t in range(2): mains.append(smf(AV(t), Mf(s), wv_res(t, s)))
    for x, i in zip(ktr, opt.get('ktrpos', (49, 49, 50, 51, 52, 53, 54, 55))): add(i, x)
    ex = [f"v_exp_f32 v{V_AQ + r}, v{V_AQ + r}" for r in range(8)]
    for x, i in zip(ex, opt.get('expos', (50, 51, 52, 53, 54, 55, 56, 57))): add(i, x)
    SM = V_AK + 4
    for i in range(4):
        mains.append(mf32(SM, vr(KF + 4*i, 4), vr(QF + 4*i, 4), "0" if i == 0 else vr(SM, 4)))
    PX = V_AQ
    v0_, v1_ = AV(0), AV(1)
    add(58, f"v_cvt_pk_bf16_f32 v{PX}, v{V_AQ}, v{V_AQ+1}", f"v_cvt_pk_bf16_f32 v{PX+1}, v{V_AQ+2}, v{V_AQ+3}")
    add(59, f"v_cvt_pk_bf16_f32 v{PX+2}, v{V_AQ+4}, v{V_AQ+5}", f"v_cvt_pk_bf16_f32 v{PX+3}, v{V_AQ+6}, v{V_AQ+7}",
            f"v_add_f32 v{v0_}, v{v0_}, v{v0_+1}", f"v_add_f32 v{v0_+2}, v{v0_+2}, v{v0_+3}")
    OA, LA = V_M, V_M + 8
    mains.append(mf32(LA, vr(V_ONES, 4), vr(PX, 4), "0"))
    mains.append(mf32(OA, vr(VXc, 4), vr(PX, 4), "0"))
    mains.append(mf32(OA + 4, vr(VXc + 4, 4), vr(PX, 4), "0"))
    add(60, f"v_mul_f32 v{SM}, s{S_C}, v{SM}", f"v_mul_f32 v{SM+1}, s{S_C}, v{SM+1}")
    add(61, f"v_exp_f32 v{SM}, v{SM}", f"v_exp_f32 v{SM+1}, v{SM+1}")
    add(62, f"v_cvt_pk_bf16_f32 v{V_AK+2}, v{v0_}, v{v0_+2}", f"v_cvt_pk_bf16_f32 v{V_PB}, v{SM}, v{SM+1}",
            f"v_add_f32 v{v1_}, v{v1_}, v{v1_+1}", f"v_add_f32 v{v1_+2}, v{v1_+2}, v{v1_+3}")
    mains.append(mf16(LA, vr(V_ONES, 2), vr(V_PB, 2), vr(LA, 4)))
    add(63, f"v_cvt_pk_bf16_f32 v{V_AK+3}, v{v1_}, v{v1_+2}", f"v_cvt_pk_bf16_f32 v{V_PB+3}, v{SM}, v{SM+1}")
    mains.append(mf16(OA, vr(V_AK + 2, 2), vr(V_PB, 2), vr(OA, 4)))
    mains.append(mf16(OA + 4, vr(V_AK + 2, 2), vr(V_PB + 2, 2), vr(OA + 4, 4)))
    wo_order = [(t, kbo) for t in range(4, 8) for kbo in range(2)]
    wor = [x for j in range(4) for x in rd_wo(Wb(j), *wo_order[j])]
    npre = opt.get('npre', 4)
    for x, i in zip(wor[:npre], (64, 64, 65, 65, 65, 65, 65, 65)): add(i, x)
    drop = opt.get('drop', [])
    if drop:
        F = {i: [x for x in xs if not any(x.startswith(d) for d in drop)] for i, xs in F.items()}
    interleave(a, mains, F)
    st_at('pv')
    if par == 1:
        a(f"s_cmp_eq_u32 s{S_STEP}, 63")
        a(f"s_cbranch_scc1 L_chain_done")
    INV, OW = V_AQ + 0, V_AQ + 4
    a(f"v_rcp_f32 v{INV}, v{LA}")
    for hh in range(2):
        if opt.get('pkn', 1):
            for r in range(4 * hh, 4 * hh + 4, 2): a(f"v_pk_mul_f32 {vr(OA+r,2)}, {vr(OA+r,2)}, {vr(INV,2)} op_sel_hi:[1,0]")
        else:
            for r in range(4 * hh, 4 * hh + 4): a(f"v_mul_f32 v{OA+r}, v{OA+r}, v{INV}")
        for r in range(2 * hh, 2 * hh + 2): a(f"v_cvt_pk_bf16_f32 v{OW+r}, v{OA+2*r}, v{OA+2*r+1}")
        if not opt.get('ow128'): a(f"ds_write_b64 v{V_OW}, {vr(OW + 2*hh, 2)} offset:{8*hh}")
    if opt.get('ow128'): a(f"ds_write_b128 v{V_OW}, {vr(OW, 4)}")
    a(f"v_subrev_u32 v{INV+1}, s{S_LLO}, v{LA}")
    a(f"v_cmp_le_u32 vcc, s{S_LRG}, v{INV+1}")
    zacc = lambda t: mf16(V_M + 4*t, vr(V_PB + 2, 2), vr(V_PB, 2), "0")
    nb1, nb2 = opt.get('nb1', 0), opt.get('nb2', 0)
    b1l = wor[npre:npre + nb1]
    for t in range(opt.get('z1', 4)):
        a(zacc(t))
        for x in b1l[t::4]: a(x)
    a(f"s_cbranch_vccnz {tag}_fallback")
    a.label(f"{tag}_fbdone")
    a(f"s_waitcnt lgkmcnt({nb1})")
    st_at('prebar4')
    a("s_barrier")
    st_at('bar4')
    OF = VXc
    a(f"ds_read_b128 {vr(OF,4)}, v{V_LA}")
    a(f"ds_read_b128 {vr(OF+4,4)}, v{V_LA} offset:1024")
    HV = V_AK + 4
    a(f"s_add_u32 s{S_STEP}, s{S_STEP}, 1")
    for t in range(opt.get('z1', 4), 8):
        a(zacc(t))
        for x in wor[npre + nb1:npre + nb1 + nb2][t - 4::4]: a(x)
        if t == 4: a(f"v_mov_b32 v{HV}, s{S_STEP}")
    st_at('oex')
    mains = []; F = {}
    P = lambda t: V_M + 4 * t
    for t in range(4):
        for kbo in range(2): mains.append(smf(P(t), vr(OF + 4*kbo, 4), wo_res(t, kbo)))
    src = [Wb(0), Wb(1), Wb(2), Wb(3), V_AQ, V_AV, Wb(0), Wb(1)]
    for j, (t, kbo) in enumerate(wo_order): mains.append(smf(P(t), vr(OF + 4*kbo, 4), vr(src[j], 8)))
    nd = npre + nb1 + nb2
    late = wor[nd:] + [x for j in range(4, 8) for x in rd_wo(src[j], *wo_order[j])]
    n1 = 12 - nd
    lpos = [min(7, (j * 8) // max(n1, 8)) for j in range(n1)] + list(opt.get('lp', (8, 9, 9, 10)))
    for x, i in zip(late, lpos): add(i, x)
    split = opt.get('split', 0)
    def fold(t, dst):
        p = P(t)
        return [f"v_add_f32 v{p}, v{p}, v{p+1}", f"v_add_f32 v{p+2}, v{p+2}, v{p+3}", f"v_cvt_pk_bf16_f32 v{dst}, v{p}, v{p+2}"]
    for t in range(6):
        y = fold(t, P(t & 4) + (t & 3))
        add(2 * t + 3, y[0]); add(2 * t + 4, y[1], y[2])
        if t & 3 == 0: add(2 * t + 5, f"v_and_or_b32 v{P(t)}, v{P(t)}, -2, s{S_PH}")
        if split and t == 2: add(2 * t + 5, f"v_and_or_b32 v{P(0)+2}, v{P(0)+2}, -2, s{S_PH}")
    add(11, FLIP)
    y6 = fold(6, P(4) + 2); add(15, y6[0])
    sp = opt.get('st0', 11)
    F[sp].insert(0, f"buffer_store_dwordx4 {vr(P(0),4)}, v{V_PST}, {WS}, s{S_PST0} offen {st}")
    if split: F[15].insert(0, f"buffer_store_dwordx2 {vr(P(4),2)}, v{V_PST}, {WS}, s{S_PST1} offen {st}")
    probes = opt.get('probes', (14, 16))
    F.setdefault(opt.get('hintpos', 7), []).insert(0, f"buffer_store_dword v{HV}, v{V_L4}, {WS}, s{S_HST} offen {st}")
    probe = lambda j: f"buffer_load_dword v{HV + 1 + j % 3}, v{V_L4}, {WS}, s{S_HLD} offen sc1"
    for j, g in enumerate(probes):
        if g < 16: F[g].insert(0, probe(j))
    interleave(a, mains, F)
    a(y6[1]); a(y6[2])
    if split: a(f"v_and_or_b32 v{P(4)+2}, v{P(4)+2}, -2, s{S_PH}")
    for j, g in enumerate(probes):
        if g == 16: a(probe(j))
    for y in fold(7, P(4) + 3): a(y)
    if split: a(f"buffer_store_dwordx2 {vr(P(4)+2,2)}, v{V_PST}, {WS}, s{S_PST1} offen offset:8 {st}")
    else: a(f"buffer_store_dwordx4 {vr(P(4),4)}, v{V_PST}, {WS}, s{S_PST1} offen {st}")
    st_at('pst')
    SEL, RA = V_AQ, V_AV
    def h2_issue():
        for i in range(8):
            a(f"buffer_load_dwordx4 {Mf(i)}, v{V_LA}, {WS}, s{S_INB0 if i < 4 else S_INB1} offen offset:{(i & 3)*1024} sc1")
    FLG = QB + 4 - MEMB
    a(f"s_cmp_lg_u32 s{S_WV}, 0")
    a(f"s_cbranch_scc1 {tag}_others")
    PR = [HV + 1, HV + 2, HV + 3, V_AV, V_AV + 1]
    probe_to = lambda r: f"buffer_load_dword v{r}, v{V_L4}, {WS}, s{S_HLD} offen sc1"
    def check(r):
        a(f"v_cmp_gt_u32 vcc, s{S_STEP}, v{r}")
        a(f"s_cmp_eq_u32 vcc_lo, 0")
        a(f"s_cbranch_scc1 {tag}_go")
    n = len(probes)
    depth = opt.get('pdepth', 4)
    queue = []
    for g in sorted(set(list(probes) + [sp, 17])):
        if g in probes: queue.append(PR[probes.index(g)])
        if g == sp or g == 17: queue.append(None)
    if sp in probes:
        pass
    def issue(r):
        a(probe_to(r)); queue.append(r)
    def wait_check(r):
        k = max(i for i, x in enumerate(queue) if x == r)
        return len(queue) - 1 - k
    sel = [f"v_cndmask_b32 v{SEL+r}, 0, v{V_SELX}, s[{S_SELM+2*r}:{S_SELM+2*r+1}]" for r in range(4)]
    nxtr = n
    issue(PR[nxtr]); nxtr += 1
    for x in sel: a(x)
    copy_export(a, 1 - par)
    if depth > nxtr:
        zero_b(a)
        issue(PR[nxtr]); nxtr += 1
    order = list(range(nxtr))
    first = True
    for j in range(n):
        a(f"s_waitcnt vmcnt({wait_check(PR[j])})")
        check(PR[j])
        if nxtr < depth:
            issue(PR[nxtr]); order.append(nxtr); nxtr += 1
            if first: wv_preload(a)
            issue(PR[j]); order.append(j)
        else:
            issue(PR[j]); order.append(j)
        first = False
    ring = order[n:]
    a.label(f"{tag}_hl")
    for j in ring:
        a(f"s_waitcnt vmcnt({len(ring) - 1})")
        check(PR[j])
        a(probe_to(PR[j]))
        a(f"s_add_u32 s{S_ACC+3}, s{S_ACC+3}, 1")
    a(f"s_add_u32 s{S_SPIN}, s{S_SPIN}, 1")
    a(f"s_cmp_gt_u32 s{S_SPIN}, {SPIN_LIMIT}")
    a(f"s_cbranch_scc0 {tag}_hl")
    a("s_branch L_abort")
    a.label(f"{tag}_go")
    for _ in range(opt.get('h2pad', 0)): a("s_nop 7")
    st_at('h2iss')
    h2_issue()
    ea = opt.get('ea', 3)
    if not ea & 1: wv_preload(a)
    if not ea & 2: idle_b(a, 1 - par, f"{tag}_av0", 10 + len(probes))
    a.label(f"{tag}_h2")
    TG = RA + 4
    for i in range(8):
        a(mf32(RA, Mf(i), vr(SEL, 4), "0" if i == 0 else vr(RA, 4)))
        if i == 0: a(f"v_xor_b32 v{TG}, s{S_PH}, v{V_M}")
        else: a(f"v_bitop3_b32 v{TG}, v{TG}, v{V_M + 4*i}, s{S_PH} bitop3:0xf6")
        if split: a(f"v_bitop3_b32 v{TG}, v{TG}, v{V_M + 4*i + 2}, s{S_PH} bitop3:0xf6")
    a(f"v_and_b32 v{TG}, 1, v{TG}")
    a(f"v_cmp_ne_u32 vcc, 0, v{TG}")
    a(f"v_mov_b32 v{TG}, -1")
    a(f"v_mov_b32 v{TG+1}, -1")
    a(f"v_cvt_pk_bf16_f32 v{RA+6}, v{RA}, v{RA+1}")
    a(f"v_cvt_pk_bf16_f32 v{RA+7}, v{RA+2}, v{RA+3}")
    a(f"s_cbranch_vccnz {tag}_h2r")
    a(f"buffer_store_dwordx2 {vr(RA+6,2)}, v{V_PUB}, {WS}, s{S_PUBN} offen {st}")
    st_at('pub')
    a(f"buffer_store_dwordx2 {vr(TG,2)}, v{V_PUB}, {WS}, s{S_PUBC} offen {st}")
    if ea & 1: wv_preload(a)
    if ea & 2: idle_b(a, 1 - par, f"{tag}_av0", 63)
    idle_c1(a)
    a(f"s_branch {tag}_join")
    a.label(f"{tag}_others")
    if opt.get('time'):
        for k, (st_, reg) in enumerate(((8, 80), (62, 82))):
            a(f"s_cmp_lg_u32 s{S_STEP}, {st_}")
            a(f"s_cbranch_scc1 {tag}_nt{k}")
            a(f"s_memtime s[{reg}:{reg+1}]")
            a("s_waitcnt lgkmcnt(0)")
            a.label(f"{tag}_nt{k}")
    idle_c1(a)
    idle_a(a, 1 - par)
    idle_b(a, 1 - par, f"{tag}_av2", 2 + len(probes))
    a.label(f"{tag}_join")
    a("s_barrier")
    for _ in range(opt.get('h1pad', 0)): a("s_nop 7")
    st_at('h1iss')
    h1_issue(a, 0)
    idle_c(a, 1 - par, True)
    a("s_waitcnt lgkmcnt(0)")
    st_at('join')
    return h2_issue, None

def h1_issue(a, j):
    WS = f"s[{S_WS}:{S_WS+3}]"
    a(f"buffer_load_dwordx4 {Mf(2*j)}, v{V_P1}, {WS}, s{S_MEMRD} offen sc1")
    a(f"buffer_load_dwordx4 {Mf(2*j + 1)}, v{V_P1}, {WS}, s{S_MEMRD} offen offset:1024 sc1")

def step_tails(a, par, tag, h2, opt):
    WS = f"s[{S_WS}:{S_WS+3}]"
    VXc = V_VX[par]
    Kc = KB[par] - MEMB
    T0 = V_PB + 3
    def spin(k):
        a(f"s_add_u32 s{S_SPIN}, s{S_SPIN}, 1")
        a(f"s_cmp_gt_u32 s{S_SPIN}, {SPIN_LIMIT}")
        a("s_cbranch_scc1 L_abort")
        a(f"s_add_u32 s{S_ACC+k}, s{S_ACC+k}, 1")
    a.label(f"{tag}_h1retry")
    a("s_mov_b64 exec, vcc")
    h1_issue(a, 0)
    a("s_mov_b64 exec, -1")
    spin(1)
    a("s_nop 2")
    for r in range(8): a(f"v_mov_b32 v{V_AQ + r}, 0")
    a(f"s_branch {tag}_h1")
    a.label(f"{tag}_h2r")
    a("s_mov_b64 exec, vcc")
    h2[0]()
    a("s_mov_b64 exec, -1")
    if h2[1]: a(h2[1])
    spin(2)
    a(f"s_branch {tag}_h2")
    for j in (0, 2): avail_slow(a, f"{tag}_av{j}")
    a.label(f"{tag}_fallback")
    a("s_nop 7")
    a("s_nop 3")
    a("s_waitcnt lgkmcnt(0)")
    QF, KF = Wb(0), Wb(2)
    SX, SM = V_AV, V_AK + 4
    OA, LA = V_M, V_M + 8
    for i in range(4):
        for hh in range(2): a(f"ds_read_b64_tr_b16 {vr(QF + 4*i + 2*hh, 2)}, v{V_QKR} offset:{i*1024 + hh*512}")
    for T in range(2):
        for i in range(4): a(f"ds_read_b128 {vr(KF + 4*i, 4)}, v{V_LA} offset:{Kc + T*4096 + i*1024}")
        for i in range(4): a(mf32(SX + 4*T, vr(KF + 4*i, 4), vr(QF + 4*i, 4), "0" if i == 0 else vr(SX + 4*T, 4)))
        a("s_nop 7")
    for i in range(4):
        for hh in range(2): a(f"ds_read_b64_tr_b16 {vr(KF + 4*i + 2*hh, 2)}, v{V_QKR} offset:{4096 + i*1024 + hh*512}")
    for i in range(4): a(mf32(SM, vr(KF + 4*i, 4), vr(QF + 4*i, 4), "0" if i == 0 else vr(SM, 4)))
    a(f"v_mul_f32 v{SM}, s{S_C}, v{SM}")
    a(f"v_mul_f32 v{SM+1}, s{S_C}, v{SM+1}")
    MX, T2 = SM + 2, SM + 3
    a(f"v_max3_f32 v{MX}, v{SM}, v{SM+1}, v{SX}")
    for r in range(1, 7, 2): a(f"v_max3_f32 v{MX}, v{MX}, v{SX+r}, v{SX+r+1}")
    a(f"v_max_f32 v{MX}, v{MX}, v{SX+7}")
    for sw in ("v_permlane16_swap_b32", "v_permlane32_swap_b32"):
        a(f"v_mov_b32 v{T2}, v{MX}")
        a(f"{sw} v{MX}, v{T2}")
        a(f"v_max_f32 v{MX}, v{MX}, v{T2}")
    for r in list(range(SX, SX + 8)) + [SM, SM + 1]:
        a(f"v_sub_f32 v{r}, v{r}, v{MX}")
        a(f"v_exp_f32 v{r}, v{r}")
    PX = V_AQ
    for r in range(4): a(f"v_cvt_pk_bf16_f32 v{PX+r}, v{SX+2*r}, v{SX+2*r+1}")
    a(f"v_cvt_pk_bf16_f32 v{V_PB}, v{SM}, v{SM+1}")
    a(f"v_cvt_pk_bf16_f32 v{V_PB+3}, v{SM}, v{SM+1}")
    a(mf32(LA, vr(V_ONES, 4), vr(PX, 4), "0"))
    a(mf32(OA, vr(VXc, 4), vr(PX, 4), "0"))
    a(mf32(OA + 4, vr(VXc + 4, 4), vr(PX, 4), "0"))
    a(mf16(LA, vr(V_ONES, 2), vr(V_PB, 2), vr(LA, 4)))
    a(mf16(OA, vr(V_AK + 2, 2), vr(V_PB, 2), vr(OA, 4)))
    a(mf16(OA + 4, vr(V_AK + 2, 2), vr(V_PB + 2, 2), vr(OA + 4, 4)))
    wo_order = [(t, kbo) for t in range(4, 8) for kbo in range(2)]
    for j in range(4):
        for x in rd_wo(Wb(j), *wo_order[j]): a(x)
    INV, OW = V_AQ + 0, V_AQ + 4
    a(f"v_rcp_f32 v{INV}, v{LA}")
    for r in range(8): a(f"v_mul_f32 v{OA+r}, v{OA+r}, v{INV}")
    for r in range(4): a(f"v_cvt_pk_bf16_f32 v{OW+r}, v{OA+2*r}, v{OA+2*r+1}")
    a(f"ds_write_b128 v{V_OW}, {vr(OW,4)}")
    for r in range(16): a(f"v_mov_b32 v{V_M + r}, 0")
    a("s_waitcnt lgkmcnt(0)")
    a("s_nop 1")
    a(f"s_branch {tag}_fbdone")

def role_chain(a, opt):
    WS = f"s[{S_WS}:{S_WS+3}]"; DB = f"s[{S_D}:{S_D+3}]"
    vq = VmQueue()
    HINT_STRIDE[0] = opt.get('hs', 4)
    CODEPF[0] = opt.get('codepf', 0)
    start_weights(a, vq)
    a(f"s_mov_b32 s65, s{S_T2}")
    if opt.get('dbgtime'):
        a("s_not_b32 s96, s98"); a("s_mov_b64 exec, 1"); a("v_mov_b32 v126, s96"); a(f"buffer_atomic_umax v126, off, s[{S_D}:{S_D+3}], 0 offset:36"); a("s_mov_b64 exec, -1"); vq.add('x')
    setup_lanes(a)
    a(f"s_mov_b32 s{S_C}, {f32bits(CSCALE):#x}")
    a(f"s_mov_b32 s{S_LLO}, 0x21800000")
    a(f"s_mov_b32 s{S_LRG}, 0x3c000000")
    for r in range(S_ACC, S_ACC + 4): a(f"s_mov_b32 s{r}, 0")
    a(f"s_lshl_b32 s{S_T0}, s{S_H}, 8")
    a(f"s_add_u32 s{S_HB_PST}, s{S_T0}, {WS_PART}")
    a(f"s_lshl_b32 s{S_T0}, s{S_H}, 13")
    a(f"s_add_u32 s{S_HB_INB}, s{S_T0}, {WS_PART - MEMB}")
    a(f"s_add_u32 s{S_KPF}, s{S_T0}, {WS_KX - MEMB}")
    a(f"s_add_u32 s{S_VPF}, s{S_T0}, {WS_VX - MEMB}")
    a(f"s_and_b32 s{S_T0}, s{S_H}, 3")
    a(f"s_lshl_b32 s{S_T0}, s{S_T0}, 6")
    a(f"s_lshr_b32 s{S_T1}, s{S_H}, 2")
    a(f"s_lshl_b32 s{S_T1}, s{S_T1}, 10")
    a(f"s_add_u32 s{S_T0}, s{S_T0}, s{S_T1}")
    a(f"s_add_u32 s{S_HB_PUB}, s{S_T0}, {WS_MEMRING}")
    a(f"s_lshl_b32 s{S_T0}, s{S_H}, 12")
    a(f"s_lshl_b32 s{S_T1}, s{S_WV}, 10")
    a(f"s_add_u32 s{S_T0}, s{S_T0}, s{S_T1}")
    a(f"s_add_u32 s{S_EXP}, s{S_T0}, {WS_KVM - MEMB - 32*4096}")
    a(f"s_lshl_b32 s{S_T0}, s{S_H}, 7")
    a(f"s_add_u32 s{S_FLP}, s{S_T0}, {WS_FLAG + FLAG_P * 128}")
    a(f"s_add_u32 s{S_FLA}, s{S_T0}, {WS_FLAG + FLAG_A * 128}")
    a(f"s_lshl_b32 s{S_T0}, s{S_WV}, 11")
    a(f"s_add_u32 s{S_KM0}, s{S_T0}, {KB[0]}")
    a(f"s_add_u32 s{S_KM0+1}, s{S_T0}, {KB[1]}")
    SN = V_W
    a(f"s_mov_b32 s{S_T2}, s65")
    S_OK = S_AVAIL
    PSTAMP[0] = opt.get('pstamp', -1)
    groups = opt.get('groups', [0])
    IV = V_M + 16
    srd(a, S_W, KA_MEM0, 8192)
    def seg0_loads():
        a(f"s_mov_b32 m0, s{S_KM0}")
        a("s_nop 0")
        a(f"buffer_load_dwordx4 v{V_P1}, {WS}, s{S_KPF} offen sc1 lds")
        a(f"buffer_load_dwordx4 v{V_P1}, {WS}, s{S_KPF} offen offset:1024 sc1 lds")
        a(f"buffer_load_dwordx4 {vr(V_VX[0],4)}, v{V_P1}, {WS}, s{S_VPF} offen sc1")
        a(f"buffer_load_dwordx4 {vr(V_VX[0]+4,4)}, v{V_P1}, {WS}, s{S_VPF} offen offset:1024 sc1")
    def h8(a):
        init_issue(a, IV); vq.add('init', 3)
        a(f"s_mov_b32 s{S_OK}, 0")
    def h16(a):
        assert vq.done('init')
        vq.add('fl')
        a.items.append(('x', 'forget_vm'))
        init_check(a, IV, groups, "L_ch_h16")
        a(f"s_mov_b32 s{S_OK}, 1")
        a.label("L_ch_h16")
        a(f"buffer_load_dword v{V_FL}, off, {WS}, s{S_FLP} sc1")
    def h24(a):
        assert vq.done('fl')
        vq.add('mem0', 2)
        a.items.append(('x', 'forget_vm'))
        a(f"buffer_load_dwordx4 {Mf(0)}, v{V_GATH}, s[{S_W}:{S_W+3}], 0 offen")
        a(f"buffer_load_dwordx4 {Mf(1)}, v{V_GATH}, s[{S_W}:{S_W+3}], 0 offen offset:128")
        a(f"v_readfirstlane_b32 s{S_T0}, v{V_FL}")
        a(f"s_lshr_b32 s{S_T1}, s{S_T0}, 16")
        a(f"s_and_b32 s{S_T0}, s{S_T0}, 0xffff")
        a(f"s_min_u32 s{S_T0}, s{S_T0}, s{S_T1}")
        a(f"s_cmp_ge_u32 s{S_T0}, 2")
        a(f"s_cselect_b32 s{S_T0}, s{S_OK}, 0")
        a(f"s_lshl_b32 s{S_OK}, s{S_T0}, 1")
        a(f"s_cmp_eq_u32 s{S_OK}, 0")
        a("s_cbranch_scc1 L_ch_h24")
        seg0_loads()
        a.label("L_ch_h24")
    load_weights(a, dict(zip(opt.get('hooks', (7, 11, 15)), (h8, h16, h24))), vq)
    if opt.get('ptime') and 'pstamp' not in opt:
        a("s_memrealtime s[62:63]"); a("s_waitcnt lgkmcnt(0)"); a(f"s_sub_u32 s{S_ACC}, s62, s92"); a(f"s_lshl_b32 s{S_ACC}, s{S_ACC}, 2"); a(f"s_add_u32 s{S_ACC}, s{S_ACC}, s{S_OK}")
    if opt.get('ponly'):
        a(f"s_lshl_b32 s{S_T0}, s{S_H}, 2"); a(f"s_add_u32 s{S_T0}, s{S_T0}, s{S_WV}"); a(f"s_lshl_b32 s{S_T0}, s{S_T0}, 5"); a(f"s_add_u32 s{S_T0}, s{S_T0}, {WS_STAMP + 4}")
        a(f"v_mov_b32 v{V_M}, s{S_ACC}")
        a(f"buffer_store_dword v{V_M}, off, {WS}, s{S_T0}")
        a("s_endpgm")
    a(f"s_mov_b32 s{S_STEP}, 0")
    a(f"s_cmp_lg_u32 s{S_OK}, 0")
    a("s_cbranch_scc1 L_ch_ready")
    wait_init(a, IV, groups, "L_ch_init")
    a(f"v_mov_b32 v{V_FL}, 0")
    avail_check(a, "L_ch_av")
    seg0_loads()
    a.label("L_ch_ready")
    if opt.get('nokv'):
        a(f"s_mov_b32 m0, s{S_KM0+1}")
        a(f"s_nop 0")
        a(f"buffer_load_dwordx4 v{V_P1}, {WS}, s{S_KPF} offen sc1 lds")
        a(f"buffer_load_dwordx4 v{V_P1}, {WS}, s{S_KPF} offen offset:1024 sc1 lds")
        a(f"buffer_load_dwordx4 {vr(V_VX[1]+4,4)}, v{V_P1}, {WS}, s{S_VPF} offen offset:1024 sc1")
    a(f"s_add_u32 s{S_KPF}, s{S_KPF}, {32*8192}")
    a(f"s_add_u32 s{S_VPF}, s{S_VPF}, {32*8192}")
    idle_a(a, 0)
    for r in range(24): a(f"v_mov_b32 v{V_AQ + r}, 0")
    a(f"s_mov_b32 s{S_SPIN2}, 0")
    a(f"s_mov_b32 s{S_MEMRD}, {WS_MEMRING - MEMB}")
    a(f"v_cndmask_b32 v{V_GATH}, v{V_ONES}, 0, s[{S_L0}:{S_L0+1}]")
    for r in range(4): a(f"v_mov_b32 v{V_M + 8 + r}, 0")
    for j in range(2): a(f"ds_write_b128 v{V_P1}, {vr(V_M + 8, 4)} offset:{QB - MEMB + 1024*j}")
    a("s_waitcnt vmcnt(0) lgkmcnt(0)")
    for r in range(8): a(f"v_min_u32 v{V_M+r}, -2, v{V_M+r}")
    if opt.get('time'):
        a("s_mov_b32 s74, 0"); a("s_mov_b32 s73, -1"); a("s_mov_b32 s72, 0")
        a(f"s_memtime s[84:85]")
        a(f"s_memrealtime s[88:89]")
        a("s_waitcnt lgkmcnt(0)")
    if opt.get('dbgtime'): dbg_stamp(a, 11, vt=V_M + 30); a("s_waitcnt vmcnt(0)")
    a(f"s_cmp_eq_u32 s{S_MODE}, {opt.get('fastmode', 1)}")
    a("s_cbranch_scc0 L_S0_entry")
    a("s_branch L_F0_entry")
    for tag, st in (("L_F", ""), ("L_S", "sc1")):
        h20 = step(a, 0, st, tag + "0", opt)
        h21 = step(a, 1, st, tag + "1", opt)
        a(f"s_branch {tag}0_h1")
        step_tails(a, 0, tag + "0", h20, opt)
        step_tails(a, 1, tag + "1", h21, opt)
    avail_slow(a, "L_ch_av")
    a.label("L_chain_done")
    a(f"buffer_store_dwordx4 {vr(V_AK,4)}, v{V_LA}, {WS}, s{S_EXP} offen sc1")
    a("s_nop 7")
    a("s_waitcnt vmcnt(0)")
    a("s_barrier")
    a(f"v_mov_b32 v{V_M}, 64")
    a(f"buffer_store_dword v{V_M}, off, {WS}, s{S_FLA} sc1")
    if opt.get('dbgtime'): dbg_stamp(a, 12, vt=V_M + 30)
    if opt.get('time'):
        a(f"s_memtime s[86:87]")
        a(f"s_memrealtime s[90:91]")
        a("s_waitcnt lgkmcnt(0)")
        a("s_sub_u32 s86, s86, s84")
        a(f"s_lshl_b32 s{S_T0}, s{S_H}, 2")
        a(f"s_add_u32 s{S_T0}, s{S_T0}, s{S_WV}")
        a(f"s_lshl_b32 s{S_T0}, s{S_T0}, 5")
        a(f"s_add_u32 s{S_T0}, s{S_T0}, {WS_STAMP}")
        for i, s in enumerate((86, S_ACC, S_ACC + 1, S_ACC + 2, 88, 90, 92, S_ACC + 3)):
            a(f"v_mov_b32 v{V_M+i}, s{s}")
        a(f"buffer_store_dwordx4 {vr(V_M,4)}, off, {WS}, s{S_T0}")
        a(f"buffer_store_dwordx4 {vr(V_M+4,4)}, off, {WS}, s{S_T0} offset:16")
        a(f"s_add_u32 s{S_T0}, s{S_T0}, 0x8000")
        a("s_mov_b32 s75, s84")
        if not opt.get('trace') and not opt.get('stamp'): a("s_sub_u32 s68, s82, s80")
        for i in range(8): a(f"v_mov_b32 v{V_M+8+i}, s{68+i}")
        a(f"buffer_store_dwordx4 {vr(V_M+8,4)}, off, {WS}, s{S_T0}")
        a(f"buffer_store_dwordx4 {vr(V_M+12,4)}, off, {WS}, s{S_T0} offset:16")
    a("s_endpgm")
```

```python
from stream import *
from rolepf import clear_flag, late_start, S_FLG

KXB = 73728
KMB = 81920
S_CNT = 43
S_C = 44
S_GRP = 45
S_KV = 46
S_KVM = 47
S_PST, S_INB = 48, 49
S_FP = 50
S_NEED = 51
S_FLPA = 52
S_FLC = 53
S_FLF = 54
S_OUTO = 55
S_GO = 56
S_PSTB, S_INBB = 57, 58
S_MASK = 60
S_SELM = 76
S_LM2 = 84
S_LM32 = 86
S_LMF = 88
S_O = 92

V_EXW, V_EXR, V_QRD, V_KMW, V_KMR, V_OWR, V_FLG, V_INB, V_INBF, V_OUT, V_GOF, V_SELX, V_VRD, V_L4 = range(9, 23)
V_ONES = 24
V_PB = 28
XF, AQ = 32, 48
QF = 64
KF = 80
VF = 128
VM = 144
KM = 148
SS = 152
OA = 164
HF = 184
AO = 216
TM = 232
WQ, WO = 256, 384

def role_c(a, opt):
    WS = f"s[{S_WS}:{S_WS+3}]"
    NG = opt.get('ng', 4)
    L, T = 127, 126
    if opt.get('warm_llc', 0):
        a(f"v_lshlrev_b32 v1, 4, v0")
        a(f"s_sub_u32 s{S_T0}, s{S_XG}, 1")
        a(f"s_lshl_b32 s{S_T1}, s{S_H}, 2")
        a(f"s_add_u32 s{S_T0}, s{S_T0}, s{S_T1}")
        a(f"s_lshl_b32 s{S_T0}, s{S_T0}, 12")
        for j in range(4):
            d = S_DESC[0]
            a(f"s_mov_b32 s{d}, s{40 + 2*j}")
            a(f"s_and_b32 s{d+1}, s{41 + 2*j}, 0xffff")
            a(f"s_mov_b32 s{d+2}, 0x400000")
            a(f"s_mov_b32 s{d+3}, 0x20000")
            a(f"s_mov_b32 s{S_T1}, s{S_T0}")
            for u in range(8):
                a(f"buffer_load_dwordx4 {vr(128 + 4 * (8*j + u), 4)}, v1, s[{d}:{d+3}], s{S_T1} offen")
                if u < 7: a(f"s_add_u32 s{S_T1}, s{S_T1}, {128 * 4096}")
    setup(a)
    a(f"s_sub_u32 s{S_GRP}, s{S_XG}, 1")
    a(f"s_lshl_b32 s{S_T2}, s{S_GRP}, 5")
    a(f"s_add_u32 s{S_T2}, s{S_T2}, s{S_H}")
    clear_flag(a, FLAG_C, S_T2)
    for r in range(4): a(f"v_mov_b32 v{16+r}, -1")
    a(f"v_mov_b32 v20, 0")
    a(f"s_lshl_b32 s{S_T0}, s{S_T2}, 13")
    a(f"s_add_u32 s{S_T0}, s{S_T0}, {WS_PART}")
    for j in range(2):
        a(f"buffer_store_dwordx4 v[16:19], v{V_P1K}, {WS}, s{S_T0} offen sc1")
        a(f"s_add_u32 s{S_T0}, s{S_T0}, 4096")
    a(f"s_cmp_ge_u32 s{S_T2}, 8")
    a("s_cbranch_scc1 L_c_noarm")
    a(f"s_lshl_b32 s{S_T0}, s{S_T2}, 12")
    a(f"s_add_u32 s{S_T0}, s{S_T0}, {WS_MEMRING}")
    a(f"buffer_store_dwordx4 v[16:19], v{V_P1K}, {WS}, s{S_T0} offen sc1")
    a(f"s_cmp_lg_u32 s{S_T2}, 0")
    a("s_cbranch_scc1 L_c_noarm")
    for r in range(3): a(f"v_mov_b32 v{21+r}, 0")
    for j in range(2):
        a(f"s_mov_b32 s{S_T0}, {WS_HINT + 4096 * j}")
        a(f"buffer_store_dwordx4 v[20:23], v{V_P1K}, {WS}, s{S_T0} offen sc1")
    a(f"s_mov_b32 s{S_T0}, {WS_FLAG + FLAG_A * 128}")
    a(f"buffer_store_dwordx4 v[20:23], v{V_P1K}, {WS}, s{S_T0} offen sc1")
    a.label("L_c_noarm")
    late_start(a, opt, "L_c")
    srd(a, S_DESC[0], KA_WQ, 0x400000)
    srd(a, S_DESC[1], KA_WO, 0x400000)
    col = [f"s_lshl_b32 s{S_T0}, s{S_H}, 8", f"s_lshl_b32 s{S_T1}, s{S_WV}, 6", f"s_add_u32 s{S_T0}, s{S_T0}, s{S_T1}"]
    load_weights(a, proj_chunks(S_DESC[0], 8192, col, WQ) + out_chunks(S_DESC[1], [f"s_lshl_b32 s{S_T0}, s{S_H}, 17"], WO),
                 lambda a: None)
    srd(a, S_O, KA_OUT, 2048 * 1024)
    a(f"s_mov_b32 s{S_C}, {f32bits(CSCALE):#x}")
    a(f"v_add_u32 v{V_EXW}, {EXB}, v{V_P1K}")
    a(f"v_add_u32 v{V_EXR}, {EXB}, v{V_L16}")
    a(f"s_and_b32 s{S_T0}, s{S_WV}, 1")
    a(f"s_lshr_b32 s{S_T1}, s{S_WV}, 1")
    a(f"s_lshl_b32 s{S_T2}, s{S_T0}, 12")
    a(f"v_add_u32 v{V_QRD}, s{S_T2}, v{V_EXR}")
    a(f"s_lshl_b32 s{S_T3}, s{S_T1}, 11")
    a(f"v_add_u32 v{V_OWR}, s{S_T3}, v{V_QRD}")
    a(f"s_lshl_b32 s{S_T3}, s{S_T1}, 12")
    a(f"v_add_u32 v{V_VRD}, s{S_T3}, v{V_L16}")
    a(f"s_lshl_b32 s{S_T2}, s{S_T0}, 4")
    a(f"v_and_b32 v{V_T0}, 15, v{L}")
    a(f"v_add_u32 v{V_T0}, s{S_T2}, v{V_T0}")
    bitpat(a, V_T1, L, [(4, 3, 4)], T)
    a(f"v_sub_u32 v{V_T0}, v{V_T0}, v{V_T1}")
    for Tt in range(2):
        for r in range(4):
            k = S_MASK + 2 * (4 * Tt + r)
            a(f"v_cmp_le_i32 s[{k}:{k+1}], {16*Tt + r}, v{V_T0}")
    bitpat(a, V_KMW, L, [(5, 1, 8), (0, 15, 1)], T)
    a(f"v_and_b32 v{V_KMW}, 15, v{V_KMW}")
    a(f"v_and_b32 v{T}, 48, v{L}")
    a(f"v_add_u32 v{V_KMW}, v{V_KMW}, v{T}")
    a(f"v_lshlrev_b32 v{V_KMW}, 3, v{V_KMW}")
    a(f"s_lshl_b32 s{S_T0}, s{S_WV}, 10")
    a(f"s_add_u32 s{S_T0}, s{S_T0}, {KMB}")
    a(f"v_add_u32 v{V_KMW}, s{S_T0}, v{V_KMW}")
    bitpat(a, V_KMR, L, [(1, 1, 8), (2, 15, 1)], T)
    a(f"v_and_b32 v{V_KMR}, 15, v{V_KMR}")
    a(f"v_and_b32 v{T}, 3, v{L}")
    a(f"v_lshl_add_u32 v{V_KMR}, v{T}, 4, v{V_KMR}")
    a(f"v_lshlrev_b32 v{V_KMR}, 3, v{V_KMR}")
    a(f"v_add_u32 v{V_KMR}, {KMB}, v{V_KMR}")
    for r in range(4):
        a(f"v_mov_b32 v{V_ONES+r}, 0x3f803f80")
        a(f"v_mov_b32 v{V_PB+r}, 0")
    a(f"v_add_u32 v{V_T0}, {KMB}, v{V_P1K}")
    a(f"ds_write_b128 v{V_T0}, {vr(V_PB,4)}")
    a(f"v_lshlrev_b32 v{V_FLG}, 7, v{L}")
    a(f"v_lshlrev_b32 v{V_L4}, 2, v{L}")
    a(f"v_cmp_gt_u32 s[{S_LM32}:{S_LM32+1}], 32, v{L}")
    a(f"s_lshl_b32 s{S_T0}, s{S_H}, 7")
    a(f"s_add_u32 s{S_FLPA}, s{S_T0}, {WS_FLAG + FLAG_P * 128}")
    a(f"s_lshl_b32 s{S_T0}, s{S_GRP}, 12")
    a(f"s_add_u32 s{S_FLC}, s{S_T0}, {WS_FLAG + FLAG_C * 128}")
    a(f"s_mov_b32 s{S_FLF}, {WS_FLAG + FLAG_F * 128}")
    a(f"s_mov_b64 s[{S_LM2}:{S_LM2+1}], 0")
    a(f"s_bitset1_b64 s[{S_LM2}:{S_LM2+1}], 0")
    bitpat(a, V_INB, L, [(4, 3, 1024), (0, 15, 16)], T)
    a(f"s_lshl_b32 s{S_T0}, s{S_WV}, 8")
    a(f"v_add_u32 v{V_INB}, s{S_T0}, v{V_INB}")
    bitpat(a, V_T0, L, [(5, 1, OOB)], T)
    a(f"v_add_u32 v{V_INBF}, v{V_T0}, v{V_INB}")
    bitpat(a, V_GOF, L, [(2, 1, 16), (0, 3, 1)], T)
    a(f"s_lshl_b32 s{S_T0}, s{S_WV}, 2")
    a(f"v_add_u32 v{V_GOF}, s{S_T0}, v{V_GOF}")
    bitpat(a, V_OUT, L, [(4, 3, 8), (3, 1, OOB)], T)
    a(f"v_lshl_add_u32 v{V_OUT}, v{V_GOF}, 10, v{V_OUT}")
    a(f"v_lshlrev_b32 v{V_GOF}, 2, v{V_GOF}")
    a(f"v_and_b32 v{T}, 1, v{L}")
    a(f"v_cmp_eq_u32 vcc, 1, v{T}")
    a(f"v_mov_b32 v{V_SELX}, 0x3f80")
    a(f"v_mov_b32 v{T}, 0x3f800000")
    a(f"v_cndmask_b32 v{V_SELX}, v{V_SELX}, v{T}, vcc")
    a(f"v_bfe_u32 v{T}, v{L}, 1, 3")
    for r in range(4):
        a(f"v_cmp_eq_u32 s[{S_SELM+2*r}:{S_SELM+2*r+1}], {r}, v{T}")
    a(f"s_lshl_b32 s{S_T0}, s{S_GRP}, 21")
    a(f"s_add_u32 s{S_T0}, s{S_T0}, {WS_CP}")
    a(f"s_lshl_b32 s{S_T1}, s{S_H}, 10")
    a(f"s_add_u32 s{S_PSTB}, s{S_T0}, s{S_T1}")
    a(f"s_lshl_b32 s{S_T1}, s{S_WV}, 18")
    a(f"s_add_u32 s{S_PSTB}, s{S_PSTB}, s{S_T1}")
    a(f"s_lshl_b32 s{S_T1}, s{S_H}, 15")
    a(f"s_add_u32 s{S_INBB}, s{S_T0}, s{S_T1}")
    a(f"s_mov_b32 s{S_SEG}, s{S_GRP}")
    a(f"s_mov_b32 s{S_CNT}, 0")
    x_issue(a, 0, S_SEG)
    wait_init(a, TM, opt['groups'], "L_c_init2")
    a("s_waitcnt lgkmcnt(0)")
    a(f"s_cmp_eq_u32 s{S_MODE}, {opt.get('fastmode', 1)}")
    a("s_cbranch_scc0 L_cS_loop")
    for tag, st in (("L_cF", ""), ("L_cS", "sc1")):
        a.label(f"{tag}_loop")
        for par in range(2):
            segment(a, par, st, f"{tag}{par}", NG, opt)
            a(f"s_cmp_ge_u32 s{S_SEG}, 64")
            a("s_cbranch_scc1 L_done")
        a(f"s_branch {tag}_loop")

def segment(a, par, st, tag, NG, opt):
    WS = f"s[{S_WS}:{S_WS+3}]"
    a("s_waitcnt vmcnt(0)")
    a("s_barrier")
    a(f"s_add_u32 s{S_T2}, s{S_SEG}, {NG}")
    a(f"s_min_u32 s{S_T2}, s{S_T2}, 63")
    xi = x_issue_groups(1 - par, S_T2)
    a(f"s_lshl_b32 s{S_T0}, s{S_SEG}, 5")
    a(f"s_add_u32 s{S_T0}, s{S_T0}, s{S_H}")
    a(f"s_lshl_b32 s{S_KV}, s{S_T0}, 13")
    a(f"s_lshl_b32 s{S_KVM}, s{S_T0}, 12")
    a(f"s_add_u32 s{S_KVM}, s{S_KVM}, {WS_KVM}")
    a(f"s_add_u32 s{S_NEED}, s{S_SEG}, 1")
    def mm(ks, xf):
        o = []
        for t in range(2):
            for tt in range(2):
                d = AQ + (tt * 2 + t) * 4
                o.append(mf32(d, ur(WQ + (t * 16 + ks) * 4, 4), xf[tt], "0" if ks == 0 else vr(d, 4)))
        if ks < len(xi): o[2] += "\n" + xi[ks]
        return o
    proj_phase(a, par, XF, mm)
    for tt in range(2):
        d = AQ + 8 * tt
        for r in range(4): a(f"v_cvt_pk_bf16_f32 v{d+r}, v{d+2*r}, v{d+2*r+1}")
        a(f"ds_write_b128 v{V_EXW}, {vr(d,4)} offset:{tt*4096}")
    poll_flags(a, f"{tag}_pp", TM, V_FLG, S_FLPA, S_NEED, S_LM2, halves=True)
    a(f"s_lshl_b32 s{S_T0}, s{S_WV}, 10")
    a(f"s_add_u32 s{S_T1}, s{S_KV}, s{S_T0}")
    a(f"s_add_u32 s{S_T1}, s{S_T1}, {WS_KX}")
    a(f"s_lshl_b32 s{S_T0}, s{S_WV}, 11")
    a(f"s_add_u32 m0, s{S_T0}, {KXB}")
    a(f"s_add_u32 s{S_T2}, s{S_KV}, {WS_VX}")
    for j in range(2): a(f"buffer_load_dwordx4 v{V_P1K}, {WS}, s{S_T1} offen offset:{j*1024} sc1 lds")
    for j in range(4): a(f"buffer_load_dwordx4 {vr(VF + 4*j, 4)}, v{V_VRD}, {WS}, s{S_T2} offen offset:{j*1024} sc1")
    a(f"s_add_u32 s{S_T3}, s{S_FLPA}, {(FLAG_A - FLAG_P) * 128}")
    poll_flags(a, f"{tag}_pa", TM, V_FLG, S_T3, S_NEED, S_LM2)
    if opt.get('time'):
        a("s_memrealtime s[96:97]"); a("s_waitcnt lgkmcnt(0)"); a("s_mov_b32 s99, s96")
    a(f"s_lshr_b32 s{S_T0}, s{S_WV}, 1")
    a(f"s_lshl_b32 s{S_T0}, s{S_T0}, 11")
    a(f"s_add_u32 s{S_T0}, s{S_T0}, s{S_KVM}")
    a(f"buffer_load_dwordx2 {vr(KM,2)}, v{V_P1K}, {WS}, s{S_KVM} offen sc1")
    for j in range(2): a(f"buffer_load_dwordx2 {vr(VM + 2*j, 2)}, v{V_L16}, {WS}, s{S_T0} offen offset:{j*1024 + 8} sc1")
    a(f"ds_write_b32 v{V_KMW}, v{KM}")
    a(f"ds_write_b32 v{V_KMW}, v{KM+1} offset:512")
    a("s_waitcnt lgkmcnt(0)")
    a("s_barrier")
    for i in range(4): a(f"ds_read_b128 {vr(QF + 4*i, 4)}, v{V_QRD} offset:{i*1024}")
    for j in range(8): a(f"ds_read_b128 {vr(KF + 4*j, 4)}, v{V_EXR} offset:{KXB - EXB + j*1024}")
    for i in range(4):
        for hh in range(2): a(f"ds_read_b64_tr_b16 {vr(KF + 32 + 4*i + 2*hh, 2)}, v{V_KMR} offset:{i*1024 + hh*512}")
    for i in range(4):
        for Tt in range(3):
            d = SS + 4 * Tt
            a(mf32(d, vr(KF + 16*Tt + 4*i, 4), vr(QF + 4*i, 4), "0" if i == 0 else vr(d, 4)))
    SM = SS + 8
    NEG, MX, T2 = TM, TM + 1, TM + 2
    a(f"v_mov_b32 v{NEG}, 0xff800000")
    for r in range(8): a(f"v_cndmask_b32 v{SS+r}, v{NEG}, v{SS+r}, s[{S_MASK+2*r}:{S_MASK+2*r+1}]")
    a(f"v_mul_f32 v{SM}, s{S_C}, v{SM}")
    a(f"v_mul_f32 v{SM+1}, s{S_C}, v{SM+1}")
    a(f"v_max3_f32 v{MX}, v{SM}, v{SM+1}, v{SS}")
    for r in range(1, 7, 2): a(f"v_max3_f32 v{MX}, v{MX}, v{SS+r}, v{SS+r+1}")
    a(f"v_max_f32 v{MX}, v{MX}, v{SS+7}")
    for sw in ("v_permlane16_swap_b32", "v_permlane32_swap_b32"):
        a(f"v_mov_b32 v{T2}, v{MX}")
        a(f"{sw} v{MX}, v{T2}")
        a(f"v_max_f32 v{MX}, v{MX}, v{T2}")
    for r in range(10): a(f"v_sub_f32 v{SS+r}, v{SS+r}, v{MX}")
    for r in range(10): a(f"v_exp_f32 v{SS+r}, v{SS+r}")
    for r in range(4): a(f"v_cvt_pk_bf16_f32 v{SS+r}, v{SS+2*r}, v{SS+2*r+1}")
    a(f"v_cvt_pk_bf16_f32 v{V_PB}, v{SM}, v{SM+1}")
    a(f"v_cvt_pk_bf16_f32 v{V_PB+3}, v{SM}, v{SM+1}")
    LA = OA + 16
    a(mf32(LA, vr(V_ONES, 4), vr(SS, 4), "0"))
    for j in range(4): a(mf32(OA + 4*j, vr(VF + 4*j, 4), vr(SS, 4), "0"))
    a(mf16(LA, vr(V_ONES, 2), vr(V_PB, 2), vr(LA, 4)))
    for j in range(4): a(mf16(OA + 4*j, vr(VM + 2*(j >> 1), 2), vr(V_PB + 2*(j & 1), 2), vr(OA + 4*j, 4)))
    if opt.get('dumpc'):
        a("s_nop 7")
        a(f"s_lshl_b32 s{S_T0}, s{S_GRP}, 5"); a(f"s_add_u32 s{S_T0}, s{S_T0}, s{S_H}"); a(f"s_lshl_b32 s{S_T0}, s{S_T0}, 2")
        a(f"s_add_u32 s{S_T0}, s{S_T0}, s{S_WV}"); a(f"s_lshl_b32 s{S_T0}, s{S_T0}, 14"); a(f"s_add_u32 s{S_T0}, s{S_T0}, 0x8000000")
        for j, r in enumerate((QF, KF, KF + 32, VF, SS, V_PB, OA, LA, VM, TM, V_ONES, SS + 8)):
            a(f"buffer_store_dwordx4 {vr(r,4)}, v{V_L16}, {WS}, s{S_T0} offen")
            a(f"s_add_u32 s{S_T0}, s{S_T0}, 1024")
    a(f"v_rcp_f32 v{T2}, v{LA}")
    for r in range(16): a(f"v_mul_f32 v{OA+r}, v{OA+r}, v{T2}")
    for r in range(8): a(f"v_cvt_pk_bf16_f32 v{OA+r}, v{OA+2*r}, v{OA+2*r+1}")
    a("s_barrier")
    for j in range(2): a(f"ds_write_b128 v{V_OWR}, {vr(OA + 4*j, 4)} offset:{j*1024}")
    a(f"s_and_b32 s{S_T0}, s{S_CNT}, 1")
    a(f"s_lshl_b32 s{S_T0}, s{S_T0}, 20")
    a(f"s_add_u32 s{S_PST}, s{S_PSTB}, s{S_T0}")
    a(f"s_add_u32 s{S_INB}, s{S_INBB}, s{S_T0}")
    a(f"s_add_u32 s{S_CNT}, s{S_CNT}, 1")
    a("s_waitcnt lgkmcnt(0)")
    a("s_barrier")
    for j in range(8): a(f"ds_read_b128 {vr(HF + 4*j, 4)}, v{V_EXR} offset:{j*1024}")
    def store(ct, reg):
        return f"s_add_u32 s{S_T0}, s{S_PST}, {ct * 32768}\nbuffer_store_dwordx4 {vr(reg,4)}, v{V_L16}, {WS}, s{S_T0} offen {st}"
    out_phase(a, HF, WO, AO, store)
    a("s_waitcnt vmcnt(0)")
    a("s_barrier")
    flag_store(a, TM, S_CNT, S_FLG, f"{tag}_nf", st)
    if opt.get('time'):
        a("s_memrealtime s[96:97]"); a("s_waitcnt lgkmcnt(0)"); a("s_mov_b32 s100, s96")
    SEL, RA, RB, GV = TM + 4, TM + 8, TM + 12, TM + 3
    for r in range(4): a(f"v_cndmask_b32 v{SEL+r}, 0, v{V_SELX}, s[{S_SELM+2*r}:{S_SELM+2*r+1}]")
    a(f"s_and_b32 s{S_T0}, s{S_SEG}, 1")
    a(f"s_mul_i32 s{S_T0}, s{S_T0}, 14")
    a(f"s_lshl_b64 s[{S_LMF}:{S_LMF+1}], 0x3fff, s{S_T0}")
    a(f"s_or_b32 s{S_LMF}, s{S_LMF}, 0xf0000000")
    a(f"s_lshr_b32 s{S_NEED}, s{S_SEG}, 1")
    a(f"s_add_u32 s{S_NEED}, s{S_NEED}, 1")
    poll_flags(a, f"{tag}_pf", TM, V_FLG, S_FLF, S_NEED, S_LMF)
    a(f"s_lshl_b32 s{S_FP}, s{S_SEG}, 19")
    a(f"s_lshl_b32 s{S_T0}, s{S_H}, 14")
    a(f"s_add_u32 s{S_FP}, s{S_FP}, s{S_T0}")
    a(f"s_add_u32 s{S_FP}, s{S_FP}, {WS_FP}")
    for i in range(4):
        a(f"buffer_load_dwordx4 {vr(KF + 4*i, 4)}, v{V_INBF if i == 3 else V_INB}, {WS}, s{S_FP} offen sc1")
        if i < 3: a(f"s_add_u32 s{S_FP}, s{S_FP}, 4096")
    a(f"s_lshl_b32 s{S_GO}, s{S_SEG}, 7")
    a(f"s_add_u32 s{S_GO}, s{S_GO}, {WS_G}")
    a(f"buffer_load_dword v{GV}, v{V_GOF}, {WS}, s{S_GO} offen sc1")
    poll_flags(a, f"{tag}_pc", TM, V_FLG, S_FLC, S_CNT, S_LM32)
    for i in range(8):
        a(f"buffer_load_dwordx4 {vr(HF + 4*i, 4)}, v{V_INB}, {WS}, s{S_INB} offen sc1")
        if i < 7: a(f"s_add_u32 s{S_INB}, s{S_INB}, 4096")
    for i in range(4): a(mf32(RB, vr(KF + 4*i, 4), vr(SEL, 4), "0" if i == 0 else vr(RB, 4)))
    OM = TM
    a(f"v_sub_f32 v{OM}, 1.0, v{GV}")
    a(f"v_cvt_pk_bf16_f32 v{OM}, v{OM}, v{OM}")
    a(f"v_and_b32 v{OM}, 0xffff0000, v{OM}")
    def rnd(R):
        a(f"v_cvt_pk_bf16_f32 v{R}, v{R}, v{R+1}")
        a(f"v_cvt_pk_bf16_f32 v{R+2}, v{R+2}, v{R+3}")
        for q in (0, 2):
            a(f"v_and_b32 v{R+q+1}, 0xffff0000, v{R+q}")
            a(f"v_lshlrev_b32 v{R+q}, 16, v{R+q}")
    rnd(RB)
    for r in range(4): a(f"v_mul_f32 v{RB+r}, v{RB+r}, v{OM}")
    rnd(RB)
    for i in range(8): a(mf32(RA, vr(HF + 4*i, 4), vr(SEL, 4), "0" if i == 0 else vr(RA, 4)))
    rnd(RA)
    for r in range(4): a(f"v_mul_f32 v{RA+r}, v{RA+r}, v{GV}")
    rnd(RA)
    for r in range(4): a(f"v_add_f32 v{RA+r}, v{RA+r}, v{RB+r}")
    a(f"v_cvt_pk_bf16_f32 v{RA}, v{RA}, v{RA+1}")
    a(f"v_cvt_pk_bf16_f32 v{RA+1}, v{RA+2}, v{RA+3}")
    a(f"s_lshl_b32 s{S_OUTO}, s{S_SEG}, 15")
    a(f"s_lshl_b32 s{S_T0}, s{S_H}, 5")
    a(f"s_add_u32 s{S_OUTO}, s{S_OUTO}, s{S_T0}")
    a(f"buffer_store_dwordx2 {vr(RA,2)}, v{V_OUT}, s[{S_O}:{S_O+3}], s{S_OUTO} offen")
    a(f"s_add_u32 s{S_SEG}, s{S_SEG}, {NG}")
```

```python
from common import *

MEMB = 131072
KB = (139264, 147456)
QB = 155648
KKB = QB + 4096
LDS_BYTES = 163840

V_LA, V_P1, V_MR1, V_MR2, V_MR3, V_QW, V_L4, V_QKR, V_WVO, V_OW, V_GATH, V_PST, V_PUB, V_IDX, V_SELX, V_FL = range(16)
V_ONES = 16
V_PB = 20
V_M = 24
V_AQ, V_AK, V_AV = 56, 64, 72
V_W = 80
V_VX = (112, 120)
WQ0, WK0, WV0, WO0 = 256, 384, 128, 192

def wq(t, s): return ur(WQ0 + (s * 2 + t) * 8, 8)
def wk(t, s): return ur(WK0 + (s * 2 + t) * 8, 8)
def wv_res(t, s): return ur(WV0 + ((s - 4) * 2 + t) * 8, 8)
def wo_res(t, kbo): return ur(WO0 + (t * 2 + kbo) * 8, 8)
def Mf(s): return vr(V_M + 4 * s, 4)
def Wb(j): return V_W + 8 * j

S_STEP = 30
S_MEMRD = 31
S_PST0, S_PST1 = 32, 33
S_INB0, S_INB1 = 34, 35
S_PUBN = 36
S_PUBC = 37
S_PH = 38
S_KPF, S_VPF = 39, 40
S_EXP = 41
S_FLP = 42
S_FLA = 43
S_AVAIL = 44
S_C = 45
S_LLO, S_LRG = 46, 47
S_SELM = 48
S_KM0 = 56
S_HB_PST, S_HB_INB, S_HB_PUB = 58, 59, 60
S_TCH = 61
S_HST, S_HLD = 23, 29
S_HST2, S_HLD2 = 64, 65
S_L0 = 66
S_TS = 76
S_ACC = 94

def smf(d, A, B): return f"v_smfmac_f32_16x16x64_bf16 {vr(d,4)}, {A}, {B}, v{V_IDX}"
def mf32(d, A, B, C): return f"v_mfma_f32_16x16x32_bf16 {vr(d,4)}, {A}, {B}, {C}"
def mf16(d, A, B, C): return f"v_mfma_f32_16x16x16_bf16 {vr(d,4)}, {A}, {B}, {C}"

V_TID = 123
HINT_STRIDE = [4]
S_KA = 40

def setup_lanes(a):
    L, T = 127, 126
    a(f"v_lshlrev_b32 v{V_LA}, 4, v{L}")
    a(f"s_lshl_b32 s{S_T0}, s{S_WV}, 13")
    a(f"v_add_u32 v{V_WVO}, s{S_T0}, v{V_LA}")
    a(f"v_add_u32 v{V_LA}, {MEMB}, v{V_LA}")
    for j, r in enumerate((V_P1, V_MR1, V_MR2, V_MR3)):
        a(f"s_xor_b32 s{S_T0}, s{S_WV}, {j}")
        a(f"s_lshl_b32 s{S_T0}, s{S_T0}, 11")
        a(f"v_add_u32 v{r}, s{S_T0}, v{V_LA}")
    bitpat(a, V_QW, L, [(5, 1, 8), (0, 15, 1)], T)
    a(f"v_and_b32 v{V_QW}, 15, v{V_QW}")
    a(f"v_and_b32 v{T}, 48, v{L}")
    a(f"v_add_u32 v{V_QW}, v{V_QW}, v{T}")
    a(f"v_lshlrev_b32 v{V_QW}, 3, v{V_QW}")
    a(f"s_lshl_b32 s{S_T0}, s{S_WV}, 10")
    a(f"s_add_u32 s{S_T0}, s{S_T0}, {QB}")
    a(f"v_add_u32 v{V_QW}, s{S_T0}, v{V_QW}")
    bitpat(a, V_QKR, L, [(1, 1, 8), (2, 15, 1)], T)
    a(f"v_and_b32 v{V_QKR}, 15, v{V_QKR}")
    a(f"v_and_b32 v{T}, 3, v{L}")
    a(f"v_lshl_add_u32 v{V_QKR}, v{T}, 4, v{V_QKR}")
    a(f"v_lshlrev_b32 v{V_QKR}, 3, v{V_QKR}")
    a(f"v_add_u32 v{V_QKR}, {QB}, v{V_QKR}")
    bitpat(a, V_OW, L, [(4, 3, 256), (2, 3, 64), (0, 1, 32), (1, 1, 4096)], T, MEMB)
    a(f"s_lshr_b32 s{S_T0}, s{S_WV}, 1")
    a(f"s_lshl_b32 s{S_T0}, s{S_T0}, 10")
    a(f"s_and_b32 s{S_T1}, s{S_WV}, 1")
    a(f"s_lshl_b32 s{S_T1}, s{S_T1}, 4")
    a(f"s_add_u32 s{S_T0}, s{S_T0}, s{S_T1}")
    a(f"v_add_u32 v{V_OW}, s{S_T0}, v{V_OW}")
    bitpat(a, T, L, [(1, 1, 16)], T)
    a(f"v_xor_b32 v{V_OW}, v{V_OW}, v{T}")
    HS = HINT_STRIDE[0]
    bitpat(a, V_L4, L, [(0, 31, HS), (5, 1, OOB)], T)
    if HS == 4: bitpat(a, V_GATH, L, [(0, 7, 128), (3, 1, OOB), (4, 1, OOB), (5, 1, OOB)], T)
    elif HS == 32: bitpat(a, V_GATH, L, [(3, 7, 1024), (0, 7, 4)], T)
    else: bitpat(a, V_GATH, L, [(4, 3, 2048), (0, 15, 4)], T)
    a(f"s_cmp_eq_u32 s{S_WV}, 3")
    a(f"s_cselect_b64 vcc, -1, 0")
    a(f"v_cndmask_b32 v{V_L4}, v{V_L4}, v{V_GATH}, vcc")
    a(f"s_mul_i32 s{S_T0}, s{S_H}, {HS}")
    a(f"s_add_u32 s{S_T0}, s{S_T0}, {WS_HINT}")
    a(f"s_cmp_eq_u32 s{S_WV}, 3")
    a(f"s_cselect_b32 s{S_HST}, s{S_T0}, {OOB}")
    a(f"s_and_b32 s{S_T0}, s{S_H}, {3 if HS == 64 else 7}")
    a(f"s_mul_i32 s{S_T0}, s{S_T0}, {32 * HS}")
    a(f"s_add_u32 s{S_T0}, s{S_T0}, {WS_HINT}")
    a(f"s_cmp_eq_u32 s{S_WV}, 0")
    a(f"s_cselect_b32 s{S_HLD}, s{S_T0}, {OOB}")
    bitpat(a, V_GATH, L, [(1, 7, 1024), (4, 3, 32), (0, 1, 16)], T)
    a(f"s_lshl_b32 s{S_T0}, s{S_WV}, 8")
    a(f"v_add_u32 v{V_GATH}, s{S_T0}, v{V_GATH}")
    bitpat(a, V_PST, L, [(4, 3, 8192), (0, 15, 16)], T)
    a(f"s_lshl_b32 s{S_T0}, s{S_WV}, 16")
    a(f"v_add_u32 v{V_PST}, s{S_T0}, v{V_PST}")
    bitpat(a, V_PUB, L, [(1, 3, 256), (0, 1, 32), (5, 1, 16), (4, 1, 8), (3, 1, OOB)], T)
    a(f"v_and_b32 v{T}, 1, v{L}")
    a(f"v_cmp_eq_u32 vcc, 1, v{T}")
    a(f"v_mov_b32 v{V_IDX}, 0x44444444")
    a(f"v_mov_b32 v{T}, 0xeeeeeeee")
    a(f"v_cndmask_b32 v{V_IDX}, v{V_IDX}, v{T}, vcc")
    a(f"v_mov_b32 v{V_SELX}, 0x3f80")
    a(f"v_mov_b32 v{T}, 0x3f800000")
    a(f"v_cndmask_b32 v{V_SELX}, v{V_SELX}, v{T}, vcc")
    a(f"v_bfe_u32 v{T}, v{L}, 1, 3")
    for r in range(4):
        a(f"v_cmp_eq_u32 s[{S_SELM+2*r}:{S_SELM+2*r+1}], {r}, v{T}")
    a(f"v_cmp_eq_u32 s[{S_L0}:{S_L0+1}], 64, v{V_TID}")
    for r in range(4):
        a(f"v_mov_b32 v{V_ONES+r}, 0x3f803f80")
        a(f"v_mov_b32 v{V_PB+r}, 0")

PSTAMP = [-1]
CODEPF = [0]
S_DQ = (68, 72, 76, 80)
V_SQ, V_SO = 125, 124
ROUNDS = [('q', s) for s in (0, 1, 4, 5)] + [('k', s) for s in (0, 1, 4, 5)] + [('v', 4), ('v', 5), ('o', (0, 0)), ('o', (0, 1))] \
    + [('v', 0), ('v', 1), ('o', (1, 0)), ('o', (1, 1))]

def src_pattern(a, dst, L, T, bits, pitch):
    bitpat(a, dst, L, [(3, 1, pitch << bits[0]), (4, 1, pitch << bits[1]), (5, 1, pitch << bits[2]), (0, 1, 16)], T)
    for sh, bit in ((2, 4), (4, 2)):
        a(f"v_lshrrev_b32 v{T}, {sh}, v{L}")
        a(f"v_xor_b32 v{T}, v{T}, v{L}")
        a(f"v_and_b32 v{T}, {bit}, v{T}")
        a(f"v_lshl_add_u32 v{dst}, v{T}, 4, v{dst}")

class VmQueue:
    def __init__(self): self.q = []
    def add(self, tag, n=1): self.q += [tag] * n
    def wait(self, a, tag):
        last = max(i for i, t in enumerate(self.q) if t == tag)
        a(f"s_waitcnt vmcnt({len(self.q) - 1 - last})")
        self.q = self.q[last + 1:]
    def done(self, tag): return tag not in self.q

def issue_round(a, i, vq):
    kind, p = ROUNDS[i]
    if kind != 'o':
        a(f"s_xor_b32 s{S_T0}, s{S_WV}, {p >> 1}")
        a(f"s_lshl_b32 s{S_T0}, s{S_T0}, 20")
        a(f"s_add_u32 s{S_T0}, s{S_T0}, s{S_T2}")
        if p & 1: a(f"s_add_u32 s{S_T0}, s{S_T0}, {64 * 8192}")
        rows, pitch, v = (16, 2, 32), 8192, V_SQ
    else:
        a(f"s_lshl_b32 s{S_T0}, s{S_H}, 17")
        a(f"s_lshl_b32 s{S_T1}, s{S_WV}, 8")
        a(f"s_add_u32 s{S_T0}, s{S_T0}, s{S_T1}")
        a(f"s_add_u32 s{S_T0}, s{S_T0}, {p[1] * 65536 + p[0] * 128}")
        rows, pitch, v = (4, 2, 8), 1024, V_SO
    d = S_DQ['qkvo'.index(kind)]
    prev = 0
    for u in range(8):
        off = sum(rows[b] for b in range(3) if u >> b & 1) * pitch - (u & 3) * 1024
        if u & 3 == 0: a(f"s_add_u32 m0, s{S_T3}, {(i & 3) * 32768 + (u >> 2) * 4096}")
        if off != prev: a(f"s_add_u32 s{S_T0}, s{S_T0}, {(off - prev) & 0xffffffff:#x}")
        prev = off
        a(f"buffer_load_dwordx4 v{v}, s[{d}:{d+3}], s{S_T0} offen offset:{(u & 3)*1024} lds")
    vq.add(('w', i), 8)

def start_weights(a, vq):
    L, T = 127, 126
    a(f"v_mov_b32 v{V_TID}, v0")
    a(f"v_and_b32 v{L}, 63, v0")
    a(f"v_lshrrev_b32 v{T}, 6, v0")
    a(f"v_readfirstlane_b32 s{S_WV}, v{T}")
    if CODEPF[0]:
        a("s_getpc_b64 s[8:9]")
        a.label("L_pc")
        a("s_and_b32 s9, s9, 0xffff")
        a("s_mov_b32 s10, L_code_end-L_pc")
        a("s_mov_b32 s11, 0x20000")
        a(f"s_lshl_b32 s{S_T0}, s{S_H}, 12")
        a(f"v_lshlrev_b32 v{T}, 4, v0")
        a(f"buffer_load_dwordx4 v[24:27], v{T}, s[8:11], s{S_T0} offen")
        vq.add('code')
    src_pattern(a, V_SQ, L, T, (0, 3, 2), 8192)
    a(f"s_lshl_b32 s{S_T3}, s{S_WV}, 13")
    a(f"s_lshr_b32 s{S_T1}, s{S_WV}, 1")
    a(f"s_lshl_b32 s{S_T1}, s{S_T1}, 7")
    a(f"s_lshl_b32 s{S_T2}, s{S_H}, 8")
    a(f"s_add_u32 s{S_T2}, s{S_T2}, s{S_T1}")
    a("s_waitcnt lgkmcnt(0)")
    for base, src, size in ((S_D, S_KA + 8, 256), (S_WS, S_KA + 10, WS_SIZE)):
        a(f"s_mov_b32 s{base}, s{src}")
        a(f"s_and_b32 s{base+1}, s{src+1}, 0xffff")
        a(f"s_mov_b32 s{base+2}, {size:#x}")
        a(f"s_mov_b32 s{base+3}, 0x20000")
    register_wg(a, V_W, "L_ch_noreg", barrier=False)
    for j, d in enumerate(S_DQ):
        a(f"s_mov_b32 s{d}, s{S_KA + 2*j}")
        a(f"s_and_b32 s{d+1}, s{S_KA + 2*j + 1}, 0xffff")
        a(f"s_mov_b32 s{d+2}, 0x400000")
        a(f"s_mov_b32 s{d+3}, 0x20000")
        if j == 0:
            for i in range(3): issue_round(a, i, vq)

def load_weights(a, hooks, vq):
    L, T = 127, 126
    TQ, TO = V_AQ, V_AQ + 4
    TMP = V_W
    S_CB = 64
    a(f"s_mov_b32 s{S_CB}, s{S_T2}")
    src_pattern(a, V_SO, L, T, (0, 5, 4), 1024)
    bitpat(a, TO, L, [(5, 1, 1024), (4, 1, 512 + 32), (3, 1, 256 + 64), (2, 1, 128), (0, 3, 8)], T)
    a(f"s_lshl_b32 s{S_T0}, s{S_WV}, 13")
    a(f"v_add_u32 v{TO}, s{S_T0}, v{TO}")
    for j in range(1, 4): a(f"v_xor_b32 v{TO + j}, {32 * j}, v{TO}")
    a(f"s_and_b32 s{S_T0}, s{S_WV}, 1")
    a(f"s_lshl_b32 s{S_T0}, s{S_T0}, 6")
    a(f"v_xor_b32 v{TQ}, s{S_T0}, v{TO}")
    a(f"v_xor_b32 v{TQ+1}, 32, v{TQ}")
    a(f"v_xor_b32 v{TQ+2}, 8192, v{TQ}")
    a(f"v_xor_b32 v{TQ+3}, 8192, v{TQ+1}")
    for i in range(16):
        kind, p = ROUNDS[i]
        vq.wait(a, ('w', i))
        a("s_barrier")
        if i + 3 < 16:
            a(f"s_mov_b32 s{S_T2}, s{S_CB}")
            a(f"s_lshl_b32 s{S_T3}, s{S_WV}, 13")
            issue_round(a, i + 3, vq)
        if i in hooks: hooks[i](a)
        if i == PSTAMP[0]:
            a("s_memrealtime s[62:63]"); a("s_waitcnt lgkmcnt(0)"); a(f"s_sub_u32 s{S_ACC}, s62, s92"); a(f"s_lshl_b32 s{S_ACC}, s{S_ACC}, 2")
        if i and i % 2 == 0:
            for j in range(8): a(f"v_xor_b32 v{TQ + j}, 0x10000, v{TQ + j}")
        for j in range(2):
            for t in range(2):
                if i >= 12: base = TMP + 16 * j + 8 * t
                elif kind == 'q': base = WQ0 + ((p + 2 * j) * 2 + t) * 8
                elif kind == 'k': base = WK0 + ((p + 2 * j) * 2 + t) * 8
                elif kind == 'v': base = WV0 + ((p + 2 * j - 4) * 2 + t) * 8
                else: base = WO0 + ((2 * j + t) * 2 + p[1]) * 8
                ad = (TO if kind == 'o' else TQ) + 2 * j + t
                for pr in range(4):
                    a(f"ds_read_b64_tr_b16 {ur(base + 2*pr, 2)}, v{ad} offset:{(i & 1)*32768 + (pr >> 1)*4096 + (pr & 1)*2048}")
            a("s_waitcnt lgkmcnt(0)")
        if i >= 12:
            a("s_barrier")
            if i == 14: a(f"v_xor_b32 v{V_WVO}, 0x10000, v{V_WVO}")
            for q in range(8):
                a(f"ds_write_b128 v{V_WVO}, {vr(TMP + 4*q, 4)} offset:{(i & 1)*32768 + q*1024}")
            a("s_waitcnt lgkmcnt(0)")
    a(f"v_xor_b32 v{V_WVO}, 0x10000, v{V_WVO}")

def lds_wv(s, t, h): return (s & 1) * 32768 + (s >> 1) * 4096 + t * 2048 + h * 1024
def lds_wo(t, kbo, h): return kbo * 32768 + ((t >> 1) - 2) * 4096 + (t & 1) * 2048 + h * 1024
FLIP = f"v_xor_b32 v{V_WVO}, 0x10000, v{V_WVO}"
def rd_wv(dst, s, t): return [f"ds_read_b128 {vr(dst + 4*h, 4)}, v{V_WVO} offset:{lds_wv(s, t, h)}" for h in range(2)]
def rd_wo(dst, t, kbo): return [f"ds_read_b128 {vr(dst + 4*h, 4)}, v{V_WVO} offset:{lds_wo(t, kbo, h)}" for h in range(2)]

def slot_lines():
    return [
        f"s_and_b32 s{S_T0}, s{S_STEP}, 3",
        f"s_lshl_b32 s{S_T1}, s{S_T0}, 13",
        f"s_add_u32 s{S_PUBC}, s{S_T1}, s{S_HB_PUB}",
        f"s_and_b32 s{S_T0}, s{S_T0}, 1",
        f"s_lshl_b32 s{S_T1}, s{S_T0}, 18",
        f"s_add_u32 s{S_PST0}, s{S_T1}, s{S_HB_PST}",
        f"s_add_u32 s{S_PST1}, s{S_PST0}, 32768",
        f"s_add_u32 s{S_INB0}, s{S_T1}, s{S_HB_INB}",
        f"s_add_u32 s{S_INB1}, s{S_INB0}, 4096",
        f"s_bfe_u32 s{S_PH}, s{S_STEP}, 0x10001",
        f"s_add_u32 s{S_T0}, s{S_STEP}, 1",
        f"s_and_b32 s{S_T0}, s{S_T0}, 3",
        f"s_lshl_b32 s{S_T0}, s{S_T0}, 13",
        f"s_add_u32 s{S_PUBN}, s{S_T0}, s{S_HB_PUB}",
        f"s_add_u32 s{S_MEMRD}, s{S_T0}, {WS_MEMRING - MEMB}"]

def idle_a(a, par_next):
    wv_preload(a)
    copy_export(a, par_next)

def wv_preload(a):
    for j in range(4):
        for x in rd_wv(Wb(j), j >> 1, j & 1): a(x)

def copy_export(a, par_next):
    vn = V_VX[1 - par_next]
    for r in range(4): a(f"v_mov_b32 v{vn + r}, v{V_AK + r}")

def zero_b(a):
    for r in list(range(V_AQ + 4, V_AQ + 8)) + list(range(V_AK, V_AK + 4)): a(f"v_mov_b32 v{r}, 0")

def idle_b(a, par_next, tag, young):
    zero_b(a)
    a(f"s_waitcnt vmcnt({young})")
    avail_check(a, tag)

def idle_c1(a):
    for r in list(range(V_AQ, V_AQ + 4)) + list(range(V_AV, V_AV + 8)): a(f"v_mov_b32 v{r}, 0")

def idle_c(a, par_next, done=False):
    if not done: idle_c1(a)
    a("s_waitcnt vmcnt(2)")
    for r in range(V_AK + 4, V_AK + 8): a(f"v_mov_b32 v{r}, 0")

def avail_check(a, tag):
    a(f"v_readfirstlane_b32 s{S_AVAIL}, v{V_FL}")
    a(f"s_lshr_b32 s{S_T0}, s{S_AVAIL}, 16")
    a(f"s_and_b32 s{S_AVAIL}, s{S_AVAIL}, 0xffff")
    a(f"s_min_u32 s{S_AVAIL}, s{S_AVAIL}, s{S_T0}")
    a(f"s_add_u32 s{S_T0}, s{S_STEP}, 2")
    a(f"s_min_u32 s{S_T0}, s{S_T0}, 64")
    a(f"s_cmp_ge_u32 s{S_AVAIL}, s{S_T0}")
    a(f"s_cbranch_scc0 {tag}_slow")
    a.label(f"{tag}_ok")

def avail_slow(a, tag):
    a.label(f"{tag}_slow")
    a(f"buffer_load_dword v{V_FL}, off, s[{S_WS}:{S_WS+3}], s{S_FLP} sc1")
    a(f"s_add_u32 s{S_SPIN}, s{S_SPIN}, 1")
    a(f"s_cmp_gt_u32 s{S_SPIN}, {SPIN_LIMIT}")
    a("s_cbranch_scc1 L_abort")
    a("s_waitcnt vmcnt(0)")
    a(f"v_readfirstlane_b32 s{S_AVAIL}, v{V_FL}")
    a(f"s_lshr_b32 s{S_T1}, s{S_AVAIL}, 16")
    a(f"s_and_b32 s{S_AVAIL}, s{S_AVAIL}, 0xffff")
    a(f"s_min_u32 s{S_AVAIL}, s{S_AVAIL}, s{S_T1}")
    a(f"s_cmp_ge_u32 s{S_AVAIL}, s{S_T0}")
    a(f"s_cbranch_scc0 {tag}_slow")
    a(f"s_branch {tag}_ok")

def step(a, par, st, tag, opt, nxt=None):
    WS = f"s[{S_WS}:{S_WS+3}]"
    VXc, VXn = V_VX[par], V_VX[1 - par]
    Kc = KB[par] - MEMB
    T0 = V_PB + 3
    stamp = opt.get('stamp') or (None, None)
    trace = opt.get('trace', [])
    def st_list(name):
        if opt.get('series') == name:
            return [f"s_memtime s[{S_TS}:{S_TS+1}]", f"s_lshl_b32 s{S_TS+2}, s{S_STEP}, 2", f"s_lshl_b32 s{S_TS+3}, s{S_H}, 8", f"s_add_u32 s{S_TS+2}, s{S_TS+2}, s{S_TS+3}",
                    f"s_add_u32 s{S_TS+2}, s{S_TS+2}, {WS_STAMP + 0x30000}", "s_waitcnt lgkmcnt(0)", f"v_mov_b32 v{V_PB}, s{S_TS}",
                    f"buffer_store_dword v{V_PB}, off, {WS}, s{S_TS+2}"]
        if name in trace:
            k = 68 + trace.index(name)
            return [f"s_memtime s[{S_TS}:{S_TS+1}]", "s_waitcnt lgkmcnt(0)", f"s_cmp_eq_u32 s{S_STEP}, {opt.get('tstep', 20) + (1 if name in ('join', 'pub', 'h2iss', 'h1iss', 'pst', 'oex') else 0) + (1 if name == 'entry' and opt.get('nextentry') else 0)}",
                    f"s_cselect_b32 s{k}, s{S_TS}, s{k}"]
        if stamp[0] == name:
            return [f"s_memtime s[{S_TS}:{S_TS+1}]", "s_waitcnt lgkmcnt(0)"]
        if stamp[1] == name:
            return [f"s_memtime s[{S_TS+2}:{S_TS+3}]", "s_waitcnt lgkmcnt(0)", f"s_sub_u32 s{S_TS+2}, s{S_TS+2}, s{S_TS}",
                    f"s_cmp_lt_u32 s{S_STEP}, 2", f"s_cselect_b32 s{S_TS+2}, 3000, s{S_TS+2}", f"s_cselect_b32 s{S_TS+3}, 3000, 0", f"s_sub_u32 s{S_ACC}, s{S_ACC}, s{S_TS+3}",
                    f"s_add_u32 s{S_ACC}, s{S_ACC}, s{S_TS+2}", f"s_max_u32 s74, s74, s{S_TS+2}", f"s_min_u32 s73, s73, s{S_TS+2}",
                    f"s_cmp_gt_u32 s{S_TS+2}, {opt.get('thr', 100000)}", "s_addc_u32 s72, s72, 0"]
        return []
    def st_at(name):
        for x in st_list(name): a(x)
    a.label(f"{tag}_h1")
    a("s_waitcnt vmcnt(0)")
    a.label(f"{tag}_entry")
    st_at('entry')
    M = V_M
    if opt.get('w0', 1): a(f"ds_write_b128 v{V_P1}, {Mf(0)}")
    a(f"v_max3_u32 v{T0}, v{M+1}, v{M+3}, v{M+5}")
    a(f"v_max_u32 v{T0}, v{T0}, v{M+7}")
    a(f"v_cmp_eq_u32 vcc, -1, v{T0}")
    a.label(f"{tag}_entry2")
    mains = []; F = {}
    nobg = opt.get('nobg', '')
    def add(i, *xs): F.setdefault(i, []).extend(xs)
    AQ = lambda t: V_AQ + 4 * t
    AK = lambda t: V_AK + 4 * t
    AV = lambda t: V_AV + 4 * t
    for s in range(2):
        for t in range(2): mains.append(smf(AQ(t), Mf(s), wq(t, s)))
    for s in range(2):
        for t in range(2): mains.append(smf(AK(t), Mf(s), wk(t, s)))
    for s in range(2):
        for t in range(2): mains.append(smf(AV(t), Mf(s), vr(Wb(2*s + t), 8)))
    M = V_M
    add(1, f"s_cbranch_vccnz {tag}_h1retry")
    if not opt.get('w0', 1): add(1, f"ds_write_b128 v{V_P1}, {Mf(0)}")
    add(opt.get('w1', 2), f"ds_write_b128 v{V_P1}, {Mf(1)} offset:1024")
    B1 = opt.get('b1', 6)
    add(B1, "s_waitcnt lgkmcnt(0)", *st_list('prebar1'), "s_barrier", *st_list('bar1'))
    mr = (V_MR1, V_MR2, V_MR3)
    for j, s in enumerate(range(2, 8)):
        add(B1 + j, f"ds_read_b128 {Mf(s)}, v{mr[(s >> 1) - 1]} offset:{(s & 1) * 1024}")
    for s in range(2, 8):
        for t in range(2): mains.append(smf(AQ(t), Mf(s), wq(t, s)))
    wvr = [x for j in range(4) for x in rd_wv(Wb(j), 2 + (j >> 1), j & 1)]
    for i, x in enumerate(wvr): add(14 + i, x)
    for s in range(2, 4):
        for t in range(2): mains.append(smf(AV(t), Mf(s), vr(Wb(2*(s-2) + t), 8)))
    for s in range(2, 8):
        for t in range(2): mains.append(smf(AK(t), Mf(s), wk(t, s)))
    ex4 = [f"buffer_store_dwordx4 {vr(VXn,4)}, v{V_LA}, {WS}, s{S_EXP} offen sc1"]
    bg = [f"buffer_load_dwordx4 v{V_P1}, {WS}, s{S_KPF} offen sc1 lds",
          f"buffer_load_dwordx4 v{V_P1}, {WS}, s{S_KPF} offen offset:1024 sc1 lds",
          f"buffer_load_dwordx4 {vr(VXn+4,4)}, v{V_P1}, {WS}, s{S_VPF} offen offset:1024 sc1",
          f"buffer_load_dwordx4 {vr(VXn,4)}, v{V_P1}, {WS}, s{S_VPF} offen sc1",
          f"buffer_load_dword v{V_FL}, off, {WS}, s{S_FLP} sc1"]
    vpos = opt.get('vpos', (13, 15, 17, 19, 21, 22))
    add(5, f"s_mov_b32 m0, s{S_KM0 + (1 - par)}")
    for x, i in zip(ex4 + bg, vpos): add(i, x)
    add(20, f"s_sub_u32 s{S_T2}, s{S_STEP}, 1", f"s_max_i32 s{S_T2}, s{S_T2}, 0")
    add(21, f"v_mov_b32 v{V_PB}, s{S_T2}")
    add(23, f"buffer_store_dword v{V_PB}, v{V_GATH}, {WS}, s{S_FLA} offen sc1")
    sal = slot_lines() + [f"s_add_u32 s{S_EXP}, s{S_EXP}, {32*4096}", f"s_add_u32 s{S_KPF}, s{S_KPF}, {32*8192}", f"s_add_u32 s{S_VPF}, s{S_VPF}, {32*8192}"]
    if opt.get('samekv'): sal = sal[:-2]
    if opt.get('sameexp'): sal = [x for x in sal if f"s{S_EXP}," not in x]
    for j, x in enumerate(sal): F.setdefault(23 + j, []).insert(0, x)
    QF, KF = Wb(0), Wb(2)
    KX = [V_M, V_M + 4, Wb(2), Wb(2) + 4, Wb(3), Wb(3) + 4, V_M + 8, V_M + 12]
    qtr = [f"ds_read_b64_tr_b16 {vr(QF + 4*i + 2*hh, 2)}, v{V_QKR} offset:{i*1024 + hh*512}" for i in range(4) for hh in range(2)]
    kxr = [f"ds_read_b128 {vr(KX[2*i + T], 4)}, v{V_LA} offset:{Kc + T*4096 + i*1024}" for i in range(4) for T in range(2)]
    q0, q1 = AQ(0), AQ(1)
    add(22, kxr[0]); add(23, kxr[1])
    add(24, f"v_add_f32 v{q0}, v{q0}, v{q0+1}")
    add(25, f"v_add_f32 v{q0+2}, v{q0+2}, v{q0+3}")
    add(26, f"v_cvt_pk_bf16_f32 v{q0}, v{q0}, v{q0+2}")
    add(27, f"ds_write_b32 v{V_QW}, v{q0}", f"v_add_f32 v{q1}, v{q1}, v{q1+1}")
    add(28, kxr[2], f"v_add_f32 v{q1+2}, v{q1+2}, v{q1+3}")
    add(29, kxr[3], f"v_cvt_pk_bf16_f32 v{q1}, v{q1}, v{q1+2}")
    add(30, f"ds_write_b32 v{V_QW}, v{q1} offset:512")
    add(31, kxr[4]); add(32, kxr[5]); add(33, kxr[6])
    add(33, FLIP)
    B2 = opt.get('b2', 34)
    add(B2, "s_waitcnt lgkmcnt(3)", *st_list('prebar2'), "s_barrier", *st_list('bar2'))
    for j, x in enumerate(qtr): add(B2 + j, x)
    SX = lambda T: V_AQ + 4 * T
    for s in (4,):
        for t in range(2): mains.append(smf(AV(t), Mf(s), wv_res(t, s)))
    for i in range(4):
        for T in range(2):
            mains.append(mf32(SX(T), vr(KX[2*i + T], 4), vr(QF + 4*i, 4), "0" if i == 0 else vr(SX(T), 4)))
    k0, k1 = AK(0), AK(1)
    add(40, f"v_add_f32 v{k0}, v{k0}, v{k0+1}")
    add(41, f"v_add_f32 v{k0+2}, v{k0+2}, v{k0+3}")
    add(42, f"v_cvt_pk_bf16_f32 v{k0}, v{k0}, v{k0+2}", f"v_add_f32 v{k1}, v{k1}, v{k1+1}")
    add(43, f"ds_write_b32 v{V_QW}, v{k0} offset:4096", f"v_add_f32 v{k1+2}, v{k1+2}, v{k1+3}")
    add(44, kxr[7], f"v_cvt_pk_bf16_f32 v{k0+1}, v{k1}, v{k1+2}")
    add(45, f"ds_write_b32 v{V_QW}, v{k0+1} offset:4608")
    B3 = opt.get('b3', 49)
    add(B3, "s_waitcnt lgkmcnt(0)", *st_list('prebar3'), "s_barrier", *st_list('bar3'))
    ktr = [f"ds_read_b64_tr_b16 {vr(KF + 4*i + 2*hh, 2)}, v{V_QKR} offset:{4096 + i*1024 + hh*512}" for i in range(4) for hh in range(2)]
    for s in (5, 6, 7):
        for t in range(2): mains.append(smf(AV(t), Mf(s), wv_res(t, s)))
    for x, i in zip(ktr, opt.get('ktrpos', (49, 49, 50, 51, 52, 53, 54, 55))): add(i, x)
    ex = [f"v_exp_f32 v{V_AQ + r}, v{V_AQ + r}" for r in range(8)]
    for x, i in zip(ex, opt.get('expos', (50, 51, 52, 53, 54, 55, 56, 57))): add(i, x)
    SM = V_AK + 4
    for i in range(4):
        mains.append(mf32(SM, vr(KF + 4*i, 4), vr(QF + 4*i, 4), "0" if i == 0 else vr(SM, 4)))
    PX = V_AQ
    v0_, v1_ = AV(0), AV(1)
    add(58, f"v_cvt_pk_bf16_f32 v{PX}, v{V_AQ}, v{V_AQ+1}", f"v_cvt_pk_bf16_f32 v{PX+1}, v{V_AQ+2}, v{V_AQ+3}")
    add(59, f"v_cvt_pk_bf16_f32 v{PX+2}, v{V_AQ+4}, v{V_AQ+5}", f"v_cvt_pk_bf16_f32 v{PX+3}, v{V_AQ+6}, v{V_AQ+7}",
            f"v_add_f32 v{v0_}, v{v0_}, v{v0_+1}", f"v_add_f32 v{v0_+2}, v{v0_+2}, v{v0_+3}")
    OA, LA = V_M, V_M + 8
    mains.append(mf32(LA, vr(V_ONES, 4), vr(PX, 4), "0"))
    mains.append(mf32(OA, vr(VXc, 4), vr(PX, 4), "0"))
    mains.append(mf32(OA + 4, vr(VXc + 4, 4), vr(PX, 4), "0"))
    add(60, f"v_mul_f32 v{SM}, s{S_C}, v{SM}", f"v_mul_f32 v{SM+1}, s{S_C}, v{SM+1}")
    add(61, f"v_exp_f32 v{SM}, v{SM}", f"v_exp_f32 v{SM+1}, v{SM+1}")
    add(62, f"v_cvt_pk_bf16_f32 v{V_AK+2}, v{v0_}, v{v0_+2}", f"v_cvt_pk_bf16_f32 v{V_PB}, v{SM}, v{SM+1}",
            f"v_add_f32 v{v1_}, v{v1_}, v{v1_+1}", f"v_add_f32 v{v1_+2}, v{v1_+2}, v{v1_+3}")
    mains.append(mf16(LA, vr(V_ONES, 2), vr(V_PB, 2), vr(LA, 4)))
    add(63, f"v_cvt_pk_bf16_f32 v{V_AK+3}, v{v1_}, v{v1_+2}", f"v_cvt_pk_bf16_f32 v{V_PB+3}, v{SM}, v{SM+1}")
    mains.append(mf16(OA, vr(V_AK + 2, 2), vr(V_PB, 2), vr(OA, 4)))
    mains.append(mf16(OA + 4, vr(V_AK + 2, 2), vr(V_PB + 2, 2), vr(OA + 4, 4)))
    wo_order = [(t, kbo) for t in range(4, 8) for kbo in range(2)]
    wor = [x for j in range(4) for x in rd_wo(Wb(j), *wo_order[j])]
    npre = opt.get('npre', 4)
    for x, i in zip(wor[:npre], (64, 64, 65, 65, 65, 65, 65, 65)): add(i, x)
    drop = opt.get('drop', [])
    if drop:
        F = {i: [x for x in xs if not any(x.startswith(d) for d in drop)] for i, xs in F.items()}
    interleave(a, mains, F)
    st_at('pv')
    if par == 1:
        a(f"s_cmp_eq_u32 s{S_STEP}, 63")
        a(f"s_cbranch_scc1 L_chain_done")
    INV, OW = V_AQ + 0, V_AQ + 4
    a(f"v_rcp_f32 v{INV}, v{LA}")
    for hh in range(2):
        if opt.get('pkn', 1):
            for r in range(4 * hh, 4 * hh + 4, 2): a(f"v_pk_mul_f32 {vr(OA+r,2)}, {vr(OA+r,2)}, {vr(INV,2)} op_sel_hi:[1,0]")
        else:
            for r in range(4 * hh, 4 * hh + 4): a(f"v_mul_f32 v{OA+r}, v{OA+r}, v{INV}")
        for r in range(2 * hh, 2 * hh + 2): a(f"v_cvt_pk_bf16_f32 v{OW+r}, v{OA+2*r}, v{OA+2*r+1}")
        if not opt.get('ow128'): a(f"ds_write_b64 v{V_OW}, {vr(OW + 2*hh, 2)} offset:{8*hh}")
    if opt.get('ow128'): a(f"ds_write_b128 v{V_OW}, {vr(OW, 4)}")
    a(f"v_subrev_u32 v{INV+1}, s{S_LLO}, v{LA}")
    a(f"v_cmp_le_u32 vcc, s{S_LRG}, v{INV+1}")
    zacc = lambda t: mf16(V_M + 4*t, vr(V_PB + 2, 2), vr(V_PB, 2), "0")
    nb1, nb2 = opt.get('nb1', 0), opt.get('nb2', 0)
    b1l = wor[npre:npre + nb1]
    for t in range(opt.get('z1', 4)):
        a(zacc(t))
        for x in b1l[t::4]: a(x)
    a(f"s_cbranch_vccnz {tag}_fallback")
    a.label(f"{tag}_fbdone")
    a(f"s_waitcnt lgkmcnt({nb1})")
    st_at('prebar4')
    a("s_barrier")
    st_at('bar4')
    OF = VXc
    a(f"ds_read_b128 {vr(OF,4)}, v{V_LA}")
    a(f"ds_read_b128 {vr(OF+4,4)}, v{V_LA} offset:1024")
    HV = V_AK + 4
    a(f"s_add_u32 s{S_STEP}, s{S_STEP}, 1")
    for t in range(opt.get('z1', 4), 8):
        a(zacc(t))
        for x in wor[npre + nb1:npre + nb1 + nb2][t - 4::4]: a(x)
        if t == 4: a(f"v_mov_b32 v{HV}, s{S_STEP}")
    st_at('oex')
    mains = []; F = {}
    P = lambda t: V_M + 4 * t
    for t in range(4):
        for kbo in range(2): mains.append(smf(P(t), vr(OF + 4*kbo, 4), wo_res(t, kbo)))
    src = [Wb(0), Wb(1), Wb(2), Wb(3), V_AQ, V_AV, Wb(0), Wb(1)]
    for j, (t, kbo) in enumerate(wo_order): mains.append(smf(P(t), vr(OF + 4*kbo, 4), vr(src[j], 8)))
    nd = npre + nb1 + nb2
    late = wor[nd:] + [x for j in range(4, 8) for x in rd_wo(src[j], *wo_order[j])]
    n1 = 12 - nd
    lpos = [min(7, (j * 8) // max(n1, 8)) for j in range(n1)] + list(opt.get('lp', (8, 9, 9, 10)))
    for x, i in zip(late, lpos): add(i, x)
    split = opt.get('split', 0)
    def fold(t, dst):
        p = P(t)
        return [f"v_add_f32 v{p}, v{p}, v{p+1}", f"v_add_f32 v{p+2}, v{p+2}, v{p+3}", f"v_cvt_pk_bf16_f32 v{dst}, v{p}, v{p+2}"]
    for t in range(6):
        y = fold(t, P(t & 4) + (t & 3))
        add(2 * t + 3, y[0]); add(2 * t + 4, y[1], y[2])
        if t & 3 == 0: add(2 * t + 5, f"v_and_or_b32 v{P(t)}, v{P(t)}, -2, s{S_PH}")
        if split and t == 2: add(2 * t + 5, f"v_and_or_b32 v{P(0)+2}, v{P(0)+2}, -2, s{S_PH}")
    add(11, FLIP)
    y6 = fold(6, P(4) + 2); add(15, y6[0])
    sp = opt.get('st0', 11)
    F[sp].insert(0, f"buffer_store_dwordx4 {vr(P(0),4)}, v{V_PST}, {WS}, s{S_PST0} offen {st}")
    if split: F[15].insert(0, f"buffer_store_dwordx2 {vr(P(4),2)}, v{V_PST}, {WS}, s{S_PST1} offen {st}")
    probes = opt.get('probes', (14, 16))
    F.setdefault(opt.get('hintpos', 7), []).insert(0, f"buffer_store_dword v{HV}, v{V_L4}, {WS}, s{S_HST} offen {st}")
    probe = lambda j: f"buffer_load_dword v{HV + 1 + j % 3}, v{V_L4}, {WS}, s{S_HLD} offen sc1"
    for j, g in enumerate(probes):
        if g < 16: F[g].insert(0, probe(j))
    interleave(a, mains, F)
    a(y6[1]); a(y6[2])
    if split: a(f"v_and_or_b32 v{P(4)+2}, v{P(4)+2}, -2, s{S_PH}")
    for j, g in enumerate(probes):
        if g == 16: a(probe(j))
    for y in fold(7, P(4) + 3): a(y)
    if split: a(f"buffer_store_dwordx2 {vr(P(4)+2,2)}, v{V_PST}, {WS}, s{S_PST1} offen offset:8 {st}")
    else: a(f"buffer_store_dwordx4 {vr(P(4),4)}, v{V_PST}, {WS}, s{S_PST1} offen {st}")
    st_at('pst')
    SEL, RA = V_AQ, V_AV
    def h2_issue():
        for i in range(8):
            a(f"buffer_load_dwordx4 {Mf(i)}, v{V_LA}, {WS}, s{S_INB0 if i < 4 else S_INB1} offen offset:{(i & 3)*1024} sc1")
    FLG = QB + 4 - MEMB
    a(f"s_cmp_lg_u32 s{S_WV}, 0")
    a(f"s_cbranch_scc1 {tag}_others")
    PR = [HV + 1, HV + 2, HV + 3, V_AV, V_AV + 1]
    probe_to = lambda r: f"buffer_load_dword v{r}, v{V_L4}, {WS}, s{S_HLD} offen sc1"
    def check(r):
        a(f"v_cmp_gt_u32 vcc, s{S_STEP}, v{r}")
        a(f"s_cmp_eq_u32 vcc_lo, 0")
        a(f"s_cbranch_scc1 {tag}_go")
    n = len(probes)
    depth = opt.get('pdepth', 4)
    queue = []
    for g in sorted(set(list(probes) + [sp, 17])):
        if g in probes: queue.append(PR[probes.index(g)])
        if g == sp or g == 17: queue.append(None)
    if sp in probes:
        pass
    def issue(r):
        a(probe_to(r)); queue.append(r)
    def wait_check(r):
        k = max(i for i, x in enumerate(queue) if x == r)
        return len(queue) - 1 - k
    sel = [f"v_cndmask_b32 v{SEL+r}, 0, v{V_SELX}, s[{S_SELM+2*r}:{S_SELM+2*r+1}]" for r in range(4)]
    nxtr = n
    issue(PR[nxtr]); nxtr += 1
    for x in sel: a(x)
    copy_export(a, 1 - par)
    if depth > nxtr:
        zero_b(a)
        issue(PR[nxtr]); nxtr += 1
    order = list(range(nxtr))
    first = True
    for j in range(n):
        a(f"s_waitcnt vmcnt({wait_check(PR[j])})")
        check(PR[j])
        if nxtr < depth:
            issue(PR[nxtr]); order.append(nxtr); nxtr += 1
            if first: wv_preload(a)
            issue(PR[j]); order.append(j)
        else:
            issue(PR[j]); order.append(j)
        first = False
    ring = order[n:]
    a.label(f"{tag}_hl")
    for j in ring:
        a(f"s_waitcnt vmcnt({len(ring) - 1})")
        check(PR[j])
        a(probe_to(PR[j]))
        a(f"s_add_u32 s{S_ACC+3}, s{S_ACC+3}, 1")
    a(f"s_add_u32 s{S_SPIN}, s{S_SPIN}, 1")
    a(f"s_cmp_gt_u32 s{S_SPIN}, {SPIN_LIMIT}")
    a(f"s_cbranch_scc0 {tag}_hl")
    a("s_branch L_abort")
    a.label(f"{tag}_go")
    for _ in range(opt.get('h2pad', 0)): a("s_nop 7")
    st_at('h2iss')
    h2_issue()
    ea = opt.get('ea', 3)
    if not ea & 1: wv_preload(a)
    if not ea & 2: idle_b(a, 1 - par, f"{tag}_av0", 10 + len(probes))
    a.label(f"{tag}_h2")
    TG = RA + 4
    for i in range(8):
        a(mf32(RA, Mf(i), vr(SEL, 4), "0" if i == 0 else vr(RA, 4)))
        if i == 0: a(f"v_xor_b32 v{TG}, s{S_PH}, v{V_M}")
        else: a(f"v_bitop3_b32 v{TG}, v{TG}, v{V_M + 4*i}, s{S_PH} bitop3:0xf6")
        if split: a(f"v_bitop3_b32 v{TG}, v{TG}, v{V_M + 4*i + 2}, s{S_PH} bitop3:0xf6")
    a(f"v_and_b32 v{TG}, 1, v{TG}")
    a(f"v_cmp_ne_u32 vcc, 0, v{TG}")
    a(f"v_mov_b32 v{TG}, -1")
    a(f"v_mov_b32 v{TG+1}, -1")
    a(f"v_cvt_pk_bf16_f32 v{RA+6}, v{RA}, v{RA+1}")
    a(f"v_cvt_pk_bf16_f32 v{RA+7}, v{RA+2}, v{RA+3}")
    a(f"s_cbranch_vccnz {tag}_h2r")
    a(f"buffer_store_dwordx2 {vr(RA+6,2)}, v{V_PUB}, {WS}, s{S_PUBN} offen {st}")
    st_at('pub')
    a(f"buffer_store_dwordx2 {vr(TG,2)}, v{V_PUB}, {WS}, s{S_PUBC} offen {st}")
    if ea & 1: wv_preload(a)
    if ea & 2: idle_b(a, 1 - par, f"{tag}_av0", 63)
    idle_c1(a)
    a(f"s_branch {tag}_join")
    a.label(f"{tag}_others")
    if opt.get('time'):
        for k, (st_, reg) in enumerate(((8, 80), (62, 82))):
            a(f"s_cmp_lg_u32 s{S_STEP}, {st_}")
            a(f"s_cbranch_scc1 {tag}_nt{k}")
            a(f"s_memtime s[{reg}:{reg+1}]")
            a("s_waitcnt lgkmcnt(0)")
            a.label(f"{tag}_nt{k}")
    idle_c1(a)
    idle_a(a, 1 - par)
    zero_b(a)
    a(f"s_cmp_lg_u32 s{S_WV}, 1")
    a(f"s_cbranch_scc1 {tag}_av2_ok")
    a(f"s_waitcnt vmcnt({2 + len(probes)})")
    avail_check(a, f"{tag}_av2")
    for j in range(opt.get('dummy', 0)): a(smf(V_M + 8 + 4 * (j & 1), vr(V_W + 4 * (j & 3), 4), wq(j & 1, j & 7)))
    a.label(f"{tag}_join")
    a("s_barrier")
    for _ in range(opt.get('h1pad', 0)): a("s_nop 7")
    st_at('h1iss')
    h1_issue(a, 0)
    idle_c(a, 1 - par, True)
    for j in range(opt.get('dummy2', 0)): a(smf(V_M + 8 + 4 * (j & 1), vr(V_W + 4 * (j & 3), 4), wq(j & 1, j & 7)))
    a("s_waitcnt lgkmcnt(0)")
    st_at('join')
    return h2_issue, None

def h1_issue(a, j):
    WS = f"s[{S_WS}:{S_WS+3}]"
    a(f"buffer_load_dwordx4 {Mf(2*j)}, v{V_P1}, {WS}, s{S_MEMRD} offen sc1")
    a(f"buffer_load_dwordx4 {Mf(2*j + 1)}, v{V_P1}, {WS}, s{S_MEMRD} offen offset:1024 sc1")

def step_tails(a, par, tag, h2, opt):
    WS = f"s[{S_WS}:{S_WS+3}]"
    VXc = V_VX[par]
    Kc = KB[par] - MEMB
    T0 = V_PB + 3
    def spin(k):
        a(f"s_add_u32 s{S_SPIN}, s{S_SPIN}, 1")
        a(f"s_cmp_gt_u32 s{S_SPIN}, {SPIN_LIMIT}")
        a("s_cbranch_scc1 L_abort")
        a(f"s_add_u32 s{S_ACC+k}, s{S_ACC+k}, 1")
    a.label(f"{tag}_h1retry")
    a("s_mov_b64 exec, vcc")
    h1_issue(a, 0)
    a("s_mov_b64 exec, -1")
    spin(1)
    a("s_nop 2")
    for r in range(8): a(f"v_mov_b32 v{V_AQ + r}, 0")
    a(f"s_branch {tag}_h1")
    a.label(f"{tag}_h2r")
    a("s_mov_b64 exec, vcc")
    h2[0]()
    a("s_mov_b64 exec, -1")
    if h2[1]: a(h2[1])
    spin(2)
    a(f"s_branch {tag}_h2")
    for j in (0, 2): avail_slow(a, f"{tag}_av{j}")
    a.label(f"{tag}_fallback")
    a("s_nop 7")
    a("s_nop 3")
    a("s_waitcnt lgkmcnt(0)")
    QF, KF = Wb(0), Wb(2)
    SX, SM = V_AV, V_AK + 4
    OA, LA = V_M, V_M + 8
    for i in range(4):
        for hh in range(2): a(f"ds_read_b64_tr_b16 {vr(QF + 4*i + 2*hh, 2)}, v{V_QKR} offset:{i*1024 + hh*512}")
    for T in range(2):
        for i in range(4): a(f"ds_read_b128 {vr(KF + 4*i, 4)}, v{V_LA} offset:{Kc + T*4096 + i*1024}")
        for i in range(4): a(mf32(SX + 4*T, vr(KF + 4*i, 4), vr(QF + 4*i, 4), "0" if i == 0 else vr(SX + 4*T, 4)))
        a("s_nop 7")
    for i in range(4):
        for hh in range(2): a(f"ds_read_b64_tr_b16 {vr(KF + 4*i + 2*hh, 2)}, v{V_QKR} offset:{4096 + i*1024 + hh*512}")
    for i in range(4): a(mf32(SM, vr(KF + 4*i, 4), vr(QF + 4*i, 4), "0" if i == 0 else vr(SM, 4)))
    a(f"v_mul_f32 v{SM}, s{S_C}, v{SM}")
    a(f"v_mul_f32 v{SM+1}, s{S_C}, v{SM+1}")
    MX, T2 = SM + 2, SM + 3
    a(f"v_max3_f32 v{MX}, v{SM}, v{SM+1}, v{SX}")
    for r in range(1, 7, 2): a(f"v_max3_f32 v{MX}, v{MX}, v{SX+r}, v{SX+r+1}")
    a(f"v_max_f32 v{MX}, v{MX}, v{SX+7}")
    for sw in ("v_permlane16_swap_b32", "v_permlane32_swap_b32"):
        a(f"v_mov_b32 v{T2}, v{MX}")
        a(f"{sw} v{MX}, v{T2}")
        a(f"v_max_f32 v{MX}, v{MX}, v{T2}")
    for r in list(range(SX, SX + 8)) + [SM, SM + 1]:
        a(f"v_sub_f32 v{r}, v{r}, v{MX}")
        a(f"v_exp_f32 v{r}, v{r}")
    PX = V_AQ
    for r in range(4): a(f"v_cvt_pk_bf16_f32 v{PX+r}, v{SX+2*r}, v{SX+2*r+1}")
    a(f"v_cvt_pk_bf16_f32 v{V_PB}, v{SM}, v{SM+1}")
    a(f"v_cvt_pk_bf16_f32 v{V_PB+3}, v{SM}, v{SM+1}")
    a(mf32(LA, vr(V_ONES, 4), vr(PX, 4), "0"))
    a(mf32(OA, vr(VXc, 4), vr(PX, 4), "0"))
    a(mf32(OA + 4, vr(VXc + 4, 4), vr(PX, 4), "0"))
    a(mf16(LA, vr(V_ONES, 2), vr(V_PB, 2), vr(LA, 4)))
    a(mf16(OA, vr(V_AK + 2, 2), vr(V_PB, 2), vr(OA, 4)))
    a(mf16(OA + 4, vr(V_AK + 2, 2), vr(V_PB + 2, 2), vr(OA + 4, 4)))
    wo_order = [(t, kbo) for t in range(4, 8) for kbo in range(2)]
    for j in range(4):
        for x in rd_wo(Wb(j), *wo_order[j]): a(x)
    INV, OW = V_AQ + 0, V_AQ + 4
    a(f"v_rcp_f32 v{INV}, v{LA}")
    for r in range(8): a(f"v_mul_f32 v{OA+r}, v{OA+r}, v{INV}")
    for r in range(4): a(f"v_cvt_pk_bf16_f32 v{OW+r}, v{OA+2*r}, v{OA+2*r+1}")
    a(f"ds_write_b128 v{V_OW}, {vr(OW,4)}")
    for r in range(16): a(f"v_mov_b32 v{V_M + r}, 0")
    a("s_waitcnt lgkmcnt(0)")
    a("s_nop 1")
    a(f"s_branch {tag}_fbdone")

def role_chain(a, opt):
    WS = f"s[{S_WS}:{S_WS+3}]"; DB = f"s[{S_D}:{S_D+3}]"
    vq = VmQueue()
    HINT_STRIDE[0] = opt.get('hs', 4)
    CODEPF[0] = opt.get('codepf', 0)
    start_weights(a, vq)
    a(f"s_mov_b32 s65, s{S_T2}")
    if opt.get('dbgtime'):
        a("s_not_b32 s96, s98"); a("s_mov_b64 exec, 1"); a("v_mov_b32 v126, s96"); a(f"buffer_atomic_umax v126, off, s[{S_D}:{S_D+3}], 0 offset:48"); a("s_mov_b64 exec, -1"); vq.add('x')
    setup_lanes(a)
    a(f"s_mov_b32 s{S_C}, {f32bits(CSCALE):#x}")
    a(f"s_mov_b32 s{S_LLO}, 0x21800000")
    a(f"s_mov_b32 s{S_LRG}, 0x3c000000")
    for r in range(S_ACC, S_ACC + 4): a(f"s_mov_b32 s{r}, 0")
    a(f"s_lshl_b32 s{S_T0}, s{S_H}, 8")
    a(f"s_add_u32 s{S_HB_PST}, s{S_T0}, {WS_PART}")
    a(f"s_lshl_b32 s{S_T0}, s{S_H}, 13")
    a(f"s_add_u32 s{S_HB_INB}, s{S_T0}, {WS_PART - MEMB}")
    a(f"s_add_u32 s{S_KPF}, s{S_T0}, {WS_KX - MEMB}")
    a(f"s_add_u32 s{S_VPF}, s{S_T0}, {WS_VX - MEMB}")
    a(f"s_and_b32 s{S_T0}, s{S_H}, 3")
    a(f"s_lshl_b32 s{S_T0}, s{S_T0}, 6")
    a(f"s_lshr_b32 s{S_T1}, s{S_H}, 2")
    a(f"s_lshl_b32 s{S_T1}, s{S_T1}, 10")
    a(f"s_add_u32 s{S_T0}, s{S_T0}, s{S_T1}")
    a(f"s_add_u32 s{S_HB_PUB}, s{S_T0}, {WS_MEMRING}")
    a(f"s_lshl_b32 s{S_T0}, s{S_H}, 12")
    a(f"s_lshl_b32 s{S_T1}, s{S_WV}, 10")
    a(f"s_add_u32 s{S_T0}, s{S_T0}, s{S_T1}")
    a(f"s_add_u32 s{S_EXP}, s{S_T0}, {WS_KVM - MEMB - 32*4096}")
    a(f"s_lshl_b32 s{S_T0}, s{S_H}, 7")
    a(f"s_add_u32 s{S_FLP}, s{S_T0}, {WS_FLAG + FLAG_P * 128}")
    a(f"s_add_u32 s{S_FLA}, s{S_T0}, {WS_FLAG + FLAG_A * 128}")
    a(f"s_lshl_b32 s{S_T0}, s{S_WV}, 11")
    a(f"s_add_u32 s{S_KM0}, s{S_T0}, {KB[0]}")
    a(f"s_add_u32 s{S_KM0+1}, s{S_T0}, {KB[1]}")
    SN = V_W
    a(f"s_mov_b32 s{S_T2}, s65")
    S_OK = S_AVAIL
    PSTAMP[0] = opt.get('pstamp', -1)
    groups = opt.get('groups', [0])
    IV = V_M + 16
    srd(a, S_W, KA_MEM0, 8192)
    def seg0_loads():
        a(f"s_mov_b32 m0, s{S_KM0}")
        a("s_nop 0")
        a(f"buffer_load_dwordx4 v{V_P1}, {WS}, s{S_KPF} offen sc1 lds")
        a(f"buffer_load_dwordx4 v{V_P1}, {WS}, s{S_KPF} offen offset:1024 sc1 lds")
        a(f"buffer_load_dwordx4 {vr(V_VX[0],4)}, v{V_P1}, {WS}, s{S_VPF} offen sc1")
        a(f"buffer_load_dwordx4 {vr(V_VX[0]+4,4)}, v{V_P1}, {WS}, s{S_VPF} offen offset:1024 sc1")
    def h8(a):
        init_issue(a, IV); vq.add('init', 3)
        a(f"s_mov_b32 s{S_OK}, 0")
    def h16(a):
        assert vq.done('init')
        vq.add('fl')
        a.items.append(('x', 'forget_vm'))
        init_check(a, IV, groups, "L_ch_h16")
        a(f"s_mov_b32 s{S_OK}, 1")
        if opt.get('ringpf', 1):
            for sl in range(2):
                a(f"s_add_u32 s{S_T0}, s{S_HB_INB}, {sl << 18}")
                for j in range(2):
                    a(f"buffer_load_dwordx4 {vr(V_M + 8, 4)}, v{V_P1}, {WS}, s{S_T0} offen offset:{1024 * j} sc1")
                    a.items.append(('x', 'forget_vm'))
            a(f"s_lshl_b32 s{S_T0}, s{S_H}, 10")
            a(f"s_add_u32 s{S_T0}, s{S_T0}, {WS_MEMRING - MEMB}")
            a(f"buffer_load_dwordx4 {vr(V_M + 8, 4)}, v{V_LA}, {WS}, s{S_T0} offen sc1")
            a(f"buffer_load_dword v{V_M + 12}, v{V_L4}, {WS}, s{S_HLD} offen sc1")
            a.items.append(('x', 'forget_vm'))
        a.label("L_ch_h16")
        a(f"buffer_load_dword v{V_FL}, off, {WS}, s{S_FLP} sc1")
    def h24(a):
        assert vq.done('fl')
        vq.add('mem0', 2)
        a.items.append(('x', 'forget_vm'))
        a(f"buffer_load_dwordx4 {Mf(0)}, v{V_GATH}, s[{S_W}:{S_W+3}], 0 offen")
        a(f"buffer_load_dwordx4 {Mf(1)}, v{V_GATH}, s[{S_W}:{S_W+3}], 0 offen offset:128")
        a(f"v_readfirstlane_b32 s{S_T0}, v{V_FL}")
        a(f"s_lshr_b32 s{S_T1}, s{S_T0}, 16")
        a(f"s_and_b32 s{S_T0}, s{S_T0}, 0xffff")
        a(f"s_min_u32 s{S_T0}, s{S_T0}, s{S_T1}")
        a(f"s_cmp_ge_u32 s{S_T0}, 2")
        a(f"s_cselect_b32 s{S_T0}, s{S_OK}, 0")
        a(f"s_lshl_b32 s{S_OK}, s{S_T0}, 1")
        a(f"s_cmp_eq_u32 s{S_OK}, 0")
        a("s_cbranch_scc1 L_ch_h24")
        seg0_loads()
        a.label("L_ch_h24")
    load_weights(a, dict(zip(opt.get('hooks', (7, 11, 15)), (h8, h16, h24))), vq)
    if opt.get('ptime') and 'pstamp' not in opt:
        a("s_memrealtime s[62:63]"); a("s_waitcnt lgkmcnt(0)"); a(f"s_sub_u32 s{S_ACC}, s62, s92"); a(f"s_lshl_b32 s{S_ACC}, s{S_ACC}, 2"); a(f"s_add_u32 s{S_ACC}, s{S_ACC}, s{S_OK}")
    if opt.get('ponly'):
        a(f"s_lshl_b32 s{S_T0}, s{S_H}, 2"); a(f"s_add_u32 s{S_T0}, s{S_T0}, s{S_WV}"); a(f"s_lshl_b32 s{S_T0}, s{S_T0}, 5"); a(f"s_add_u32 s{S_T0}, s{S_T0}, {WS_STAMP + 4}")
        a(f"v_mov_b32 v{V_M}, s{S_ACC}")
        a(f"buffer_store_dword v{V_M}, off, {WS}, s{S_T0}")
        a("s_endpgm")
    a(f"s_mov_b32 s{S_STEP}, 0")
    a(f"s_cmp_lg_u32 s{S_OK}, 0")
    a("s_cbranch_scc1 L_ch_ready")
    wait_init(a, IV, groups, "L_ch_init")
    a(f"v_mov_b32 v{V_FL}, 0")
    avail_check(a, "L_ch_av")
    seg0_loads()
    a.label("L_ch_ready")
    if opt.get('nokv'):
        a(f"s_mov_b32 m0, s{S_KM0+1}")
        a(f"s_nop 0")
        a(f"buffer_load_dwordx4 v{V_P1}, {WS}, s{S_KPF} offen sc1 lds")
        a(f"buffer_load_dwordx4 v{V_P1}, {WS}, s{S_KPF} offen offset:1024 sc1 lds")
        a(f"buffer_load_dwordx4 {vr(V_VX[1]+4,4)}, v{V_P1}, {WS}, s{S_VPF} offen offset:1024 sc1")
    a(f"s_add_u32 s{S_KPF}, s{S_KPF}, {32*8192}")
    a(f"s_add_u32 s{S_VPF}, s{S_VPF}, {32*8192}")
    idle_a(a, 0)
    for r in range(24): a(f"v_mov_b32 v{V_AQ + r}, 0")
    a(f"s_mov_b32 s{S_MEMRD}, {WS_MEMRING - MEMB}")
    a("s_waitcnt vmcnt(0)")
    a(f"v_cndmask_b32 v{V_GATH}, v{V_ONES}, 0, s[{S_L0}:{S_L0+1}]")
    a(f"s_cmp_ge_u32 s{S_WV}, 2")
    a(f"s_cselect_b32 s{S_FLP}, {OOB}, s{S_FLP}")
    for r in range(4): a(f"v_mov_b32 v{V_M + 8 + r}, 0")
    for j in range(2): a(f"ds_write_b128 v{V_P1}, {vr(V_M + 8, 4)} offset:{QB - MEMB + 1024*j}")
    a("s_waitcnt vmcnt(0) lgkmcnt(0)")
    for r in range(8): a(f"v_min_u32 v{V_M+r}, -2, v{V_M+r}")
    if opt.get('time'):
        a("s_mov_b32 s74, 0"); a("s_mov_b32 s73, -1"); a("s_mov_b32 s72, 0")
        a(f"s_memtime s[84:85]")
        a(f"s_memrealtime s[88:89]")
        a("s_waitcnt lgkmcnt(0)")
    if opt.get('dbgtime'): dbg_stamp(a, 13, vt=V_M + 30); a("s_waitcnt vmcnt(0)")
    a(f"s_cmp_eq_u32 s{S_MODE}, {opt.get('fastmode', 1)}")
    a("s_cbranch_scc0 L_S0_entry")
    a("s_branch L_F0_entry")
    for tag, st in (("L_F", ""), ("L_S", "sc1")):
        h20 = step(a, 0, st, tag + "0", opt)
        h21 = step(a, 1, st, tag + "1", opt)
        a(f"s_branch {tag}0_h1")
        step_tails(a, 0, tag + "0", h20, opt)
        step_tails(a, 1, tag + "1", h21, opt)
    avail_slow(a, "L_ch_av")
    a.label("L_chain_done")
    a(f"buffer_store_dwordx4 {vr(V_AK,4)}, v{V_LA}, {WS}, s{S_EXP} offen sc1")
    a("s_nop 7")
    a("s_waitcnt vmcnt(0)")
    a("s_barrier")
    a(f"v_mov_b32 v{V_M}, 64")
    a(f"buffer_store_dword v{V_M}, off, {WS}, s{S_FLA} sc1")
    if opt.get('dbgtime'): dbg_stamp(a, 14, vt=V_M + 30)
    if opt.get('time'):
        a(f"s_memtime s[86:87]")
        a(f"s_memrealtime s[90:91]")
        a("s_waitcnt lgkmcnt(0)")
        a("s_sub_u32 s86, s86, s84")
        a(f"s_lshl_b32 s{S_T0}, s{S_H}, 2")
        a(f"s_add_u32 s{S_T0}, s{S_T0}, s{S_WV}")
        a(f"s_lshl_b32 s{S_T0}, s{S_T0}, 5")
        a(f"s_add_u32 s{S_T0}, s{S_T0}, {WS_STAMP}")
        for i, s in enumerate((86, S_ACC, S_ACC + 1, S_ACC + 2, 88, 90, 92, S_ACC + 3)):
            a(f"v_mov_b32 v{V_M+i}, s{s}")
        a(f"buffer_store_dwordx4 {vr(V_M,4)}, off, {WS}, s{S_T0}")
        a(f"buffer_store_dwordx4 {vr(V_M+4,4)}, off, {WS}, s{S_T0} offset:16")
        a(f"s_add_u32 s{S_T0}, s{S_T0}, 0x8000")
        a("s_mov_b32 s75, s84")
        if not opt.get('trace') and not opt.get('stamp'): a("s_sub_u32 s68, s82, s80")
        for i in range(8): a(f"v_mov_b32 v{V_M+8+i}, s{68+i}")
        a(f"buffer_store_dwordx4 {vr(V_M+8,4)}, off, {WS}, s{S_T0}")
        a(f"buffer_store_dwordx4 {vr(V_M+12,4)}, off, {WS}, s{S_T0} offset:16")
    a("s_endpgm")
```

```python
from stream import *
from rolepf import clear_flag, late_start, gate_tokens, S_FLG

KXB = 73728
KMB = 81920
S_CNT = 43
S_C = 44
S_GRP = 45
S_KV = 46
S_KVM = 47
S_PST, S_INB = 48, 49
S_FP = 50
S_NEED = 51
S_FLPA = 52
S_PH = 53
S_FLF = 54
S_OUTO = 55
S_GO = 56
S_PSTB, S_INBB = 57, 58
S_MASK = 60
S_SELM = 76
S_LM2 = 84
S_LM32 = 86
S_LMF = 88
S_O = 92

V_EXW, V_EXR, V_QRD, V_KMW, V_KMR, V_OWR, V_FLG, V_INB, V_INBF, V_OUT, V_GOF, V_SELX, V_VRD, V_L4 = range(9, 23)
V_ONES = 24
V_PB = 28
XF, AQ = 32, 48
QF = 64
KF = 80
VF = 128
VM = 144
KM = 148
SS = 152
OA = 164
HF = 184
AO = 216
TM = 232
WQ, WO = 256, 384

def role_c(a, opt):
    WS = f"s[{S_WS}:{S_WS+3}]"
    NG = opt.get('ng', 4)
    L, T = 127, 126
    if opt.get('warm_llc', 0):
        a(f"v_lshlrev_b32 v1, 4, v0")
        a(f"s_sub_u32 s{S_T0}, s{S_XG}, 1")
        a(f"s_lshl_b32 s{S_T1}, s{S_H}, 2")
        a(f"s_add_u32 s{S_T0}, s{S_T0}, s{S_T1}")
        a(f"s_lshl_b32 s{S_T0}, s{S_T0}, 12")
        for j in range(4):
            d = S_DESC[0]
            a(f"s_mov_b32 s{d}, s{40 + 2*j}")
            a(f"s_and_b32 s{d+1}, s{41 + 2*j}, 0xffff")
            a(f"s_mov_b32 s{d+2}, 0x400000")
            a(f"s_mov_b32 s{d+3}, 0x20000")
            a(f"s_mov_b32 s{S_T1}, s{S_T0}")
            for u in range(8):
                a(f"buffer_load_dwordx4 {vr(128 + 4 * (8*j + u), 4)}, v1, s[{d}:{d+3}], s{S_T1} offen")
                if u < 7: a(f"s_add_u32 s{S_T1}, s{S_T1}, {128 * 4096}")
    setup(a)
    a(f"s_sub_u32 s{S_GRP}, s{S_XG}, 1")
    a(f"s_lshl_b32 s{S_T2}, s{S_GRP}, 5")
    a(f"s_add_u32 s{S_T2}, s{S_T2}, s{S_H}")
    for r in range(4): a(f"v_mov_b32 v{16+r}, -1")
    a(f"v_mov_b32 v20, 0")
    a(f"s_lshl_b32 s{S_T0}, s{S_T2}, 12")
    a(f"s_add_u32 s{S_T0}, s{S_T0}, {WS_PART}")
    a(f"buffer_store_dwordx4 v[16:19], v{V_P1K}, {WS}, s{S_T0} offen sc1")
    a(f"s_lshl_b32 s{S_T0}, s{S_T2}, 11")
    a(f"s_and_b32 s{S_T1}, s{S_WV}, 1")
    a(f"s_lshl_b32 s{S_T1}, s{S_T1}, 10")
    a(f"s_add_u32 s{S_T0}, s{S_T0}, s{S_T1}")
    a(f"s_add_u32 s{S_T0}, s{S_T0}, {WS_KVM + 62 * 32 * 4096}")
    a(f"buffer_store_dwordx4 v[16:19], v{V_L16}, {WS}, s{S_T0} offen sc1")
    a(f"s_cmp_ge_u32 s{S_T2}, 8")
    a("s_cbranch_scc1 L_c_noarm")
    a(f"s_lshl_b32 s{S_T0}, s{S_T2}, 12")
    a(f"s_add_u32 s{S_T0}, s{S_T0}, {WS_MEMRING}")
    a(f"buffer_store_dwordx4 v[16:19], v{V_P1K}, {WS}, s{S_T0} offen sc1")
    a(f"s_cmp_lg_u32 s{S_T2}, 0")
    a("s_cbranch_scc1 L_c_noarm")
    for r in range(3): a(f"v_mov_b32 v{21+r}, 0")
    for j in range(2):
        a(f"s_mov_b32 s{S_T0}, {WS_HINT + 4096 * j}")
        a(f"buffer_store_dwordx4 v[20:23], v{V_P1K}, {WS}, s{S_T0} offen sc1")
    a(f"s_mov_b32 s{S_T0}, {WS_FLAG + FLAG_A * 128}")
    a(f"buffer_store_dwordx4 v[20:23], v{V_P1K}, {WS}, s{S_T0} offen sc1")
    a.label("L_c_noarm")
    gate_tokens(a, S_T2, L)
    late_start(a, opt, "L_c")
    srd(a, S_DESC[0], KA_WQ, 0x400000)
    srd(a, S_DESC[1], KA_WO, 0x400000)
    col = [f"s_lshl_b32 s{S_T0}, s{S_H}, 8", f"s_lshl_b32 s{S_T1}, s{S_WV}, 6", f"s_add_u32 s{S_T0}, s{S_T0}, s{S_T1}"]
    load_weights(a, proj_chunks(S_DESC[0], 8192, col, WQ) + out_chunks(S_DESC[1], [f"s_lshl_b32 s{S_T0}, s{S_H}, 17"], WO),
                 lambda a: None)
    srd(a, S_O, KA_OUT, 2048 * 1024)
    a(f"s_mov_b32 s{S_C}, {f32bits(CSCALE):#x}")
    a(f"v_add_u32 v{V_EXW}, {EXB}, v{V_P1K}")
    a(f"v_add_u32 v{V_EXR}, {EXB}, v{V_L16}")
    a(f"s_and_b32 s{S_T0}, s{S_WV}, 1")
    a(f"s_lshr_b32 s{S_T1}, s{S_WV}, 1")
    a(f"s_lshl_b32 s{S_T2}, s{S_T0}, 12")
    a(f"v_add_u32 v{V_QRD}, s{S_T2}, v{V_EXR}")
    a(f"s_lshl_b32 s{S_T3}, s{S_T1}, 11")
    a(f"v_add_u32 v{V_OWR}, s{S_T3}, v{V_QRD}")
    a(f"s_lshl_b32 s{S_T3}, s{S_T1}, 12")
    a(f"v_add_u32 v{V_VRD}, s{S_T3}, v{V_L16}")
    a(f"s_lshl_b32 s{S_T2}, s{S_T0}, 4")
    a(f"v_and_b32 v{V_T0}, 15, v{L}")
    a(f"v_add_u32 v{V_T0}, s{S_T2}, v{V_T0}")
    bitpat(a, V_T1, L, [(4, 3, 4)], T)
    a(f"v_sub_u32 v{V_T0}, v{V_T0}, v{V_T1}")
    for Tt in range(2):
        for r in range(4):
            k = S_MASK + 2 * (4 * Tt + r)
            a(f"v_cmp_le_i32 s[{k}:{k+1}], {16*Tt + r}, v{V_T0}")
    bitpat(a, V_KMW, L, [(5, 1, 8), (0, 15, 1)], T)
    a(f"v_and_b32 v{V_KMW}, 15, v{V_KMW}")
    a(f"v_and_b32 v{T}, 48, v{L}")
    a(f"v_add_u32 v{V_KMW}, v{V_KMW}, v{T}")
    a(f"v_lshlrev_b32 v{V_KMW}, 3, v{V_KMW}")
    a(f"s_lshl_b32 s{S_T0}, s{S_WV}, 10")
    a(f"s_add_u32 s{S_T0}, s{S_T0}, {KMB}")
    a(f"v_add_u32 v{V_KMW}, s{S_T0}, v{V_KMW}")
    bitpat(a, V_KMR, L, [(1, 1, 8), (2, 15, 1)], T)
    a(f"v_and_b32 v{V_KMR}, 15, v{V_KMR}")
    a(f"v_and_b32 v{T}, 3, v{L}")
    a(f"v_lshl_add_u32 v{V_KMR}, v{T}, 4, v{V_KMR}")
    a(f"v_lshlrev_b32 v{V_KMR}, 3, v{V_KMR}")
    a(f"v_add_u32 v{V_KMR}, {KMB}, v{V_KMR}")
    for r in range(4):
        a(f"v_mov_b32 v{V_ONES+r}, 0x3f803f80")
        a(f"v_mov_b32 v{V_PB+r}, 0")
    a(f"v_add_u32 v{V_T0}, {KMB}, v{V_P1K}")
    a(f"ds_write_b128 v{V_T0}, {vr(V_PB,4)}")
    a(f"v_lshlrev_b32 v{V_FLG}, 7, v{L}")
    a(f"v_lshlrev_b32 v{V_L4}, 2, v{L}")
    a(f"v_cmp_gt_u32 s[{S_LM32}:{S_LM32+1}], 32, v{L}")
    a(f"s_lshl_b32 s{S_T0}, s{S_H}, 7")
    a(f"s_add_u32 s{S_FLPA}, s{S_T0}, {WS_FLAG + FLAG_P * 128}")
    a(f"s_mov_b32 s{S_FLF}, {WS_FLAG + FLAG_F * 128}")
    a(f"s_mov_b64 s[{S_LM2}:{S_LM2+1}], 0")
    a(f"s_bitset1_b64 s[{S_LM2}:{S_LM2+1}], 0")
    bitpat(a, V_INB, L, [(4, 3, 1024), (0, 15, 16)], T)
    a(f"s_lshl_b32 s{S_T0}, s{S_WV}, 8")
    a(f"v_add_u32 v{V_INB}, s{S_T0}, v{V_INB}")
    bitpat(a, V_T0, L, [(5, 1, OOB)], T)
    a(f"v_add_u32 v{V_INBF}, v{V_T0}, v{V_INB}")
    bitpat(a, V_GOF, L, [(2, 1, 16), (0, 3, 1)], T)
    a(f"s_lshl_b32 s{S_T0}, s{S_WV}, 2")
    a(f"v_add_u32 v{V_GOF}, s{S_T0}, v{V_GOF}")
    bitpat(a, V_OUT, L, [(4, 3, 8), (3, 1, OOB)], T)
    a(f"v_lshl_add_u32 v{V_OUT}, v{V_GOF}, 10, v{V_OUT}")
    a(f"v_lshlrev_b32 v{V_GOF}, 2, v{V_GOF}")
    a(f"v_and_b32 v{T}, 1, v{L}")
    a(f"v_cmp_eq_u32 vcc, 1, v{T}")
    a(f"v_mov_b32 v{V_SELX}, 0x3f80")
    a(f"v_mov_b32 v{T}, 0x3f800000")
    a(f"v_cndmask_b32 v{V_SELX}, v{V_SELX}, v{T}, vcc")
    a(f"v_bfe_u32 v{T}, v{L}, 1, 3")
    for r in range(4):
        a(f"v_cmp_eq_u32 s[{S_SELM+2*r}:{S_SELM+2*r+1}], {r}, v{T}")
    a(f"s_lshl_b32 s{S_T0}, s{S_GRP}, 21")
    a(f"s_add_u32 s{S_T0}, s{S_T0}, {WS_CP}")
    a(f"s_lshl_b32 s{S_T1}, s{S_H}, 10")
    a(f"s_add_u32 s{S_PSTB}, s{S_T0}, s{S_T1}")
    a(f"s_lshl_b32 s{S_T1}, s{S_WV}, 18")
    a(f"s_add_u32 s{S_PSTB}, s{S_PSTB}, s{S_T1}")
    a(f"s_lshl_b32 s{S_T1}, s{S_H}, 15")
    a(f"s_add_u32 s{S_INBB}, s{S_T0}, s{S_T1}")
    a(f"s_mov_b32 s{S_SEG}, s{S_GRP}")
    a(f"s_mov_b32 s{S_CNT}, 0")
    x_issue(a, 0, S_SEG)
    wait_init(a, TM, opt['groups'], "L_c_init2")
    a("s_waitcnt lgkmcnt(0)")
    a(f"s_cmp_eq_u32 s{S_MODE}, {opt.get('fastmode', 1)}")
    a("s_cbranch_scc0 L_cS_arm")
    for tag, st in (("L_cF", ""), ("L_cS", "sc1")):
        a.label(f"{tag}_arm")
        for r in range(4): a(f"v_mov_b32 v{TM+r}, -1")
        for sl in range(2):
            a(f"s_add_u32 s{S_T0}, s{S_INBB}, {sl << 20}")
            for j in range(8):
                a(f"buffer_store_dwordx4 {vr(TM,4)}, v{V_P1K}, {WS}, s{S_T0} offen {st}")
                if j < 7: a(f"s_add_u32 s{S_T0}, s{S_T0}, 4096")
        a("s_waitcnt vmcnt(0)")
        a("s_barrier")
        a(f"s_cmp_lg_u32 s{S_WV}, 0")
        a(f"s_cbranch_scc1 {tag}_met")
        a(f"s_lshl_b32 s{S_T1}, s{S_GRP}, 2")
        a("s_mov_b64 exec, 1")
        a(f"v_mov_b32 v{TM}, 1")
        a(f"buffer_atomic_add v{TM}, off, s[{S_D}:{S_D+3}], s{S_T1} offset:32")
        a.label(f"{tag}_meet")
        a("s_sleep 8")
        a(f"buffer_load_dword v{TM+1}, off, s[{S_D}:{S_D+3}], s{S_T1} offset:32 sc1")
        a(f"s_add_u32 s{S_SPIN}, s{S_SPIN}, 1")
        a(f"s_cmp_gt_u32 s{S_SPIN}, {SPIN_LIMIT}")
        a("s_cbranch_scc1 L_abort")
        a("s_waitcnt vmcnt(0)")
        a(f"v_readfirstlane_b32 s{S_T0}, v{TM+1}")
        a(f"s_cmp_ge_u32 s{S_T0}, 32")
        a(f"s_cbranch_scc0 {tag}_meet")
        a("s_mov_b64 exec, -1")
        a.label(f"{tag}_met")
        a.label(f"{tag}_loop")
        for par in range(2):
            segment(a, par, st, f"{tag}{par}", NG, opt)
            a(f"s_cmp_ge_u32 s{S_SEG}, 64")
            a("s_cbranch_scc1 L_done")
        a(f"s_branch {tag}_loop")

def segment(a, par, st, tag, NG, opt):
    WS = f"s[{S_WS}:{S_WS+3}]"
    a("s_waitcnt vmcnt(0)")
    a("s_barrier")
    a(f"s_add_u32 s{S_T2}, s{S_SEG}, {NG}")
    a(f"s_min_u32 s{S_T2}, s{S_T2}, 63")
    xi = x_issue_groups(1 - par, S_T2)
    a(f"s_lshl_b32 s{S_T0}, s{S_SEG}, 5")
    a(f"s_add_u32 s{S_T0}, s{S_T0}, s{S_H}")
    a(f"s_lshl_b32 s{S_KV}, s{S_T0}, 13")
    a(f"s_lshl_b32 s{S_KVM}, s{S_T0}, 12")
    a(f"s_add_u32 s{S_KVM}, s{S_KVM}, {WS_KVM}")
    a(f"s_add_u32 s{S_NEED}, s{S_SEG}, 1")
    def mm(ks, xf):
        o = []
        for t in range(2):
            for tt in range(2):
                d = AQ + (tt * 2 + t) * 4
                o.append(mf32(d, ur(WQ + (t * 16 + ks) * 4, 4), xf[tt], "0" if ks == 0 else vr(d, 4)))
        if ks < len(xi): o[2] += "\n" + xi[ks]
        return o
    proj_phase(a, par, XF, mm)
    for tt in range(2):
        d = AQ + 8 * tt
        for r in range(4): a(f"v_cvt_pk_bf16_f32 v{d+r}, v{d+2*r}, v{d+2*r+1}")
        a(f"ds_write_b128 v{V_EXW}, {vr(d,4)} offset:{tt*4096}")
    SEL, RA, RB, GV = TM + 4, TM + 8, TM + 12, TM + 3
    poll_flags(a, f"{tag}_pp", TM, V_FLG, S_FLPA, S_NEED, S_LM2, halves=True)
    a(f"s_lshl_b32 s{S_T0}, s{S_WV}, 10")
    a(f"s_add_u32 s{S_T1}, s{S_KV}, s{S_T0}")
    a(f"s_add_u32 s{S_T1}, s{S_T1}, {WS_KX}")
    a(f"s_lshl_b32 s{S_T0}, s{S_WV}, 11")
    a(f"s_add_u32 m0, s{S_T0}, {KXB}")
    a(f"s_add_u32 s{S_T2}, s{S_KV}, {WS_VX}")
    for j in range(2): a(f"buffer_load_dwordx4 v{V_P1K}, {WS}, s{S_T1} offen offset:{j*1024} sc1 lds")
    for j in range(4): a(f"buffer_load_dwordx4 {vr(VF + 4*j, 4)}, v{V_VRD}, {WS}, s{S_T2} offen offset:{j*1024} sc1")
    for r in range(4): a(f"v_cndmask_b32 v{SEL+r}, 0, v{V_SELX}, s[{S_SELM+2*r}:{S_SELM+2*r+1}]")
    a(f"s_and_b32 s{S_T0}, s{S_SEG}, 1")
    a(f"s_mul_i32 s{S_T0}, s{S_T0}, 14")
    a(f"s_lshl_b64 s[{S_LMF}:{S_LMF+1}], 0x3fff, s{S_T0}")
    a(f"s_lshr_b32 s{S_T2}, s{S_SEG}, 1")
    a(f"s_add_u32 s{S_T2}, s{S_T2}, 1")
    poll_flags(a, f"{tag}_pf", TM, V_FLG, S_FLF, S_T2, S_LMF)
    a(f"s_lshl_b32 s{S_FP}, s{S_SEG}, 19")
    a(f"s_lshl_b32 s{S_T0}, s{S_H}, 14")
    a(f"s_add_u32 s{S_FP}, s{S_FP}, s{S_T0}")
    a(f"s_add_u32 s{S_FP}, s{S_FP}, {WS_FP}")
    for i in range(4):
        a(f"buffer_load_dwordx4 {vr(HF + 4*i, 4)}, v{V_INBF if i == 3 else V_INB}, {WS}, s{S_FP} offen sc1")
        if i < 3: a(f"s_add_u32 s{S_FP}, s{S_FP}, 4096")
    a(f"s_lshl_b32 s{S_GO}, s{S_SEG}, 7")
    a(f"s_add_u32 s{S_GO}, s{S_GO}, {WS_G}")
    a(f"buffer_load_dword v{GV}, v{V_GOF}, {WS}, s{S_GO} offen sc1")
    for i in range(4): a(mf32(RB, vr(HF + 4*i, 4), vr(SEL, 4), "0" if i == 0 else vr(RB, 4)))
    OM = TM
    a(f"v_sub_f32 v{OM}, 1.0, v{GV}")
    a(f"v_cvt_pk_bf16_f32 v{OM}, v{OM}, v{OM}")
    a(f"v_and_b32 v{OM}, 0xffff0000, v{OM}")
    def rnd(R):
        a(f"v_cvt_pk_bf16_f32 v{R}, v{R}, v{R+1}")
        a(f"v_cvt_pk_bf16_f32 v{R+2}, v{R+2}, v{R+3}")
        for q in (0, 2):
            a(f"v_and_b32 v{R+q+1}, 0xffff0000, v{R+q}")
            a(f"v_lshlrev_b32 v{R+q}, 16, v{R+q}")
    rnd(RB)
    for r in range(4): a(f"v_mul_f32 v{RB+r}, v{RB+r}, v{OM}")
    rnd(RB)
    a("s_waitcnt vmcnt(0) lgkmcnt(0)")
    a("s_barrier")
    for i in range(4): a(f"ds_read_b128 {vr(QF + 4*i, 4)}, v{V_QRD} offset:{i*1024}")
    for j in range(8): a(f"ds_read_b128 {vr(KF + 4*j, 4)}, v{V_EXR} offset:{KXB - EXB + j*1024}")
    for i in range(4):
        for Tt in range(2):
            d = SS + 4 * Tt
            a(mf32(d, vr(KF + 16*Tt + 4*i, 4), vr(QF + 4*i, 4), "0" if i == 0 else vr(d, 4)))
    SM = SS + 8
    NEG, MX, T2 = TM, TM + 1, TM + 2
    a(f"v_mov_b32 v{NEG}, 0xff800000")
    for r in range(8): a(f"v_cndmask_b32 v{SS+r}, v{NEG}, v{SS+r}, s[{S_MASK+2*r}:{S_MASK+2*r+1}]")
    a(f"v_max3_f32 v{MX}, v{SS}, v{SS+1}, v{SS+2}")
    a(f"v_max3_f32 v{MX}, v{MX}, v{SS+3}, v{SS+4}")
    a(f"v_max3_f32 v{MX}, v{MX}, v{SS+5}, v{SS+6}")
    a(f"v_max_f32 v{MX}, v{MX}, v{SS+7}")
    a(f"s_and_b32 s{S_T0}, s{S_CNT}, 1")
    a(f"s_lshl_b32 s{S_T0}, s{S_T0}, 20")
    a(f"s_add_u32 s{S_PST}, s{S_PSTB}, s{S_T0}")
    a(f"s_add_u32 s{S_INB}, s{S_INBB}, s{S_T0}")
    a(f"s_bfe_u32 s{S_PH}, s{S_CNT}, 0x10001")
    a(f"s_add_u32 s{S_CNT}, s{S_CNT}, 1")
    a(f"s_cmp_ge_u32 s{S_SEG}, 62")
    a(f"s_cbranch_scc1 {tag}_direct")
    a(f"s_add_u32 s{S_T3}, s{S_FLPA}, {(FLAG_A - FLAG_P) * 128}")
    poll_flags(a, f"{tag}_pa", T2, V_FLG, S_T3, S_NEED, S_LM2, pause=8)
    a.label(f"{tag}_direct")
    a(f"s_lshr_b32 s{S_T0}, s{S_WV}, 1")
    a(f"s_lshl_b32 s{S_T0}, s{S_T0}, 11")
    a(f"s_add_u32 s{S_T0}, s{S_T0}, s{S_KVM}")
    a.label(f"{tag}_km")
    a(f"buffer_load_dwordx2 {vr(KM,2)}, v{V_P1K}, {WS}, s{S_KVM} offen sc1")
    for j in range(2): a(f"buffer_load_dwordx2 {vr(VM + 2*j, 2)}, v{V_L16}, {WS}, s{S_T0} offen offset:{j*1024 + 8} sc1")
    a(f"s_add_u32 s{S_SPIN}, s{S_SPIN}, 1")
    a(f"s_cmp_gt_u32 s{S_SPIN}, {SPIN_LIMIT}")
    a("s_cbranch_scc1 L_abort")
    a("s_waitcnt vmcnt(0)")
    a(f"v_max3_u32 v{T2}, v{KM}, v{VM}, v{VM+2}")
    a(f"v_cmp_eq_u32 vcc, -1, v{T2}")
    a(f"ds_write_b32 v{V_KMW}, v{KM}")
    a(f"ds_write_b32 v{V_KMW}, v{KM+1} offset:512")
    a(f"s_cbranch_vccnz {tag}_km")
    if opt.get('time'):
        a("s_memrealtime s[96:97]"); a("s_waitcnt lgkmcnt(0)"); a("s_mov_b32 s99, s96")
    a("s_waitcnt lgkmcnt(0)")
    a("s_barrier")
    for i in range(4):
        for hh in range(2): a(f"ds_read_b64_tr_b16 {vr(KF + 32 + 4*i + 2*hh, 2)}, v{V_KMR} offset:{i*1024 + hh*512}")
    for i in range(4): a(mf32(SM, vr(KF + 32 + 4*i, 4), vr(QF + 4*i, 4), "0" if i == 0 else vr(SM, 4)))
    a(f"v_mul_f32 v{SM}, s{S_C}, v{SM}")
    a(f"v_mul_f32 v{SM+1}, s{S_C}, v{SM+1}")
    a(f"v_max3_f32 v{MX}, v{MX}, v{SM}, v{SM+1}")
    for sw in ("v_permlane16_swap_b32", "v_permlane32_swap_b32"):
        a(f"v_mov_b32 v{T2}, v{MX}")
        a(f"{sw} v{MX}, v{T2}")
        a(f"v_max_f32 v{MX}, v{MX}, v{T2}")
    for r in range(10): a(f"v_sub_f32 v{SS+r}, v{SS+r}, v{MX}")
    for r in range(10): a(f"v_exp_f32 v{SS+r}, v{SS+r}")
    for r in range(4): a(f"v_cvt_pk_bf16_f32 v{SS+r}, v{SS+2*r}, v{SS+2*r+1}")
    a(f"v_cvt_pk_bf16_f32 v{V_PB}, v{SM}, v{SM+1}")
    a(f"v_cvt_pk_bf16_f32 v{V_PB+3}, v{SM}, v{SM+1}")
    LA = OA + 16
    a(mf32(LA, vr(V_ONES, 4), vr(SS, 4), "0"))
    for j in range(4): a(mf32(OA + 4*j, vr(VF + 4*j, 4), vr(SS, 4), "0"))
    a(mf16(LA, vr(V_ONES, 2), vr(V_PB, 2), vr(LA, 4)))
    for j in range(4): a(mf16(OA + 4*j, vr(VM + 2*(j >> 1), 2), vr(V_PB + 2*(j & 1), 2), vr(OA + 4*j, 4)))
    if opt.get('dumpc'):
        a("s_nop 7")
        a(f"s_lshl_b32 s{S_T0}, s{S_GRP}, 5"); a(f"s_add_u32 s{S_T0}, s{S_T0}, s{S_H}"); a(f"s_lshl_b32 s{S_T0}, s{S_T0}, 2")
        a(f"s_add_u32 s{S_T0}, s{S_T0}, s{S_WV}"); a(f"s_lshl_b32 s{S_T0}, s{S_T0}, 14"); a(f"s_add_u32 s{S_T0}, s{S_T0}, 0x8000000")
        for j, r in enumerate((QF, KF, KF + 32, VF, SS, V_PB, OA, LA, VM, TM, V_ONES, SS + 8)):
            a(f"buffer_store_dwordx4 {vr(r,4)}, v{V_L16}, {WS}, s{S_T0} offen")
            a(f"s_add_u32 s{S_T0}, s{S_T0}, 1024")
    a(f"v_rcp_f32 v{T2}, v{LA}")
    for r in range(16): a(f"v_mul_f32 v{OA+r}, v{OA+r}, v{T2}")
    for r in range(8): a(f"v_cvt_pk_bf16_f32 v{OA+r}, v{OA+2*r}, v{OA+2*r+1}")
    for j in range(2): a(f"ds_write_b128 v{V_OWR}, {vr(OA + 4*j, 4)} offset:{j*1024}")
    a("s_waitcnt lgkmcnt(0)")
    a("s_barrier")
    for j in range(8): a(f"ds_read_b128 {vr(HF + 4*j, 4)}, v{V_EXR} offset:{j*1024}")
    def store(ct, reg):
        return (f"v_and_or_b32 v{reg}, v{reg}, -2, s{S_PH}\ns_add_u32 s{S_T0}, s{S_PST}, {ct * 32768}\n"
                f"buffer_store_dwordx4 {vr(reg,4)}, v{V_L16}, {WS}, s{S_T0} offen {st}")
    out_phase(a, HF, WO, AO, store)
    a("s_waitcnt vmcnt(0)")
    if opt.get('time'):
        a("s_memrealtime s[96:97]"); a("s_waitcnt lgkmcnt(0)"); a("s_mov_b32 s100, s96")
    a.label(f"{tag}_in")
    a(f"s_mov_b32 s{S_T0}, s{S_INB}")
    for i in range(8):
        a(f"buffer_load_dwordx4 {vr(HF + 4*i, 4)}, v{V_INB}, {WS}, s{S_T0} offen sc1")
        if i < 7: a(f"s_add_u32 s{S_T0}, s{S_T0}, 4096")
    a("s_mov_b64 exec, -1")
    a(f"s_add_u32 s{S_SPIN}, s{S_SPIN}, 1")
    a(f"s_cmp_gt_u32 s{S_SPIN}, {SPIN_LIMIT}")
    a("s_cbranch_scc1 L_abort")
    for i in range(8):
        a(mf32(RA, vr(HF + 4*i, 4), vr(SEL, 4), "0" if i == 0 else vr(RA, 4)))
        if i == 0: a(f"v_xor_b32 v{T2}, s{S_PH}, v{HF}")
        else: a(f"v_bitop3_b32 v{T2}, v{T2}, v{HF + 4*i}, s{S_PH} bitop3:0xf6")
    a(f"v_and_b32 v{T2}, 1, v{T2}")
    a(f"v_cmp_ne_u32 vcc, 0, v{T2}")
    a(f"s_cbranch_vccz {tag}_inok")
    a("s_mov_b64 exec, vcc")
    a(f"s_branch {tag}_in")
    a.label(f"{tag}_inok")
    a("s_nop 3")
    rnd(RA)
    for r in range(4): a(f"v_mul_f32 v{RA+r}, v{RA+r}, v{GV}")
    rnd(RA)
    for r in range(4): a(f"v_add_f32 v{RA+r}, v{RA+r}, v{RB+r}")
    a(f"v_cvt_pk_bf16_f32 v{RA}, v{RA}, v{RA+1}")
    a(f"v_cvt_pk_bf16_f32 v{RA+1}, v{RA+2}, v{RA+3}")
    a(f"s_lshl_b32 s{S_OUTO}, s{S_SEG}, 15")
    a(f"s_lshl_b32 s{S_T0}, s{S_H}, 5")
    a(f"s_add_u32 s{S_OUTO}, s{S_OUTO}, s{S_T0}")
    a(f"buffer_store_dwordx2 {vr(RA,2)}, v{V_OUT}, s[{S_O}:{S_O+3}], s{S_OUTO} offen")
    a(f"s_add_u32 s{S_SEG}, s{S_SEG}, {NG}")
```

```python
from stream import *

S_FLG = 40
S_OUT0, S_OUT1 = 41, 42
S_CNT = 43
S_C = 44

def clear_flag(a, line_base, idx_sgpr):
    WS = f"s[{S_WS}:{S_WS+3}]"
    a(f"s_lshl_b32 s{S_FLG}, s{idx_sgpr}, 7")
    a(f"s_add_u32 s{S_FLG}, s{S_FLG}, {WS_FLAG + line_base * 128}")
    a(f"v_mov_b32 v{V_T0}, 0")
    a(f"buffer_store_dword v{V_T0}, off, {WS}, s{S_FLG} sc1")

def role_p(a, opt, kind):
    WS = f"s[{S_WS}:{S_WS+3}]"
    K = kind == 'k'
    tg = f"L_p{kind}"
    half = 0 if K else 2
    setup(a)
    a(f"s_lshl_b32 s{S_FLG}, s{S_H}, 7")
    a(f"s_add_u32 s{S_FLG}, s{S_FLG}, {WS_FLAG + FLAG_P * 128 + half}")
    a(f"v_mov_b32 v{V_T0}, 0")
    a(f"buffer_store_short v{V_T0}, off, {WS}, s{S_FLG} sc1")
    srd(a, S_DESC[0], KA_WK if K else KA_WV, 0x400000)
    col = [f"s_lshl_b32 s{S_T0}, s{S_H}, 8", f"s_lshl_b32 s{S_T1}, s{S_WV}, 6", f"s_add_u32 s{S_T0}, s{S_T0}, s{S_T1}"]
    W = 128
    a(f"s_mov_b32 s{S_SEG}, 0")
    load_weights(a, proj_chunks(S_DESC[0], 8192, col, W), lambda a: register_wg(a, V_T1, f"{tg}_noreg"))
    x_issue(a, 0, S_SEG)
    a(f"s_mov_b32 s{S_C}, {f32bits(CSCALE):#x}")
    a(f"s_lshl_b32 s{S_T0}, s{S_H}, 13")
    if K:
        a(f"s_add_u32 s{S_OUT0}, s{S_T0}, {WS_KX}")
    else:
        a(f"s_lshl_b32 s{S_T1}, s{S_WV}, 10")
        a(f"s_add_u32 s{S_T0}, s{S_T0}, s{S_T1}")
        a(f"s_add_u32 s{S_OUT0}, s{S_T0}, {WS_VX}")
    a("s_waitcnt vmcnt(0)")
    XF, AC = 16, 32
    if opt.get('time'):
        a("s_memrealtime s[96:97]"); a("s_waitcnt lgkmcnt(0)"); a("s_mov_b32 s99, s96")
    a.label(f"{tg}_loop")
    for par in range(2):
        a("s_waitcnt vmcnt(2)")
        a("s_barrier")
        a(f"s_add_u32 s{S_T2}, s{S_SEG}, 1")
        a(f"s_min_u32 s{S_T2}, s{S_T2}, 63")
        xi = x_issue_groups(1 - par, S_T2)
        def mm(ks, xf):
            o = []
            for t in range(2):
                for tt in range(2):
                    w = ur(W + (t * 16 + ks) * 4, 4)
                    d = AC + ((tt * 2 + t) if K else (t * 2 + tt)) * 4
                    c = "0" if ks == 0 else vr(d, 4)
                    o.append(mf32(d, w, xf[tt], c) if K else mf32(d, xf[tt], w, c))
            if ks < len(xi): o[2] += "\n" + xi[ks]
            return o
        proj_phase(a, par, XF, mm)
        a("s_waitcnt vmcnt(8)")
        a("s_barrier")
        flag_store(a, V_T0, S_SEG, S_FLG, f"{tg}_nf{par}", op="buffer_store_short")
        for j in range(2):
            d = AC + j * 8
            if K:
                for r in range(8): a(f"v_mul_f32 v{d+r}, s{S_C}, v{d+r}")
            for r in range(4): a(f"v_cvt_pk_bf16_f32 v{d+r}, v{d+2*r}, v{d+2*r+1}")
            if K and j: a(f"s_add_u32 s{S_T0}, s{S_OUT0}, 4096")
            if K: a(f"buffer_store_dwordx4 {vr(d,4)}, v{V_P1K}, {WS}, s{S_T0 if j else S_OUT0} offen sc1")
            else: a(f"buffer_store_dwordx4 {vr(d,4)}, v{V_P1K}, {WS}, s{S_OUT0} offen offset:{j*1024} sc1")
        a(f"s_add_u32 s{S_OUT0}, s{S_OUT0}, {32*8192}")
        a(f"s_add_u32 s{S_SEG}, s{S_SEG}, 1")
    a(f"s_cmp_lt_u32 s{S_SEG}, 64")
    a(f"s_cbranch_scc1 {tg}_loop")
    a("s_waitcnt vmcnt(0)")
    a("s_barrier")
    flag_store(a, V_T0, S_SEG, S_FLG, f"{tg}_nfe", op="buffer_store_short")
    a("s_branch L_done")

def late_start(a, opt, tag):
    WS = f"s[{S_WS}:{S_WS+3}]"
    a("s_waitcnt vmcnt(0)")
    register_wg(a, V_T1, f"{tag}_noreg")
    if not opt.get('late', 0): return
    a(f"s_cmp_lg_u32 s{S_WV}, 0")
    a(f"s_cbranch_scc1 {tag}_go")
    wait_init(a, 16, [1, 5, 6, 7], f"{tag}_init", 64)
    a(f"s_and_b32 s{S_T0}, s{S_H}, 31")
    a(f"s_lshl_b32 s{S_T0}, s{S_T0}, 7")
    a(f"s_add_u32 s{S_T3}, s{S_T0}, {WS_FLAG + FLAG_P * 128 if opt['late'] == 1 else WS_FLAG + FLAG_A * 128 + 4}")
    a.label(f"{tag}_late")
    a(f"buffer_load_dword v16, off, {WS}, s{S_T3} sc1")
    a(f"s_add_u32 s{S_SPIN}, s{S_SPIN}, 1")
    a(f"s_cmp_gt_u32 s{S_SPIN}, {SPIN_LIMIT}")
    a("s_cbranch_scc1 L_abort")
    a("s_waitcnt vmcnt(0)")
    a(f"v_readfirstlane_b32 s{S_T0}, v16")
    a(f"s_cmp_lg_u32 s{S_T0}, 0")
    a(f"s_cbranch_scc1 {tag}_go")
    a("s_sleep 32")
    a(f"s_branch {tag}_late")
    a.label(f"{tag}_go")
    a("s_barrier")

def role_f(a, opt):
    WS = f"s[{S_WS}:{S_WS+3}]"
    S_F, S_R = 45, 46
    S_GA, S_GB = 47, 48
    setup(a)
    clear_flag(a, FLAG_F, S_H)
    a(f"s_cmp_ge_u32 s{S_H}, 14")
    a(f"s_cselect_b32 s{S_R}, 1, 0")
    a(f"s_cselect_b32 s{S_T0}, 14, 0")
    a(f"s_sub_u32 s{S_F}, s{S_H}, s{S_T0}")
    late_start(a, dict(opt, late=opt.get('latef', opt.get('late', 0))), "L_f")
    srd(a, S_DESC[0], KA_WG, 512 * 3584)
    srd(a, S_DESC[1], KA_WU, 512 * 3584)
    srd(a, S_DESC[2], KA_WD, 1792 * 1024)
    col = [f"s_lshl_b32 s{S_T0}, s{S_F}, 8", f"s_lshl_b32 s{S_T1}, s{S_WV}, 6", f"s_add_u32 s{S_T0}, s{S_T0}, s{S_T1}"]
    WG, WU, WD = 256, 384, 128
    load_weights(a, proj_chunks(S_DESC[0], 3584, col, WG) + proj_chunks(S_DESC[1], 3584, col, WU)
                 + out_chunks(S_DESC[2], [f"s_lshl_b32 s{S_T0}, s{S_F}, 17"], WD),
                 lambda a: None)
    k = -2.0 * (2.0 / 3.141592653589793) ** 0.5 * 1.4426950408889634
    a(f"s_mov_b32 s{S_GA}, {f32bits(0.044715 * k):#x}")
    a(f"s_mov_b32 s{S_GB}, {f32bits(k):#x}")
    a(f"s_lshl_b32 s{S_OUT0}, s{S_R}, 19")
    a(f"s_lshl_b32 s{S_T0}, s{S_WV}, 17")
    a(f"s_add_u32 s{S_OUT0}, s{S_OUT0}, s{S_T0}")
    a(f"s_lshl_b32 s{S_T0}, s{S_F}, 10")
    a(f"s_add_u32 s{S_OUT0}, s{S_OUT0}, s{S_T0}")
    a(f"s_add_u32 s{S_OUT0}, s{S_OUT0}, {WS_FP}")
    a(f"s_mov_b32 s{S_SEG}, s{S_R}")
    a(f"s_mov_b32 s{S_CNT}, -1")
    V_GB = 9
    a(f"v_mov_b32 v{V_GB}, s{S_GB}")
    V_EXW, V_EXR = 10, 11
    a(f"v_add_u32 v{V_EXW}, {EXB}, v{V_P1K}")
    a(f"v_add_u32 v{V_EXR}, {EXB}, v{V_L16}")
    x_issue(a, 0, S_SEG)
    a("s_waitcnt vmcnt(0)")
    XF, AG, AU, HF, AO, TM = 16, 32, 48, 64, 96, 112
    if opt.get('time'):
        a("s_memrealtime s[96:97]"); a("s_waitcnt lgkmcnt(0)"); a("s_mov_b32 s99, s96")
    a.label("L_f_loop")
    for par in range(2):
        a("s_waitcnt vmcnt(8)")
        a("s_barrier")
        a(f"s_add_u32 s{S_T2}, s{S_SEG}, 2")
        a(f"s_min_u32 s{S_T2}, s{S_T2}, 63")
        a(f"s_max_i32 s{S_T3}, s{S_CNT}, 0")
        flag_store(a, V_T0, S_T3, S_FLG, f"L_f_nf{par}")
        xi = x_issue_groups(1 - par, S_T2)
        a(f"s_add_u32 s{S_CNT}, s{S_CNT}, 1")
        def mm(ks, xf):
            o = []
            for base, W in ((AG, WG), (AU, WU)):
                for t in range(2):
                    for tt in range(2):
                        d = base + (tt * 2 + t) * 4
                        o.append(mf32(d, ur(W + (t * 16 + ks) * 4, 4), xf[tt], "0" if ks == 0 else vr(d, 4)))
            if ks < len(xi): o[3] += "\n" + xi[ks]
            return o
        proj_phase(a, par, XF, mm)
        for tt in range(2):
            G, U = AG + 8 * tt, AU + 8 * tt
            for r in range(4): a(f"v_cvt_pk_bf16_f32 v{TM+r}, v{G+2*r}, v{G+2*r+1}")
            for r in range(4): a(f"v_cvt_pk_bf16_f32 v{TM+4+r}, v{U+2*r}, v{U+2*r+1}")
            for r in range(4):
                a(f"v_lshlrev_b32 v{G+2*r}, 16, v{TM+r}")
                a(f"v_and_b32 v{G+2*r+1}, 0xffff0000, v{TM+r}")
                a(f"v_lshlrev_b32 v{U+2*r}, 16, v{TM+4+r}")
                a(f"v_and_b32 v{U+2*r+1}, 0xffff0000, v{TM+4+r}")
            for r in range(8): a(f"v_mul_f32 v{TM+r}, v{G+r}, v{G+r}")
            for r in range(8): a(f"v_fma_f32 v{TM+r}, v{TM+r}, s{S_GA}, v{V_GB}")
            for r in range(8): a(f"v_mul_f32 v{TM+r}, v{TM+r}, v{G+r}")
            for r in range(8): a(f"v_exp_f32 v{TM+r}, v{TM+r}")
            for r in range(8): a(f"v_add_f32 v{TM+r}, 1.0, v{TM+r}")
            for r in range(8): a(f"v_rcp_f32 v{TM+r}, v{TM+r}")
            for r in range(8): a(f"v_mul_f32 v{G+r}, v{G+r}, v{TM+r}")
            for r in range(4): a(f"v_cvt_pk_bf16_f32 v{TM+r}, v{G+2*r}, v{G+2*r+1}")
            for r in range(4):
                a(f"v_lshlrev_b32 v{G+2*r}, 16, v{TM+r}")
                a(f"v_and_b32 v{G+2*r+1}, 0xffff0000, v{TM+r}")
            for r in range(8): a(f"v_mul_f32 v{G+r}, v{G+r}, v{U+r}")
            for r in range(4): a(f"v_cvt_pk_bf16_f32 v{G+r}, v{G+2*r}, v{G+2*r+1}")
            a(f"ds_write_b128 v{V_EXW}, {vr(G,4)} offset:{tt*4096}")
        a("s_waitcnt lgkmcnt(0)")
        a("s_barrier")
        for j in range(8): a(f"ds_read_b128 {vr(HF + 4*j, 4)}, v{V_EXR} offset:{j*1024}")
        def st(ct, reg):
            return f"s_add_u32 s{S_T0}, s{S_OUT0}, {ct * 16384}\nbuffer_store_dwordx4 {vr(reg,4)}, v{V_L16}, {WS}, s{S_T0} offen sc1"
        out_phase(a, HF, WD, AO, st)
        a(f"s_add_u32 s{S_OUT0}, s{S_OUT0}, {2 << 19}")
        a(f"s_add_u32 s{S_SEG}, s{S_SEG}, 2")
    a(f"s_cmp_lt_u32 s{S_SEG}, 64")
    a("s_cbranch_scc1 L_f_loop")
    a("s_waitcnt vmcnt(0)")
    a("s_barrier")
    a(f"s_mov_b32 s{S_T2}, 32")
    flag_store(a, V_T0, S_T2, S_FLG, "L_f_nfe")
    a("s_branch L_done")

def gate_tokens(a, idx_sgpr, L):
    WS = f"s[{S_WS}:{S_WS+3}]"
    srd(a, S_DESC[2], KA_GW, 1024)
    GW, XR, P, ACC = 32, 48, 40, 64
    a(f"s_lshl_b32 s{S_T0}, s{idx_sgpr}, 2")
    a(f"s_add_u32 s{S_T0}, s{S_T0}, s{S_WV}")
    a(f"s_lshl_b32 s{S_T1}, s{S_T0}, 12")
    a(f"buffer_load_dwordx4 {vr(P,4)}, v{V_L16}, s[{S_DESC[2]}:{S_DESC[2]+3}], 0 offen")
    for j in range(4): a(f"buffer_load_dwordx4 {vr(XR + 4*j, 4)}, v{V_L16}, s[{S_X}:{S_X+3}], s{S_T1} offen offset:{j * 1024}")
    for r in range(4):
        a(f"v_lshlrev_b32 v{GW+2*r}, 16, v{P+r}")
        a(f"v_and_b32 v{GW+2*r+1}, 0xffff0000, v{P+r}")
    for j in range(4):
        x = XR + 4 * j
        for r in range(4):
            a(f"v_lshlrev_b32 v{P+2*r}, 16, v{x+r}")
            a(f"v_and_b32 v{P+2*r+1}, 0xffff0000, v{x+r}")
        for r in range(8): a(f"v_mul_f32 v{P+r}, v{P+r}, v{GW+r}")
        for r in range(4): a(f"v_cvt_pk_bf16_f32 v{x+r}, v{P+2*r}, v{P+2*r+1}")
        for r in range(4):
            a(f"v_lshlrev_b32 v{P+2*r}, 16, v{x+r}")
            a(f"v_and_b32 v{P+2*r+1}, 0xffff0000, v{x+r}")
        for r in range(4): a(f"v_add_f32 v{P+r}, v{P+r}, v{P+4+r}")
        for r in range(2): a(f"v_add_f32 v{P+r}, v{P+r}, v{P+2+r}")
        a(f"v_add_f32 v{P}, v{P}, v{P+1}")
        for sh in (1, 2, 4, 8):
            a(f"v_add_f32_dpp v{P}, v{P}, v{P} row_ror:{sh} row_mask:0xf bank_mask:0xf")
        for sw in ("v_permlane16_swap_b32", "v_permlane32_swap_b32"):
            a(f"v_mov_b32 v{P+1}, v{P}")
            a(f"{sw} v{P}, v{P+1}")
            a(f"v_add_f32 v{P}, v{P}, v{P+1}")
        if j == 0: a(f"v_mov_b32 v{ACC}, v{P}")
        else:
            a(f"v_cmp_eq_u32 vcc, {j}, v{L}")
            a(f"v_cndmask_b32 v{ACC}, v{ACC}, v{P}, vcc")
    a(f"v_cvt_pk_bf16_f32 v{ACC}, v{ACC}, v{ACC}")
    a(f"v_and_b32 v{ACC}, 0xffff0000, v{ACC}")
    a(f"v_mul_f32 v{ACC}, {f32bits(-1.4426950408889634):#x}, v{ACC}")
    a(f"v_exp_f32 v{ACC}, v{ACC}")
    a(f"v_add_f32 v{ACC}, 1.0, v{ACC}")
    a(f"v_rcp_f32 v{ACC}, v{ACC}")
    a(f"v_cvt_pk_bf16_f32 v{ACC}, v{ACC}, v{ACC}")
    a(f"v_and_b32 v{ACC}, 0xffff0000, v{ACC}")
    bitpat(a, P, L, [(0, 3, 4), (2, 1, OOB), (3, 1, OOB), (4, 1, OOB), (5, 1, OOB)], P + 1)
    a(f"s_lshl_b32 s{S_T0}, s{S_T0}, 4")
    a(f"s_add_u32 s{S_T0}, s{S_T0}, {WS_G}")
    a(f"buffer_store_dword v{ACC}, v{P}, {WS}, s{S_T0} offen sc1")

def role_spare(a, opt):
    a(f"v_lshrrev_b32 v1, 6, v0")
    a(f"v_readfirstlane_b32 s{S_WV}, v1")
    register_wg(a, 2, "L_g_noreg", barrier=False)
    a("s_branch L_done")
```

```python
from common import *

XB = (0, 32768)
EXB = 65536
V_L16, V_XR, V_XS, V_T0, V_T1, V_P1K = 0, 1, 5, 6, 7, 8
S_X = 32
S_SEG = 30
S_XOFF = 31
S_M0 = 36
S_DESC = (68, 72, 76)

def mf32(d, A, B, C): return f"v_mfma_f32_16x16x32_bf16 {vr(d,4)}, {A}, {B}, {C}"
def mf16(d, A, B, C): return f"v_mfma_f32_16x16x16_bf16 {vr(d,4)}, {A}, {B}, {C}"

def setup(a, L=127, T=126):
    a(f"v_and_b32 v{L}, 63, v0")
    a(f"v_lshrrev_b32 v{T}, 6, v0")
    a(f"v_readfirstlane_b32 s{S_WV}, v{T}")
    a(f"v_lshlrev_b32 v{V_L16}, 4, v{L}")
    for k in range(4):
        bitpat(a, V_XR + k, L, [(4, 3, 1)], T, 4 * k)
        a(f"v_and_b32 v{T}, 15, v{L}")
        a(f"v_xor_b32 v{V_XR+k}, v{V_XR+k}, v{T}")
        a(f"v_lshlrev_b32 v{V_XR+k}, 4, v{V_XR+k}")
        a(f"v_lshl_add_u32 v{V_XR+k}, v{T}, 10, v{V_XR+k}")
    a(f"s_and_b32 s{S_T0}, s{S_WV}, 1")
    a(f"s_lshl_b32 s{S_T0}, s{S_T0}, 7")
    a(f"v_xor_b32 v{V_XS}, s{S_T0}, v{V_L16}")
    a(f"s_lshl_b32 s{S_T0}, s{S_WV}, 10")
    a(f"v_add_u32 v{V_P1K}, s{S_T0}, v{V_L16}")
    srd(a, S_X, KA_X, 2048 * 1024)

def x_issue_groups(buf, seg):
    g = [f"s_lshl_b32 s{S_XOFF}, s{seg}, 15\ns_lshl_b32 s{S_M0}, s{S_WV}, 13\ns_add_u32 s{S_XOFF}, s{S_XOFF}, s{S_M0}"
         + (f"\ns_add_u32 s{S_M0}, s{S_M0}, {XB[buf]}" if XB[buf] else "")]
    for j in range(8):
        t = V_T0 + (j & 1)
        x = ""
        if j % 4 == 0:
            x += f"s_add_u32 m0, s{S_M0}, {j * 1024}\n"
            if j: x += f"s_add_u32 s{S_XOFF}, s{S_XOFF}, 4096\n"
        x += f"v_xor_b32 v{t}, {16 * j}, v{V_XS}\n"
        x += f"buffer_load_dwordx4 v{t}, s[{S_X}:{S_X+3}], s{S_XOFF} offen offset:{(j & 3) * 1024} lds"
        g.append(x)
    return g

def x_issue(a, buf, seg):
    for x in x_issue_groups(buf, seg): a(x)

def x_read(dst, buf, tt, ks):
    return f"ds_read_b128 {vr(dst,4)}, v{V_XR + (ks & 3)} offset:{XB[buf] + tt * 16384 + (ks >> 2) * 256}"

def load_weights(a, chunks, after_first, L=127, T=126):
    V_TR = 125
    pats = {}
    nxt = [123]
    for d, kind, pitch, off, dest in chunks:
        if (kind, pitch) not in pats:
            pats[(kind, pitch)] = nxt[0]
            chunk_src_pattern(a, nxt[0], L, T, (2, 1, 3, 0) if kind == 'proj' else (4, 1, 2, 0), pitch)
            nxt[0] -= 1
    chunk_tr_pattern(a, V_TR, L, T)
    a(f"s_lshl_b32 s{S_T3}, s{S_WV}, 15")
    a(f"v_add_u32 v{V_TR}, s{S_T3}, v{V_TR}")
    a(f"v_xor_b32 v{V_TR-1}, 32, v{V_TR}")
    n = len(chunks)
    def issue(ci):
        d, kind, pitch, off, dest = chunks[ci]
        a(f"s_add_u32 m0, s{S_T3}, {(ci & 7) * 4096}")
        for x in off: a(x)
        rows = [0, 16, 32, 48] if kind == 'proj' else [0, 8, 32, 40]
        for u in range(4):
            a(f"buffer_load_dwordx4 v{pats[(kind, pitch)]}, s[{d}:{d+3}], s{S_T0} offen offset:{u*1024} lds")
            if u < 3: a(f"s_add_u32 s{S_T0}, s{S_T0}, {(rows[u+1] - rows[u]) * pitch - 1024}")
    for ci in range(min(8, n)): issue(ci)
    for ci in range(n):
        left = min(7, n - 1 - ci)
        a(f"s_waitcnt vmcnt({4*left})")
        if ci == 0: after_first(a)
        for t in range(2):
            for pr in range(4):
                a(f"ds_read_b64_tr_b16 {ur(chunks[ci][4](t, pr), 2)}, v{V_TR - t} offset:{(ci & 7)*4096 + tr_off(pr)}")
        a("s_waitcnt lgkmcnt(0)")
        if ci + 8 < n: issue(ci + 8)
    a("s_barrier")

def proj_chunks(desc, pitch, colbyte_lines, wbase):
    out = []
    for kb in range(8):
        off = list(colbyte_lines) + ([f"s_add_u32 s{S_T0}, s{S_T0}, {kb * 64 * pitch}"] if kb else [])
        out.append((desc, 'proj', pitch, off, (lambda kb: lambda t, pr: wbase + (t * 16 + 2 * kb + (pr >> 1)) * 4 + 2 * (pr & 1))(kb)))
    return out

def out_chunks(desc, rowbase_lines, wbase):
    out = []
    for tp in range(4):
        for kb in range(2):
            off = list(rowbase_lines) + [f"s_lshl_b32 s{S_T1}, s{S_WV}, 8", f"s_add_u32 s{S_T0}, s{S_T0}, s{S_T1}",
                                         f"s_add_u32 s{S_T0}, s{S_T0}, {kb * 65536 + tp * 64}"]
            out.append((desc, 'out', 1024, off, (lambda tp, kb: lambda t, pr: wbase + ((2 * tp + t) * 4 + 2 * kb + (pr >> 1)) * 4 + 2 * (pr & 1))(tp, kb)))
    return out

def proj_phase(a, buf, xregs, mfmas):
    for tt in range(2): a(x_read(xregs + 4 * tt, buf, tt, 0))
    for ks in range(16):
        cur = xregs + 8 * (ks & 1); nx = xregs + 8 * (1 - (ks & 1))
        ms = mfmas(ks, [vr(cur, 4), vr(cur + 4, 4)])
        for i, m in enumerate(ms):
            a(m)
            if ks < 15 and i < 2: a(x_read(nx + 4 * i, buf, i, ks + 1))

def exchange(a, src, pos_sgpr_free, dst_all=None):
    pass

def out_phase(a, HF, wbase, acc, store):
    pend = None
    for ct in range(8):
        A = acc + 8 * (ct & 1)
        k = 0
        for i in range(4):
            for tt in range(2):
                a(mf32(A + 4 * tt, vr(HF + (tt * 4 + i) * 4, 4), ur(wbase + (ct * 4 + i) * 4, 4), "0" if i == 0 else vr(A + 4 * tt, 4)))
                if pend and k >= 2 and pend: a(pend.pop(0))
                k += 1
        pend = [f"v_cvt_pk_bf16_f32 v{A + r}, v{A + 2*r}, v{A + 2*r + 1}" for r in range(4)] + [store(ct, A)]
    for x in pend: a(x)

def poll_flags(a, lab, vt, voff, soff_sgpr, need_sgpr, lanes_mask, halves=False, pause=4):
    WS = f"s[{S_WS}:{S_WS+3}]"
    a(f"s_cmp_lg_u32 s{S_WV}, 0")
    a(f"s_cbranch_scc1 {lab}_ok")
    a(f"s_mov_b64 exec, s[{lanes_mask}:{lanes_mask+1}]")
    a.label(lab)
    a(f"buffer_load_dword v{vt}, v{voff}, {WS}, s{soff_sgpr} offen sc1")
    a(f"s_add_u32 s{S_SPIN}, s{S_SPIN}, 1")
    a(f"s_cmp_gt_u32 s{S_SPIN}, {SPIN_LIMIT}")
    a("s_cbranch_scc1 L_abort")
    a("s_waitcnt vmcnt(0)")
    if halves:
        a(f"v_lshrrev_b32 v{vt+1}, 16, v{vt}")
        a(f"v_and_b32 v{vt}, 0xffff, v{vt}")
        a(f"v_min_u32 v{vt}, v{vt}, v{vt+1}")
    a(f"v_cmp_gt_u32 vcc, s{need_sgpr}, v{vt}")
    a(f"s_cbranch_vccz {lab}_done")
    a(f"s_sleep {pause}")
    a(f"s_branch {lab}")
    a.label(f"{lab}_done")
    a("s_mov_b64 exec, -1")
    a.label(f"{lab}_ok")
    a("s_barrier")

def flag_store(a, vt, val_sgpr, off_sgpr, lab, st="sc1", op="buffer_store_dword"):
    WS = f"s[{S_WS}:{S_WS+3}]"
    a(f"s_cmp_lg_u32 s{S_WV}, 0")
    a(f"s_cbranch_scc1 {lab}")
    a("s_mov_b64 exec, 1")
    a(f"v_mov_b32 v{vt}, s{val_sgpr}")
    a(f"{op} v{vt}, off, {WS}, s{off_sgpr} {st}")
    a("s_mov_b64 exec, -1")
    a.label(lab)
```

```python
from common import *

MEMB = 131072
KB = (139264, 147456)
QB = 155648
KKB = QB + 4096
LDS_BYTES = 163840

V_LA, V_P1, V_MR1, V_MR2, V_MR3, V_QW, V_L4, V_QKR, V_WVO, V_OW, V_GATH, V_PST, V_PUB, V_IDX, V_SELX, V_FL = range(16)
V_ONES = 16
V_PB = 20
V_M = 24
V_AQ, V_AK, V_AV = 56, 64, 72
V_W = 80
V_VX = (112, 120)
WQ0, WK0, WV0, WO0 = 256, 384, 128, 192

def wq(t, s): return ur(WQ0 + (s * 2 + t) * 8, 8)
def wk(t, s): return ur(WK0 + (s * 2 + t) * 8, 8)
def wv_res(t, s): return ur(WV0 + ((s - 4) * 2 + t) * 8, 8)
def wo_res(t, kbo): return ur(WO0 + (t * 2 + kbo) * 8, 8)
def Mf(s): return vr(V_M + 4 * s, 4)
def Wb(j): return V_W + 8 * j

S_STEP = 30
S_MEMRD = 31
S_PST0, S_PST1 = 32, 33
S_INB0, S_INB1 = 34, 35
S_PUBN = 36
S_PUBC = 37
S_PH = 38
S_KPF, S_VPF = 39, 40
S_EXP = 41
S_FLP = 42
S_FLA = 43
S_AVAIL = 44
S_C = 45
S_LLO, S_LRG = 46, 47
S_SELM = 48
S_KM0 = 56
S_HB_PST, S_HB_INB, S_HB_PUB = 58, 59, 60
S_TCH = 61
S_HST, S_HLD = 23, 29
S_HST2, S_HLD2 = 64, 65
S_L0 = 66
S_TS = 76
S_ACC = 94

def smf(d, A, B): return f"v_smfmac_f32_16x16x64_bf16 {vr(d,4)}, {A}, {B}, v{V_IDX}"
def mf32(d, A, B, C): return f"v_mfma_f32_16x16x32_bf16 {vr(d,4)}, {A}, {B}, {C}"
def mf16(d, A, B, C): return f"v_mfma_f32_16x16x16_bf16 {vr(d,4)}, {A}, {B}, {C}"

V_TID = 123
HINT_STRIDE = [4]
S_KA = 40

def setup_lanes(a):
    L, T = 127, 126
    a(f"v_lshlrev_b32 v{V_LA}, 4, v{L}")
    a(f"s_lshl_b32 s{S_T0}, s{S_WV}, 13")
    a(f"v_add_u32 v{V_WVO}, s{S_T0}, v{V_LA}")
    a(f"v_add_u32 v{V_LA}, {MEMB}, v{V_LA}")
    for j, r in enumerate((V_P1, V_MR1, V_MR2, V_MR3)):
        a(f"s_xor_b32 s{S_T0}, s{S_WV}, {j}")
        a(f"s_lshl_b32 s{S_T0}, s{S_T0}, 11")
        a(f"v_add_u32 v{r}, s{S_T0}, v{V_LA}")
    bitpat(a, V_QW, L, [(5, 1, 8), (0, 15, 1)], T)
    a(f"v_and_b32 v{V_QW}, 15, v{V_QW}")
    a(f"v_and_b32 v{T}, 48, v{L}")
    a(f"v_add_u32 v{V_QW}, v{V_QW}, v{T}")
    a(f"v_lshlrev_b32 v{V_QW}, 3, v{V_QW}")
    a(f"s_lshl_b32 s{S_T0}, s{S_WV}, 10")
    a(f"s_add_u32 s{S_T0}, s{S_T0}, {QB}")
    a(f"v_add_u32 v{V_QW}, s{S_T0}, v{V_QW}")
    bitpat(a, V_QKR, L, [(1, 1, 8), (2, 15, 1)], T)
    a(f"v_and_b32 v{V_QKR}, 15, v{V_QKR}")
    a(f"v_and_b32 v{T}, 3, v{L}")
    a(f"v_lshl_add_u32 v{V_QKR}, v{T}, 4, v{V_QKR}")
    a(f"v_lshlrev_b32 v{V_QKR}, 3, v{V_QKR}")
    a(f"v_add_u32 v{V_QKR}, {QB}, v{V_QKR}")
    bitpat(a, V_OW, L, [(4, 3, 256), (2, 3, 64), (0, 1, 32), (1, 1, 4096)], T, MEMB)
    a(f"s_lshr_b32 s{S_T0}, s{S_WV}, 1")
    a(f"s_lshl_b32 s{S_T0}, s{S_T0}, 10")
    a(f"s_and_b32 s{S_T1}, s{S_WV}, 1")
    a(f"s_lshl_b32 s{S_T1}, s{S_T1}, 4")
    a(f"s_add_u32 s{S_T0}, s{S_T0}, s{S_T1}")
    a(f"v_add_u32 v{V_OW}, s{S_T0}, v{V_OW}")
    bitpat(a, T, L, [(1, 1, 16)], T)
    a(f"v_xor_b32 v{V_OW}, v{V_OW}, v{T}")
    HS = HINT_STRIDE[0]
    bitpat(a, V_L4, L, [(0, 31, HS), (5, 1, OOB)], T)
    if HS == 4: bitpat(a, V_GATH, L, [(0, 7, 128), (3, 1, OOB), (4, 1, OOB), (5, 1, OOB)], T)
    elif HS == 32: bitpat(a, V_GATH, L, [(3, 7, 1024), (0, 7, 4)], T)
    else: bitpat(a, V_GATH, L, [(4, 3, 2048), (0, 15, 4)], T)
    a(f"s_cmp_eq_u32 s{S_WV}, 3")
    a(f"s_cselect_b64 vcc, -1, 0")
    a(f"v_cndmask_b32 v{V_L4}, v{V_L4}, v{V_GATH}, vcc")
    a(f"s_mul_i32 s{S_T0}, s{S_H}, {HS}")
    a(f"s_add_u32 s{S_T0}, s{S_T0}, {WS_HINT}")
    a(f"s_cmp_eq_u32 s{S_WV}, 3")
    a(f"s_cselect_b32 s{S_HST}, s{S_T0}, {OOB}")
    a(f"s_and_b32 s{S_T0}, s{S_H}, {3 if HS == 64 else 7}")
    a(f"s_mul_i32 s{S_T0}, s{S_T0}, {32 * HS}")
    a(f"s_add_u32 s{S_T0}, s{S_T0}, {WS_HINT}")
    a(f"s_cmp_eq_u32 s{S_WV}, 0")
    a(f"s_cselect_b32 s{S_HLD}, s{S_T0}, {OOB}")
    bitpat(a, V_GATH, L, [(1, 7, 1024), (4, 3, 32), (0, 1, 16)], T)
    a(f"s_lshl_b32 s{S_T0}, s{S_WV}, 8")
    a(f"v_add_u32 v{V_GATH}, s{S_T0}, v{V_GATH}")
    bitpat(a, V_PST, L, [(4, 3, 8192), (0, 15, 16)], T)
    a(f"s_lshl_b32 s{S_T0}, s{S_WV}, 16")
    a(f"v_add_u32 v{V_PST}, s{S_T0}, v{V_PST}")
    bitpat(a, V_PUB, L, [(1, 3, 256), (0, 1, 32), (5, 1, 16), (4, 1, 8), (3, 1, OOB)], T)
    a(f"v_and_b32 v{T}, 1, v{L}")
    a(f"v_cmp_eq_u32 vcc, 1, v{T}")
    a(f"v_mov_b32 v{V_IDX}, 0x44444444")
    a(f"v_mov_b32 v{T}, 0xeeeeeeee")
    a(f"v_cndmask_b32 v{V_IDX}, v{V_IDX}, v{T}, vcc")
    a(f"v_mov_b32 v{V_SELX}, 0x3f80")
    a(f"v_mov_b32 v{T}, 0x3f800000")
    a(f"v_cndmask_b32 v{V_SELX}, v{V_SELX}, v{T}, vcc")
    a(f"v_bfe_u32 v{T}, v{L}, 1, 3")
    for r in range(4):
        a(f"v_cmp_eq_u32 s[{S_SELM+2*r}:{S_SELM+2*r+1}], {r}, v{T}")
    a(f"v_cmp_eq_u32 s[{S_L0}:{S_L0+1}], 64, v{V_TID}")
    for r in range(4):
        a(f"v_mov_b32 v{V_ONES+r}, 0x3f803f80")
        a(f"v_mov_b32 v{V_PB+r}, 0")

PSTAMP = [-1]
CODEPF = [0]
S_DQ = (68, 72, 76, 80)
V_SQ, V_SO = 125, 124
ROUNDS = [('q', s) for s in (0, 1, 4, 5)] + [('k', s) for s in (0, 1, 4, 5)] + [('v', 4), ('v', 5), ('o', (0, 0)), ('o', (0, 1))] \
    + [('v', 0), ('v', 1), ('o', (1, 0)), ('o', (1, 1))]

def src_pattern(a, dst, L, T, bits, pitch):
    bitpat(a, dst, L, [(3, 1, pitch << bits[0]), (4, 1, pitch << bits[1]), (5, 1, pitch << bits[2]), (0, 1, 16)], T)
    for sh, bit in ((2, 4), (4, 2)):
        a(f"v_lshrrev_b32 v{T}, {sh}, v{L}")
        a(f"v_xor_b32 v{T}, v{T}, v{L}")
        a(f"v_and_b32 v{T}, {bit}, v{T}")
        a(f"v_lshl_add_u32 v{dst}, v{T}, 4, v{dst}")

class VmQueue:
    def __init__(self): self.q = []
    def add(self, tag, n=1): self.q += [tag] * n
    def wait(self, a, tag):
        last = max(i for i, t in enumerate(self.q) if t == tag)
        a(f"s_waitcnt vmcnt({len(self.q) - 1 - last})")
        self.q = self.q[last + 1:]
    def done(self, tag): return tag not in self.q

def issue_round(a, i, vq):
    kind, p = ROUNDS[i]
    if kind != 'o':
        a(f"s_xor_b32 s{S_T0}, s{S_WV}, {p >> 1}")
        a(f"s_lshl_b32 s{S_T0}, s{S_T0}, 20")
        a(f"s_add_u32 s{S_T0}, s{S_T0}, s{S_T2}")
        if p & 1: a(f"s_add_u32 s{S_T0}, s{S_T0}, {64 * 8192}")
        rows, pitch, v = (16, 2, 32), 8192, V_SQ
    else:
        a(f"s_lshl_b32 s{S_T0}, s{S_H}, 17")
        a(f"s_lshl_b32 s{S_T1}, s{S_WV}, 8")
        a(f"s_add_u32 s{S_T0}, s{S_T0}, s{S_T1}")
        a(f"s_add_u32 s{S_T0}, s{S_T0}, {p[1] * 65536 + p[0] * 128}")
        rows, pitch, v = (4, 2, 8), 1024, V_SO
    d = S_DQ['qkvo'.index(kind)]
    prev = 0
    for u in range(8):
        off = sum(rows[b] for b in range(3) if u >> b & 1) * pitch - (u & 3) * 1024
        if u & 3 == 0: a(f"s_add_u32 m0, s{S_T3}, {(i & 3) * 32768 + (u >> 2) * 4096}")
        if off != prev: a(f"s_add_u32 s{S_T0}, s{S_T0}, {(off - prev) & 0xffffffff:#x}")
        prev = off
        a(f"buffer_load_dwordx4 v{v}, s[{d}:{d+3}], s{S_T0} offen offset:{(u & 3)*1024} lds")
    vq.add(('w', i), 8)

def start_weights(a, vq):
    L, T = 127, 126
    a(f"v_mov_b32 v{V_TID}, v0")
    a(f"v_and_b32 v{L}, 63, v0")
    a(f"v_lshrrev_b32 v{T}, 6, v0")
    a(f"v_readfirstlane_b32 s{S_WV}, v{T}")
    if CODEPF[0]:
        a("s_getpc_b64 s[8:9]")
        a.label("L_pc")
        a("s_and_b32 s9, s9, 0xffff")
        a("s_mov_b32 s10, L_code_end-L_pc")
        a("s_mov_b32 s11, 0x20000")
        a(f"s_lshl_b32 s{S_T0}, s{S_H}, 12")
        a(f"v_lshlrev_b32 v{T}, 4, v0")
        a(f"buffer_load_dwordx4 v[24:27], v{T}, s[8:11], s{S_T0} offen")
        vq.add('code')
    src_pattern(a, V_SQ, L, T, (0, 3, 2), 8192)
    a(f"s_lshl_b32 s{S_T3}, s{S_WV}, 13")
    a(f"s_lshr_b32 s{S_T1}, s{S_WV}, 1")
    a(f"s_lshl_b32 s{S_T1}, s{S_T1}, 7")
    a(f"s_lshl_b32 s{S_T2}, s{S_H}, 8")
    a(f"s_add_u32 s{S_T2}, s{S_T2}, s{S_T1}")
    a("s_waitcnt lgkmcnt(0)")
    for base, src, size in ((S_D, S_KA + 8, 256), (S_WS, S_KA + 10, WS_SIZE)):
        a(f"s_mov_b32 s{base}, s{src}")
        a(f"s_and_b32 s{base+1}, s{src+1}, 0xffff")
        a(f"s_mov_b32 s{base+2}, {size:#x}")
        a(f"s_mov_b32 s{base+3}, 0x20000")
    register_wg(a, V_W, "L_ch_noreg", barrier=False)
    for j, d in enumerate(S_DQ):
        a(f"s_mov_b32 s{d}, s{S_KA + 2*j}")
        a(f"s_and_b32 s{d+1}, s{S_KA + 2*j + 1}, 0xffff")
        a(f"s_mov_b32 s{d+2}, 0x400000")
        a(f"s_mov_b32 s{d+3}, 0x20000")
        if j == 0:
            for i in range(3): issue_round(a, i, vq)

def load_weights(a, hooks, vq):
    L, T = 127, 126
    TQ, TO = V_AQ, V_AQ + 4
    TMP = V_W
    S_CB = 64
    a(f"s_mov_b32 s{S_CB}, s{S_T2}")
    src_pattern(a, V_SO, L, T, (0, 5, 4), 1024)
    bitpat(a, TO, L, [(5, 1, 1024), (4, 1, 512 + 32), (3, 1, 256 + 64), (2, 1, 128), (0, 3, 8)], T)
    a(f"s_lshl_b32 s{S_T0}, s{S_WV}, 13")
    a(f"v_add_u32 v{TO}, s{S_T0}, v{TO}")
    for j in range(1, 4): a(f"v_xor_b32 v{TO + j}, {32 * j}, v{TO}")
    a(f"s_and_b32 s{S_T0}, s{S_WV}, 1")
    a(f"s_lshl_b32 s{S_T0}, s{S_T0}, 6")
    a(f"v_xor_b32 v{TQ}, s{S_T0}, v{TO}")
    a(f"v_xor_b32 v{TQ+1}, 32, v{TQ}")
    a(f"v_xor_b32 v{TQ+2}, 8192, v{TQ}")
    a(f"v_xor_b32 v{TQ+3}, 8192, v{TQ+1}")
    for i in range(16):
        kind, p = ROUNDS[i]
        vq.wait(a, ('w', i))
        a("s_barrier")
        if i + 3 < 16:
            a(f"s_mov_b32 s{S_T2}, s{S_CB}")
            a(f"s_lshl_b32 s{S_T3}, s{S_WV}, 13")
            issue_round(a, i + 3, vq)
        if i in hooks: hooks[i](a)
        if i == PSTAMP[0]:
            a("s_memrealtime s[62:63]"); a("s_waitcnt lgkmcnt(0)"); a(f"s_sub_u32 s{S_ACC}, s62, s92"); a(f"s_lshl_b32 s{S_ACC}, s{S_ACC}, 2")
        if i and i % 2 == 0:
            for j in range(8): a(f"v_xor_b32 v{TQ + j}, 0x10000, v{TQ + j}")
        for j in range(2):
            for t in range(2):
                if i >= 12: base = TMP + 16 * j + 8 * t
                elif kind == 'q': base = WQ0 + ((p + 2 * j) * 2 + t) * 8
                elif kind == 'k': base = WK0 + ((p + 2 * j) * 2 + t) * 8
                elif kind == 'v': base = WV0 + ((p + 2 * j - 4) * 2 + t) * 8
                else: base = WO0 + ((2 * j + t) * 2 + p[1]) * 8
                ad = (TO if kind == 'o' else TQ) + 2 * j + t
                for pr in range(4):
                    a(f"ds_read_b64_tr_b16 {ur(base + 2*pr, 2)}, v{ad} offset:{(i & 1)*32768 + (pr >> 1)*4096 + (pr & 1)*2048}")
            a("s_waitcnt lgkmcnt(0)")
        if i >= 12:
            a("s_barrier")
            if i == 14: a(f"v_xor_b32 v{V_WVO}, 0x10000, v{V_WVO}")
            for q in range(8):
                a(f"ds_write_b128 v{V_WVO}, {vr(TMP + 4*q, 4)} offset:{(i & 1)*32768 + q*1024}")
            a("s_waitcnt lgkmcnt(0)")
    a(f"v_xor_b32 v{V_WVO}, 0x10000, v{V_WVO}")

def lds_wv(s, t, h): return (s & 1) * 32768 + (s >> 1) * 4096 + t * 2048 + h * 1024
def lds_wo(t, kbo, h): return kbo * 32768 + ((t >> 1) - 2) * 4096 + (t & 1) * 2048 + h * 1024
FLIP = f"v_xor_b32 v{V_WVO}, 0x10000, v{V_WVO}"
def rd_wv(dst, s, t): return [f"ds_read_b128 {vr(dst + 4*h, 4)}, v{V_WVO} offset:{lds_wv(s, t, h)}" for h in range(2)]
def rd_wo(dst, t, kbo): return [f"ds_read_b128 {vr(dst + 4*h, 4)}, v{V_WVO} offset:{lds_wo(t, kbo, h)}" for h in range(2)]

def slot_lines():
    return [
        f"s_and_b32 s{S_T0}, s{S_STEP}, 3",
        f"s_lshl_b32 s{S_T1}, s{S_T0}, 13",
        f"s_add_u32 s{S_PUBC}, s{S_T1}, s{S_HB_PUB}",
        f"s_and_b32 s{S_T0}, s{S_T0}, 1",
        f"s_lshl_b32 s{S_T1}, s{S_T0}, 18",
        f"s_add_u32 s{S_PST0}, s{S_T1}, s{S_HB_PST}",
        f"s_add_u32 s{S_PST1}, s{S_PST0}, 32768",
        f"s_add_u32 s{S_INB0}, s{S_T1}, s{S_HB_INB}",
        f"s_add_u32 s{S_INB1}, s{S_INB0}, 4096",
        f"s_bfe_u32 s{S_PH}, s{S_STEP}, 0x10001",
        f"s_add_u32 s{S_T0}, s{S_STEP}, 1",
        f"s_and_b32 s{S_T0}, s{S_T0}, 3",
        f"s_lshl_b32 s{S_T0}, s{S_T0}, 13",
        f"s_add_u32 s{S_PUBN}, s{S_T0}, s{S_HB_PUB}",
        f"s_add_u32 s{S_MEMRD}, s{S_T0}, {WS_MEMRING - MEMB}"]

def idle_a(a, par_next):
    wv_preload(a)
    copy_export(a, par_next)

def wv_preload(a):
    for j in range(4):
        for x in rd_wv(Wb(j), j >> 1, j & 1): a(x)

def copy_export(a, par_next):
    vn = V_VX[1 - par_next]
    for r in range(4): a(f"v_mov_b32 v{vn + r}, v{V_AK + r}")

def zero_b(a):
    for r in list(range(V_AQ + 4, V_AQ + 8)) + list(range(V_AK, V_AK + 4)): a(f"v_mov_b32 v{r}, 0")

def idle_b(a, par_next, tag, young):
    zero_b(a)
    a(f"s_waitcnt vmcnt({young})")
    avail_check(a, tag)

def idle_c1(a):
    for r in list(range(V_AQ, V_AQ + 4)) + list(range(V_AV, V_AV + 8)): a(f"v_mov_b32 v{r}, 0")

def idle_c(a, par_next, done=False):
    if not done: idle_c1(a)
    a("s_waitcnt vmcnt(2)")
    for r in range(V_AK + 4, V_AK + 8): a(f"v_mov_b32 v{r}, 0")

def avail_check(a, tag):
    a(f"v_readfirstlane_b32 s{S_AVAIL}, v{V_FL}")
    a(f"s_lshr_b32 s{S_T0}, s{S_AVAIL}, 16")
    a(f"s_and_b32 s{S_AVAIL}, s{S_AVAIL}, 0xffff")
    a(f"s_min_u32 s{S_AVAIL}, s{S_AVAIL}, s{S_T0}")
    a(f"s_add_u32 s{S_T0}, s{S_STEP}, 2")
    a(f"s_min_u32 s{S_T0}, s{S_T0}, 64")
    a(f"s_cmp_ge_u32 s{S_AVAIL}, s{S_T0}")
    a(f"s_cbranch_scc0 {tag}_slow")
    a.label(f"{tag}_ok")

def avail_slow(a, tag):
    a.label(f"{tag}_slow")
    a(f"buffer_load_dword v{V_FL}, off, s[{S_WS}:{S_WS+3}], s{S_FLP} sc1")
    a(f"s_add_u32 s{S_SPIN}, s{S_SPIN}, 1")
    a(f"s_cmp_gt_u32 s{S_SPIN}, {SPIN_LIMIT}")
    a("s_cbranch_scc1 L_abort")
    a("s_waitcnt vmcnt(0)")
    a(f"v_readfirstlane_b32 s{S_AVAIL}, v{V_FL}")
    a(f"s_lshr_b32 s{S_T1}, s{S_AVAIL}, 16")
    a(f"s_and_b32 s{S_AVAIL}, s{S_AVAIL}, 0xffff")
    a(f"s_min_u32 s{S_AVAIL}, s{S_AVAIL}, s{S_T1}")
    a(f"s_cmp_ge_u32 s{S_AVAIL}, s{S_T0}")
    a(f"s_cbranch_scc0 {tag}_slow")
    a(f"s_branch {tag}_ok")

def step(a, par, st, tag, opt, nxt=None):
    WS = f"s[{S_WS}:{S_WS+3}]"
    VXc, VXn = V_VX[par], V_VX[1 - par]
    Kc = KB[par] - MEMB
    T0 = V_PB + 3
    stamp = opt.get('stamp') or (None, None)
    trace = opt.get('trace', [])
    def st_list(name):
        if opt.get('series') == name:
            return [f"s_memtime s[{S_TS}:{S_TS+1}]", f"s_lshl_b32 s{S_TS+2}, s{S_STEP}, 2", f"s_lshl_b32 s{S_TS+3}, s{S_H}, 8", f"s_add_u32 s{S_TS+2}, s{S_TS+2}, s{S_TS+3}",
                    f"s_add_u32 s{S_TS+2}, s{S_TS+2}, {WS_STAMP + 0x30000}", "s_waitcnt lgkmcnt(0)", f"v_mov_b32 v{V_PB}, s{S_TS}",
                    f"buffer_store_dword v{V_PB}, off, {WS}, s{S_TS+2}"]
        if name in trace:
            k = 68 + trace.index(name)
            return [f"s_memtime s[{S_TS}:{S_TS+1}]", "s_waitcnt lgkmcnt(0)", f"s_cmp_eq_u32 s{S_STEP}, {opt.get('tstep', 20) + (1 if name in ('join', 'pub', 'h2iss', 'h1iss', 'pst', 'oex') else 0) + (1 if name == 'entry' and opt.get('nextentry') else 0)}",
                    f"s_cselect_b32 s{k}, s{S_TS}, s{k}"]
        if stamp[0] == name:
            return [f"s_memtime s[{S_TS}:{S_TS+1}]", "s_waitcnt lgkmcnt(0)"]
        if stamp[1] == name:
            return [f"s_memtime s[{S_TS+2}:{S_TS+3}]", "s_waitcnt lgkmcnt(0)", f"s_sub_u32 s{S_TS+2}, s{S_TS+2}, s{S_TS}",
                    f"s_cmp_lt_u32 s{S_STEP}, 2", f"s_cselect_b32 s{S_TS+2}, 3000, s{S_TS+2}", f"s_cselect_b32 s{S_TS+3}, 3000, 0", f"s_sub_u32 s{S_ACC}, s{S_ACC}, s{S_TS+3}",
                    f"s_add_u32 s{S_ACC}, s{S_ACC}, s{S_TS+2}", f"s_max_u32 s74, s74, s{S_TS+2}", f"s_min_u32 s73, s73, s{S_TS+2}",
                    f"s_cmp_gt_u32 s{S_TS+2}, {opt.get('thr', 100000)}", "s_addc_u32 s72, s72, 0"]
        return []
    def st_at(name):
        for x in st_list(name): a(x)
    a.label(f"{tag}_h1")
    a("s_waitcnt vmcnt(0)")
    a.label(f"{tag}_entry")
    st_at('entry')
    M = V_M
    if opt.get('w0', 1): a(f"ds_write_b128 v{V_P1}, {Mf(0)}")
    a(f"v_max3_u32 v{T0}, v{M+1}, v{M+3}, v{M+5}")
    a(f"v_max_u32 v{T0}, v{T0}, v{M+7}")
    a(f"v_cmp_eq_u32 vcc, -1, v{T0}")
    a.label(f"{tag}_entry2")
    mains = []; F = {}
    nobg = opt.get('nobg', '')
    def add(i, *xs): F.setdefault(i, []).extend(xs)
    AQ = lambda t: V_AQ + 4 * t
    AK = lambda t: V_AK + 4 * t
    AV = lambda t: V_AV + 4 * t
    for s in range(2):
        for t in range(2): mains.append(smf(AQ(t), Mf(s), wq(t, s)))
    for s in range(2):
        for t in range(2): mains.append(smf(AK(t), Mf(s), wk(t, s)))
    for s in range(2):
        for t in range(2): mains.append(smf(AV(t), Mf(s), vr(Wb(2*s + t), 8)))
    M = V_M
    add(1, f"s_cbranch_vccnz {tag}_h1retry")
    if not opt.get('w0', 1): add(1, f"ds_write_b128 v{V_P1}, {Mf(0)}")
    add(opt.get('w1', 2), f"ds_write_b128 v{V_P1}, {Mf(1)} offset:1024")
    B1 = opt.get('b1', 6)
    add(B1, "s_waitcnt lgkmcnt(0)", *st_list('prebar1'), "s_barrier", *st_list('bar1'))
    mr = (V_MR1, V_MR2, V_MR3)
    for j, s in enumerate(range(2, 8)):
        add(B1 + j, f"ds_read_b128 {Mf(s)}, v{mr[(s >> 1) - 1]} offset:{(s & 1) * 1024}")
    for s in range(2, 8):
        for t in range(2): mains.append(smf(AQ(t), Mf(s), wq(t, s)))
    wvr = [x for j in range(4) for x in rd_wv(Wb(j), 2 + (j >> 1), j & 1)]
    for i, x in enumerate(wvr): add(14 + i, x)
    for s in range(2, 4):
        for t in range(2): mains.append(smf(AV(t), Mf(s), vr(Wb(2*(s-2) + t), 8)))
    for s in range(2, 8):
        for t in range(2): mains.append(smf(AK(t), Mf(s), wk(t, s)))
    ex4 = [f"buffer_store_dwordx4 {vr(VXn,4)}, v{V_LA}, {WS}, s{S_EXP} offen sc1"]
    bg = [f"buffer_load_dwordx4 v{V_P1}, {WS}, s{S_KPF} offen sc1 lds",
          f"buffer_load_dwordx4 v{V_P1}, {WS}, s{S_KPF} offen offset:1024 sc1 lds",
          f"buffer_load_dwordx4 {vr(VXn+4,4)}, v{V_P1}, {WS}, s{S_VPF} offen offset:1024 sc1",
          f"buffer_load_dwordx4 {vr(VXn,4)}, v{V_P1}, {WS}, s{S_VPF} offen sc1",
          f"buffer_load_dword v{V_FL}, off, {WS}, s{S_FLP} sc1"]
    vpos = opt.get('vpos', (13, 15, 17, 19, 21, 22))
    add(5, f"s_mov_b32 m0, s{S_KM0 + (1 - par)}")
    for x, i in zip(ex4 + bg, vpos): add(i, x)
    add(20, f"s_sub_u32 s{S_T2}, s{S_STEP}, 1", f"s_max_i32 s{S_T2}, s{S_T2}, 0")
    add(21, f"v_mov_b32 v{V_PB}, s{S_T2}")
    add(23, f"buffer_store_dword v{V_PB}, v{V_GATH}, {WS}, s{S_FLA} offen sc1")
    sal = slot_lines() + [f"s_add_u32 s{S_EXP}, s{S_EXP}, {32*4096}", f"s_add_u32 s{S_KPF}, s{S_KPF}, {32*8192}", f"s_add_u32 s{S_VPF}, s{S_VPF}, {32*8192}"]
    if opt.get('samekv'): sal = sal[:-2]
    if opt.get('sameexp'): sal = [x for x in sal if f"s{S_EXP}," not in x]
    for j, x in enumerate(sal): F.setdefault(23 + j, []).insert(0, x)
    QF, KF = Wb(0), Wb(2)
    KX = [V_M, V_M + 4, Wb(2), Wb(2) + 4, Wb(3), Wb(3) + 4, V_M + 8, V_M + 12]
    qtr = [f"ds_read_b64_tr_b16 {vr(QF + 4*i + 2*hh, 2)}, v{V_QKR} offset:{i*1024 + hh*512}" for i in range(4) for hh in range(2)]
    kxr = [f"ds_read_b128 {vr(KX[2*i + T], 4)}, v{V_LA} offset:{Kc + T*4096 + i*1024}" for i in range(4) for T in range(2)]
    q0, q1 = AQ(0), AQ(1)
    add(22, kxr[0]); add(23, kxr[1])
    add(24, f"v_add_f32 v{q0}, v{q0}, v{q0+1}")
    add(25, f"v_add_f32 v{q0+2}, v{q0+2}, v{q0+3}")
    add(26, f"v_cvt_pk_bf16_f32 v{q0}, v{q0}, v{q0+2}")
    add(27, f"ds_write_b32 v{V_QW}, v{q0}", f"v_add_f32 v{q1}, v{q1}, v{q1+1}")
    add(28, kxr[2], f"v_add_f32 v{q1+2}, v{q1+2}, v{q1+3}")
    add(29, kxr[3], f"v_cvt_pk_bf16_f32 v{q1}, v{q1}, v{q1+2}")
    add(30, f"ds_write_b32 v{V_QW}, v{q1} offset:512")
    add(31, kxr[4]); add(32, kxr[5]); add(33, kxr[6])
    add(33, FLIP)
    B2 = opt.get('b2', 34)
    add(B2, "s_waitcnt lgkmcnt(3)", *st_list('prebar2'), "s_barrier", *st_list('bar2'))
    for j, x in enumerate(qtr): add(B2 + j, x)
    SX = lambda T: V_AQ + 4 * T
    for s in (4,):
        for t in range(2): mains.append(smf(AV(t), Mf(s), wv_res(t, s)))
    for i in range(4):
        for T in range(2):
            mains.append(mf32(SX(T), vr(KX[2*i + T], 4), vr(QF + 4*i, 4), "0" if i == 0 else vr(SX(T), 4)))
    k0, k1 = AK(0), AK(1)
    add(40, f"v_add_f32 v{k0}, v{k0}, v{k0+1}")
    add(41, f"v_add_f32 v{k0+2}, v{k0+2}, v{k0+3}")
    add(42, f"v_cvt_pk_bf16_f32 v{k0}, v{k0}, v{k0+2}", f"v_add_f32 v{k1}, v{k1}, v{k1+1}")
    add(43, f"ds_write_b32 v{V_QW}, v{k0} offset:4096", f"v_add_f32 v{k1+2}, v{k1+2}, v{k1+3}")
    add(44, kxr[7], f"v_cvt_pk_bf16_f32 v{k0+1}, v{k1}, v{k1+2}")
    add(45, f"ds_write_b32 v{V_QW}, v{k0+1} offset:4608")
    B3 = opt.get('b3', 49)
    add(B3, "s_waitcnt lgkmcnt(0)", *st_list('prebar3'), "s_barrier", *st_list('bar3'))
    ktr = [f"ds_read_b64_tr_b16 {vr(KF + 4*i + 2*hh, 2)}, v{V_QKR} offset:{4096 + i*1024 + hh*512}" for i in range(4) for hh in range(2)]
    for s in (5, 6, 7):
        for t in range(2): mains.append(smf(AV(t), Mf(s), wv_res(t, s)))
    for x, i in zip(ktr, opt.get('ktrpos', (49, 49, 50, 51, 52, 53, 54, 55))): add(i, x)
    ex = [f"v_exp_f32 v{V_AQ + r}, v{V_AQ + r}" for r in range(8)]
    for x, i in zip(ex, opt.get('expos', (50, 51, 52, 53, 54, 55, 56, 57))): add(i, x)
    SM = V_AK + 4
    for i in range(4):
        mains.append(mf32(SM, vr(KF + 4*i, 4), vr(QF + 4*i, 4), "0" if i == 0 else vr(SM, 4)))
    PX = V_AQ
    v0_, v1_ = AV(0), AV(1)
    add(58, f"v_cvt_pk_bf16_f32 v{PX}, v{V_AQ}, v{V_AQ+1}", f"v_cvt_pk_bf16_f32 v{PX+1}, v{V_AQ+2}, v{V_AQ+3}")
    add(59, f"v_cvt_pk_bf16_f32 v{PX+2}, v{V_AQ+4}, v{V_AQ+5}", f"v_cvt_pk_bf16_f32 v{PX+3}, v{V_AQ+6}, v{V_AQ+7}",
            f"v_add_f32 v{v0_}, v{v0_}, v{v0_+1}", f"v_add_f32 v{v0_+2}, v{v0_+2}, v{v0_+3}")
    OA, LA = V_M, V_M + 8
    mains.append(mf32(LA, vr(V_ONES, 4), vr(PX, 4), "0"))
    mains.append(mf32(OA, vr(VXc, 4), vr(PX, 4), "0"))
    mains.append(mf32(OA + 4, vr(VXc + 4, 4), vr(PX, 4), "0"))
    add(60, f"v_mul_f32 v{SM}, s{S_C}, v{SM}", f"v_mul_f32 v{SM+1}, s{S_C}, v{SM+1}")
    add(61, f"v_exp_f32 v{SM}, v{SM}", f"v_exp_f32 v{SM+1}, v{SM+1}")
    add(62, f"v_cvt_pk_bf16_f32 v{V_AK+2}, v{v0_}, v{v0_+2}", f"v_cvt_pk_bf16_f32 v{V_PB}, v{SM}, v{SM+1}",
            f"v_add_f32 v{v1_}, v{v1_}, v{v1_+1}", f"v_add_f32 v{v1_+2}, v{v1_+2}, v{v1_+3}")
    mains.append(mf16(LA, vr(V_ONES, 2), vr(V_PB, 2), vr(LA, 4)))
    add(63, f"v_cvt_pk_bf16_f32 v{V_AK+3}, v{v1_}, v{v1_+2}", f"v_cvt_pk_bf16_f32 v{V_PB+3}, v{SM}, v{SM+1}")
    mains.append(mf16(OA, vr(V_AK + 2, 2), vr(V_PB, 2), vr(OA, 4)))
    mains.append(mf16(OA + 4, vr(V_AK + 2, 2), vr(V_PB + 2, 2), vr(OA + 4, 4)))
    wo_order = [(t, kbo) for t in range(4, 8) for kbo in range(2)]
    wor = [x for j in range(4) for x in rd_wo(Wb(j), *wo_order[j])]
    npre = opt.get('npre', 4)
    for x, i in zip(wor[:npre], (64, 64, 65, 65, 65, 65, 65, 65)): add(i, x)
    drop = opt.get('drop', [])
    if drop:
        F = {i: [x for x in xs if not any(x.startswith(d) for d in drop)] for i, xs in F.items()}
    interleave(a, mains, F)
    st_at('pv')
    if par == 1:
        a(f"s_cmp_eq_u32 s{S_STEP}, 63")
        a(f"s_cbranch_scc1 L_chain_done")
    INV, OW = V_AQ + 0, V_AQ + 4
    a(f"v_rcp_f32 v{INV}, v{LA}")
    for hh in range(2):
        if opt.get('pkn', 1):
            for r in range(4 * hh, 4 * hh + 4, 2): a(f"v_pk_mul_f32 {vr(OA+r,2)}, {vr(OA+r,2)}, {vr(INV,2)} op_sel_hi:[1,0]")
        else:
            for r in range(4 * hh, 4 * hh + 4): a(f"v_mul_f32 v{OA+r}, v{OA+r}, v{INV}")
        for r in range(2 * hh, 2 * hh + 2): a(f"v_cvt_pk_bf16_f32 v{OW+r}, v{OA+2*r}, v{OA+2*r+1}")
        if not opt.get('ow128'): a(f"ds_write_b64 v{V_OW}, {vr(OW + 2*hh, 2)} offset:{8*hh}")
    if opt.get('ow128'): a(f"ds_write_b128 v{V_OW}, {vr(OW, 4)}")
    a(f"v_subrev_u32 v{INV+1}, s{S_LLO}, v{LA}")
    a(f"v_cmp_le_u32 vcc, s{S_LRG}, v{INV+1}")
    zacc = lambda t: mf16(V_M + 4*t, vr(V_PB + 2, 2), vr(V_PB, 2), "0")
    nb1, nb2 = opt.get('nb1', 0), opt.get('nb2', 0)
    b1l = wor[npre:npre + nb1]
    for t in range(opt.get('z1', 4)):
        a(zacc(t))
        for x in b1l[t::4]: a(x)
    a(f"s_cbranch_vccnz {tag}_fallback")
    a.label(f"{tag}_fbdone")
    a(f"s_waitcnt lgkmcnt({nb1})")
    st_at('prebar4')
    a("s_barrier")
    st_at('bar4')
    OF = VXc
    a(f"ds_read_b128 {vr(OF,4)}, v{V_LA}")
    a(f"ds_read_b128 {vr(OF+4,4)}, v{V_LA} offset:1024")
    HV = V_AK + 4
    a(f"s_add_u32 s{S_STEP}, s{S_STEP}, 1")
    for t in range(opt.get('z1', 4), 8):
        a(zacc(t))
        for x in wor[npre + nb1:npre + nb1 + nb2][t - 4::4]: a(x)
        if t == 4: a(f"v_mov_b32 v{HV}, s{S_STEP}")
    st_at('oex')
    mains = []; F = {}
    P = lambda t: V_M + 4 * t
    for t in range(4):
        for kbo in range(2): mains.append(smf(P(t), vr(OF + 4*kbo, 4), wo_res(t, kbo)))
    src = [Wb(0), Wb(1), Wb(2), Wb(3), V_AQ, V_AV, Wb(0), Wb(1)]
    for j, (t, kbo) in enumerate(wo_order): mains.append(smf(P(t), vr(OF + 4*kbo, 4), vr(src[j], 8)))
    nd = npre + nb1 + nb2
    late = wor[nd:] + [x for j in range(4, 8) for x in rd_wo(src[j], *wo_order[j])]
    n1 = 12 - nd
    lpos = [min(7, (j * 8) // max(n1, 8)) for j in range(n1)] + list(opt.get('lp', (8, 9, 9, 10)))
    for x, i in zip(late, lpos): add(i, x)
    split = opt.get('split', 0)
    def fold(t, dst):
        p = P(t)
        return [f"v_add_f32 v{p}, v{p}, v{p+1}", f"v_add_f32 v{p+2}, v{p+2}, v{p+3}", f"v_cvt_pk_bf16_f32 v{dst}, v{p}, v{p+2}"]
    for t in range(6):
        y = fold(t, P(t & 4) + (t & 3))
        add(2 * t + 3, y[0]); add(2 * t + 4, y[1], y[2])
        if t & 3 == 0: add(2 * t + 5, f"v_and_or_b32 v{P(t)}, v{P(t)}, -2, s{S_PH}")
        if split and t == 2: add(2 * t + 5, f"v_and_or_b32 v{P(0)+2}, v{P(0)+2}, -2, s{S_PH}")
    add(11, FLIP)
    y6 = fold(6, P(4) + 2); add(15, y6[0])
    sp = opt.get('st0', 11)
    F[sp].insert(0, f"buffer_store_dwordx4 {vr(P(0),4)}, v{V_PST}, {WS}, s{S_PST0} offen {st}")
    if split: F[15].insert(0, f"buffer_store_dwordx2 {vr(P(4),2)}, v{V_PST}, {WS}, s{S_PST1} offen {st}")
    probes = opt.get('probes', (14, 16))
    F.setdefault(opt.get('hintpos', 7), []).insert(0, f"buffer_store_dword v{HV}, v{V_L4}, {WS}, s{S_HST} offen {st}")
    probe = lambda j: f"buffer_load_dword v{HV + 1 + j % 3}, v{V_L4}, {WS}, s{S_HLD} offen sc1"
    for j, g in enumerate(probes):
        if g < 16: F[g].insert(0, probe(j))
    interleave(a, mains, F)
    a(y6[1]); a(y6[2])
    if split: a(f"v_and_or_b32 v{P(4)+2}, v{P(4)+2}, -2, s{S_PH}")
    for j, g in enumerate(probes):
        if g == 16: a(probe(j))
    for y in fold(7, P(4) + 3): a(y)
    if split: a(f"buffer_store_dwordx2 {vr(P(4)+2,2)}, v{V_PST}, {WS}, s{S_PST1} offen offset:8 {st}")
    else: a(f"buffer_store_dwordx4 {vr(P(4),4)}, v{V_PST}, {WS}, s{S_PST1} offen {st}")
    st_at('pst')
    SEL, RA = V_AQ, V_AV
    def h2_issue():
        for i in range(8):
            a(f"buffer_load_dwordx4 {Mf(i)}, v{V_LA}, {WS}, s{S_INB0 if i < 4 else S_INB1} offen offset:{(i & 3)*1024} sc1")
    FLG = QB + 4 - MEMB
    a(f"s_cmp_lg_u32 s{S_WV}, 0")
    a(f"s_cbranch_scc1 {tag}_others")
    PR = [HV + 1, HV + 2, HV + 3, V_AV, V_AV + 1]
    probe_to = lambda r: f"buffer_load_dword v{r}, v{V_L4}, {WS}, s{S_HLD} offen sc1"
    def check(r):
        a(f"v_cmp_gt_u32 vcc, s{S_STEP}, v{r}")
        a(f"s_cmp_eq_u32 vcc_lo, 0")
        a(f"s_cbranch_scc1 {tag}_go")
    n = len(probes)
    depth = opt.get('pdepth', 4)
    queue = []
    for g in sorted(set(list(probes) + [sp, 17])):
        if g in probes: queue.append(PR[probes.index(g)])
        if g == sp or g == 17: queue.append(None)
    if sp in probes:
        pass
    def issue(r):
        a(probe_to(r)); queue.append(r)
    def wait_check(r):
        k = max(i for i, x in enumerate(queue) if x == r)
        return len(queue) - 1 - k
    sel = [f"v_cndmask_b32 v{SEL+r}, 0, v{V_SELX}, s[{S_SELM+2*r}:{S_SELM+2*r+1}]" for r in range(4)]
    nxtr = n
    issue(PR[nxtr]); nxtr += 1
    for x in sel: a(x)
    copy_export(a, 1 - par)
    if depth > nxtr:
        zero_b(a)
        issue(PR[nxtr]); nxtr += 1
    order = list(range(nxtr))
    first = True
    for j in range(n):
        a(f"s_waitcnt vmcnt({wait_check(PR[j])})")
        check(PR[j])
        if nxtr < depth:
            issue(PR[nxtr]); order.append(nxtr); nxtr += 1
            if first: wv_preload(a)
            issue(PR[j]); order.append(j)
        else:
            issue(PR[j]); order.append(j)
        first = False
    ring = order[n:]
    a.label(f"{tag}_hl")
    for j in ring:
        a(f"s_waitcnt vmcnt({len(ring) - 1})")
        check(PR[j])
        a(probe_to(PR[j]))
        a(f"s_add_u32 s{S_ACC+3}, s{S_ACC+3}, 1")
    a(f"s_add_u32 s{S_SPIN}, s{S_SPIN}, 1")
    a(f"s_cmp_gt_u32 s{S_SPIN}, {SPIN_LIMIT}")
    a(f"s_cbranch_scc0 {tag}_hl")
    a("s_branch L_abort")
    a.label(f"{tag}_go")
    for _ in range(opt.get('h2pad', 0)): a("s_nop 7")
    st_at('h2iss')
    h2_issue()
    ea = opt.get('ea', 3)
    if not ea & 1: wv_preload(a)
    if not ea & 2: idle_b(a, 1 - par, f"{tag}_av0", 10 + len(probes))
    a.label(f"{tag}_h2")
    TG = RA + 4
    for i in range(8):
        a(mf32(RA, Mf(i), vr(SEL, 4), "0" if i == 0 else vr(RA, 4)))
        if i == 0: a(f"v_xor_b32 v{TG}, s{S_PH}, v{V_M}")
        else: a(f"v_bitop3_b32 v{TG}, v{TG}, v{V_M + 4*i}, s{S_PH} bitop3:0xf6")
        if split: a(f"v_bitop3_b32 v{TG}, v{TG}, v{V_M + 4*i + 2}, s{S_PH} bitop3:0xf6")
    a(f"v_and_b32 v{TG}, 1, v{TG}")
    a(f"v_cmp_ne_u32 vcc, 0, v{TG}")
    a(f"v_mov_b32 v{TG}, -1")
    a(f"v_mov_b32 v{TG+1}, -1")
    a(f"v_cvt_pk_bf16_f32 v{RA+6}, v{RA}, v{RA+1}")
    a(f"v_cvt_pk_bf16_f32 v{RA+7}, v{RA+2}, v{RA+3}")
    a(f"s_cbranch_vccnz {tag}_h2r")
    a(f"buffer_store_dwordx2 {vr(RA+6,2)}, v{V_PUB}, {WS}, s{S_PUBN} offen {st}")
    st_at('pub')
    a(f"buffer_store_dwordx2 {vr(TG,2)}, v{V_PUB}, {WS}, s{S_PUBC} offen {st}")
    if ea & 1: wv_preload(a)
    if ea & 2: idle_b(a, 1 - par, f"{tag}_av0", 63)
    idle_c1(a)
    a(f"s_branch {tag}_join")
    a.label(f"{tag}_others")
    if opt.get('time'):
        for k, (st_, reg) in enumerate(((8, 80), (62, 82))):
            a(f"s_cmp_lg_u32 s{S_STEP}, {st_}")
            a(f"s_cbranch_scc1 {tag}_nt{k}")
            a(f"s_memtime s[{reg}:{reg+1}]")
            a("s_waitcnt lgkmcnt(0)")
            a.label(f"{tag}_nt{k}")
    idle_c1(a)
    idle_a(a, 1 - par)
    zero_b(a)
    a(f"s_cmp_lg_u32 s{S_WV}, 1")
    a(f"s_cbranch_scc1 {tag}_av2_ok")
    a(f"s_waitcnt vmcnt({2 + len(probes)})")
    avail_check(a, f"{tag}_av2")
    for j in range(opt.get('dummy', 0)): a(smf(V_M + 8 + 4 * (j & 1), vr(V_W + 4 * (j & 3), 4), wq(j & 1, j & 7)))
    a.label(f"{tag}_join")
    a("s_barrier")
    for _ in range(opt.get('h1pad', 0)): a("s_nop 7")
    st_at('h1iss')
    h1_issue(a, 0)
    idle_c(a, 1 - par, True)
    for j in range(opt.get('dummy2', 0)): a(smf(V_M + 8 + 4 * (j & 1), vr(V_W + 4 * (j & 3), 4), wq(j & 1, j & 7)))
    a("s_waitcnt lgkmcnt(0)")
    st_at('join')
    return h2_issue, None

def h1_issue(a, j):
    WS = f"s[{S_WS}:{S_WS+3}]"
    a(f"buffer_load_dwordx4 {Mf(2*j)}, v{V_P1}, {WS}, s{S_MEMRD} offen sc1")
    a(f"buffer_load_dwordx4 {Mf(2*j + 1)}, v{V_P1}, {WS}, s{S_MEMRD} offen offset:1024 sc1")

def step_tails(a, par, tag, h2, opt):
    WS = f"s[{S_WS}:{S_WS+3}]"
    VXc = V_VX[par]
    Kc = KB[par] - MEMB
    T0 = V_PB + 3
    def spin(k):
        a(f"s_add_u32 s{S_SPIN}, s{S_SPIN}, 1")
        a(f"s_cmp_gt_u32 s{S_SPIN}, {SPIN_LIMIT}")
        a("s_cbranch_scc1 L_abort")
        a(f"s_add_u32 s{S_ACC+k}, s{S_ACC+k}, 1")
    a.label(f"{tag}_h1retry")
    a("s_mov_b64 exec, vcc")
    h1_issue(a, 0)
    a("s_mov_b64 exec, -1")
    spin(1)
    a("s_nop 2")
    for r in range(8): a(f"v_mov_b32 v{V_AQ + r}, 0")
    a(f"s_branch {tag}_h1")
    a.label(f"{tag}_h2r")
    a("s_mov_b64 exec, vcc")
    h2[0]()
    a("s_mov_b64 exec, -1")
    if h2[1]: a(h2[1])
    spin(2)
    a(f"s_branch {tag}_h2")
    for j in (0, 2): avail_slow(a, f"{tag}_av{j}")
    a.label(f"{tag}_fallback")
    a("s_nop 7")
    a("s_nop 3")
    a("s_waitcnt lgkmcnt(0)")
    QF, KF = Wb(0), Wb(2)
    SX, SM = V_AV, V_AK + 4
    OA, LA = V_M, V_M + 8
    for i in range(4):
        for hh in range(2): a(f"ds_read_b64_tr_b16 {vr(QF + 4*i + 2*hh, 2)}, v{V_QKR} offset:{i*1024 + hh*512}")
    for T in range(2):
        for i in range(4): a(f"ds_read_b128 {vr(KF + 4*i, 4)}, v{V_LA} offset:{Kc + T*4096 + i*1024}")
        for i in range(4): a(mf32(SX + 4*T, vr(KF + 4*i, 4), vr(QF + 4*i, 4), "0" if i == 0 else vr(SX + 4*T, 4)))
        a("s_nop 7")
    for i in range(4):
        for hh in range(2): a(f"ds_read_b64_tr_b16 {vr(KF + 4*i + 2*hh, 2)}, v{V_QKR} offset:{4096 + i*1024 + hh*512}")
    for i in range(4): a(mf32(SM, vr(KF + 4*i, 4), vr(QF + 4*i, 4), "0" if i == 0 else vr(SM, 4)))
    a(f"v_mul_f32 v{SM}, s{S_C}, v{SM}")
    a(f"v_mul_f32 v{SM+1}, s{S_C}, v{SM+1}")
    MX, T2 = SM + 2, SM + 3
    a(f"v_max3_f32 v{MX}, v{SM}, v{SM+1}, v{SX}")
    for r in range(1, 7, 2): a(f"v_max3_f32 v{MX}, v{MX}, v{SX+r}, v{SX+r+1}")
    a(f"v_max_f32 v{MX}, v{MX}, v{SX+7}")
    for sw in ("v_permlane16_swap_b32", "v_permlane32_swap_b32"):
        a(f"v_mov_b32 v{T2}, v{MX}")
        a(f"{sw} v{MX}, v{T2}")
        a(f"v_max_f32 v{MX}, v{MX}, v{T2}")
    for r in list(range(SX, SX + 8)) + [SM, SM + 1]:
        a(f"v_sub_f32 v{r}, v{r}, v{MX}")
        a(f"v_exp_f32 v{r}, v{r}")
    PX = V_AQ
    for r in range(4): a(f"v_cvt_pk_bf16_f32 v{PX+r}, v{SX+2*r}, v{SX+2*r+1}")
    a(f"v_cvt_pk_bf16_f32 v{V_PB}, v{SM}, v{SM+1}")
    a(f"v_cvt_pk_bf16_f32 v{V_PB+3}, v{SM}, v{SM+1}")
    a(mf32(LA, vr(V_ONES, 4), vr(PX, 4), "0"))
    a(mf32(OA, vr(VXc, 4), vr(PX, 4), "0"))
    a(mf32(OA + 4, vr(VXc + 4, 4), vr(PX, 4), "0"))
    a(mf16(LA, vr(V_ONES, 2), vr(V_PB, 2), vr(LA, 4)))
    a(mf16(OA, vr(V_AK + 2, 2), vr(V_PB, 2), vr(OA, 4)))
    a(mf16(OA + 4, vr(V_AK + 2, 2), vr(V_PB + 2, 2), vr(OA + 4, 4)))
    wo_order = [(t, kbo) for t in range(4, 8) for kbo in range(2)]
    for j in range(4):
        for x in rd_wo(Wb(j), *wo_order[j]): a(x)
    INV, OW = V_AQ + 0, V_AQ + 4
    a(f"v_rcp_f32 v{INV}, v{LA}")
    for r in range(8): a(f"v_mul_f32 v{OA+r}, v{OA+r}, v{INV}")
    for r in range(4): a(f"v_cvt_pk_bf16_f32 v{OW+r}, v{OA+2*r}, v{OA+2*r+1}")
    a(f"ds_write_b128 v{V_OW}, {vr(OW,4)}")
    for r in range(16): a(f"v_mov_b32 v{V_M + r}, 0")
    a("s_waitcnt lgkmcnt(0)")
    a("s_nop 1")
    a(f"s_branch {tag}_fbdone")

def role_chain(a, opt):
    WS = f"s[{S_WS}:{S_WS+3}]"; DB = f"s[{S_D}:{S_D+3}]"
    vq = VmQueue()
    HINT_STRIDE[0] = opt.get('hs', 4)
    CODEPF[0] = opt.get('codepf', 0)
    start_weights(a, vq)
    a(f"s_mov_b32 s65, s{S_T2}")
    if opt.get('dbgtime'):
        a("s_not_b32 s96, s98"); a("s_mov_b64 exec, 1"); a("v_mov_b32 v126, s96"); a(f"buffer_atomic_umax v126, off, s[{S_D}:{S_D+3}], 0 offset:48"); a("s_mov_b64 exec, -1"); vq.add('x')
    setup_lanes(a)
    a(f"s_mov_b32 s{S_C}, {f32bits(CSCALE):#x}")
    a(f"s_mov_b32 s{S_LLO}, 0x21800000")
    a(f"s_mov_b32 s{S_LRG}, 0x3c000000")
    for r in range(S_ACC, S_ACC + 4): a(f"s_mov_b32 s{r}, 0")
    a(f"s_lshl_b32 s{S_T0}, s{S_H}, 8")
    a(f"s_add_u32 s{S_HB_PST}, s{S_T0}, {WS_PART}")
    a(f"s_lshl_b32 s{S_T0}, s{S_H}, 13")
    a(f"s_add_u32 s{S_HB_INB}, s{S_T0}, {WS_PART - MEMB}")
    a(f"s_add_u32 s{S_KPF}, s{S_T0}, {WS_KX - MEMB}")
    a(f"s_add_u32 s{S_VPF}, s{S_T0}, {WS_VX - MEMB}")
    a(f"s_and_b32 s{S_T0}, s{S_H}, 3")
    a(f"s_lshl_b32 s{S_T0}, s{S_T0}, 6")
    a(f"s_lshr_b32 s{S_T1}, s{S_H}, 2")
    a(f"s_lshl_b32 s{S_T1}, s{S_T1}, 10")
    a(f"s_add_u32 s{S_T0}, s{S_T0}, s{S_T1}")
    a(f"s_add_u32 s{S_HB_PUB}, s{S_T0}, {WS_MEMRING}")
    a(f"s_lshl_b32 s{S_T0}, s{S_H}, 12")
    a(f"s_lshl_b32 s{S_T1}, s{S_WV}, 10")
    a(f"s_add_u32 s{S_T0}, s{S_T0}, s{S_T1}")
    a(f"s_add_u32 s{S_EXP}, s{S_T0}, {WS_KVM - MEMB - 32*4096}")
    a(f"s_lshl_b32 s{S_T0}, s{S_H}, 7")
    a(f"s_add_u32 s{S_FLP}, s{S_T0}, {WS_FLAG + FLAG_P * 128}")
    a(f"s_add_u32 s{S_FLA}, s{S_T0}, {WS_FLAG + FLAG_A * 128}")
    a(f"s_lshl_b32 s{S_T0}, s{S_WV}, 11")
    a(f"s_add_u32 s{S_KM0}, s{S_T0}, {KB[0]}")
    a(f"s_add_u32 s{S_KM0+1}, s{S_T0}, {KB[1]}")
    SN = V_W
    a(f"s_mov_b32 s{S_T2}, s65")
    S_OK = S_AVAIL
    PSTAMP[0] = opt.get('pstamp', -1)
    groups = opt.get('groups', [0])
    IV = V_M + 16
    srd(a, S_W, KA_MEM0, 8192)
    def seg0_loads():
        a(f"s_mov_b32 m0, s{S_KM0}")
        a("s_nop 0")
        a(f"buffer_load_dwordx4 v{V_P1}, {WS}, s{S_KPF} offen sc1 lds")
        a(f"buffer_load_dwordx4 v{V_P1}, {WS}, s{S_KPF} offen offset:1024 sc1 lds")
        a(f"buffer_load_dwordx4 {vr(V_VX[0],4)}, v{V_P1}, {WS}, s{S_VPF} offen sc1")
        a(f"buffer_load_dwordx4 {vr(V_VX[0]+4,4)}, v{V_P1}, {WS}, s{S_VPF} offen offset:1024 sc1")
    def h8(a):
        init_issue(a, IV); vq.add('init', 3)
        a(f"s_mov_b32 s{S_OK}, 0")
    def h16(a):
        assert vq.done('init')
        vq.add('fl')
        a.items.append(('x', 'forget_vm'))
        init_check(a, IV, groups, "L_ch_h16")
        a(f"s_mov_b32 s{S_OK}, 1")
        if opt.get('ringpf', 1):
            for sl in range(2):
                a(f"s_add_u32 s{S_T0}, s{S_HB_INB}, {sl << 18}")
                for j in range(2):
                    a(f"buffer_load_dwordx4 {vr(V_M + 8, 4)}, v{V_P1}, {WS}, s{S_T0} offen offset:{1024 * j} sc1")
                    a.items.append(('x', 'forget_vm'))
            a(f"s_lshl_b32 s{S_T0}, s{S_H}, 10")
            a(f"s_add_u32 s{S_T0}, s{S_T0}, {WS_MEMRING - MEMB}")
            a(f"buffer_load_dwordx4 {vr(V_M + 8, 4)}, v{V_LA}, {WS}, s{S_T0} offen sc1")
            a(f"buffer_load_dword v{V_M + 12}, v{V_L4}, {WS}, s{S_HLD} offen sc1")
            a.items.append(('x', 'forget_vm'))
        a.label("L_ch_h16")
        a(f"buffer_load_dword v{V_FL}, off, {WS}, s{S_FLP} sc1")
    def h24(a):
        assert vq.done('fl')
        vq.add('mem0', 2)
        a.items.append(('x', 'forget_vm'))
        a(f"buffer_load_dwordx4 {Mf(0)}, v{V_GATH}, s[{S_W}:{S_W+3}], 0 offen")
        a(f"buffer_load_dwordx4 {Mf(1)}, v{V_GATH}, s[{S_W}:{S_W+3}], 0 offen offset:128")
        a(f"v_readfirstlane_b32 s{S_T0}, v{V_FL}")
        a(f"s_lshr_b32 s{S_T1}, s{S_T0}, 16")
        a(f"s_and_b32 s{S_T0}, s{S_T0}, 0xffff")
        a(f"s_min_u32 s{S_T0}, s{S_T0}, s{S_T1}")
        a(f"s_cmp_ge_u32 s{S_T0}, 2")
        a(f"s_cselect_b32 s{S_T0}, s{S_OK}, 0")
        a(f"s_lshl_b32 s{S_OK}, s{S_T0}, 1")
        a(f"s_cmp_eq_u32 s{S_OK}, 0")
        a("s_cbranch_scc1 L_ch_h24")
        seg0_loads()
        a.label("L_ch_h24")
    load_weights(a, dict(zip(opt.get('hooks', (7, 11, 15)), (h8, h16, h24))), vq)
    if opt.get('ptime') and 'pstamp' not in opt:
        a("s_memrealtime s[62:63]"); a("s_waitcnt lgkmcnt(0)"); a(f"s_sub_u32 s{S_ACC}, s62, s92"); a(f"s_lshl_b32 s{S_ACC}, s{S_ACC}, 2"); a(f"s_add_u32 s{S_ACC}, s{S_ACC}, s{S_OK}")
    if opt.get('ponly'):
        a(f"s_lshl_b32 s{S_T0}, s{S_H}, 2"); a(f"s_add_u32 s{S_T0}, s{S_T0}, s{S_WV}"); a(f"s_lshl_b32 s{S_T0}, s{S_T0}, 5"); a(f"s_add_u32 s{S_T0}, s{S_T0}, {WS_STAMP + 4}")
        a(f"v_mov_b32 v{V_M}, s{S_ACC}")
        a(f"buffer_store_dword v{V_M}, off, {WS}, s{S_T0}")
        a("s_endpgm")
    a(f"s_mov_b32 s{S_STEP}, 0")
    a(f"s_cmp_lg_u32 s{S_OK}, 0")
    a("s_cbranch_scc1 L_ch_ready")
    wait_init(a, IV, groups, "L_ch_init")
    a(f"v_mov_b32 v{V_FL}, 0")
    avail_check(a, "L_ch_av")
    seg0_loads()
    a.label("L_ch_ready")
    if opt.get('nokv'):
        a(f"s_mov_b32 m0, s{S_KM0+1}")
        a(f"s_nop 0")
        a(f"buffer_load_dwordx4 v{V_P1}, {WS}, s{S_KPF} offen sc1 lds")
        a(f"buffer_load_dwordx4 v{V_P1}, {WS}, s{S_KPF} offen offset:1024 sc1 lds")
        a(f"buffer_load_dwordx4 {vr(V_VX[1]+4,4)}, v{V_P1}, {WS}, s{S_VPF} offen offset:1024 sc1")
    a(f"s_add_u32 s{S_KPF}, s{S_KPF}, {32*8192}")
    a(f"s_add_u32 s{S_VPF}, s{S_VPF}, {32*8192}")
    idle_a(a, 0)
    for r in range(24): a(f"v_mov_b32 v{V_AQ + r}, 0")
    a(f"s_mov_b32 s{S_MEMRD}, {WS_MEMRING - MEMB}")
    a("s_waitcnt vmcnt(0)")
    a(f"v_cndmask_b32 v{V_GATH}, v{V_ONES}, 0, s[{S_L0}:{S_L0+1}]")
    a(f"s_cmp_ge_u32 s{S_WV}, 2")
    a(f"s_cselect_b32 s{S_FLP}, {OOB}, s{S_FLP}")
    for r in range(4): a(f"v_mov_b32 v{V_M + 8 + r}, 0")
    for j in range(2): a(f"ds_write_b128 v{V_P1}, {vr(V_M + 8, 4)} offset:{QB - MEMB + 1024*j}")
    a("s_waitcnt vmcnt(0) lgkmcnt(0)")
    for r in range(8): a(f"v_min_u32 v{V_M+r}, -2, v{V_M+r}")
    if opt.get('time'):
        a("s_mov_b32 s74, 0"); a("s_mov_b32 s73, -1"); a("s_mov_b32 s72, 0")
        a(f"s_memtime s[84:85]")
        a(f"s_memrealtime s[88:89]")
        a("s_waitcnt lgkmcnt(0)")
    if opt.get('dbgtime'): dbg_stamp(a, 13, vt=V_M + 30); a("s_waitcnt vmcnt(0)")
    a(f"s_cmp_eq_u32 s{S_MODE}, {opt.get('fastmode', 1)}")
    a("s_cbranch_scc0 L_S0_entry")
    a("s_branch L_F0_entry")
    for tag, st in (("L_F", ""), ("L_S", "sc1")):
        h20 = step(a, 0, st, tag + "0", opt)
        h21 = step(a, 1, st, tag + "1", opt)
        a(f"s_branch {tag}0_h1")
        step_tails(a, 0, tag + "0", h20, opt)
        step_tails(a, 1, tag + "1", h21, opt)
    avail_slow(a, "L_ch_av")
    a.label("L_chain_done")
    a(f"buffer_store_dwordx4 {vr(V_AK,4)}, v{V_LA}, {WS}, s{S_EXP} offen sc1")
    a("s_nop 7")
    a("s_waitcnt vmcnt(0)")
    a("s_barrier")
    a(f"v_mov_b32 v{V_M}, 64")
    a(f"buffer_store_dword v{V_M}, off, {WS}, s{S_FLA} sc1")
    if opt.get('wb'):
        a(f"s_or_b32 s{S_T0}, s{S_H}, s{S_WV}")
        a(f"s_cmp_lg_u32 s{S_T0}, 0")
        a("s_cbranch_scc1 L_ch_nowb")
        a("buffer_wbl2 sc1")
        a.label("L_ch_nowb")
    if opt.get('dbgtime'): dbg_stamp(a, 14, vt=V_M + 30)
    if opt.get('time'):
        a(f"s_memtime s[86:87]")
        a(f"s_memrealtime s[90:91]")
        a("s_waitcnt lgkmcnt(0)")
        a("s_sub_u32 s86, s86, s84")
        a(f"s_lshl_b32 s{S_T0}, s{S_H}, 2")
        a(f"s_add_u32 s{S_T0}, s{S_T0}, s{S_WV}")
        a(f"s_lshl_b32 s{S_T0}, s{S_T0}, 5")
        a(f"s_add_u32 s{S_T0}, s{S_T0}, {WS_STAMP}")
        for i, s in enumerate((86, S_ACC, S_ACC + 1, S_ACC + 2, 88, 90, 92, S_ACC + 3)):
            a(f"v_mov_b32 v{V_M+i}, s{s}")
        a(f"buffer_store_dwordx4 {vr(V_M,4)}, off, {WS}, s{S_T0}")
        a(f"buffer_store_dwordx4 {vr(V_M+4,4)}, off, {WS}, s{S_T0} offset:16")
        a(f"s_add_u32 s{S_T0}, s{S_T0}, 0x8000")
        a("s_mov_b32 s75, s84")
        if not opt.get('trace') and not opt.get('stamp'): a("s_sub_u32 s68, s82, s80")
        for i in range(8): a(f"v_mov_b32 v{V_M+8+i}, s{68+i}")
        a(f"buffer_store_dwordx4 {vr(V_M+8,4)}, off, {WS}, s{S_T0}")
        a(f"buffer_store_dwordx4 {vr(V_M+12,4)}, off, {WS}, s{S_T0} offset:16")
    a("s_endpgm")
```

```python
from stream import *
from rolepf import clear_flag, late_start, gate_tokens, S_FLG

KXB = 73728
KMB = 81920
S_CNT = 43
S_C = 44
S_GRP = 45
S_KV = 46
S_KVM = 47
S_PST, S_INB = 48, 49
S_FP = 50
S_NEED = 51
S_FLPA = 52
S_PH = 53
S_FLF = 54
S_OUTO = 55
S_GO = 56
S_PSTB, S_INBB = 57, 58
S_MASK = 60
S_SELM = 76
S_LM2 = 84
S_LM32 = 86
S_LMF = 88
S_O = 92

V_EXW, V_EXR, V_QRD, V_KMW, V_KMR, V_OWR, V_FLG, V_INB, V_INBF, V_OUT, V_GOF, V_SELX, V_VRD, V_L4 = range(9, 23)
V_ONES = 24
V_PB = 28
XF, AQ = 32, 48
QF = 64
KF = 80
VF = 128
VM = 144
KM = 148
SS = 152
OA = 164
HF = 184
AO = 216
TM = 232
WQ, WO = 256, 384

def role_c(a, opt):
    WS = f"s[{S_WS}:{S_WS+3}]"
    NG = opt.get('ng', 4)
    L, T = 127, 126
    if opt.get('warm_llc', 0):
        a(f"v_lshlrev_b32 v1, 4, v0")
        a(f"s_sub_u32 s{S_T0}, s{S_XG}, 1")
        a(f"s_lshl_b32 s{S_T1}, s{S_H}, 2")
        a(f"s_add_u32 s{S_T0}, s{S_T0}, s{S_T1}")
        a(f"s_lshl_b32 s{S_T0}, s{S_T0}, 12")
        for j in range(4):
            d = S_DESC[0]
            a(f"s_mov_b32 s{d}, s{40 + 2*j}")
            a(f"s_and_b32 s{d+1}, s{41 + 2*j}, 0xffff")
            a(f"s_mov_b32 s{d+2}, 0x400000")
            a(f"s_mov_b32 s{d+3}, 0x20000")
            a(f"s_mov_b32 s{S_T1}, s{S_T0}")
            for u in range(8):
                a(f"buffer_load_dwordx4 {vr(128 + 4 * (8*j + u), 4)}, v1, s[{d}:{d+3}], s{S_T1} offen")
                if u < 7: a(f"s_add_u32 s{S_T1}, s{S_T1}, {128 * 4096}")
    setup(a)
    a(f"s_sub_u32 s{S_GRP}, s{S_XG}, 1")
    a(f"s_lshl_b32 s{S_T2}, s{S_GRP}, 5")
    a(f"s_add_u32 s{S_T2}, s{S_T2}, s{S_H}")
    for r in range(4): a(f"v_mov_b32 v{16+r}, -1")
    a(f"v_mov_b32 v20, 0")
    a(f"s_lshl_b32 s{S_T0}, s{S_T2}, 12")
    a(f"s_add_u32 s{S_T0}, s{S_T0}, {WS_PART}")
    a(f"buffer_store_dwordx4 v[16:19], v{V_P1K}, {WS}, s{S_T0} offen sc1")
    a(f"s_lshl_b32 s{S_T0}, s{S_T2}, 11")
    a(f"s_and_b32 s{S_T1}, s{S_WV}, 1")
    a(f"s_lshl_b32 s{S_T1}, s{S_T1}, 10")
    a(f"s_add_u32 s{S_T0}, s{S_T0}, s{S_T1}")
    a(f"s_add_u32 s{S_T0}, s{S_T0}, {WS_KVM + 62 * 32 * 4096}")
    a(f"buffer_store_dwordx4 v[16:19], v{V_L16}, {WS}, s{S_T0} offen sc1")
    a(f"s_cmp_ge_u32 s{S_T2}, 8")
    a("s_cbranch_scc1 L_c_noarm")
    a(f"s_lshl_b32 s{S_T0}, s{S_T2}, 12")
    a(f"s_add_u32 s{S_T0}, s{S_T0}, {WS_MEMRING}")
    a(f"buffer_store_dwordx4 v[16:19], v{V_P1K}, {WS}, s{S_T0} offen sc1")
    a(f"s_cmp_lg_u32 s{S_T2}, 0")
    a("s_cbranch_scc1 L_c_noarm")
    for r in range(3): a(f"v_mov_b32 v{21+r}, 0")
    for j in range(2):
        a(f"s_mov_b32 s{S_T0}, {WS_HINT + 4096 * j}")
        a(f"buffer_store_dwordx4 v[20:23], v{V_P1K}, {WS}, s{S_T0} offen sc1")
    a(f"s_mov_b32 s{S_T0}, {WS_FLAG + FLAG_A * 128}")
    a(f"buffer_store_dwordx4 v[20:23], v{V_P1K}, {WS}, s{S_T0} offen sc1")
    a.label("L_c_noarm")
    gate_tokens(a, S_T2, L)
    late_start(a, opt, "L_c")
    srd(a, S_DESC[0], KA_WQ, 0x400000)
    srd(a, S_DESC[1], KA_WO, 0x400000)
    col = [f"s_lshl_b32 s{S_T0}, s{S_H}, 8", f"s_lshl_b32 s{S_T1}, s{S_WV}, 6", f"s_add_u32 s{S_T0}, s{S_T0}, s{S_T1}"]
    load_weights(a, proj_chunks(S_DESC[0], 8192, col, WQ) + out_chunks(S_DESC[1], [f"s_lshl_b32 s{S_T0}, s{S_H}, 17"], WO),
                 lambda a: None)
    srd(a, S_O, KA_OUT, 2048 * 1024)
    a(f"s_mov_b32 s{S_C}, {f32bits(CSCALE):#x}")
    a(f"v_add_u32 v{V_EXW}, {EXB}, v{V_P1K}")
    a(f"v_add_u32 v{V_EXR}, {EXB}, v{V_L16}")
    a(f"s_and_b32 s{S_T0}, s{S_WV}, 1")
    a(f"s_lshr_b32 s{S_T1}, s{S_WV}, 1")
    a(f"s_lshl_b32 s{S_T2}, s{S_T0}, 12")
    a(f"v_add_u32 v{V_QRD}, s{S_T2}, v{V_EXR}")
    a(f"s_lshl_b32 s{S_T3}, s{S_T1}, 11")
    a(f"v_add_u32 v{V_OWR}, s{S_T3}, v{V_QRD}")
    a(f"s_lshl_b32 s{S_T3}, s{S_T1}, 12")
    a(f"v_add_u32 v{V_VRD}, s{S_T3}, v{V_L16}")
    a(f"s_lshl_b32 s{S_T2}, s{S_T0}, 4")
    a(f"v_and_b32 v{V_T0}, 15, v{L}")
    a(f"v_add_u32 v{V_T0}, s{S_T2}, v{V_T0}")
    bitpat(a, V_T1, L, [(4, 3, 4)], T)
    a(f"v_sub_u32 v{V_T0}, v{V_T0}, v{V_T1}")
    for Tt in range(2):
        for r in range(4):
            k = S_MASK + 2 * (4 * Tt + r)
            a(f"v_cmp_le_i32 s[{k}:{k+1}], {16*Tt + r}, v{V_T0}")
    bitpat(a, V_KMW, L, [(5, 1, 8), (0, 15, 1)], T)
    a(f"v_and_b32 v{V_KMW}, 15, v{V_KMW}")
    a(f"v_and_b32 v{T}, 48, v{L}")
    a(f"v_add_u32 v{V_KMW}, v{V_KMW}, v{T}")
    a(f"v_lshlrev_b32 v{V_KMW}, 3, v{V_KMW}")
    a(f"s_lshl_b32 s{S_T0}, s{S_WV}, 10")
    a(f"s_add_u32 s{S_T0}, s{S_T0}, {KMB}")
    a(f"v_add_u32 v{V_KMW}, s{S_T0}, v{V_KMW}")
    bitpat(a, V_KMR, L, [(1, 1, 8), (2, 15, 1)], T)
    a(f"v_and_b32 v{V_KMR}, 15, v{V_KMR}")
    a(f"v_and_b32 v{T}, 3, v{L}")
    a(f"v_lshl_add_u32 v{V_KMR}, v{T}, 4, v{V_KMR}")
    a(f"v_lshlrev_b32 v{V_KMR}, 3, v{V_KMR}")
    a(f"v_add_u32 v{V_KMR}, {KMB}, v{V_KMR}")
    for r in range(4):
        a(f"v_mov_b32 v{V_ONES+r}, 0x3f803f80")
        a(f"v_mov_b32 v{V_PB+r}, 0")
    a(f"v_add_u32 v{V_T0}, {KMB}, v{V_P1K}")
    a(f"ds_write_b128 v{V_T0}, {vr(V_PB,4)}")
    a(f"v_lshlrev_b32 v{V_FLG}, 7, v{L}")
    a(f"v_lshlrev_b32 v{V_L4}, 2, v{L}")
    a(f"v_cmp_gt_u32 s[{S_LM32}:{S_LM32+1}], 32, v{L}")
    a(f"s_lshl_b32 s{S_T0}, s{S_H}, 7")
    a(f"s_add_u32 s{S_FLPA}, s{S_T0}, {WS_FLAG + FLAG_P * 128}")
    a(f"s_mov_b32 s{S_FLF}, {WS_FLAG + FLAG_F * 128}")
    a(f"s_mov_b64 s[{S_LM2}:{S_LM2+1}], 0")
    a(f"s_bitset1_b64 s[{S_LM2}:{S_LM2+1}], 0")
    bitpat(a, V_INB, L, [(4, 3, 1024), (0, 15, 16)], T)
    a(f"s_lshl_b32 s{S_T0}, s{S_WV}, 8")
    a(f"v_add_u32 v{V_INB}, s{S_T0}, v{V_INB}")
    bitpat(a, V_T0, L, [(5, 1, OOB)], T)
    a(f"v_add_u32 v{V_INBF}, v{V_T0}, v{V_INB}")
    bitpat(a, V_GOF, L, [(2, 1, 16), (0, 3, 1)], T)
    a(f"s_lshl_b32 s{S_T0}, s{S_WV}, 2")
    a(f"v_add_u32 v{V_GOF}, s{S_T0}, v{V_GOF}")
    bitpat(a, V_OUT, L, [(4, 3, 8), (3, 1, OOB)], T)
    a(f"v_lshl_add_u32 v{V_OUT}, v{V_GOF}, 10, v{V_OUT}")
    a(f"v_lshlrev_b32 v{V_GOF}, 2, v{V_GOF}")
    a(f"v_and_b32 v{T}, 1, v{L}")
    a(f"v_cmp_eq_u32 vcc, 1, v{T}")
    a(f"v_mov_b32 v{V_SELX}, 0x3f80")
    a(f"v_mov_b32 v{T}, 0x3f800000")
    a(f"v_cndmask_b32 v{V_SELX}, v{V_SELX}, v{T}, vcc")
    a(f"v_bfe_u32 v{T}, v{L}, 1, 3")
    for r in range(4):
        a(f"v_cmp_eq_u32 s[{S_SELM+2*r}:{S_SELM+2*r+1}], {r}, v{T}")
    a(f"s_lshl_b32 s{S_T0}, s{S_GRP}, 21")
    a(f"s_add_u32 s{S_T0}, s{S_T0}, {WS_CP}")
    a(f"s_lshl_b32 s{S_T1}, s{S_H}, 10")
    a(f"s_add_u32 s{S_PSTB}, s{S_T0}, s{S_T1}")
    a(f"s_lshl_b32 s{S_T1}, s{S_WV}, 18")
    a(f"s_add_u32 s{S_PSTB}, s{S_PSTB}, s{S_T1}")
    a(f"s_lshl_b32 s{S_T1}, s{S_H}, 15")
    a(f"s_add_u32 s{S_INBB}, s{S_T0}, s{S_T1}")
    a(f"s_mov_b32 s{S_SEG}, s{S_GRP}")
    a(f"s_mov_b32 s{S_CNT}, 0")
    x_issue(a, 0, S_SEG)
    wait_init(a, TM, opt['groups'], "L_c_init2")
    a("s_waitcnt lgkmcnt(0)")
    a(f"s_cmp_eq_u32 s{S_MODE}, {opt.get('fastmode', 1)}")
    a("s_cbranch_scc0 L_cS_arm")
    for tag, st in (("L_cF", ""), ("L_cS", "sc1")):
        a.label(f"{tag}_arm")
        for r in range(4): a(f"v_mov_b32 v{TM+r}, -1")
        for sl in range(2):
            a(f"s_add_u32 s{S_T0}, s{S_INBB}, {sl << 20}")
            for j in range(8):
                a(f"buffer_store_dwordx4 {vr(TM,4)}, v{V_P1K}, {WS}, s{S_T0} offen {st}")
                if j < 7: a(f"s_add_u32 s{S_T0}, s{S_T0}, 4096")
        a("s_waitcnt vmcnt(0)")
        a("s_barrier")
        a(f"s_cmp_lg_u32 s{S_WV}, 0")
        a(f"s_cbranch_scc1 {tag}_met")
        a(f"s_lshl_b32 s{S_T1}, s{S_GRP}, 2")
        a("s_mov_b64 exec, 1")
        a(f"v_mov_b32 v{TM}, 1")
        a(f"buffer_atomic_add v{TM}, off, s[{S_D}:{S_D+3}], s{S_T1} offset:32")
        a.label(f"{tag}_meet")
        a("s_sleep 8")
        a(f"buffer_load_dword v{TM+1}, off, s[{S_D}:{S_D+3}], s{S_T1} offset:32 sc1")
        a(f"s_add_u32 s{S_SPIN}, s{S_SPIN}, 1")
        a(f"s_cmp_gt_u32 s{S_SPIN}, {SPIN_LIMIT}")
        a("s_cbranch_scc1 L_abort")
        a("s_waitcnt vmcnt(0)")
        a(f"v_readfirstlane_b32 s{S_T0}, v{TM+1}")
        a(f"s_cmp_ge_u32 s{S_T0}, 32")
        a(f"s_cbranch_scc0 {tag}_meet")
        a("s_mov_b64 exec, -1")
        a.label(f"{tag}_met")
        a.label(f"{tag}_loop")
        for par in range(2):
            segment(a, par, st, f"{tag}{par}", NG, opt)
            a(f"s_cmp_ge_u32 s{S_SEG}, 64")
            a("s_cbranch_scc1 L_done")
        a(f"s_branch {tag}_loop")

def segment(a, par, st, tag, NG, opt):
    WS = f"s[{S_WS}:{S_WS+3}]"
    a("s_waitcnt vmcnt(0)")
    a("s_barrier")
    a(f"s_add_u32 s{S_T2}, s{S_SEG}, {NG}")
    a(f"s_min_u32 s{S_T2}, s{S_T2}, 63")
    xi = x_issue_groups(1 - par, S_T2)
    a(f"s_lshl_b32 s{S_T0}, s{S_SEG}, 5")
    a(f"s_add_u32 s{S_T0}, s{S_T0}, s{S_H}")
    a(f"s_lshl_b32 s{S_KV}, s{S_T0}, 13")
    a(f"s_lshl_b32 s{S_KVM}, s{S_T0}, 12")
    a(f"s_add_u32 s{S_KVM}, s{S_KVM}, {WS_KVM}")
    a(f"s_add_u32 s{S_NEED}, s{S_SEG}, 1")
    def mm(ks, xf):
        o = []
        for t in range(2):
            for tt in range(2):
                d = AQ + (tt * 2 + t) * 4
                o.append(mf32(d, ur(WQ + (t * 16 + ks) * 4, 4), xf[tt], "0" if ks == 0 else vr(d, 4)))
        if ks < len(xi): o[2] += "\n" + xi[ks]
        return o
    proj_phase(a, par, XF, mm)
    for tt in range(2):
        d = AQ + 8 * tt
        for r in range(4): a(f"v_cvt_pk_bf16_f32 v{d+r}, v{d+2*r}, v{d+2*r+1}")
        a(f"ds_write_b128 v{V_EXW}, {vr(d,4)} offset:{tt*4096}")
    SEL, RA, RB, GV = TM + 4, TM + 8, TM + 12, TM + 3
    poll_flags(a, f"{tag}_pp", TM, V_FLG, S_FLPA, S_NEED, S_LM2, halves=True)
    a(f"s_lshl_b32 s{S_T0}, s{S_WV}, 10")
    a(f"s_add_u32 s{S_T1}, s{S_KV}, s{S_T0}")
    a(f"s_add_u32 s{S_T1}, s{S_T1}, {WS_KX}")
    a(f"s_lshl_b32 s{S_T0}, s{S_WV}, 11")
    a(f"s_add_u32 m0, s{S_T0}, {KXB}")
    a(f"s_add_u32 s{S_T2}, s{S_KV}, {WS_VX}")
    for j in range(2): a(f"buffer_load_dwordx4 v{V_P1K}, {WS}, s{S_T1} offen offset:{j*1024} sc1 lds")
    for j in range(4): a(f"buffer_load_dwordx4 {vr(VF + 4*j, 4)}, v{V_VRD}, {WS}, s{S_T2} offen offset:{j*1024} sc1")
    for r in range(4): a(f"v_cndmask_b32 v{SEL+r}, 0, v{V_SELX}, s[{S_SELM+2*r}:{S_SELM+2*r+1}]")
    a(f"s_and_b32 s{S_T0}, s{S_SEG}, 1")
    a(f"s_mul_i32 s{S_T0}, s{S_T0}, 14")
    a(f"s_lshl_b64 s[{S_LMF}:{S_LMF+1}], 0x3fff, s{S_T0}")
    a(f"s_lshr_b32 s{S_T2}, s{S_SEG}, 1")
    a(f"s_add_u32 s{S_T2}, s{S_T2}, 1")
    poll_flags(a, f"{tag}_pf", TM, V_FLG, S_FLF, S_T2, S_LMF)
    a(f"s_lshl_b32 s{S_FP}, s{S_SEG}, 19")
    a(f"s_lshl_b32 s{S_T0}, s{S_H}, 14")
    a(f"s_add_u32 s{S_FP}, s{S_FP}, s{S_T0}")
    a(f"s_add_u32 s{S_FP}, s{S_FP}, {WS_FP}")
    for i in range(4):
        a(f"buffer_load_dwordx4 {vr(HF + 4*i, 4)}, v{V_INBF if i == 3 else V_INB}, {WS}, s{S_FP} offen sc1")
        if i < 3: a(f"s_add_u32 s{S_FP}, s{S_FP}, 4096")
    a(f"s_lshl_b32 s{S_GO}, s{S_SEG}, 7")
    a(f"s_add_u32 s{S_GO}, s{S_GO}, {WS_G}")
    a(f"buffer_load_dword v{GV}, v{V_GOF}, {WS}, s{S_GO} offen sc1")
    for i in range(4): a(mf32(RB, vr(HF + 4*i, 4), vr(SEL, 4), "0" if i == 0 else vr(RB, 4)))
    OM = TM
    a(f"v_sub_f32 v{OM}, 1.0, v{GV}")
    a(f"v_cvt_pk_bf16_f32 v{OM}, v{OM}, v{OM}")
    a(f"v_and_b32 v{OM}, 0xffff0000, v{OM}")
    def rnd(R):
        a(f"v_cvt_pk_bf16_f32 v{R}, v{R}, v{R+1}")
        a(f"v_cvt_pk_bf16_f32 v{R+2}, v{R+2}, v{R+3}")
        for q in (0, 2):
            a(f"v_and_b32 v{R+q+1}, 0xffff0000, v{R+q}")
            a(f"v_lshlrev_b32 v{R+q}, 16, v{R+q}")
    rnd(RB)
    for r in range(4): a(f"v_mul_f32 v{RB+r}, v{RB+r}, v{OM}")
    rnd(RB)
    a("s_waitcnt vmcnt(0) lgkmcnt(0)")
    a("s_barrier")
    for i in range(4): a(f"ds_read_b128 {vr(QF + 4*i, 4)}, v{V_QRD} offset:{i*1024}")
    for j in range(8): a(f"ds_read_b128 {vr(KF + 4*j, 4)}, v{V_EXR} offset:{KXB - EXB + j*1024}")
    for i in range(4):
        for Tt in range(2):
            d = SS + 4 * Tt
            a(mf32(d, vr(KF + 16*Tt + 4*i, 4), vr(QF + 4*i, 4), "0" if i == 0 else vr(d, 4)))
    SM = SS + 8
    NEG, MX, T2 = TM, TM + 1, TM + 2
    a(f"v_mov_b32 v{NEG}, 0xff800000")
    for r in range(8): a(f"v_cndmask_b32 v{SS+r}, v{NEG}, v{SS+r}, s[{S_MASK+2*r}:{S_MASK+2*r+1}]")
    a(f"v_max3_f32 v{MX}, v{SS}, v{SS+1}, v{SS+2}")
    a(f"v_max3_f32 v{MX}, v{MX}, v{SS+3}, v{SS+4}")
    a(f"v_max3_f32 v{MX}, v{MX}, v{SS+5}, v{SS+6}")
    a(f"v_max_f32 v{MX}, v{MX}, v{SS+7}")
    a(f"s_and_b32 s{S_T0}, s{S_CNT}, 1")
    a(f"s_lshl_b32 s{S_T0}, s{S_T0}, 20")
    a(f"s_add_u32 s{S_PST}, s{S_PSTB}, s{S_T0}")
    a(f"s_add_u32 s{S_INB}, s{S_INBB}, s{S_T0}")
    a(f"s_bfe_u32 s{S_PH}, s{S_CNT}, 0x10001")
    a(f"s_add_u32 s{S_CNT}, s{S_CNT}, 1")
    a(f"s_cmp_ge_u32 s{S_SEG}, 62")
    a(f"s_cbranch_scc1 {tag}_direct")
    a(f"s_add_u32 s{S_T3}, s{S_FLPA}, {(FLAG_A - FLAG_P) * 128}")
    poll_flags(a, f"{tag}_pa", T2, V_FLG, S_T3, S_NEED, S_LM2, pause=8)
    a.label(f"{tag}_direct")
    a(f"s_lshr_b32 s{S_T0}, s{S_WV}, 1")
    a(f"s_lshl_b32 s{S_T0}, s{S_T0}, 11")
    a(f"s_add_u32 s{S_T0}, s{S_T0}, s{S_KVM}")
    a.label(f"{tag}_km")
    a(f"buffer_load_dwordx2 {vr(KM,2)}, v{V_P1K}, {WS}, s{S_KVM} offen sc1")
    for j in range(2): a(f"buffer_load_dwordx2 {vr(VM + 2*j, 2)}, v{V_L16}, {WS}, s{S_T0} offen offset:{j*1024 + 8} sc1")
    a(f"s_add_u32 s{S_SPIN}, s{S_SPIN}, 1")
    a(f"s_cmp_gt_u32 s{S_SPIN}, {SPIN_LIMIT}")
    a("s_cbranch_scc1 L_abort")
    a("s_waitcnt vmcnt(0)")
    a(f"v_max3_u32 v{T2}, v{KM}, v{VM}, v{VM+2}")
    a(f"v_cmp_eq_u32 vcc, -1, v{T2}")
    a(f"ds_write_b32 v{V_KMW}, v{KM}")
    a(f"ds_write_b32 v{V_KMW}, v{KM+1} offset:512")
    a(f"s_cbranch_vccnz {tag}_km")
    if opt.get('time'):
        a("s_memrealtime s[96:97]"); a("s_waitcnt lgkmcnt(0)"); a("s_mov_b32 s99, s96")
    a("s_waitcnt lgkmcnt(0)")
    a("s_barrier")
    for i in range(4):
        for hh in range(2): a(f"ds_read_b64_tr_b16 {vr(KF + 32 + 4*i + 2*hh, 2)}, v{V_KMR} offset:{i*1024 + hh*512}")
    for i in range(4): a(mf32(SM, vr(KF + 32 + 4*i, 4), vr(QF + 4*i, 4), "0" if i == 0 else vr(SM, 4)))
    a(f"v_mul_f32 v{SM}, s{S_C}, v{SM}")
    a(f"v_mul_f32 v{SM+1}, s{S_C}, v{SM+1}")
    a(f"v_max3_f32 v{MX}, v{MX}, v{SM}, v{SM+1}")
    for sw in ("v_permlane16_swap_b32", "v_permlane32_swap_b32"):
        a(f"v_mov_b32 v{T2}, v{MX}")
        a(f"{sw} v{MX}, v{T2}")
        a(f"v_max_f32 v{MX}, v{MX}, v{T2}")
    for r in range(10): a(f"v_sub_f32 v{SS+r}, v{SS+r}, v{MX}")
    for r in range(10): a(f"v_exp_f32 v{SS+r}, v{SS+r}")
    for r in range(4): a(f"v_cvt_pk_bf16_f32 v{SS+r}, v{SS+2*r}, v{SS+2*r+1}")
    a(f"v_cvt_pk_bf16_f32 v{V_PB}, v{SM}, v{SM+1}")
    a(f"v_cvt_pk_bf16_f32 v{V_PB+3}, v{SM}, v{SM+1}")
    LA = OA + 16
    a(mf32(LA, vr(V_ONES, 4), vr(SS, 4), "0"))
    for j in range(4): a(mf32(OA + 4*j, vr(VF + 4*j, 4), vr(SS, 4), "0"))
    a(mf16(LA, vr(V_ONES, 2), vr(V_PB, 2), vr(LA, 4)))
    for j in range(4): a(mf16(OA + 4*j, vr(VM + 2*(j >> 1), 2), vr(V_PB + 2*(j & 1), 2), vr(OA + 4*j, 4)))
    if opt.get('dumpc'):
        a("s_nop 7")
        a(f"s_lshl_b32 s{S_T0}, s{S_GRP}, 5"); a(f"s_add_u32 s{S_T0}, s{S_T0}, s{S_H}"); a(f"s_lshl_b32 s{S_T0}, s{S_T0}, 2")
        a(f"s_add_u32 s{S_T0}, s{S_T0}, s{S_WV}"); a(f"s_lshl_b32 s{S_T0}, s{S_T0}, 14"); a(f"s_add_u32 s{S_T0}, s{S_T0}, 0x8000000")
        for j, r in enumerate((QF, KF, KF + 32, VF, SS, V_PB, OA, LA, VM, TM, V_ONES, SS + 8)):
            a(f"buffer_store_dwordx4 {vr(r,4)}, v{V_L16}, {WS}, s{S_T0} offen")
            a(f"s_add_u32 s{S_T0}, s{S_T0}, 1024")
    a(f"v_rcp_f32 v{T2}, v{LA}")
    for r in range(16): a(f"v_mul_f32 v{OA+r}, v{OA+r}, v{T2}")
    for r in range(8): a(f"v_cvt_pk_bf16_f32 v{OA+r}, v{OA+2*r}, v{OA+2*r+1}")
    for j in range(2): a(f"ds_write_b128 v{V_OWR}, {vr(OA + 4*j, 4)} offset:{j*1024}")
    a("s_waitcnt lgkmcnt(0)")
    a("s_barrier")
    for j in range(8): a(f"ds_read_b128 {vr(HF + 4*j, 4)}, v{V_EXR} offset:{j*1024}")
    def store(ct, reg):
        return (f"v_and_or_b32 v{reg}, v{reg}, -2, s{S_PH}\ns_add_u32 s{S_T0}, s{S_PST}, {ct * 32768}\n"
                f"buffer_store_dwordx4 {vr(reg,4)}, v{V_L16}, {WS}, s{S_T0} offen {st}")
    out_phase(a, HF, WO, AO, store)
    a("s_waitcnt vmcnt(0)")
    if opt.get('time'):
        a("s_memrealtime s[96:97]"); a("s_waitcnt lgkmcnt(0)"); a("s_mov_b32 s100, s96")
    a.label(f"{tag}_in")
    a(f"s_mov_b32 s{S_T0}, s{S_INB}")
    for i in range(8):
        a(f"buffer_load_dwordx4 {vr(HF + 4*i, 4)}, v{V_INB}, {WS}, s{S_T0} offen sc1")
        if i < 7: a(f"s_add_u32 s{S_T0}, s{S_T0}, 4096")
    a("s_mov_b64 exec, -1")
    a(f"s_add_u32 s{S_SPIN}, s{S_SPIN}, 1")
    a(f"s_cmp_gt_u32 s{S_SPIN}, {SPIN_LIMIT}")
    a("s_cbranch_scc1 L_abort")
    for i in range(8):
        a(mf32(RA, vr(HF + 4*i, 4), vr(SEL, 4), "0" if i == 0 else vr(RA, 4)))
        if i == 0: a(f"v_xor_b32 v{T2}, s{S_PH}, v{HF}")
        else: a(f"v_bitop3_b32 v{T2}, v{T2}, v{HF + 4*i}, s{S_PH} bitop3:0xf6")
    a(f"v_and_b32 v{T2}, 1, v{T2}")
    a(f"v_cmp_ne_u32 vcc, 0, v{T2}")
    a(f"s_cbranch_vccz {tag}_inok")
    a("s_mov_b64 exec, vcc")
    a(f"s_branch {tag}_in")
    a.label(f"{tag}_inok")
    a("s_nop 3")
    rnd(RA)
    for r in range(4): a(f"v_mul_f32 v{RA+r}, v{RA+r}, v{GV}")
    rnd(RA)
    for r in range(4): a(f"v_add_f32 v{RA+r}, v{RA+r}, v{RB+r}")
    a(f"v_cvt_pk_bf16_f32 v{RA}, v{RA}, v{RA+1}")
    a(f"v_cvt_pk_bf16_f32 v{RA+1}, v{RA+2}, v{RA+3}")
    a(f"s_lshl_b32 s{S_OUTO}, s{S_SEG}, 15")
    a(f"s_lshl_b32 s{S_T0}, s{S_H}, 5")
    a(f"s_add_u32 s{S_OUTO}, s{S_OUTO}, s{S_T0}")
    a(f"buffer_store_dwordx2 {vr(RA,2)}, v{V_OUT}, s[{S_O}:{S_O+3}], s{S_OUTO} offen")
    if opt.get('wb'):
        a(f"s_or_b32 s{S_T0}, s{S_H}, s{S_WV}")
        a(f"s_cmp_lg_u32 s{S_T0}, 0")
        a(f"s_cbranch_scc1 {tag}_nowb")
        a(f"s_cmp_lt_u32 s{S_SEG}, {opt['wb']}")
        a(f"s_cbranch_scc1 {tag}_nowb")
        a(f"s_cmp_eq_u32 s{S_SEG}, 63")
        a(f"s_cbranch_scc1 {tag}_nowb")
        a("buffer_wbl2 sc1")
        a.label(f"{tag}_nowb")
    a(f"s_add_u32 s{S_SEG}, s{S_SEG}, {NG}")
```

```python
from common import *

MEMB = 131072
KB = (139264, 147456)
QB = 155648
KKB = QB + 4096
LDS_BYTES = 163840

V_LA, V_P1, V_MR1, V_MR2, V_MR3, V_QW, V_L4, V_QKR, V_WVO, V_OW, V_GATH, V_PST, V_PUB, V_IDX, V_SELX, V_FL = range(16)
V_ONES = 16
V_PB = 20
V_M = 24
V_AQ, V_AK, V_AV = 56, 64, 72
V_W = 80
V_VX = (112, 120)
WQ0, WK0, WV0, WO0 = 256, 384, 128, 192

def wq(t, s): return ur(WQ0 + (s * 2 + t) * 8, 8)
def wk(t, s): return ur(WK0 + (s * 2 + t) * 8, 8)
def wv_res(t, s): return ur(WV0 + ((s - 4) * 2 + t) * 8, 8)
def wo_res(t, kbo): return ur(WO0 + (t * 2 + kbo) * 8, 8)
def Mf(s): return vr(V_M + 4 * s, 4)
def Wb(j): return V_W + 8 * j

S_STEP = 30
S_MEMRD = 31
S_PST0, S_PST1 = 32, 33
S_INB0, S_INB1 = 34, 35
S_PUBN = 36
S_PUBC = 37
S_PH = 38
S_KPF, S_VPF = 39, 40
S_EXP = 41
S_FLP = 42
S_FLA = 43
S_AVAIL = 44
S_C = 45
S_LLO, S_LRG = 46, 47
S_SELM = 48
S_KM0 = 56
S_HB_PST, S_HB_INB, S_HB_PUB = 58, 59, 60
S_TCH = 61
S_HST, S_HLD = 23, 29
S_HST2, S_HLD2 = 64, 65
S_L0 = 66
S_TS = 76
S_ACC = 94

def smf(d, A, B): return f"v_smfmac_f32_16x16x64_bf16 {vr(d,4)}, {A}, {B}, v{V_IDX}"
def mf32(d, A, B, C): return f"v_mfma_f32_16x16x32_bf16 {vr(d,4)}, {A}, {B}, {C}"
def mf16(d, A, B, C): return f"v_mfma_f32_16x16x16_bf16 {vr(d,4)}, {A}, {B}, {C}"

V_TID = 123
HINT_STRIDE = [4, 8]
S_KA = 40

def setup_lanes(a):
    L, T = 127, 126
    a(f"v_lshlrev_b32 v{V_LA}, 4, v{L}")
    a(f"s_lshl_b32 s{S_T0}, s{S_WV}, 13")
    a(f"v_add_u32 v{V_WVO}, s{S_T0}, v{V_LA}")
    a(f"v_add_u32 v{V_LA}, {MEMB}, v{V_LA}")
    for j, r in enumerate((V_P1, V_MR1, V_MR2, V_MR3)):
        a(f"s_xor_b32 s{S_T0}, s{S_WV}, {j}")
        a(f"s_lshl_b32 s{S_T0}, s{S_T0}, 11")
        a(f"v_add_u32 v{r}, s{S_T0}, v{V_LA}")
    bitpat(a, V_QW, L, [(5, 1, 8), (0, 15, 1)], T)
    a(f"v_and_b32 v{V_QW}, 15, v{V_QW}")
    a(f"v_and_b32 v{T}, 48, v{L}")
    a(f"v_add_u32 v{V_QW}, v{V_QW}, v{T}")
    a(f"v_lshlrev_b32 v{V_QW}, 3, v{V_QW}")
    a(f"s_lshl_b32 s{S_T0}, s{S_WV}, 10")
    a(f"s_add_u32 s{S_T0}, s{S_T0}, {QB}")
    a(f"v_add_u32 v{V_QW}, s{S_T0}, v{V_QW}")
    bitpat(a, V_QKR, L, [(1, 1, 8), (2, 15, 1)], T)
    a(f"v_and_b32 v{V_QKR}, 15, v{V_QKR}")
    a(f"v_and_b32 v{T}, 3, v{L}")
    a(f"v_lshl_add_u32 v{V_QKR}, v{T}, 4, v{V_QKR}")
    a(f"v_lshlrev_b32 v{V_QKR}, 3, v{V_QKR}")
    a(f"v_add_u32 v{V_QKR}, {QB}, v{V_QKR}")
    bitpat(a, V_OW, L, [(4, 3, 256), (2, 3, 64), (0, 1, 32), (1, 1, 4096)], T, MEMB)
    a(f"s_lshr_b32 s{S_T0}, s{S_WV}, 1")
    a(f"s_lshl_b32 s{S_T0}, s{S_T0}, 10")
    a(f"s_and_b32 s{S_T1}, s{S_WV}, 1")
    a(f"s_lshl_b32 s{S_T1}, s{S_T1}, 4")
    a(f"s_add_u32 s{S_T0}, s{S_T0}, s{S_T1}")
    a(f"v_add_u32 v{V_OW}, s{S_T0}, v{V_OW}")
    bitpat(a, T, L, [(1, 1, 16)], T)
    a(f"v_xor_b32 v{V_OW}, v{V_OW}, v{T}")
    HS = HINT_STRIDE[0]
    bitpat(a, V_L4, L, [(0, 31, HS), (5, 1, OOB)], T)
    NR = HINT_STRIDE[1]
    nb = NR.bit_length() - 1
    bitpat(a, V_GATH, L, [(0, NR - 1, 32 * HS)] + [(b, 1, OOB) for b in range(nb, 6)], T)
    a(f"s_cmp_eq_u32 s{S_WV}, 3")
    a(f"s_cselect_b64 vcc, -1, 0")
    a(f"v_cndmask_b32 v{V_L4}, v{V_L4}, v{V_GATH}, vcc")
    a(f"s_mul_i32 s{S_T0}, s{S_H}, {HS}")
    a(f"s_add_u32 s{S_T0}, s{S_T0}, {WS_HINT}")
    a(f"s_cmp_eq_u32 s{S_WV}, 3")
    a(f"s_cselect_b32 s{S_HST}, s{S_T0}, {OOB}")
    a(f"s_and_b32 s{S_T0}, s{S_H}, {NR - 1}")
    a(f"s_mul_i32 s{S_T0}, s{S_T0}, {32 * HS}")
    a(f"s_add_u32 s{S_T0}, s{S_T0}, {WS_HINT}")
    a(f"s_cmp_eq_u32 s{S_WV}, 0")
    a(f"s_cselect_b32 s{S_HLD}, s{S_T0}, {OOB}")
    bitpat(a, V_GATH, L, [(1, 7, 1024), (4, 3, 32), (0, 1, 16)], T)
    a(f"s_lshl_b32 s{S_T0}, s{S_WV}, 8")
    a(f"v_add_u32 v{V_GATH}, s{S_T0}, v{V_GATH}")
    bitpat(a, V_PST, L, [(4, 3, 8192), (0, 15, 16)], T)
    a(f"s_lshl_b32 s{S_T0}, s{S_WV}, 16")
    a(f"v_add_u32 v{V_PST}, s{S_T0}, v{V_PST}")
    bitpat(a, V_PUB, L, [(1, 3, 256), (0, 1, 32), (5, 1, 16), (4, 1, 8), (3, 1, OOB)], T)
    a(f"v_and_b32 v{T}, 1, v{L}")
    a(f"v_cmp_eq_u32 vcc, 1, v{T}")
    a(f"v_mov_b32 v{V_IDX}, 0x44444444")
    a(f"v_mov_b32 v{T}, 0xeeeeeeee")
    a(f"v_cndmask_b32 v{V_IDX}, v{V_IDX}, v{T}, vcc")
    a(f"v_mov_b32 v{V_SELX}, 0x3f80")
    a(f"v_mov_b32 v{T}, 0x3f800000")
    a(f"v_cndmask_b32 v{V_SELX}, v{V_SELX}, v{T}, vcc")
    a(f"v_bfe_u32 v{T}, v{L}, 1, 3")
    for r in range(4):
        a(f"v_cmp_eq_u32 s[{S_SELM+2*r}:{S_SELM+2*r+1}], {r}, v{T}")
    a(f"v_cmp_eq_u32 s[{S_L0}:{S_L0+1}], 64, v{V_TID}")
    for r in range(4):
        a(f"v_mov_b32 v{V_ONES+r}, 0x3f803f80")
        a(f"v_mov_b32 v{V_PB+r}, 0")

PSTAMP = [-1]
DEPTH0 = [3]
SFX = ['']
CODEPF = [0]
S_DQ = (68, 72, 76, 80)
V_SQ, V_SO = 125, 124
ROUNDS = []
def set_rounds(order):
    q = [('q', s) for s in (0, 1, 4, 5)]; k = [('k', s) for s in (0, 1, 4, 5)]; o = [('o', (0, 0)), ('o', (0, 1))]; v = [('v', 4), ('v', 5)]
    head = {0: q + k + v + o, 1: o + q + k + v, 2: [q[0], o[0]] + q[1:] + [k[0], o[1]] + k[1:] + v, 3: o + k + v + q}[order]
    ROUNDS[:] = head + [('o', (1, 0)), ('o', (1, 1)), ('v', 0), ('v', 1)]

def src_pattern(a, dst, L, T, bits, pitch):
    bitpat(a, dst, L, [(3, 1, pitch << bits[0]), (4, 1, pitch << bits[1]), (5, 1, pitch << bits[2]), (0, 1, 16)], T)
    for sh, bit in ((2, 4), (4, 2)):
        a(f"v_lshrrev_b32 v{T}, {sh}, v{L}")
        a(f"v_xor_b32 v{T}, v{T}, v{L}")
        a(f"v_and_b32 v{T}, {bit}, v{T}")
        a(f"v_lshl_add_u32 v{dst}, v{T}, 4, v{dst}")

class VmQueue:
    def __init__(self): self.q = []
    def add(self, tag, n=1): self.q += [tag] * n
    def wait(self, a, tag):
        last = max(i for i, t in enumerate(self.q) if t == tag)
        a(f"s_waitcnt vmcnt({len(self.q) - 1 - last})")
        self.q = self.q[last + 1:]
    def done(self, tag): return tag not in self.q

def issue_round(a, i, vq):
    kind, p = ROUNDS[i]
    if kind != 'o':
        a(f"s_xor_b32 s{S_T0}, s{S_WV}, {p >> 1}")
        a(f"s_lshl_b32 s{S_T0}, s{S_T0}, 20")
        a(f"s_add_u32 s{S_T0}, s{S_T0}, s{S_T2}")
        if p & 1: a(f"s_add_u32 s{S_T0}, s{S_T0}, {64 * 8192}")
        rows, pitch, v = (16, 2, 32), 8192, V_SQ
    else:
        a(f"s_lshl_b32 s{S_T0}, s{S_H}, 17")
        a(f"s_lshl_b32 s{S_T1}, s{S_WV}, 8")
        a(f"s_add_u32 s{S_T0}, s{S_T0}, s{S_T1}")
        a(f"s_add_u32 s{S_T0}, s{S_T0}, {p[1] * 65536 + p[0] * 128}")
        rows, pitch, v = (4, 2, 8), 1024, V_SO
    d = S_DQ['qkvo'.index(kind)]
    prev = 0
    for u in range(8):
        off = sum(rows[b] for b in range(3) if u >> b & 1) * pitch - (u & 3) * 1024
        if u & 3 == 0: a(f"s_add_u32 m0, s{S_T3}, {(i & 3) * 32768 + (u >> 2) * 4096}")
        if off != prev: a(f"s_add_u32 s{S_T0}, s{S_T0}, {(off - prev) & 0xffffffff:#x}")
        prev = off
        a(f"buffer_load_dwordx4 v{v}, s[{d}:{d+3}], s{S_T0} offen offset:{(u & 3)*1024} lds")
    vq.add(('w', i), 8)

def start_weights(a, vq):
    L, T = 127, 126
    a(f"v_mov_b32 v{V_TID}, v0")
    a(f"v_and_b32 v{L}, 63, v0")
    a(f"v_lshrrev_b32 v{T}, 6, v0")
    a(f"v_readfirstlane_b32 s{S_WV}, v{T}")
    if CODEPF[0]:
        a("s_getpc_b64 s[8:9]")
        a.label("L_pc")
        a("s_and_b32 s9, s9, 0xffff")
        a("s_mov_b32 s10, L_code_end-L_pc")
        a("s_mov_b32 s11, 0x20000")
        a(f"s_lshl_b32 s{S_T0}, s{S_H}, 12")
        a(f"v_lshlrev_b32 v{T}, 4, v0")
        a(f"buffer_load_dwordx4 v[24:27], v{T}, s[8:11], s{S_T0} offen")
        vq.add('code')
    src_pattern(a, V_SQ, L, T, (0, 3, 2), 8192)
    lazy = all(k == 'q' for k, _ in ROUNDS[:DEPTH0[0]])
    if not lazy: src_pattern(a, V_SO, L, T, (0, 5, 4), 1024)
    a(f"s_lshl_b32 s{S_T3}, s{S_WV}, 13")
    a(f"s_lshr_b32 s{S_T1}, s{S_WV}, 1")
    a(f"s_lshl_b32 s{S_T1}, s{S_T1}, 7")
    a(f"s_lshl_b32 s{S_T2}, s{S_H}, 8")
    a(f"s_add_u32 s{S_T2}, s{S_T2}, s{S_T1}")
    a("s_waitcnt lgkmcnt(0)")
    def desc(base, src, size):
        a(f"s_mov_b32 s{base}, s{src}")
        a(f"s_and_b32 s{base+1}, s{src+1}, 0xffff")
        a(f"s_mov_b32 s{base+2}, {size:#x}")
        a(f"s_mov_b32 s{base+3}, 0x20000")
    desc(S_D, S_KA + 8, 256)
    register_wg(a, V_W, "L_ch_noreg", barrier=False)
    for j, d in enumerate(S_DQ):
        desc(d, S_KA + 2 * j, 0x400000)
        if lazy and j == 0:
            for i in range(DEPTH0[0]): issue_round(a, i, vq)
    if not lazy:
        for i in range(DEPTH0[0]): issue_round(a, i, vq)
    else: src_pattern(a, V_SO, L, T, (0, 5, 4), 1024)
    desc(S_WS, S_KA + 10, WS_SIZE)

def load_weights(a, hooks, vq, depth=3):
    L, T = 127, 126
    TQ, TO = V_AQ, V_AQ + 4
    TMP = V_W
    S_CB = 64
    a(f"s_mov_b32 s{S_CB}, s{S_T2}")
    bitpat(a, TO, L, [(5, 1, 1024), (4, 1, 512 + 32), (3, 1, 256 + 64), (2, 1, 128), (0, 3, 8)], T)
    a(f"s_lshl_b32 s{S_T0}, s{S_WV}, 13")
    a(f"v_add_u32 v{TO}, s{S_T0}, v{TO}")
    for j in range(1, 4): a(f"v_xor_b32 v{TO + j}, {32 * j}, v{TO}")
    a(f"s_and_b32 s{S_T0}, s{S_WV}, 1")
    a(f"s_lshl_b32 s{S_T0}, s{S_T0}, 6")
    a(f"v_xor_b32 v{TQ}, s{S_T0}, v{TO}")
    a(f"v_xor_b32 v{TQ+1}, 32, v{TQ}")
    a(f"v_xor_b32 v{TQ+2}, 8192, v{TQ}")
    a(f"v_xor_b32 v{TQ+3}, 8192, v{TQ+1}")
    for i in range(DEPTH0[0], depth):
        a(f"s_mov_b32 s{S_T2}, s{S_CB}")
        a(f"s_lshl_b32 s{S_T3}, s{S_WV}, 13")
        issue_round(a, i, vq)
    for i in range(16):
        kind, p = ROUNDS[i]
        vq.wait(a, ('w', i))
        a("s_barrier")
        if i + depth < 16:
            a(f"s_mov_b32 s{S_T2}, s{S_CB}")
            a(f"s_lshl_b32 s{S_T3}, s{S_WV}, 13")
            issue_round(a, i + depth, vq)
        if i in hooks: hooks[i](a)
        if i == PSTAMP[0]:
            a("s_memrealtime s[62:63]"); a("s_waitcnt lgkmcnt(0)"); a(f"s_sub_u32 s{S_ACC}, s62, s92"); a(f"s_lshl_b32 s{S_ACC}, s{S_ACC}, 2")
        if i and i % 2 == 0:
            for j in range(8): a(f"v_xor_b32 v{TQ + j}, 0x10000, v{TQ + j}")
        for j in range(2):
            for t in range(2):
                if i >= 12: base = TMP + 16 * j + 8 * t
                elif kind == 'q': base = WQ0 + ((p + 2 * j) * 2 + t) * 8
                elif kind == 'k': base = WK0 + ((p + 2 * j) * 2 + t) * 8
                elif kind == 'v': base = WV0 + ((p + 2 * j - 4) * 2 + t) * 8
                else: base = WO0 + ((2 * j + t) * 2 + p[1]) * 8
                ad = (TO if kind == 'o' else TQ) + 2 * j + t
                for pr in range(4):
                    a(f"ds_read_b64_tr_b16 {ur(base + 2*pr, 2)}, v{ad} offset:{(i & 1)*32768 + (pr >> 1)*4096 + (pr & 1)*2048}")
            a("s_waitcnt lgkmcnt(0)")
        if i >= 12:
            a("s_barrier")
            if i == 14: a(f"v_xor_b32 v{V_WVO}, 0x10000, v{V_WVO}")
            for q in range(8):
                a(f"ds_write_b128 v{V_WVO}, {vr(TMP + 4*q, 4)} offset:{(i & 1)*32768 + q*1024}")
            a("s_waitcnt lgkmcnt(0)")

def lds_wv(s, t, h): return (s & 1) * 32768 + (s >> 1) * 4096 + t * 2048 + h * 1024
def lds_wo(t, kbo, h): return kbo * 32768 + ((t >> 1) - 2) * 4096 + (t & 1) * 2048 + h * 1024
FLIP = f"v_xor_b32 v{V_WVO}, 0x10000, v{V_WVO}"
def rd_wv(dst, s, t): return [f"ds_read_b128 {vr(dst + 4*h, 4)}, v{V_WVO} offset:{lds_wv(s, t, h)}" for h in range(2)]
def rd_wo(dst, t, kbo): return [f"ds_read_b128 {vr(dst + 4*h, 4)}, v{V_WVO} offset:{lds_wo(t, kbo, h)}" for h in range(2)]

def slot_lines():
    return [
        f"s_and_b32 s{S_T0}, s{S_STEP}, 3",
        f"s_lshl_b32 s{S_T1}, s{S_T0}, 13",
        f"s_add_u32 s{S_PUBC}, s{S_T1}, s{S_HB_PUB}",
        f"s_and_b32 s{S_T0}, s{S_T0}, 1",
        f"s_lshl_b32 s{S_T1}, s{S_T0}, 18",
        f"s_add_u32 s{S_PST0}, s{S_T1}, s{S_HB_PST}",
        f"s_add_u32 s{S_PST1}, s{S_PST0}, 32768",
        f"s_add_u32 s{S_INB0}, s{S_T1}, s{S_HB_INB}",
        f"s_add_u32 s{S_INB1}, s{S_INB0}, 4096",
        f"s_bfe_u32 s{S_PH}, s{S_STEP}, 0x10001",
        f"s_add_u32 s{S_T0}, s{S_STEP}, 1",
        f"s_and_b32 s{S_T0}, s{S_T0}, 3",
        f"s_lshl_b32 s{S_T0}, s{S_T0}, 13",
        f"s_add_u32 s{S_PUBN}, s{S_T0}, s{S_HB_PUB}",
        f"s_add_u32 s{S_MEMRD}, s{S_T0}, {WS_MEMRING - MEMB}"]

def idle_a(a, par_next):
    wv_preload(a)
    copy_export(a, par_next)

def wv_preload(a):
    for j in range(4):
        for x in rd_wv(Wb(j), j >> 1, j & 1): a(x)

def copy_export(a, par_next):
    vn = V_VX[1 - par_next]
    for r in range(4): a(f"v_mov_b32 v{vn + r}, v{V_AK + r}")

def zero_b(a):
    for r in list(range(V_AQ + 4, V_AQ + 8)) + list(range(V_AK, V_AK + 4)): a(f"v_mov_b32 v{r}, 0")

def idle_b(a, par_next, tag, young):
    zero_b(a)
    a(f"s_waitcnt vmcnt({young})")
    avail_check(a, tag)

def idle_c1(a):
    for r in list(range(V_AQ, V_AQ + 4)) + list(range(V_AV, V_AV + 8)): a(f"v_mov_b32 v{r}, 0")

def idle_c(a, par_next, done=False):
    if not done: idle_c1(a)
    a("s_waitcnt vmcnt(2)")
    for r in range(V_AK + 4, V_AK + 8): a(f"v_mov_b32 v{r}, 0")

def avail_check(a, tag):
    a(f"v_readfirstlane_b32 s{S_AVAIL}, v{V_FL}")
    a(f"s_lshr_b32 s{S_T0}, s{S_AVAIL}, 16")
    a(f"s_and_b32 s{S_AVAIL}, s{S_AVAIL}, 0xffff")
    a(f"s_min_u32 s{S_AVAIL}, s{S_AVAIL}, s{S_T0}")
    a(f"s_add_u32 s{S_T0}, s{S_STEP}, 2")
    a(f"s_min_u32 s{S_T0}, s{S_T0}, 64")
    a(f"s_cmp_ge_u32 s{S_AVAIL}, s{S_T0}")
    a(f"s_cbranch_scc0 {tag}_slow")
    a.label(f"{tag}_ok")

def avail_slow(a, tag):
    a.label(f"{tag}_slow")
    a(f"buffer_load_dword v{V_FL}, off, s[{S_WS}:{S_WS+3}], s{S_FLP} sc1")
    a(f"s_add_u32 s{S_SPIN}, s{S_SPIN}, 1")
    a(f"s_cmp_gt_u32 s{S_SPIN}, {SPIN_LIMIT}")
    a("s_cbranch_scc1 L_abort")
    a("s_waitcnt vmcnt(0)")
    a(f"v_readfirstlane_b32 s{S_AVAIL}, v{V_FL}")
    a(f"s_lshr_b32 s{S_T1}, s{S_AVAIL}, 16")
    a(f"s_and_b32 s{S_AVAIL}, s{S_AVAIL}, 0xffff")
    a(f"s_min_u32 s{S_AVAIL}, s{S_AVAIL}, s{S_T1}")
    a(f"s_cmp_ge_u32 s{S_AVAIL}, s{S_T0}")
    a(f"s_cbranch_scc0 {tag}_slow")
    a(f"s_branch {tag}_ok")

def step(a, par, st, tag, opt, nxt=None):
    WS = f"s[{S_WS}:{S_WS+3}]"
    VXc, VXn = V_VX[par], V_VX[1 - par]
    Kc = KB[par] - MEMB
    T0 = V_PB + 3
    stamp = opt.get('stamp') or (None, None)
    trace = opt.get('trace', [])
    def st_list(name):
        if opt.get('series') == name:
            return [f"s_memtime s[{S_TS}:{S_TS+1}]", f"s_lshl_b32 s{S_TS+2}, s{S_STEP}, 2", f"s_lshl_b32 s{S_TS+3}, s{S_H}, 8", f"s_add_u32 s{S_TS+2}, s{S_TS+2}, s{S_TS+3}",
                    f"s_add_u32 s{S_TS+2}, s{S_TS+2}, {WS_STAMP + 0x30000}", "s_waitcnt lgkmcnt(0)", f"v_mov_b32 v{V_PB}, s{S_TS}",
                    f"buffer_store_dword v{V_PB}, off, {WS}, s{S_TS+2}"]
        if name in trace:
            k = 68 + trace.index(name)
            return [f"s_memtime s[{S_TS}:{S_TS+1}]", "s_waitcnt lgkmcnt(0)", f"s_cmp_eq_u32 s{S_STEP}, {opt.get('tstep', 20) + (1 if name in ('join', 'pub', 'h2iss', 'h1iss', 'pst', 'oex') else 0) + (1 if name == 'entry' and opt.get('nextentry') else 0)}",
                    f"s_cselect_b32 s{k}, s{S_TS}, s{k}"]
        if stamp[0] == name:
            return [f"s_memtime s[{S_TS}:{S_TS+1}]", "s_waitcnt lgkmcnt(0)"]
        if stamp[1] == name:
            return [f"s_memtime s[{S_TS+2}:{S_TS+3}]", "s_waitcnt lgkmcnt(0)", f"s_sub_u32 s{S_TS+2}, s{S_TS+2}, s{S_TS}",
                    f"s_cmp_lt_u32 s{S_STEP}, 2", f"s_cselect_b32 s{S_TS+2}, 3000, s{S_TS+2}", f"s_cselect_b32 s{S_TS+3}, 3000, 0", f"s_sub_u32 s{S_ACC}, s{S_ACC}, s{S_TS+3}",
                    f"s_add_u32 s{S_ACC}, s{S_ACC}, s{S_TS+2}", f"s_max_u32 s74, s74, s{S_TS+2}", f"s_min_u32 s73, s73, s{S_TS+2}",
                    f"s_cmp_gt_u32 s{S_TS+2}, {opt.get('thr', 100000)}", "s_addc_u32 s72, s72, 0"]
        return []
    def st_at(name):
        for x in st_list(name): a(x)
    sg = opt.get('sg', 0)
    a.label(f"{tag}_h1")
    a(f"s_waitcnt vmcnt({1 if sg else 0})")
    a.label(f"{tag}_entry")
    st_at('entry')
    M = V_M
    if opt.get('w0', 1): a(f"ds_write_b128 v{V_P1}, {Mf(0)}")
    if not sg:
        a(f"v_max3_u32 v{T0}, v{M+1}, v{M+3}, v{M+5}")
        a(f"v_max_u32 v{T0}, v{T0}, v{M+7}")
        a(f"v_cmp_eq_u32 vcc, -1, v{T0}")
    elif opt.get('sg2'):
        a(f"v_max_u32 v{T0}, v{M+1}, v{M+3}")
    a.label(f"{tag}_entry2")
    mains = []; F = {}
    nobg = opt.get('nobg', '')
    def add(i, *xs): F.setdefault(i, []).extend(xs)
    AQ = lambda t: V_AQ + 4 * t
    AK = lambda t: V_AK + 4 * t
    AV = lambda t: V_AV + 4 * t
    if not sg:
        for s in range(2):
            for t in range(2): mains.append(smf(AQ(t), Mf(s), wq(t, s)))
        for s in range(2):
            for t in range(2): mains.append(smf(AK(t), Mf(s), wk(t, s)))
        for s in range(2):
            for t in range(2): mains.append(smf(AV(t), Mf(s), vr(Wb(2*s + t), 8)))
        add(1, f"s_cbranch_vccnz {tag}_h1retry")
        if not opt.get('w0', 1): add(1, f"ds_write_b128 v{V_P1}, {Mf(0)}")
        add(opt.get('w1', 2), f"ds_write_b128 v{V_P1}, {Mf(1)} offset:1024")
    else:
        for s in range(2):
            for t in range(2): mains.append(smf(AQ(t), Mf(s), wq(t, s)))
            for t in range(2): mains.append(smf(AK(t), Mf(s), wk(t, s)))
            for t in range(2): mains.append(smf(AV(t), Mf(s), vr(Wb(2*s + t), 8)))
        g = sg
        if not opt.get('sg2'): add(0, f"v_max_u32 v{T0}, v{M+1}, v{M+3}")
        add(g, "s_waitcnt vmcnt(0)", f"ds_write_b128 v{V_P1}, {Mf(1)} offset:1024", f"v_max3_u32 v{T0}, v{T0}, v{M+5}, v{M+7}")
        add(g + 1, f"v_cmp_eq_u32 vcc, -1, v{T0}")
        add(g + 3, f"s_cbranch_vccnz {tag}_h1retry")
    B1 = opt.get('b1', 6)
    add(B1, "s_waitcnt lgkmcnt(0)", *st_list('prebar1'), "s_barrier", *st_list('bar1'))
    mr = (V_MR1, V_MR2, V_MR3)
    for j, s in enumerate(range(2, 8)):
        add(B1 + j, f"ds_read_b128 {Mf(s)}, v{mr[(s >> 1) - 1]} offset:{(s & 1) * 1024}")
    for s in range(2, 8):
        for t in range(2): mains.append(smf(AQ(t), Mf(s), wq(t, s)))
    wvr = [x for j in range(4) for x in rd_wv(Wb(j), 2 + (j >> 1), j & 1)]
    for i, x in enumerate(wvr): add(14 + i, x)
    for s in range(2, 4):
        for t in range(2): mains.append(smf(AV(t), Mf(s), vr(Wb(2*(s-2) + t), 8)))
    for s in range(2, 8):
        for t in range(2): mains.append(smf(AK(t), Mf(s), wk(t, s)))
    ex4 = [f"buffer_store_dwordx4 {vr(VXn,4)}, v{V_LA}, {WS}, s{S_EXP} offen sc1"]
    bg = [f"buffer_load_dwordx4 v{V_P1}, {WS}, s{S_KPF} offen sc1 lds",
          f"buffer_load_dwordx4 v{V_P1}, {WS}, s{S_KPF} offen offset:1024 sc1 lds",
          f"buffer_load_dwordx4 {vr(VXn+4,4)}, v{V_P1}, {WS}, s{S_VPF} offen offset:1024 sc1",
          f"buffer_load_dwordx4 {vr(VXn,4)}, v{V_P1}, {WS}, s{S_VPF} offen sc1",
          f"buffer_load_dword v{V_FL}, off, {WS}, s{S_FLP} sc1"]
    vpos = opt.get('vpos', (13, 15, 17, 19, 21, 22))
    add(5, f"s_mov_b32 m0, s{S_KM0 + (1 - par)}")
    for x, i in zip(ex4 + bg, vpos): add(i, x)
    add(20, f"s_sub_u32 s{S_T2}, s{S_STEP}, 1", f"s_max_i32 s{S_T2}, s{S_T2}, 0")
    add(21, f"v_mov_b32 v{V_PB}, s{S_T2}")
    add(23, f"buffer_store_dword v{V_PB}, v{V_GATH}, {WS}, s{S_FLA} offen sc1")
    sal = slot_lines() + [f"s_add_u32 s{S_EXP}, s{S_EXP}, {32*4096}", f"s_add_u32 s{S_KPF}, s{S_KPF}, {32*8192}", f"s_add_u32 s{S_VPF}, s{S_VPF}, {32*8192}"]
    if opt.get('samekv'): sal = sal[:-2]
    if opt.get('sameexp'): sal = [x for x in sal if f"s{S_EXP}," not in x]
    for j, x in enumerate(sal): F.setdefault(23 + j, []).insert(0, x)
    QF, KF = Wb(0), Wb(2)
    KX = [V_M, V_M + 4, Wb(2), Wb(2) + 4, Wb(3), Wb(3) + 4, V_M + 8, V_M + 12]
    qtr = [f"ds_read_b64_tr_b16 {vr(QF + 4*i + 2*hh, 2)}, v{V_QKR} offset:{i*1024 + hh*512}" for i in range(4) for hh in range(2)]
    kxr = [f"ds_read_b128 {vr(KX[2*i + T], 4)}, v{V_LA} offset:{Kc + T*4096 + i*1024}" for i in range(4) for T in range(2)]
    q0, q1 = AQ(0), AQ(1)
    add(22, kxr[0]); add(23, kxr[1])
    add(24, f"v_add_f32 v{q0}, v{q0}, v{q0+1}")
    add(25, f"v_add_f32 v{q0+2}, v{q0+2}, v{q0+3}")
    add(26, f"v_cvt_pk_bf16_f32 v{q0}, v{q0}, v{q0+2}")
    add(27, f"ds_write_b32 v{V_QW}, v{q0}", f"v_add_f32 v{q1}, v{q1}, v{q1+1}")
    add(28, kxr[2], f"v_add_f32 v{q1+2}, v{q1+2}, v{q1+3}")
    add(29, kxr[3], f"v_cvt_pk_bf16_f32 v{q1}, v{q1}, v{q1+2}")
    add(30, f"ds_write_b32 v{V_QW}, v{q1} offset:512")
    add(31, kxr[4]); add(32, kxr[5]); add(33, kxr[6])
    add(33, FLIP)
    B2 = opt.get('b2', 34)
    add(B2, "s_waitcnt lgkmcnt(3)", *st_list('prebar2'), "s_barrier", *st_list('bar2'))
    for j, x in enumerate(qtr): add(B2 + j, x)
    SX = lambda T: V_AQ + 4 * T
    for s in (4,):
        for t in range(2): mains.append(smf(AV(t), Mf(s), wv_res(t, s)))
    for i in range(4):
        for T in range(2):
            mains.append(mf32(SX(T), vr(KX[2*i + T], 4), vr(QF + 4*i, 4), "0" if i == 0 else vr(SX(T), 4)))
    k0, k1 = AK(0), AK(1)
    add(40, f"v_add_f32 v{k0}, v{k0}, v{k0+1}")
    add(41, f"v_add_f32 v{k0+2}, v{k0+2}, v{k0+3}")
    add(42, f"v_cvt_pk_bf16_f32 v{k0}, v{k0}, v{k0+2}", f"v_add_f32 v{k1}, v{k1}, v{k1+1}")
    add(43, f"ds_write_b32 v{V_QW}, v{k0} offset:4096", f"v_add_f32 v{k1+2}, v{k1+2}, v{k1+3}")
    add(44, kxr[7], f"v_cvt_pk_bf16_f32 v{k0+1}, v{k1}, v{k1+2}")
    add(45, f"ds_write_b32 v{V_QW}, v{k0+1} offset:4608")
    B3 = opt.get('b3', 49)
    add(B3, "s_waitcnt lgkmcnt(0)", *st_list('prebar3'), "s_barrier", *st_list('bar3'))
    ktr = [f"ds_read_b64_tr_b16 {vr(KF + 4*i + 2*hh, 2)}, v{V_QKR} offset:{4096 + i*1024 + hh*512}" for i in range(4) for hh in range(2)]
    for s in (5, 6, 7):
        for t in range(2): mains.append(smf(AV(t), Mf(s), wv_res(t, s)))
    for x, i in zip(ktr, opt.get('ktrpos', (49, 49, 50, 51, 52, 53, 54, 55))): add(i, x)
    ex = [f"v_exp_f32 v{V_AQ + r}, v{V_AQ + r}" for r in range(8)]
    for x, i in zip(ex, opt.get('expos', (50, 51, 52, 53, 54, 55, 56, 57))): add(i, x)
    SM = V_AK + 4
    for i in range(4):
        mains.append(mf32(SM, vr(KF + 4*i, 4), vr(QF + 4*i, 4), "0" if i == 0 else vr(SM, 4)))
    PX = V_AQ
    v0_, v1_ = AV(0), AV(1)
    add(58, f"v_cvt_pk_bf16_f32 v{PX}, v{V_AQ}, v{V_AQ+1}", f"v_cvt_pk_bf16_f32 v{PX+1}, v{V_AQ+2}, v{V_AQ+3}")
    add(59, f"v_cvt_pk_bf16_f32 v{PX+2}, v{V_AQ+4}, v{V_AQ+5}", f"v_cvt_pk_bf16_f32 v{PX+3}, v{V_AQ+6}, v{V_AQ+7}",
            f"v_add_f32 v{v0_}, v{v0_}, v{v0_+1}", f"v_add_f32 v{v0_+2}, v{v0_+2}, v{v0_+3}")
    OA, LA = V_M, V_M + 8
    mains.append(mf32(LA, vr(V_ONES, 4), vr(PX, 4), "0"))
    mains.append(mf32(OA, vr(VXc, 4), vr(PX, 4), "0"))
    mains.append(mf32(OA + 4, vr(VXc + 4, 4), vr(PX, 4), "0"))
    add(60, f"v_mul_f32 v{SM}, s{S_C}, v{SM}", f"v_mul_f32 v{SM+1}, s{S_C}, v{SM+1}")
    add(61, f"v_exp_f32 v{SM}, v{SM}", f"v_exp_f32 v{SM+1}, v{SM+1}")
    add(62, f"v_cvt_pk_bf16_f32 v{V_AK+2}, v{v0_}, v{v0_+2}", f"v_cvt_pk_bf16_f32 v{V_PB}, v{SM}, v{SM+1}",
            f"v_add_f32 v{v1_}, v{v1_}, v{v1_+1}", f"v_add_f32 v{v1_+2}, v{v1_+2}, v{v1_+3}")
    mains.append(mf16(LA, vr(V_ONES, 2), vr(V_PB, 2), vr(LA, 4)))
    add(63, f"v_cvt_pk_bf16_f32 v{V_AK+3}, v{v1_}, v{v1_+2}", f"v_cvt_pk_bf16_f32 v{V_PB+3}, v{SM}, v{SM+1}")
    mains.append(mf16(OA, vr(V_AK + 2, 2), vr(V_PB, 2), vr(OA, 4)))
    mains.append(mf16(OA + 4, vr(V_AK + 2, 2), vr(V_PB + 2, 2), vr(OA + 4, 4)))
    wo_order = [(t, kbo) for t in range(4, 8) for kbo in range(2)]
    wor = [x for j in range(4) for x in rd_wo(Wb(j), *wo_order[j])]
    npre = opt.get('npre', 4)
    for x, i in zip(wor[:npre], (64, 64, 65, 65, 65, 65, 65, 65)): add(i, x)
    drop = opt.get('drop', [])
    if drop:
        F = {i: [x for x in xs if not any(x.startswith(d) for d in drop)] for i, xs in F.items()}
    interleave(a, mains, F)
    st_at('pv')
    INV, OW = V_AQ + 0, V_AQ + 4
    a(f"v_rcp_f32 v{INV}, v{LA}")
    for hh in range(2):
        if opt.get('pkn', 1):
            for r in range(4 * hh, 4 * hh + 4, 2): a(f"v_pk_mul_f32 {vr(OA+r,2)}, {vr(OA+r,2)}, {vr(INV,2)} op_sel_hi:[1,0]")
        else:
            for r in range(4 * hh, 4 * hh + 4): a(f"v_mul_f32 v{OA+r}, v{OA+r}, v{INV}")
        for r in range(2 * hh, 2 * hh + 2): a(f"v_cvt_pk_bf16_f32 v{OW+r}, v{OA+2*r}, v{OA+2*r+1}")
        if not opt.get('ow128'): a(f"ds_write_b64 v{V_OW}, {vr(OW + 2*hh, 2)} offset:{8*hh}")
    if opt.get('ow128'): a(f"ds_write_b128 v{V_OW}, {vr(OW, 4)}")
    a(f"v_subrev_u32 v{INV+1}, s{S_LLO}, v{LA}")
    a(f"v_cmp_le_u32 vcc, s{S_LRG}, v{INV+1}")
    zacc = lambda t: mf16(V_M + 4*t, vr(V_PB + 2, 2), vr(V_PB, 2), "0")
    nb1, nb2 = opt.get('nb1', 0), opt.get('nb2', 0)
    b1l = wor[npre:npre + nb1]
    for t in range(opt.get('z1', 4)):
        a(zacc(t))
        for x in b1l[t::4]: a(x)
    a(f"s_cbranch_vccnz {tag}_fallback")
    a.label(f"{tag}_fbdone")
    a(f"s_waitcnt lgkmcnt({nb1})")
    st_at('prebar4')
    a("s_barrier")
    st_at('bar4')
    OF = VXc
    a(f"ds_read_b128 {vr(OF,4)}, v{V_LA}")
    a(f"ds_read_b128 {vr(OF+4,4)}, v{V_LA} offset:1024")
    HV = V_AK + 4
    a(f"s_add_u32 s{S_STEP}, s{S_STEP}, 1")
    for t in range(opt.get('z1', 4), 8):
        a(zacc(t))
        for x in wor[npre + nb1:npre + nb1 + nb2][t - 4::4]: a(x)
        if t == 4: a(f"v_mov_b32 v{HV}, s{S_STEP}")
    st_at('oex')
    mains = []; F = {}
    P = lambda t: V_M + 4 * t
    for t in range(4):
        for kbo in range(2): mains.append(smf(P(t), vr(OF + 4*kbo, 4), wo_res(t, kbo)))
    src = [Wb(0), Wb(1), Wb(2), Wb(3), V_AQ, V_AV, Wb(0), Wb(1)]
    for j, (t, kbo) in enumerate(wo_order): mains.append(smf(P(t), vr(OF + 4*kbo, 4), vr(src[j], 8)))
    nd = npre + nb1 + nb2
    late = wor[nd:] + [x for j in range(4, 8) for x in rd_wo(src[j], *wo_order[j])]
    n1 = 12 - nd
    lpos = [min(7, (j * 8) // max(n1, 8)) for j in range(n1)] + list(opt.get('lp', (8, 9, 9, 10)))
    for x, i in zip(late, lpos): add(i, x)
    split = opt.get('split', 0)
    def fold(t, dst):
        p = P(t)
        return [f"v_add_f32 v{p}, v{p}, v{p+1}", f"v_add_f32 v{p+2}, v{p+2}, v{p+3}", f"v_cvt_pk_bf16_f32 v{dst}, v{p}, v{p+2}"]
    for t in range(6):
        y = fold(t, P(t & 4) + (t & 3))
        add(2 * t + 3, y[0]); add(2 * t + 4, y[1], y[2])
        if t & 3 == 0: add(2 * t + 5, f"v_and_or_b32 v{P(t)}, v{P(t)}, -2, s{S_PH}")
        if split and t == 2: add(2 * t + 5, f"v_and_or_b32 v{P(0)+2}, v{P(0)+2}, -2, s{S_PH}")
    add(11, FLIP)
    y6 = fold(6, P(4) + 2); add(15, y6[0])
    sp = opt.get('st0', 11)
    F[sp].insert(0, f"buffer_store_dwordx4 {vr(P(0),4)}, v{V_PST}, {WS}, s{S_PST0} offen {st}")
    if split: F[15].insert(0, f"buffer_store_dwordx2 {vr(P(4),2)}, v{V_PST}, {WS}, s{S_PST1} offen {st}")
    probes = opt.get('probes', (14, 16))
    F.setdefault(opt.get('hintpos', 7), []).insert(0, f"buffer_store_dword v{HV}, v{V_L4}, {WS}, s{S_HST} offen {st}")
    probe = lambda j: f"buffer_load_dword v{HV + 1 + j % 3}, v{V_L4}, {WS}, s{S_HLD} offen sc1"
    for j, g in enumerate(probes):
        if g < 16: F[g].insert(0, probe(j))
    interleave(a, mains, F)
    a(y6[1]); a(y6[2])
    if split: a(f"v_and_or_b32 v{P(4)+2}, v{P(4)+2}, -2, s{S_PH}")
    for j, g in enumerate(probes):
        if g == 16: a(probe(j))
    for y in fold(7, P(4) + 3): a(y)
    if split: a(f"buffer_store_dwordx2 {vr(P(4)+2,2)}, v{V_PST}, {WS}, s{S_PST1} offen offset:8 {st}")
    else: a(f"buffer_store_dwordx4 {vr(P(4),4)}, v{V_PST}, {WS}, s{S_PST1} offen {st}")
    st_at('pst')
    SEL, RA = V_AQ, V_AV
    def h2_issue():
        for i in range(8):
            a(f"buffer_load_dwordx4 {Mf(i)}, v{V_LA}, {WS}, s{S_INB0 if i < 4 else S_INB1} offen offset:{(i & 3)*1024} sc1")
    FLG = QB + 4 - MEMB
    a(f"s_cmp_lg_u32 s{S_WV}, 0")
    a(f"s_cbranch_scc1 {tag}_others")
    PR = [HV + 1, HV + 2, HV + 3, V_AV, V_AV + 1]
    probe_to = lambda r: f"buffer_load_dword v{r}, v{V_L4}, {WS}, s{S_HLD} offen sc1"
    def check(r):
        a(f"v_cmp_gt_u32 vcc, s{S_STEP}, v{r}")
        a(f"s_cmp_eq_u32 vcc_lo, 0")
        a(f"s_cbranch_scc1 {tag}_go")
    n = len(probes)
    depth = opt.get('pdepth', 4)
    queue = []
    for g in sorted(set(list(probes) + [sp, 17])):
        if g in probes: queue.append(PR[probes.index(g)])
        if g == sp or g == 17: queue.append(None)
    if sp in probes:
        pass
    def issue(r):
        a(probe_to(r)); queue.append(r)
    def wait_check(r):
        k = max(i for i, x in enumerate(queue) if x == r)
        return len(queue) - 1 - k
    sel = [f"v_cndmask_b32 v{SEL+r}, 0, v{V_SELX}, s[{S_SELM+2*r}:{S_SELM+2*r+1}]" for r in range(4)]
    nxtr = n
    issue(PR[nxtr]); nxtr += 1
    for x in sel: a(x)
    copy_export(a, 1 - par)
    if depth > nxtr:
        zero_b(a)
        issue(PR[nxtr]); nxtr += 1
    order = list(range(nxtr))
    first = True
    for j in range(n):
        a(f"s_waitcnt vmcnt({wait_check(PR[j])})")
        check(PR[j])
        if nxtr < depth:
            issue(PR[nxtr]); order.append(nxtr); nxtr += 1
            if first: wv_preload(a)
            issue(PR[j]); order.append(j)
        else:
            issue(PR[j]); order.append(j)
        first = False
    ring = order[n:]
    a.label(f"{tag}_hl")
    for j in ring:
        a(f"s_waitcnt vmcnt({len(ring) - 1})")
        check(PR[j])
        a(probe_to(PR[j]))
        a(f"s_add_u32 s{S_ACC+3}, s{S_ACC+3}, 1")
    a(f"s_add_u32 s{S_SPIN}, s{S_SPIN}, 1")
    a(f"s_cmp_gt_u32 s{S_SPIN}, {SPIN_LIMIT}")
    a(f"s_cbranch_scc0 {tag}_hl")
    a("s_branch L_abort")
    if opt.get('al', 1): a(".p2align 5")
    a.label(f"{tag}_go")
    for _ in range(opt.get('h2pad', 0)): a("s_nop 7")
    st_at('h2iss')
    h2_issue()
    ea = opt.get('ea', 3)
    if not ea & 1: wv_preload(a)
    if not ea & 2: idle_b(a, 1 - par, f"{tag}_av0", 10 + len(probes))
    a.label(f"{tag}_h2")
    TG = RA + 4
    for i in range(8):
        a(mf32(RA, Mf(i), vr(SEL, 4), "0" if i == 0 else vr(RA, 4)))
        if i == 0: a(f"v_xor_b32 v{TG}, s{S_PH}, v{V_M}")
        else: a(f"v_bitop3_b32 v{TG}, v{TG}, v{V_M + 4*i}, s{S_PH} bitop3:0xf6")
        if split: a(f"v_bitop3_b32 v{TG}, v{TG}, v{V_M + 4*i + 2}, s{S_PH} bitop3:0xf6")
    a(f"v_and_b32 v{TG}, 1, v{TG}")
    a(f"v_cmp_ne_u32 vcc, 0, v{TG}")
    a(f"v_mov_b32 v{TG}, -1")
    a(f"v_mov_b32 v{TG+1}, -1")
    a(f"v_cvt_pk_bf16_f32 v{RA+6}, v{RA}, v{RA+1}")
    a(f"v_cvt_pk_bf16_f32 v{RA+7}, v{RA+2}, v{RA+3}")
    a(f"s_cbranch_vccnz {tag}_h2r")
    a(f"buffer_store_dwordx2 {vr(RA+6,2)}, v{V_PUB}, {WS}, s{S_PUBN} offen {st}")
    st_at('pub')
    a(f"buffer_store_dwordx2 {vr(TG,2)}, v{V_PUB}, {WS}, s{S_PUBC} offen {st}")
    if ea & 1: wv_preload(a)
    if ea & 2: idle_b(a, 1 - par, f"{tag}_av0", 63)
    idle_c1(a)
    a(f"s_branch {tag}_join")
    if opt.get('al', 1): a(".p2align 5")
    for _ in range(opt.get('sh2', 4)): a(".long 0xbf800000")
    a.label(f"{tag}_others")
    if opt.get('time'):
        for k, (st_, reg) in enumerate(((8, 80), (62, 82))):
            a(f"s_cmp_lg_u32 s{S_STEP}, {st_}")
            a(f"s_cbranch_scc1 {tag}_nt{k}")
            a(f"s_memtime s[{reg}:{reg+1}]")
            a("s_waitcnt lgkmcnt(0)")
            a.label(f"{tag}_nt{k}")
    idle_c1(a)
    idle_a(a, 1 - par)
    zero_b(a)
    a(f"s_cmp_lg_u32 s{S_WV}, 1")
    a(f"s_cbranch_scc1 {tag}_av2_ok")
    a(f"s_waitcnt vmcnt({2 + len(probes)})")
    avail_check(a, f"{tag}_av2")
    for j in range(opt.get('dummy', 0)): a(smf(V_M + 8 + 4 * (j & 1), vr(V_W + 4 * (j & 3), 4), wq(j & 1, j & 7)))
    a.label(f"{tag}_join")
    a("s_barrier")
    for _ in range(opt.get('h1pad', 0)): a("s_nop 7")
    st_at('h1iss')
    if par == 0:
        a(f"s_cmp_eq_u32 s{S_STEP}, 63")
        a(f"s_cbranch_scc1 L_last")
    if sg and not opt.get('sgb2b'):
        a(f"buffer_load_dwordx4 {Mf(0)}, v{V_P1}, {WS}, s{S_MEMRD} offen sc1")
        a("s_waitcnt vmcnt(1)")
        for r in range(V_AK + 4, V_AK + 8): a(f"v_mov_b32 v{r}, 0")
        for _ in range(opt.get('sgpad', 0)): a("s_nop 3")
        a(f"buffer_load_dwordx4 {Mf(1)}, v{V_P1}, {WS}, s{S_MEMRD} offen offset:1024 sc1")
    else:
        h1_issue(a, 0)
        idle_c(a, 1 - par, True)
    for j in range(opt.get('dummy2', 0)): a(smf(V_M + 8 + 4 * (j & 1), vr(V_W + 4 * (j & 3), 4), wq(j & 1, j & 7)))
    a("s_waitcnt lgkmcnt(0)")
    st_at('join')
    return h2_issue, None

def h1_issue(a, j):
    WS = f"s[{S_WS}:{S_WS+3}]"
    a(f"buffer_load_dwordx4 {Mf(2*j)}, v{V_P1}, {WS}, s{S_MEMRD} offen sc1")
    a(f"buffer_load_dwordx4 {Mf(2*j + 1)}, v{V_P1}, {WS}, s{S_MEMRD} offen offset:1024 sc1")

def step_tails(a, par, tag, h2, opt):
    WS = f"s[{S_WS}:{S_WS+3}]"
    VXc = V_VX[par]
    Kc = KB[par] - MEMB
    T0 = V_PB + 3
    def spin(k):
        a(f"s_add_u32 s{S_SPIN}, s{S_SPIN}, 1")
        a(f"s_cmp_gt_u32 s{S_SPIN}, {SPIN_LIMIT}")
        a("s_cbranch_scc1 L_abort")
        a(f"s_add_u32 s{S_ACC+k}, s{S_ACC+k}, 1")
    a.label(f"{tag}_h1retry")
    a("s_mov_b64 exec, vcc")
    h1_issue(a, 0)
    a("s_mov_b64 exec, -1")
    spin(1)
    a("s_nop 2")
    for r in range(24 if opt.get('sg') else 8): a(f"v_mov_b32 v{V_AQ + r}, 0")
    a(f"s_branch {tag}_h1")
    a.label(f"{tag}_h2r")
    a("s_mov_b64 exec, vcc")
    h2[0]()
    a("s_mov_b64 exec, -1")
    if h2[1]: a(h2[1])
    spin(2)
    a(f"s_branch {tag}_h2")
    for j in (0, 2): avail_slow(a, f"{tag}_av{j}")
    a.label(f"{tag}_fallback")
    a("s_nop 7")
    a("s_nop 3")
    a("s_waitcnt lgkmcnt(0)")
    QF, KF = Wb(0), Wb(2)
    SX, SM = V_AV, V_AK + 4
    OA, LA = V_M, V_M + 8
    for i in range(4):
        for hh in range(2): a(f"ds_read_b64_tr_b16 {vr(QF + 4*i + 2*hh, 2)}, v{V_QKR} offset:{i*1024 + hh*512}")
    for T in range(2):
        for i in range(4): a(f"ds_read_b128 {vr(KF + 4*i, 4)}, v{V_LA} offset:{Kc + T*4096 + i*1024}")
        for i in range(4): a(mf32(SX + 4*T, vr(KF + 4*i, 4), vr(QF + 4*i, 4), "0" if i == 0 else vr(SX + 4*T, 4)))
        a("s_nop 7")
    for i in range(4):
        for hh in range(2): a(f"ds_read_b64_tr_b16 {vr(KF + 4*i + 2*hh, 2)}, v{V_QKR} offset:{4096 + i*1024 + hh*512}")
    for i in range(4): a(mf32(SM, vr(KF + 4*i, 4), vr(QF + 4*i, 4), "0" if i == 0 else vr(SM, 4)))
    a(f"v_mul_f32 v{SM}, s{S_C}, v{SM}")
    a(f"v_mul_f32 v{SM+1}, s{S_C}, v{SM+1}")
    MX, T2 = SM + 2, SM + 3
    a(f"v_max3_f32 v{MX}, v{SM}, v{SM+1}, v{SX}")
    for r in range(1, 7, 2): a(f"v_max3_f32 v{MX}, v{MX}, v{SX+r}, v{SX+r+1}")
    a(f"v_max_f32 v{MX}, v{MX}, v{SX+7}")
    for sw in ("v_permlane16_swap_b32", "v_permlane32_swap_b32"):
        a(f"v_mov_b32 v{T2}, v{MX}")
        a(f"{sw} v{MX}, v{T2}")
        a(f"v_max_f32 v{MX}, v{MX}, v{T2}")
    for r in list(range(SX, SX + 8)) + [SM, SM + 1]:
        a(f"v_sub_f32 v{r}, v{r}, v{MX}")
        a(f"v_exp_f32 v{r}, v{r}")
    PX = V_AQ
    for r in range(4): a(f"v_cvt_pk_bf16_f32 v{PX+r}, v{SX+2*r}, v{SX+2*r+1}")
    a(f"v_cvt_pk_bf16_f32 v{V_PB}, v{SM}, v{SM+1}")
    a(f"v_cvt_pk_bf16_f32 v{V_PB+3}, v{SM}, v{SM+1}")
    a(mf32(LA, vr(V_ONES, 4), vr(PX, 4), "0"))
    a(mf32(OA, vr(VXc, 4), vr(PX, 4), "0"))
    a(mf32(OA + 4, vr(VXc + 4, 4), vr(PX, 4), "0"))
    a(mf16(LA, vr(V_ONES, 2), vr(V_PB, 2), vr(LA, 4)))
    a(mf16(OA, vr(V_AK + 2, 2), vr(V_PB, 2), vr(OA, 4)))
    a(mf16(OA + 4, vr(V_AK + 2, 2), vr(V_PB + 2, 2), vr(OA + 4, 4)))
    wo_order = [(t, kbo) for t in range(4, 8) for kbo in range(2)]
    for j in range(4):
        for x in rd_wo(Wb(j), *wo_order[j]): a(x)
    INV, OW = V_AQ + 0, V_AQ + 4
    a(f"v_rcp_f32 v{INV}, v{LA}")
    for r in range(8): a(f"v_mul_f32 v{OA+r}, v{OA+r}, v{INV}")
    for r in range(4): a(f"v_cvt_pk_bf16_f32 v{OW+r}, v{OA+2*r}, v{OA+2*r+1}")
    a(f"ds_write_b128 v{V_OW}, {vr(OW,4)}")
    for r in range(16): a(f"v_mov_b32 v{V_M + r}, 0")
    a("s_waitcnt lgkmcnt(0)")
    a("s_nop 1")
    a(f"s_branch {tag}_fbdone")

def role_chain(a, opt):
    WS = f"s[{S_WS}:{S_WS+3}]"; DB = f"s[{S_D}:{S_D+3}]"
    vq = VmQueue()
    set_rounds(opt.get('order', 0))
    DEPTH0[0] = 2 if opt.get('pace') else 3
    SFX[0] = ''
    HINT_STRIDE[0] = opt.get('hs', 4); HINT_STRIDE[1] = opt.get('nr', 8)
    CODEPF[0] = opt.get('codepf', 0)
    start_weights(a, vq)
    a(f"s_mov_b32 s65, s{S_T2}")
    if opt.get('dbgtime'):
        a("s_not_b32 s96, s98"); a("s_mov_b64 exec, 1"); a("v_mov_b32 v126, s96"); a(f"buffer_atomic_umax v126, off, s[{S_D}:{S_D+3}], 0 offset:48"); a("s_mov_b64 exec, -1"); vq.add('x')
    setup_lanes(a)
    a(f"s_mov_b32 s{S_C}, {f32bits(CSCALE):#x}")
    a(f"s_mov_b32 s{S_LLO}, 0x21800000")
    a(f"s_mov_b32 s{S_LRG}, {0 if opt.get('forcefb') else 0x3c000000:#x}")
    for r in range(S_ACC, S_ACC + 4): a(f"s_mov_b32 s{r}, 0")
    a(f"s_lshl_b32 s{S_T0}, s{S_H}, 8")
    a(f"s_add_u32 s{S_HB_PST}, s{S_T0}, {WS_PART}")
    a(f"s_lshl_b32 s{S_T0}, s{S_H}, 13")
    a(f"s_add_u32 s{S_HB_INB}, s{S_T0}, {WS_PART - MEMB}")
    a(f"s_add_u32 s{S_KPF}, s{S_T0}, {WS_KX - MEMB}")
    a(f"s_add_u32 s{S_VPF}, s{S_T0}, {WS_VX - MEMB}")
    a(f"s_and_b32 s{S_T0}, s{S_H}, 3")
    a(f"s_lshl_b32 s{S_T0}, s{S_T0}, 6")
    a(f"s_lshr_b32 s{S_T1}, s{S_H}, 2")
    a(f"s_lshl_b32 s{S_T1}, s{S_T1}, 10")
    a(f"s_add_u32 s{S_T0}, s{S_T0}, s{S_T1}")
    a(f"s_add_u32 s{S_HB_PUB}, s{S_T0}, {WS_MEMRING}")
    a(f"s_lshl_b32 s{S_T0}, s{S_H}, 12")
    a(f"s_lshl_b32 s{S_T1}, s{S_WV}, 10")
    a(f"s_add_u32 s{S_T0}, s{S_T0}, s{S_T1}")
    a(f"s_add_u32 s{S_EXP}, s{S_T0}, {WS_KVM - MEMB - 32*4096}")
    a(f"s_lshl_b32 s{S_T0}, s{S_H}, 7")
    a(f"s_add_u32 s{S_FLP}, s{S_T0}, {WS_FLAG + FLAG_P * 128}")
    a(f"s_add_u32 s{S_FLA}, s{S_T0}, {WS_FLAG + FLAG_A * 128}")
    a(f"s_lshl_b32 s{S_T0}, s{S_WV}, 11")
    a(f"s_add_u32 s{S_KM0}, s{S_T0}, {KB[0]}")
    a(f"s_add_u32 s{S_KM0+1}, s{S_T0}, {KB[1]}")
    SN = V_W
    a(f"s_mov_b32 s{S_T2}, s65")
    S_OK = S_AVAIL
    PSTAMP[0] = opt.get('pstamp', -1)
    groups = opt.get('groups', [0])
    IV = V_M + 16
    srd(a, S_W, KA_MEM0, 8192)
    def seg0_loads():
        a(f"s_mov_b32 m0, s{S_KM0}")
        a("s_nop 0")
        a(f"buffer_load_dwordx4 v{V_P1}, {WS}, s{S_KPF} offen sc1 lds")
        a(f"buffer_load_dwordx4 v{V_P1}, {WS}, s{S_KPF} offen offset:1024 sc1 lds")
        a(f"buffer_load_dwordx4 {vr(V_VX[0],4)}, v{V_P1}, {WS}, s{S_VPF} offen sc1")
        a(f"buffer_load_dwordx4 {vr(V_VX[0]+4,4)}, v{V_P1}, {WS}, s{S_VPF} offen offset:1024 sc1")
    def h8(a):
        init_issue(a, IV); vq.add('init', 3)
        a(f"s_mov_b32 s{S_OK}, 0")
    def h16(a):
        assert vq.done('init')
        vq.add('fl')
        a.items.append(('x', 'forget_vm'))
        init_check(a, IV, groups, "L_ch_h16" + SFX[0])
        a(f"s_mov_b32 s{S_OK}, 1")
        if opt.get('ringpf', 1):
            for sl in range(2):
                a(f"s_add_u32 s{S_T0}, s{S_HB_INB}, {sl << 18}")
                for j in range(2):
                    a(f"buffer_load_dwordx4 {vr(V_M + 8, 4)}, v{V_P1}, {WS}, s{S_T0} offen offset:{1024 * j} sc1")
                    a.items.append(('x', 'forget_vm'))
            a(f"s_lshl_b32 s{S_T0}, s{S_H}, 10")
            a(f"s_add_u32 s{S_T0}, s{S_T0}, {WS_MEMRING - MEMB}")
            a(f"buffer_load_dwordx4 {vr(V_M + 8, 4)}, v{V_LA}, {WS}, s{S_T0} offen sc1")
            a(f"buffer_load_dword v{V_M + 12}, v{V_L4}, {WS}, s{S_HLD} offen sc1")
            a.items.append(('x', 'forget_vm'))
        a.label("L_ch_h16" + SFX[0])
        a(f"buffer_load_dword v{V_FL}, off, {WS}, s{S_FLP} sc1")
    def h24(a):
        assert vq.done('fl')
        vq.add('mem0', 2)
        a.items.append(('x', 'forget_vm'))
        a(f"buffer_load_dwordx4 {Mf(0)}, v{V_GATH}, s[{S_W}:{S_W+3}], 0 offen")
        a(f"buffer_load_dwordx4 {Mf(1)}, v{V_GATH}, s[{S_W}:{S_W+3}], 0 offen offset:128")
        a(f"v_readfirstlane_b32 s{S_T0}, v{V_FL}")
        a(f"s_lshr_b32 s{S_T1}, s{S_T0}, 16")
        a(f"s_and_b32 s{S_T0}, s{S_T0}, 0xffff")
        a(f"s_min_u32 s{S_T0}, s{S_T0}, s{S_T1}")
        a(f"s_cmp_ge_u32 s{S_T0}, 2")
        a(f"s_cselect_b32 s{S_T0}, s{S_OK}, 0")
        a(f"s_lshl_b32 s{S_OK}, s{S_T0}, 1")
        a(f"s_cmp_eq_u32 s{S_OK}, 0")
        a("s_cbranch_scc1 L_ch_h24" + SFX[0])
        seg0_loads()
        a.label("L_ch_h24" + SFX[0])
    hk = dict(zip(opt.get('hooks', (7, 11, 15)), (h8, h16, h24)))
    if opt.get('late') == 2:
        def hrel(a):
            a(f"s_cmp_eq_u32 s{S_OK}, 0")
            a("s_cbranch_scc1 L_ch_norel" + SFX[0])
            a(f"v_mov_b32 v{IV}, 1")
            a(f"buffer_store_dword v{IV}, off, {WS}, s{S_FLA} offset:4 sc1")
            a.label("L_ch_norel" + SFX[0])
        hk[opt.get('relpos', 12)] = hrel
    if opt.get('pace'):
        import copy
        vq0 = copy.deepcopy(vq.q)
        a(f"s_and_b32 s{S_T0}, s{S_H}, 3")
        a(f"s_cmp_eq_u32 s{S_T0}, 1")
        a("s_cbranch_scc1 L_ch_deep")
        a(f"s_cmp_eq_u32 s{S_H}, 31")
        a("s_cbranch_scc1 L_ch_deep")
        SFX[0] = 'a'
        load_weights(a, hk, vq, 2)
        a("s_branch L_ch_loaded")
        a.label("L_ch_deep")
        SFX[0] = 'b'
        vq.q = vq0
        load_weights(a, hk, vq, 3)
        a.label("L_ch_loaded")
    else:
        load_weights(a, hk, vq)
    if opt.get('ptime') and 'pstamp' not in opt:
        a("s_memrealtime s[62:63]"); a("s_waitcnt lgkmcnt(0)"); a(f"s_sub_u32 s{S_ACC}, s62, s92"); a(f"s_lshl_b32 s{S_ACC}, s{S_ACC}, 2"); a(f"s_add_u32 s{S_ACC}, s{S_ACC}, s{S_OK}")
    if opt.get('ponly'):
        a(f"s_lshl_b32 s{S_T0}, s{S_H}, 2"); a(f"s_add_u32 s{S_T0}, s{S_T0}, s{S_WV}"); a(f"s_lshl_b32 s{S_T0}, s{S_T0}, 5"); a(f"s_add_u32 s{S_T0}, s{S_T0}, {WS_STAMP + 4}")
        a(f"v_mov_b32 v{V_M}, s{S_ACC}")
        a(f"buffer_store_dword v{V_M}, off, {WS}, s{S_T0}")
        a("s_endpgm")
    a(f"s_mov_b32 s{S_STEP}, 0")
    a(f"s_cmp_lg_u32 s{S_OK}, 0")
    a("s_cbranch_scc1 L_ch_ready")
    wait_init(a, IV, groups, "L_ch_init")
    a(f"v_mov_b32 v{V_FL}, 0")
    if opt.get('late') == 2:
        a(f"v_mov_b32 v{IV}, 1")
        a(f"buffer_store_dword v{IV}, off, {WS}, s{S_FLA} offset:4 sc1")
    avail_check(a, "L_ch_av")
    seg0_loads()
    a.label("L_ch_ready")
    if opt.get('nokv'):
        a(f"s_mov_b32 m0, s{S_KM0+1}")
        a(f"s_nop 0")
        a(f"buffer_load_dwordx4 v{V_P1}, {WS}, s{S_KPF} offen sc1 lds")
        a(f"buffer_load_dwordx4 v{V_P1}, {WS}, s{S_KPF} offen offset:1024 sc1 lds")
        a(f"buffer_load_dwordx4 {vr(V_VX[1]+4,4)}, v{V_P1}, {WS}, s{S_VPF} offen offset:1024 sc1")
    a(f"s_add_u32 s{S_KPF}, s{S_KPF}, {32*8192}")
    a(f"s_add_u32 s{S_VPF}, s{S_VPF}, {32*8192}")
    idle_a(a, 0)
    for r in range(24): a(f"v_mov_b32 v{V_AQ + r}, 0")
    a(f"s_mov_b32 s{S_MEMRD}, {WS_MEMRING - MEMB}")
    a("s_waitcnt vmcnt(0)")
    a(f"v_cndmask_b32 v{V_GATH}, v{V_ONES}, 0, s[{S_L0}:{S_L0+1}]")
    a(f"s_cmp_ge_u32 s{S_WV}, 2")
    a(f"s_cselect_b32 s{S_FLP}, {OOB}, s{S_FLP}")
    for r in range(4): a(f"v_mov_b32 v{V_M + 8 + r}, 0")
    for j in range(2): a(f"ds_write_b128 v{V_P1}, {vr(V_M + 8, 4)} offset:{QB - MEMB + 1024*j}")
    a("s_waitcnt vmcnt(0) lgkmcnt(0)")
    for r in range(8): a(f"v_min_u32 v{V_M+r}, -2, v{V_M+r}")
    if opt.get('time'):
        a("s_mov_b32 s74, 0"); a("s_mov_b32 s73, -1"); a("s_mov_b32 s72, 0")
        a(f"s_memtime s[84:85]")
        a(f"s_memrealtime s[88:89]")
        a("s_waitcnt lgkmcnt(0)")
    if opt.get('dbgtime'): dbg_stamp(a, 13, vt=V_M + 30); a("s_waitcnt vmcnt(0)")
    a(f"s_cmp_eq_u32 s{S_MODE}, {opt.get('fastmode', 1)}")
    a("s_cbranch_scc0 L_S0_entry")
    a("s_branch L_F0_entry")
    for tag, st in (("L_F", ""), ("L_S", "sc1")):
        a(".p2align 8")
        for _ in range(opt.get('shift', 0)): a(".long 0xbf800000")
        h20 = step(a, 0, st, tag + "0", opt)
        h21 = step(a, 1, st, tag + "1", opt)
        a(f"s_branch {tag}0_h1")
        step_tails(a, 0, tag + "0", h20, opt)
        step_tails(a, 1, tag + "1", h21, opt)
    avail_slow(a, "L_ch_av")
    a.label("L_last")
    VXn = V_VX[0]
    h1_issue(a, 0)
    a("s_waitcnt vmcnt(2)")
    for r in range(V_AK + 4, V_AK + 8): a(f"v_mov_b32 v{r}, 0")
    a.label("L_last_h1")
    a("s_waitcnt vmcnt(0) lgkmcnt(0)")
    a(f"ds_write_b128 v{V_P1}, {Mf(0)}")
    a(f"v_max3_u32 v{V_PB+3}, v{V_M+1}, v{V_M+3}, v{V_M+5}")
    a(f"v_max_u32 v{V_PB+3}, v{V_PB+3}, v{V_M+7}")
    a(f"v_cmp_eq_u32 vcc, -1, v{V_PB+3}")
    a(f"ds_write_b128 v{V_P1}, {Mf(1)} offset:1024")
    a("s_cbranch_vccz L_last_ok")
    a("s_mov_b64 exec, vcc")
    h1_issue(a, 0)
    a("s_mov_b64 exec, -1")
    a(f"s_add_u32 s{S_SPIN}, s{S_SPIN}, 1")
    a(f"s_cmp_gt_u32 s{S_SPIN}, {SPIN_LIMIT}")
    a("s_cbranch_scc0 L_last_h1")
    a("s_branch L_abort")
    a.label("L_last_ok")
    mains = []; F = {}
    AK = lambda t: V_AK + 4 * t
    AV = lambda t: V_AV + 4 * t
    for s_ in range(2):
        for t in range(2): mains.append(smf(AV(t), Mf(s_), vr(Wb(2*s_ + t), 8)))
    for s_ in range(8):
        for t in range(2): mains.append(smf(AK(t), Mf(s_), wk(t, s_)))
    for s_ in (4, 5, 6, 7):
        for t in range(2): mains.append(smf(AV(t), Mf(s_), wv_res(t, s_)))
    for s_ in (2, 3):
        for t in range(2): mains.append(smf(AV(t), Mf(s_), vr(Wb(2*(s_-2) + t), 8)))
    mr = (V_MR1, V_MR2, V_MR3)
    F[3] = ["s_waitcnt lgkmcnt(0)", "s_barrier"]
    for j, s_ in enumerate(range(2, 8)): F.setdefault(3 + j, []).append(f"ds_read_b128 {Mf(s_)}, v{mr[(s_ >> 1) - 1]} offset:{(s_ & 1) * 1024}")
    for j, x in enumerate([x for j in range(4) for x in rd_wv(Wb(j), 2 + (j >> 1), j & 1)]): F.setdefault(10 + j, []).append(x)
    F.setdefault(9, []).append(f"buffer_store_dwordx4 {vr(VXn,4)}, v{V_LA}, {WS}, s{S_EXP} offen sc1")
    F.setdefault(10, []).insert(0, f"s_add_u32 s{S_EXP}, s{S_EXP}, {32*4096}")
    F.setdefault(1, []).append(f"v_mov_b32 v{V_PB}, 62")
    F.setdefault(4, []).append(f"buffer_store_dword v{V_PB}, v{V_GATH}, {WS}, s{S_FLA} offen sc1")
    def fold2(a0, a1, d0, d1):
        return [f"v_add_f32 v{a0}, v{a0}, v{a0+1}", f"v_add_f32 v{a0+2}, v{a0+2}, v{a0+3}", f"v_cvt_pk_bf16_f32 v{d0}, v{a0}, v{a0+2}",
                f"v_add_f32 v{a1}, v{a1}, v{a1+1}", f"v_add_f32 v{a1+2}, v{a1+2}, v{a1+3}", f"v_cvt_pk_bf16_f32 v{d1}, v{a1}, v{a1+2}"]
    for j, x in enumerate(fold2(AK(0), AK(1), V_AK, V_AK + 1)): F.setdefault(22 + j, []).append(x)
    interleave(a, mains, F)
    for x in fold2(AV(0), AV(1), V_AK + 2, V_AK + 3): a(x)
    a(f"buffer_store_dwordx4 {vr(V_AK,4)}, v{V_LA}, {WS}, s{S_EXP} offen {opt.get('lastst', 'sc1')}")
    if opt.get('lastwb'): a("s_waitcnt vmcnt(0)"); a("buffer_wbl2 sc1")
    if opt.get('drain'):
        a("s_memtime s[42:43]"); a("s_waitcnt lgkmcnt(0) vmcnt(0)"); a("s_memtime s[44:45]"); a("s_waitcnt lgkmcnt(0)"); a(f"s_sub_u32 s{S_ACC+2}, s44, s42")
    a("s_nop 1")
    if opt.get('wb'):
        a(f"s_or_b32 s{S_T0}, s{S_H}, s{S_WV}")
        a(f"s_cmp_lg_u32 s{S_T0}, 0")
        a("s_cbranch_scc1 L_ch_nowb")
        a("buffer_wbl2 sc1")
        a.label("L_ch_nowb")
    if opt.get('dbgtime'): dbg_stamp(a, 14, vt=V_M + 30)
    if opt.get('time'):
        a(f"s_memtime s[86:87]")
        a(f"s_memrealtime s[90:91]")
        a("s_waitcnt lgkmcnt(0)")
        a("s_sub_u32 s86, s86, s84")
        a(f"s_lshl_b32 s{S_T0}, s{S_H}, 2")
        a(f"s_add_u32 s{S_T0}, s{S_T0}, s{S_WV}")
        a(f"s_lshl_b32 s{S_T0}, s{S_T0}, 5")
        a(f"s_add_u32 s{S_T0}, s{S_T0}, {WS_STAMP}")
        for i, s in enumerate((86, S_ACC, S_ACC + 1, S_ACC + 2, 88, 90, 92, S_ACC + 3)):
            a(f"v_mov_b32 v{V_M+i}, s{s}")
        a(f"buffer_store_dwordx4 {vr(V_M,4)}, off, {WS}, s{S_T0}")
        a(f"buffer_store_dwordx4 {vr(V_M+4,4)}, off, {WS}, s{S_T0} offset:16")
        a(f"s_add_u32 s{S_T0}, s{S_T0}, 0x8000")
        if opt.get('trace'):
            a("s_mov_b32 s40, 0"); a("s_mov_b32 s41, 0"); a("s_mov_b32 s46, 0")
            a.label("L_cal")
            a("s_memtime s[42:43]"); a("s_memrealtime s[44:45]"); a("s_waitcnt lgkmcnt(0)")
            a("s_sub_u32 s42, s42, s84"); a("s_sub_u32 s44, s44, s88")
            a("s_add_u32 s40, s40, s42"); a("s_add_u32 s41, s41, s44")
            a("s_mul_i32 s47, s46, 7"); a("s_and_b32 s47, s47, 3")
            a.label("L_cal2")
            a("s_sub_u32 s47, s47, 1"); a("s_cbranch_scc0 L_cal2")
            a("s_add_u32 s46, s46, 1"); a("s_cmp_lt_u32 s46, 256"); a("s_cbranch_scc1 L_cal")
            a(f"v_mov_b32 v{V_M+20}, s40"); a(f"v_mov_b32 v{V_M+21}, s41")
            a(f"s_add_u32 s{S_T1}, s{S_T0}, 4096")
            a(f"buffer_store_dwordx2 {vr(V_M+20,2)}, off, {WS}, s{S_T1}")
        a("s_mov_b32 s75, s84")
        if not opt.get('trace') and not opt.get('stamp'): a("s_sub_u32 s68, s82, s80")
        for i in range(8): a(f"v_mov_b32 v{V_M+8+i}, s{68+i}")
        a(f"buffer_store_dwordx4 {vr(V_M+8,4)}, off, {WS}, s{S_T0}")
        a(f"buffer_store_dwordx4 {vr(V_M+12,4)}, off, {WS}, s{S_T0} offset:16")
    a("s_endpgm")
```

```python
from stream import *
from rolepf import clear_flag, late_start, gate_tokens, S_FLG

NDIRECT = 5
KXB = 73728
KMB = 81920
S_CNT = 43
S_C = 44
S_GRP = 45
S_KV = 46
S_KVM = 47
S_PST, S_INB = 48, 49
S_FP = 50
S_NEED = 51
S_FLPA = 52
S_PH = 53
S_FLF = 54
S_OUTO = 55
S_GO = 56
S_PSTB, S_INBB = 57, 58
S_SEENP, S_SEENF = 59, 90
S_MASK = 60
S_SELM = 76
S_LM2 = 84
S_LM32 = 86
S_LMF = 88
S_O = 92

V_EXW, V_EXR, V_QRD, V_KMW, V_KMR, V_OWR, V_FLG, V_INB, V_INBF, V_OUT, V_GOF, V_SELX, V_VRD, V_L4 = range(9, 23)
V_ONES = 24
V_PB = 28
XF, AQ = 32, 48
QF = 64
KF = 80
VF = 128
VM = 144
KM = 148
SS = 152
OA = 164
HF = 184
AO = 216
TM = 232
WQ, WO = 256, 384

def role_c(a, opt):
    WS = f"s[{S_WS}:{S_WS+3}]"
    NG = opt.get('ng', 4)
    global NDIRECT
    NDIRECT = opt.get('nd', 5)
    L, T = 127, 126
    if opt.get('warm_llc', 0):
        a(f"v_lshlrev_b32 v1, 4, v0")
        a(f"s_sub_u32 s{S_T0}, s{S_XG}, 1")
        a(f"s_lshl_b32 s{S_T1}, s{S_H}, 2")
        a(f"s_add_u32 s{S_T0}, s{S_T0}, s{S_T1}")
        a(f"s_lshl_b32 s{S_T0}, s{S_T0}, 12")
        for j in opt.get('warm_mats', (0, 1, 2)):
            d = S_DESC[0]
            a(f"s_mov_b32 s{d}, s{40 + 2*j}")
            a(f"s_and_b32 s{d+1}, s{41 + 2*j}, 0xffff")
            a(f"s_mov_b32 s{d+2}, 0x400000")
            a(f"s_mov_b32 s{d+3}, 0x20000")
            a(f"s_mov_b32 s{S_T1}, s{S_T0}")
            for u in range(8):
                a(f"buffer_load_dwordx4 {vr(128 + 4 * (8*j + u), 4)}, v1, s[{d}:{d+3}], s{S_T1} offen")
                if u < 7: a(f"s_add_u32 s{S_T1}, s{S_T1}, {128 * 4096}")
    setup(a)
    a(f"s_sub_u32 s{S_GRP}, s{S_XG}, 1")
    a(f"s_lshl_b32 s{S_T2}, s{S_GRP}, 5")
    a(f"s_add_u32 s{S_T2}, s{S_T2}, s{S_H}")
    for r in range(4): a(f"v_mov_b32 v{16+r}, -1")
    a(f"v_mov_b32 v20, 0")
    a(f"s_lshl_b32 s{S_T0}, s{S_T2}, 12")
    a(f"s_add_u32 s{S_T0}, s{S_T0}, {WS_PART}")
    a(f"buffer_store_dwordx4 v[16:19], v{V_P1K}, {WS}, s{S_T0} offen sc1")
    a(f"s_mul_i32 s{S_T0}, s{S_T2}, {NDIRECT * 1024}")
    a(f"s_add_u32 s{S_T0}, s{S_T0}, {WS_KVM + (64 - NDIRECT) * 32 * 4096}")
    for j in range(NDIRECT // 4):
        a(f"buffer_store_dwordx4 v[16:19], v{V_P1K}, {WS}, s{S_T0} offen sc1")
        a(f"s_add_u32 s{S_T0}, s{S_T0}, 4096")
    if NDIRECT % 4:
        a(f"s_cmp_lt_u32 s{S_WV}, {NDIRECT % 4}")
        a(f"s_cselect_b32 s{S_T0}, s{S_T0}, {OOB}")
        a(f"buffer_store_dwordx4 v[16:19], v{V_P1K}, {WS}, s{S_T0} offen sc1")
    a(f"s_cmp_ge_u32 s{S_T2}, 8")
    a("s_cbranch_scc1 L_c_noarm")
    a(f"s_lshl_b32 s{S_T0}, s{S_T2}, 12")
    a(f"s_add_u32 s{S_T0}, s{S_T0}, {WS_MEMRING}")
    a(f"buffer_store_dwordx4 v[16:19], v{V_P1K}, {WS}, s{S_T0} offen sc1")
    a(f"s_cmp_lg_u32 s{S_T2}, 0")
    a("s_cbranch_scc1 L_c_noarm")
    for r in range(3): a(f"v_mov_b32 v{21+r}, 0")
    for j in range(2):
        a(f"s_mov_b32 s{S_T0}, {WS_HINT + 4096 * j}")
        a(f"buffer_store_dwordx4 v[20:23], v{V_P1K}, {WS}, s{S_T0} offen sc1")
    a(f"s_mov_b32 s{S_T0}, {WS_FLAG + FLAG_A * 128}")
    a(f"buffer_store_dwordx4 v[20:23], v{V_P1K}, {WS}, s{S_T0} offen sc1")
    a.label("L_c_noarm")
    gate_tokens(a, S_T2, L)
    late_start(a, opt, "L_c")
    srd(a, S_DESC[0], KA_WQ, 0x400000)
    srd(a, S_DESC[1], KA_WO, 0x400000)
    col = [f"s_lshl_b32 s{S_T0}, s{S_H}, 8", f"s_lshl_b32 s{S_T1}, s{S_WV}, 6", f"s_add_u32 s{S_T0}, s{S_T0}, s{S_T1}"]
    load_weights(a, proj_chunks(S_DESC[0], 8192, col, WQ) + out_chunks(S_DESC[1], [f"s_lshl_b32 s{S_T0}, s{S_H}, 17"], WO),
                 lambda a: None)
    srd(a, S_O, KA_OUT, 2048 * 1024)
    a(f"s_mov_b32 s{S_C}, {f32bits(CSCALE):#x}")
    a(f"v_add_u32 v{V_EXW}, {EXB}, v{V_P1K}")
    a(f"v_add_u32 v{V_EXR}, {EXB}, v{V_L16}")
    a(f"s_and_b32 s{S_T0}, s{S_WV}, 1")
    a(f"s_lshr_b32 s{S_T1}, s{S_WV}, 1")
    a(f"s_lshl_b32 s{S_T2}, s{S_T0}, 12")
    a(f"v_add_u32 v{V_QRD}, s{S_T2}, v{V_EXR}")
    a(f"s_lshl_b32 s{S_T3}, s{S_T1}, 11")
    a(f"v_add_u32 v{V_OWR}, s{S_T3}, v{V_QRD}")
    a(f"s_lshl_b32 s{S_T3}, s{S_T1}, 12")
    a(f"v_add_u32 v{V_VRD}, s{S_T3}, v{V_L16}")
    a(f"s_lshl_b32 s{S_T2}, s{S_T0}, 4")
    a(f"v_and_b32 v{V_T0}, 15, v{L}")
    a(f"v_add_u32 v{V_T0}, s{S_T2}, v{V_T0}")
    bitpat(a, V_T1, L, [(4, 3, 4)], T)
    a(f"v_sub_u32 v{V_T0}, v{V_T0}, v{V_T1}")
    for Tt in range(2):
        for r in range(4):
            k = S_MASK + 2 * (4 * Tt + r)
            a(f"v_cmp_le_i32 s[{k}:{k+1}], {16*Tt + r}, v{V_T0}")
    bitpat(a, V_KMW, L, [(5, 1, 8), (0, 15, 1)], T)
    a(f"v_and_b32 v{V_KMW}, 15, v{V_KMW}")
    a(f"v_and_b32 v{T}, 48, v{L}")
    a(f"v_add_u32 v{V_KMW}, v{V_KMW}, v{T}")
    a(f"v_lshlrev_b32 v{V_KMW}, 3, v{V_KMW}")
    a(f"s_lshl_b32 s{S_T0}, s{S_WV}, 10")
    a(f"s_add_u32 s{S_T0}, s{S_T0}, {KMB}")
    a(f"v_add_u32 v{V_KMW}, s{S_T0}, v{V_KMW}")
    bitpat(a, V_KMR, L, [(1, 1, 8), (2, 15, 1)], T)
    a(f"v_and_b32 v{V_KMR}, 15, v{V_KMR}")
    a(f"v_and_b32 v{T}, 3, v{L}")
    a(f"v_lshl_add_u32 v{V_KMR}, v{T}, 4, v{V_KMR}")
    a(f"v_lshlrev_b32 v{V_KMR}, 3, v{V_KMR}")
    a(f"v_add_u32 v{V_KMR}, {KMB}, v{V_KMR}")
    for r in range(4):
        a(f"v_mov_b32 v{V_ONES+r}, 0x3f803f80")
        a(f"v_mov_b32 v{V_PB+r}, 0")
    a(f"v_add_u32 v{V_T0}, {KMB}, v{V_P1K}")
    a(f"ds_write_b128 v{V_T0}, {vr(V_PB,4)}")
    a(f"v_lshlrev_b32 v{V_FLG}, 7, v{L}")
    a(f"v_lshlrev_b32 v{V_L4}, 2, v{L}")
    a(f"v_cmp_gt_u32 s[{S_LM32}:{S_LM32+1}], 32, v{L}")
    a(f"s_lshl_b32 s{S_T0}, s{S_H}, 7")
    a(f"s_add_u32 s{S_FLPA}, s{S_T0}, {WS_FLAG + FLAG_P * 128}")
    a(f"s_mov_b32 s{S_FLF}, {WS_FLAG + FLAG_F * 128}")
    a(f"s_mov_b64 s[{S_LM2}:{S_LM2+1}], 0")
    a(f"s_bitset1_b64 s[{S_LM2}:{S_LM2+1}], 0")
    bitpat(a, V_INB, L, [(4, 3, 1024), (0, 15, 16)], T)
    a(f"s_lshl_b32 s{S_T0}, s{S_WV}, 8")
    a(f"v_add_u32 v{V_INB}, s{S_T0}, v{V_INB}")
    bitpat(a, V_T0, L, [(5, 1, OOB)], T)
    a(f"v_add_u32 v{V_INBF}, v{V_T0}, v{V_INB}")
    bitpat(a, V_GOF, L, [(2, 1, 16), (0, 3, 1)], T)
    a(f"s_lshl_b32 s{S_T0}, s{S_WV}, 2")
    a(f"v_add_u32 v{V_GOF}, s{S_T0}, v{V_GOF}")
    bitpat(a, V_OUT, L, [(4, 3, 8), (3, 1, OOB)], T)
    a(f"v_lshl_add_u32 v{V_OUT}, v{V_GOF}, 10, v{V_OUT}")
    a(f"v_lshlrev_b32 v{V_GOF}, 2, v{V_GOF}")
    a(f"v_and_b32 v{T}, 1, v{L}")
    a(f"v_cmp_eq_u32 vcc, 1, v{T}")
    a(f"v_mov_b32 v{V_SELX}, 0x3f80")
    a(f"v_mov_b32 v{T}, 0x3f800000")
    a(f"v_cndmask_b32 v{V_SELX}, v{V_SELX}, v{T}, vcc")
    a(f"v_bfe_u32 v{T}, v{L}, 1, 3")
    for r in range(4):
        a(f"v_cmp_eq_u32 s[{S_SELM+2*r}:{S_SELM+2*r+1}], {r}, v{T}")
    a(f"s_lshl_b32 s{S_T0}, s{S_GRP}, 21")
    a(f"s_add_u32 s{S_T0}, s{S_T0}, {WS_CP}")
    a(f"s_lshl_b32 s{S_T1}, s{S_H}, 10")
    a(f"s_add_u32 s{S_PSTB}, s{S_T0}, s{S_T1}")
    a(f"s_lshl_b32 s{S_T1}, s{S_WV}, 18")
    a(f"s_add_u32 s{S_PSTB}, s{S_PSTB}, s{S_T1}")
    a(f"s_lshl_b32 s{S_T1}, s{S_H}, 15")
    a(f"s_add_u32 s{S_INBB}, s{S_T0}, s{S_T1}")
    a(f"s_mov_b32 s{S_SEG}, s{S_GRP}")
    a(f"s_mov_b32 s{S_CNT}, 0")
    a(f"s_mov_b32 s{S_SEENP}, 0")
    a(f"s_mov_b32 s{S_SEENF}, 0")
    a(f"s_and_b32 s{S_T0}, s{S_GRP}, 1")
    a(f"s_mul_i32 s{S_T0}, s{S_T0}, 14")
    a(f"s_lshl_b64 s[{S_LMF}:{S_LMF+1}], 0x3fff, s{S_T0}")
    x_issue(a, 0, S_SEG)
    wait_init(a, TM, opt['groups'], "L_c_init2")
    a("s_waitcnt lgkmcnt(0)")
    a(f"s_cmp_eq_u32 s{S_MODE}, {opt.get('fastmode', 1)}")
    a("s_cbranch_scc0 L_cS_arm")
    for tag, st in (("L_cF", ""), ("L_cS", "sc1")):
        a.label(f"{tag}_arm")
        for r in range(4): a(f"v_mov_b32 v{TM+r}, -1")
        for sl in range(2):
            a(f"s_add_u32 s{S_T0}, s{S_INBB}, {sl << 20}")
            for j in range(8):
                a(f"buffer_store_dwordx4 {vr(TM,4)}, v{V_P1K}, {WS}, s{S_T0} offen {st}")
                if j < 7: a(f"s_add_u32 s{S_T0}, s{S_T0}, 4096")
        a("s_waitcnt vmcnt(0)")
        a("s_barrier")
        a(f"s_cmp_lg_u32 s{S_WV}, 0")
        a(f"s_cbranch_scc1 {tag}_met")
        a(f"s_lshl_b32 s{S_T1}, s{S_GRP}, 2")
        a("s_mov_b64 exec, 1")
        a(f"v_mov_b32 v{TM}, 1")
        a(f"buffer_atomic_add v{TM}, off, s[{S_D}:{S_D+3}], s{S_T1} offset:32")
        a.label(f"{tag}_meet")
        a("s_sleep 8")
        a(f"buffer_load_dword v{TM+1}, off, s[{S_D}:{S_D+3}], s{S_T1} offset:32 sc1")
        a(f"s_add_u32 s{S_SPIN}, s{S_SPIN}, 1")
        a(f"s_cmp_gt_u32 s{S_SPIN}, {SPIN_LIMIT}")
        a("s_cbranch_scc1 L_abort")
        a("s_waitcnt vmcnt(0)")
        a(f"v_readfirstlane_b32 s{S_T0}, v{TM+1}")
        a(f"s_cmp_ge_u32 s{S_T0}, 32")
        a(f"s_cbranch_scc0 {tag}_meet")
        a("s_mov_b64 exec, -1")
        a.label(f"{tag}_met")
        a.label(f"{tag}_loop")
        for par in range(2):
            segment(a, par, st, f"{tag}{par}", NG, opt)
            a(f"s_cmp_ge_u32 s{S_SEG}, 64")
            a("s_cbranch_scc1 L_done")
        a(f"s_branch {tag}_loop")

def segment(a, par, st, tag, NG, opt):
    WS = f"s[{S_WS}:{S_WS+3}]"
    a("s_waitcnt vmcnt(0)")
    a("s_barrier")
    a(f"s_lshl_b32 s{S_T0}, s{S_SEG}, 5")
    a(f"s_add_u32 s{S_T0}, s{S_T0}, s{S_H}")
    a(f"s_lshl_b32 s{S_KV}, s{S_T0}, 13")
    a(f"s_lshl_b32 s{S_KVM}, s{S_T0}, 12")
    a(f"s_add_u32 s{S_KVM}, s{S_KVM}, {WS_KVM}")
    a(f"s_add_u32 s{S_NEED}, s{S_SEG}, 1")
    SEL, RA, RB, GV = TM + 4, TM + 8, TM + 12, TM + 3
    poll_flags(a, f"{tag}_pp", TM, V_FLG, S_FLPA, S_NEED, S_LM2, halves=True, seen=S_SEENP)
    a(f"s_lshl_b32 s{S_T0}, s{S_WV}, 10")
    a(f"s_add_u32 s{S_T1}, s{S_KV}, s{S_T0}")
    a(f"s_add_u32 s{S_T1}, s{S_T1}, {WS_KX}")
    a(f"s_lshl_b32 s{S_T0}, s{S_WV}, 11")
    a(f"s_add_u32 m0, s{S_T0}, {KXB}")
    a(f"s_add_u32 s{S_T2}, s{S_KV}, {WS_VX}")
    for j in range(2): a(f"buffer_load_dwordx4 v{V_P1K}, {WS}, s{S_T1} offen offset:{j*1024} sc1 lds")
    for j in range(4): a(f"buffer_load_dwordx4 {vr(VF + 4*j, 4)}, v{V_VRD}, {WS}, s{S_T2} offen offset:{j*1024} sc1")
    for r in range(4): a(f"v_cndmask_b32 v{SEL+r}, 0, v{V_SELX}, s[{S_SELM+2*r}:{S_SELM+2*r+1}]")
    a(f"s_lshr_b32 s{S_T2}, s{S_SEG}, 1")
    a(f"s_add_u32 s{S_T2}, s{S_T2}, 1")
    poll_flags(a, f"{tag}_pf", TM, V_FLG, S_FLF, S_T2, S_LMF, seen=S_SEENF, top=32)
    a(f"s_lshl_b32 s{S_FP}, s{S_SEG}, 19")
    a(f"s_lshl_b32 s{S_T0}, s{S_H}, 14")
    a(f"s_add_u32 s{S_FP}, s{S_FP}, s{S_T0}")
    a(f"s_add_u32 s{S_FP}, s{S_FP}, {WS_FP}")
    for i in range(4):
        a(f"buffer_load_dwordx4 {vr(HF + 4*i, 4)}, v{V_INBF if i == 3 else V_INB}, {WS}, s{S_FP} offen sc1")
        if i < 3: a(f"s_add_u32 s{S_FP}, s{S_FP}, 4096")
    a(f"s_lshl_b32 s{S_GO}, s{S_SEG}, 7")
    a(f"s_add_u32 s{S_GO}, s{S_GO}, {WS_G}")
    a(f"buffer_load_dword v{GV}, v{V_GOF}, {WS}, s{S_GO} offen sc1")
    a(f"s_add_u32 s{S_T2}, s{S_SEG}, {NG}")
    a(f"s_min_u32 s{S_T2}, s{S_T2}, 63")
    xi = x_issue_groups(1 - par, S_T2)
    def mm(ks, xf):
        o = []
        for t in range(2):
            for tt in range(2):
                d = AQ + (tt * 2 + t) * 4
                o.append(mf32(d, ur(WQ + (t * 16 + ks) * 4, 4), xf[tt], "0" if ks == 0 else vr(d, 4)))
        if ks < len(xi): o[2] += "\n" + xi[ks]
        return o
    proj_phase(a, par, XF, mm)
    for tt in range(2):
        d = AQ + 8 * tt
        for r in range(4): a(f"v_cvt_pk_bf16_f32 v{d+r}, v{d+2*r}, v{d+2*r+1}")
        a(f"ds_write_b128 v{V_EXW}, {vr(d,4)} offset:{tt*4096}")
    a("s_waitcnt vmcnt(8)")
    for i in range(4): a(mf32(RB, vr(HF + 4*i, 4), vr(SEL, 4), "0" if i == 0 else vr(RB, 4)))
    OM = TM
    a(f"v_sub_f32 v{OM}, 1.0, v{GV}")
    a(f"v_cvt_pk_bf16_f32 v{OM}, v{OM}, v{OM}")
    a(f"v_and_b32 v{OM}, 0xffff0000, v{OM}")
    def rnd(R):
        a(f"v_cvt_pk_bf16_f32 v{R}, v{R}, v{R+1}")
        a(f"v_cvt_pk_bf16_f32 v{R+2}, v{R+2}, v{R+3}")
        for q in (0, 2):
            a(f"v_and_b32 v{R+q+1}, 0xffff0000, v{R+q}")
            a(f"v_lshlrev_b32 v{R+q}, 16, v{R+q}")
    rnd(RB)
    for r in range(4): a(f"v_mul_f32 v{RB+r}, v{RB+r}, v{OM}")
    rnd(RB)
    a("s_waitcnt lgkmcnt(0)")
    a("s_barrier")
    for i in range(4): a(f"ds_read_b128 {vr(QF + 4*i, 4)}, v{V_QRD} offset:{i*1024}")
    for j in range(8): a(f"ds_read_b128 {vr(KF + 4*j, 4)}, v{V_EXR} offset:{KXB - EXB + j*1024}")
    for i in range(4):
        for Tt in range(2):
            d = SS + 4 * Tt
            a(mf32(d, vr(KF + 16*Tt + 4*i, 4), vr(QF + 4*i, 4), "0" if i == 0 else vr(d, 4)))
    SM = SS + 8
    NEG, MX, T2 = TM, TM + 1, TM + 2
    a(f"v_mov_b32 v{NEG}, 0xff800000")
    for r in range(8): a(f"v_cndmask_b32 v{SS+r}, v{NEG}, v{SS+r}, s[{S_MASK+2*r}:{S_MASK+2*r+1}]")
    a(f"v_max3_f32 v{MX}, v{SS}, v{SS+1}, v{SS+2}")
    a(f"v_max3_f32 v{MX}, v{MX}, v{SS+3}, v{SS+4}")
    a(f"v_max3_f32 v{MX}, v{MX}, v{SS+5}, v{SS+6}")
    a(f"v_max_f32 v{MX}, v{MX}, v{SS+7}")
    a(f"s_and_b32 s{S_T0}, s{S_CNT}, 1")
    a(f"s_lshl_b32 s{S_T0}, s{S_T0}, 20")
    a(f"s_add_u32 s{S_PST}, s{S_PSTB}, s{S_T0}")
    a(f"s_add_u32 s{S_INB}, s{S_INBB}, s{S_T0}")
    a(f"s_bfe_u32 s{S_PH}, s{S_CNT}, 0x10001")
    a(f"s_add_u32 s{S_CNT}, s{S_CNT}, 1")
    a(f"s_min_u32 s{S_T0}, s{S_SEG}, 62")
    a(f"s_cmp_ge_u32 s{S_SEG}, {64 - NDIRECT}")
    a(f"s_cselect_b32 s{S_NEED}, s{S_T0}, s{S_NEED}")
    a(f"s_add_u32 s{S_T3}, s{S_FLPA}, {(FLAG_A - FLAG_P) * 128}")
    poll_flags(a, f"{tag}_pa", T2, V_FLG, S_T3, S_NEED, S_LM2, pause=opt.get('papause', 3))
    a(f"s_lshr_b32 s{S_T0}, s{S_WV}, 1")
    a(f"s_lshl_b32 s{S_T0}, s{S_T0}, 11")
    a(f"s_add_u32 s{S_T0}, s{S_T0}, s{S_KVM}")
    a(f"s_branch {tag}_km1")
    a.label(f"{tag}_km")
    if opt.get('kmpause', 1): a(f"s_sleep {opt.get('kmpause', 1)}")
    a.label(f"{tag}_km1")
    a(f"buffer_load_dwordx2 {vr(KM,2)}, v{V_P1K}, {WS}, s{S_KVM} offen sc1")
    for j in range(2): a(f"buffer_load_dwordx2 {vr(VM + 2*j, 2)}, v{V_L16}, {WS}, s{S_T0} offen offset:{j*1024 + 8} sc1")
    a(f"s_add_u32 s{S_SPIN}, s{S_SPIN}, 1")
    a(f"s_cmp_gt_u32 s{S_SPIN}, {SPIN_LIMIT}")
    a("s_cbranch_scc1 L_abort")
    a("s_waitcnt vmcnt(0)")
    a(f"v_max3_u32 v{T2}, v{KM}, v{VM}, v{VM+2}")
    a(f"v_cmp_eq_u32 vcc, -1, v{T2}")
    a(f"ds_write_b32 v{V_KMW}, v{KM}")
    a(f"ds_write_b32 v{V_KMW}, v{KM+1} offset:512")
    a(f"s_cbranch_vccnz {tag}_km")
    if opt.get('time'):
        a("s_memrealtime s[96:97]"); a("s_waitcnt lgkmcnt(0)"); a("s_mov_b32 s99, s96")
    a("s_waitcnt lgkmcnt(0)")
    a("s_barrier")
    for i in range(4):
        for hh in range(2): a(f"ds_read_b64_tr_b16 {vr(KF + 32 + 4*i + 2*hh, 2)}, v{V_KMR} offset:{i*1024 + hh*512}")
    for i in range(4): a(mf32(SM, vr(KF + 32 + 4*i, 4), vr(QF + 4*i, 4), "0" if i == 0 else vr(SM, 4)))
    a(f"v_mul_f32 v{SM}, s{S_C}, v{SM}")
    a(f"v_mul_f32 v{SM+1}, s{S_C}, v{SM+1}")
    a(f"v_max3_f32 v{MX}, v{MX}, v{SM}, v{SM+1}")
    for sw in ("v_permlane16_swap_b32", "v_permlane32_swap_b32"):
        a(f"v_mov_b32 v{T2}, v{MX}")
        a(f"{sw} v{MX}, v{T2}")
        a(f"v_max_f32 v{MX}, v{MX}, v{T2}")
    for r in range(10): a(f"v_sub_f32 v{SS+r}, v{SS+r}, v{MX}")
    for r in range(10): a(f"v_exp_f32 v{SS+r}, v{SS+r}")
    for r in range(4): a(f"v_cvt_pk_bf16_f32 v{SS+r}, v{SS+2*r}, v{SS+2*r+1}")
    a(f"v_cvt_pk_bf16_f32 v{V_PB}, v{SM}, v{SM+1}")
    a(f"v_cvt_pk_bf16_f32 v{V_PB+3}, v{SM}, v{SM+1}")
    LA = OA + 16
    a(mf32(LA, vr(V_ONES, 4), vr(SS, 4), "0"))
    for j in range(4): a(mf32(OA + 4*j, vr(VF + 4*j, 4), vr(SS, 4), "0"))
    a(mf16(LA, vr(V_ONES, 2), vr(V_PB, 2), vr(LA, 4)))
    for j in range(4): a(mf16(OA + 4*j, vr(VM + 2*(j >> 1), 2), vr(V_PB + 2*(j & 1), 2), vr(OA + 4*j, 4)))
    if opt.get('dumpc'):
        a("s_nop 7")
        a(f"s_lshl_b32 s{S_T0}, s{S_GRP}, 5"); a(f"s_add_u32 s{S_T0}, s{S_T0}, s{S_H}"); a(f"s_lshl_b32 s{S_T0}, s{S_T0}, 2")
        a(f"s_add_u32 s{S_T0}, s{S_T0}, s{S_WV}"); a(f"s_lshl_b32 s{S_T0}, s{S_T0}, 14"); a(f"s_add_u32 s{S_T0}, s{S_T0}, 0x8000000")
        for j, r in enumerate((QF, KF, KF + 32, VF, SS, V_PB, OA, LA, VM, TM, V_ONES, SS + 8)):
            a(f"buffer_store_dwordx4 {vr(r,4)}, v{V_L16}, {WS}, s{S_T0} offen")
            a(f"s_add_u32 s{S_T0}, s{S_T0}, 1024")
    a(f"v_rcp_f32 v{T2}, v{LA}")
    for r in range(16): a(f"v_mul_f32 v{OA+r}, v{OA+r}, v{T2}")
    for r in range(8): a(f"v_cvt_pk_bf16_f32 v{OA+r}, v{OA+2*r}, v{OA+2*r+1}")
    for j in range(2): a(f"ds_write_b128 v{V_OWR}, {vr(OA + 4*j, 4)} offset:{j*1024}")
    a("s_waitcnt lgkmcnt(0)")
    a("s_barrier")
    for j in range(8): a(f"ds_read_b128 {vr(HF + 4*j, 4)}, v{V_EXR} offset:{j*1024}")
    def store(ct, reg):
        return (f"v_and_or_b32 v{reg}, v{reg}, -2, s{S_PH}\ns_add_u32 s{S_T0}, s{S_PST}, {ct * 32768}\n"
                f"buffer_store_dwordx4 {vr(reg,4)}, v{V_L16}, {WS}, s{S_T0} offen {st}")
    out_phase(a, HF, WO, AO, store)
    a("s_waitcnt vmcnt(0)")
    if opt.get('time'):
        a("s_memrealtime s[96:97]"); a("s_waitcnt lgkmcnt(0)"); a("s_mov_b32 s100, s96")
    a.label(f"{tag}_in")
    a(f"s_mov_b32 s{S_T0}, s{S_INB}")
    for i in range(8):
        a(f"buffer_load_dwordx4 {vr(HF + 4*i, 4)}, v{V_INB}, {WS}, s{S_T0} offen sc1")
        if i < 7: a(f"s_add_u32 s{S_T0}, s{S_T0}, 4096")
    a("s_mov_b64 exec, -1")
    a(f"s_add_u32 s{S_SPIN}, s{S_SPIN}, 1")
    a(f"s_cmp_gt_u32 s{S_SPIN}, {SPIN_LIMIT}")
    a("s_cbranch_scc1 L_abort")
    for i in range(8):
        a(mf32(RA, vr(HF + 4*i, 4), vr(SEL, 4), "0" if i == 0 else vr(RA, 4)))
        if i == 0: a(f"v_xor_b32 v{T2}, s{S_PH}, v{HF}")
        else: a(f"v_bitop3_b32 v{T2}, v{T2}, v{HF + 4*i}, s{S_PH} bitop3:0xf6")
    a(f"v_and_b32 v{T2}, 1, v{T2}")
    a(f"v_cmp_ne_u32 vcc, 0, v{T2}")
    a(f"s_cbranch_vccz {tag}_inok")
    a("s_mov_b64 exec, vcc")
    a(f"s_branch {tag}_in")
    a.label(f"{tag}_inok")
    a("s_nop 3")
    rnd(RA)
    for r in range(4): a(f"v_mul_f32 v{RA+r}, v{RA+r}, v{GV}")
    rnd(RA)
    for r in range(4): a(f"v_add_f32 v{RA+r}, v{RA+r}, v{RB+r}")
    a(f"v_cvt_pk_bf16_f32 v{RA}, v{RA}, v{RA+1}")
    a(f"v_cvt_pk_bf16_f32 v{RA+1}, v{RA+2}, v{RA+3}")
    a(f"s_lshl_b32 s{S_OUTO}, s{S_SEG}, 15")
    a(f"s_lshl_b32 s{S_T0}, s{S_H}, 5")
    a(f"s_add_u32 s{S_OUTO}, s{S_OUTO}, s{S_T0}")
    a(f"buffer_store_dwordx2 {vr(RA,2)}, v{V_OUT}, s[{S_O}:{S_O+3}], s{S_OUTO} offen")
    if opt.get('wb'):
        a(f"s_or_b32 s{S_T0}, s{S_H}, s{S_WV}")
        a(f"s_cmp_lg_u32 s{S_T0}, 0")
        a(f"s_cbranch_scc1 {tag}_nowb")
        a(f"s_cmp_lt_u32 s{S_SEG}, {opt['wb']}")
        a(f"s_cbranch_scc1 {tag}_nowb")
        a(f"s_cmp_eq_u32 s{S_SEG}, 63")
        a(f"s_cbranch_scc1 {tag}_nowb")
        a("buffer_wbl2 sc1")
        a.label(f"{tag}_nowb")
    a(f"s_add_u32 s{S_SEG}, s{S_SEG}, {NG}")
```

```python
from common import *

SPOL = ['']
XB = (0, 32768)
EXB = 65536
V_L16, V_XR, V_XS, V_T0, V_T1, V_P1K = 0, 1, 5, 6, 7, 8
S_X = 32
S_SEG = 30
S_XOFF = 31
S_M0 = 36
S_DESC = (68, 72, 76)

def mf32(d, A, B, C): return f"v_mfma_f32_16x16x32_bf16 {vr(d,4)}, {A}, {B}, {C}"
def mf16(d, A, B, C): return f"v_mfma_f32_16x16x16_bf16 {vr(d,4)}, {A}, {B}, {C}"

def setup(a, L=127, T=126):
    a(f"v_and_b32 v{L}, 63, v0")
    a(f"v_lshrrev_b32 v{T}, 6, v0")
    a(f"v_readfirstlane_b32 s{S_WV}, v{T}")
    a(f"v_lshlrev_b32 v{V_L16}, 4, v{L}")
    for k in range(4):
        bitpat(a, V_XR + k, L, [(4, 3, 1)], T, 4 * k)
        a(f"v_and_b32 v{T}, 15, v{L}")
        a(f"v_xor_b32 v{V_XR+k}, v{V_XR+k}, v{T}")
        a(f"v_lshlrev_b32 v{V_XR+k}, 4, v{V_XR+k}")
        a(f"v_lshl_add_u32 v{V_XR+k}, v{T}, 10, v{V_XR+k}")
    a(f"s_and_b32 s{S_T0}, s{S_WV}, 1")
    a(f"s_lshl_b32 s{S_T0}, s{S_T0}, 7")
    a(f"v_xor_b32 v{V_XS}, s{S_T0}, v{V_L16}")
    a(f"s_lshl_b32 s{S_T0}, s{S_WV}, 10")
    a(f"v_add_u32 v{V_P1K}, s{S_T0}, v{V_L16}")
    srd(a, S_X, KA_X, 2048 * 1024)

def x_issue_groups(buf, seg):
    g = [f"s_lshl_b32 s{S_XOFF}, s{seg}, 15\ns_lshl_b32 s{S_M0}, s{S_WV}, 13\ns_add_u32 s{S_XOFF}, s{S_XOFF}, s{S_M0}"
         + (f"\ns_add_u32 s{S_M0}, s{S_M0}, {XB[buf]}" if XB[buf] else "")]
    for j in range(8):
        t = V_T0 + (j & 1)
        x = ""
        if j % 4 == 0:
            x += f"s_add_u32 m0, s{S_M0}, {j * 1024}\n"
            if j: x += f"s_add_u32 s{S_XOFF}, s{S_XOFF}, 4096\n"
        x += f"v_xor_b32 v{t}, {16 * j}, v{V_XS}\n"
        x += f"buffer_load_dwordx4 v{t}, s[{S_X}:{S_X+3}], s{S_XOFF} offen offset:{(j & 3) * 1024} lds"
        g.append(x)
    return g

def x_issue(a, buf, seg):
    for x in x_issue_groups(buf, seg): a(x)

def x_read(dst, buf, tt, ks):
    return f"ds_read_b128 {vr(dst,4)}, v{V_XR + (ks & 3)} offset:{XB[buf] + tt * 16384 + (ks >> 2) * 256}"

def load_weights(a, chunks, after_first, L=127, T=126):
    V_TR = 125
    pats = {}
    nxt = [123]
    for d, kind, pitch, off, dest in chunks:
        if (kind, pitch) not in pats:
            pats[(kind, pitch)] = nxt[0]
            chunk_src_pattern(a, nxt[0], L, T, (2, 1, 3, 0) if kind == 'proj' else (4, 1, 2, 0), pitch)
            nxt[0] -= 1
    chunk_tr_pattern(a, V_TR, L, T)
    a(f"s_lshl_b32 s{S_T3}, s{S_WV}, 15")
    a(f"v_add_u32 v{V_TR}, s{S_T3}, v{V_TR}")
    a(f"v_xor_b32 v{V_TR-1}, 32, v{V_TR}")
    n = len(chunks)
    def issue(ci):
        d, kind, pitch, off, dest = chunks[ci]
        a(f"s_add_u32 m0, s{S_T3}, {(ci & 7) * 4096}")
        for x in off: a(x)
        rows = [0, 16, 32, 48] if kind == 'proj' else [0, 8, 32, 40]
        for u in range(4):
            a(f"buffer_load_dwordx4 v{pats[(kind, pitch)]}, s[{d}:{d+3}], s{S_T0} offen offset:{u*1024} {SPOL[0]} lds")
            if u < 3: a(f"s_add_u32 s{S_T0}, s{S_T0}, {(rows[u+1] - rows[u]) * pitch - 1024}")
    for ci in range(min(8, n)): issue(ci)
    for ci in range(n):
        left = min(7, n - 1 - ci)
        a(f"s_waitcnt vmcnt({4*left})")
        if ci == 0: after_first(a)
        for t in range(2):
            for pr in range(4):
                a(f"ds_read_b64_tr_b16 {ur(chunks[ci][4](t, pr), 2)}, v{V_TR - t} offset:{(ci & 7)*4096 + tr_off(pr)}")
        a("s_waitcnt lgkmcnt(0)")
        if ci + 8 < n: issue(ci + 8)
    a("s_barrier")

def proj_chunks(desc, pitch, colbyte_lines, wbase):
    out = []
    for kb in range(8):
        off = list(colbyte_lines) + ([f"s_add_u32 s{S_T0}, s{S_T0}, {kb * 64 * pitch}"] if kb else [])
        out.append((desc, 'proj', pitch, off, (lambda kb: lambda t, pr: wbase + (t * 16 + 2 * kb + (pr >> 1)) * 4 + 2 * (pr & 1))(kb)))
    return out

def out_chunks(desc, rowbase_lines, wbase):
    out = []
    for tp in range(4):
        for kb in range(2):
            off = list(rowbase_lines) + [f"s_lshl_b32 s{S_T1}, s{S_WV}, 8", f"s_add_u32 s{S_T0}, s{S_T0}, s{S_T1}",
                                         f"s_add_u32 s{S_T0}, s{S_T0}, {kb * 65536 + tp * 64}"]
            out.append((desc, 'out', 1024, off, (lambda tp, kb: lambda t, pr: wbase + ((2 * tp + t) * 4 + 2 * kb + (pr >> 1)) * 4 + 2 * (pr & 1))(tp, kb)))
    return out

def proj_phase(a, buf, xregs, mfmas):
    for tt in range(2): a(x_read(xregs + 4 * tt, buf, tt, 0))
    for ks in range(16):
        cur = xregs + 8 * (ks & 1); nx = xregs + 8 * (1 - (ks & 1))
        ms = mfmas(ks, [vr(cur, 4), vr(cur + 4, 4)])
        for i, m in enumerate(ms):
            a(m)
            if ks < 15 and i < 2: a(x_read(nx + 4 * i, buf, i, ks + 1))

def exchange(a, src, pos_sgpr_free, dst_all=None):
    pass

def out_phase(a, HF, wbase, acc, store):
    pend = None
    for ct in range(8):
        A = acc + 8 * (ct & 1)
        k = 0
        for i in range(4):
            for tt in range(2):
                a(mf32(A + 4 * tt, vr(HF + (tt * 4 + i) * 4, 4), ur(wbase + (ct * 4 + i) * 4, 4), "0" if i == 0 else vr(A + 4 * tt, 4)))
                if pend and k >= 2 and pend: a(pend.pop(0))
                k += 1
        pend = [f"v_cvt_pk_bf16_f32 v{A + r}, v{A + 2*r}, v{A + 2*r + 1}" for r in range(4)] + [store(ct, A)]
    for x in pend: a(x)

def poll_flags(a, lab, vt, voff, soff_sgpr, need_sgpr, lanes_mask, halves=False, pause=4, seen=None, top=64):
    WS = f"s[{S_WS}:{S_WS+3}]"
    a(f"s_cmp_lg_u32 s{S_WV}, 0")
    a(f"s_cbranch_scc1 {lab}_ok")
    if seen is not None:
        a(f"s_cmp_ge_u32 s{seen}, s{need_sgpr}")
        a(f"s_cbranch_scc1 {lab}_ok")
    a(f"s_mov_b64 exec, s[{lanes_mask}:{lanes_mask+1}]")
    a.label(lab)
    a(f"buffer_load_dword v{vt}, v{voff}, {WS}, s{soff_sgpr} offen sc1")
    a(f"s_add_u32 s{S_SPIN}, s{S_SPIN}, 1")
    a(f"s_cmp_gt_u32 s{S_SPIN}, {SPIN_LIMIT}")
    a("s_cbranch_scc1 L_abort")
    a("s_waitcnt vmcnt(0)")
    if halves:
        a(f"v_lshrrev_b32 v{vt+1}, 16, v{vt}")
        a(f"v_and_b32 v{vt}, 0xffff, v{vt}")
        a(f"v_min_u32 v{vt}, v{vt}, v{vt+1}")
    a(f"v_cmp_gt_u32 vcc, s{need_sgpr}, v{vt}")
    a(f"s_cbranch_vccz {lab}_done")
    a(f"s_sleep {pause}")
    a(f"s_branch {lab}")
    a.label(f"{lab}_done")
    if seen is not None:
        a(f"s_mov_b32 s{seen}, s{need_sgpr}")
        for k in (4, 8, 16):
            a(f"s_add_u32 s{S_T0}, s{need_sgpr}, {k}")
            a(f"s_min_u32 s{S_T0}, s{S_T0}, {top}")
            a(f"v_cmp_gt_u32 vcc, s{S_T0}, v{vt}")
            a(f"s_cmp_eq_u64 vcc, 0")
            a(f"s_cselect_b32 s{seen}, s{S_T0}, s{seen}")
    a("s_mov_b64 exec, -1")
    a.label(f"{lab}_ok")
    a("s_barrier")

def flag_store(a, vt, val_sgpr, off_sgpr, lab, st="sc1", op="buffer_store_dword"):
    WS = f"s[{S_WS}:{S_WS+3}]"
    a(f"s_cmp_lg_u32 s{S_WV}, 0")
    a(f"s_cbranch_scc1 {lab}")
    a("s_mov_b64 exec, 1")
    a(f"v_mov_b32 v{vt}, s{val_sgpr}")
    a(f"{op} v{vt}, off, {WS}, s{off_sgpr} {st}")
    a("s_mov_b64 exec, -1")
    a.label(lab)
```

```python
import re

REG_RE = re.compile(r'^(-)?(\|)?(abs\()?([vas])(\d+|\[(\d+):(\d+)\])\)?\|?$')

def regs_of(tok):
    tok = tok.strip()
    if tok in ('vcc',): return {('s', 'vcc')}
    if tok in ('vcc_lo', 'vcc_hi'): return {('s', 'vcc')}
    if tok in ('exec', 'exec_lo', 'exec_hi'): return {('s', 'exec')}
    if tok == 'm0': return {('s', 'm0')}
    m = REG_RE.match(tok)
    if not m: return set()
    k = m.group(4)
    if m.group(6) is not None:
        return {(k, i) for i in range(int(m.group(6)), int(m.group(7)) + 1)}
    return {(k, int(m.group(5)))}

TRANS = ('v_exp_f32', 'v_log_f32', 'v_rcp_f32', 'v_rsq_f32', 'v_sqrt_f32', 'v_sin_f32', 'v_cos_f32')

class Ins:
    def __init__(self, text):
        self.text = text
        t = text.split(';')[0].strip()
        parts = t.split(None, 1)
        self.op = parts[0]
        rest = parts[1] if len(parts) > 1 else ''
        rest = re.sub(r'(op_sel\w*|neg_\w+|quad_perm):\[([^\]]*)\]', lambda m: m.group(1) + ':' + m.group(2).replace(',', '_'), rest)
        self.ops = [x.strip() for x in rest.split(',')] if rest else []
        self.mods = ''
        if self.ops:
            last = self.ops[-1].split(None, 1)
            self.ops[-1] = last[0]
            self.mods = last[1] if len(last) > 1 else ''
        op = self.op
        self.is_mfma = op.startswith('v_mfma') or op.startswith('v_smfmac')
        self.is_valu = op.startswith('v_') and not self.is_mfma
        self.is_ds = op.startswith('ds_')
        self.is_vmem = op.startswith('buffer_') or op.startswith('global_')
        self.is_salu = op.startswith('s_')
        self.w = set(); self.r = set()
        self.A = self.B = self.C = set()
        R = [regs_of(x) for x in self.ops]
        if self.is_mfma:
            self.w = R[0]; self.A = R[1]; self.B = R[2]
            if op.startswith('v_smfmac'):
                self.C = R[0]; self.B = R[2] | R[3]
            else:
                self.C = R[3]
            self.r = self.A | self.B | self.C
            self.passes = 8 if '32x32' in op else 4
        elif self.is_valu:
            if 'permlane' in op and 'swap' in op:
                self.w = R[0] | R[1]; self.r = R[0] | R[1]
            elif op.startswith('v_cmpx'):
                self.w = R[0] | {('s', 'exec')}; self.r = set().union(*R[1:])
            elif op.startswith(('v_add_co', 'v_sub_co', 'v_addc_co', 'v_subb_co')):
                self.w = R[0] | R[1]; self.r = set().union(*R[2:])
            else:
                self.w = R[0]; self.r = set().union(*R[1:]) if len(R) > 1 else set()
                if op.startswith(('v_fmac', 'v_writelane')) or 'dpp' in op or 'dpp' in self.mods or 'row_' in self.mods:
                    self.r = self.r | R[0]
        elif self.is_ds:
            if op.startswith('ds_read') or op.startswith('ds_bpermute') or op.startswith('ds_swizzle'):
                self.w = R[0]; self.r = set().union(*R[1:])
            else:
                self.r = set().union(*R)
        elif self.is_vmem:
            lds = re.search(r'\blds\b', self.mods) is not None
            self.lds = lds
            if 'load' in op and not lds:
                self.w = R[0]; self.r = set().union(*R[1:])
            elif 'atomic' in op and 'sc0' in self.mods.split():
                self.w = R[0]; self.r = set().union(*R)
            else:
                self.r = set().union(*R) if R else set()
            if lds: self.r = self.r | {('s', 'm0')}
            self.wide_store = ('store' in op) and op.endswith(('x3', 'x4'))
            self.data = set()
            if self.wide_store:
                self.data = R[0] if op.startswith('buffer') else R[1]
        elif self.is_salu:
            if op.startswith(('s_cmp', 's_cbranch', 's_branch', 's_waitcnt', 's_barrier', 's_nop', 's_endpgm', 's_sleep', 's_setprio', 's_bitcmp')):
                self.r = set().union(*R) if R else set()
            else:
                self.w = R[0] if R else set(); self.r = set().union(*R[1:]) if len(R) > 1 else set()
                if 'saveexec' in op: self.w = self.w | {('s', 'exec')}
        self.states = 1
        if op == 's_nop': self.states = int(self.ops[0], 0) + 1

def vg(s): return {x for x in s if x[0] in 'va'}
def sg(s): return {x for x in s if x[0] == 's'}

def need(p, c):
    n = 0
    if p.is_valu:
        wv = vg(p.w); ws = sg(p.w)
        if c.is_mfma and wv & c.r: n = max(n, 2)
        if c.is_mfma and ('s', 'exec') in ws: n = max(n, 4)
        if c.is_valu:
            if 'permlane' in c.op and wv & c.r: n = max(n, 2)
            if ('dpp' in c.op or 'row_' in c.mods or 'quad_perm' in c.mods) and wv & c.r: n = max(n, 2)
            if c.op.startswith(('v_readlane', 'v_readfirstlane')) and wv & c.r: n = max(n, 1)
            if p.op.startswith(TRANS) and wv & (c.r) and not c.op.startswith(TRANS): n = max(n, 1)
            if p.op.startswith(TRANS) and wv & (c.r): n = max(n, 1)
            if ws & sg(c.r): n = max(n, 2)
            if ws and c.op.startswith('v_cndmask') and len(c.ops) == 4 and False: pass
            if ('s', 'exec') in ws and c.op.startswith(('v_readlane', 'v_readfirstlane', 'v_writelane')) : n = max(n, 4)
            if ('s', 'exec') in ws and 'permlane' in c.op: n = max(n, 4)
            if ('s', 'exec') in ws and ('dpp' in c.op or 'row_' in c.mods): n = max(n, 5)
            if ws & sg(c.r) and c.op.startswith(('v_readlane', 'v_writelane')): n = max(n, 4)
        if (c.is_vmem) and ws & sg(c.r): n = max(n, 5)
        if (c.is_vmem or c.is_ds) and p.op.startswith(TRANS) and wv & c.r: n = max(n, 1)
        if c.is_salu and ws & sg(c.r) and not c.op.startswith('s_cbranch'): n = max(n, 1)
    if p.is_mfma:
        big = {4: 8, 8: 12}[p.passes]; part = {4: 6, 8: 10}[p.passes]; war = {4: 3, 8: 7}[p.passes]
        if c.is_mfma:
            if p.w & (c.A | c.B): n = max(n, big)
            if p.w & c.C:
                if not (p.w == c.C and p.op == c.op): n = max(n, part)
            if p.w & c.w and not (p.w & c.C):
                n = max(n, part)
        elif c.is_valu:
            if p.w & (c.r | c.w): n = max(n, big)
            if p.C & c.w: n = max(n, war)
        elif c.is_ds or c.is_vmem:
            if p.w & (c.r | c.w): n = max(n, big)
    if p.is_vmem and getattr(p, 'wide_store', False):
        if (c.is_valu or c.is_mfma) and p.data & c.w: n = max(n, 2)
        elif p.data & c.w: n = max(n, 1)
    if p.is_salu and ('s', 'm0') in p.w:
        if (c.is_vmem and getattr(c, 'lds', False)): n = max(n, 1)
    return n

def distance(seq, c):
    p = seq[0]
    if not p.is_mfma:
        return sum(x.states for x in seq[1:])
    t = 0; last = 0; lastp = p.passes
    prev = p
    for x in seq[1:] + [c]:
        t += prev.states
        if x.is_mfma:
            t = max(t, last + lastp); last = t; lastp = x.passes
        prev = x
    return t - 1

class Asm:
    def __init__(self):
        self.items = []
        self.uid = 0
    def __call__(self, text):
        for ln in text.strip().split('\n'):
            ln = ln.strip()
            if not ln: continue
            if ln == '#forget':
                self.items.append(('x', 'blank_last_vm'))
            elif ln.startswith(';'):
                self.items.append(('c', ln))
            elif ln.endswith(':'):
                self.items.append(('l', ln[:-1]))
            elif ln.startswith('.'):
                self.items.append(('d', ln))
            else:
                self.items.append(('i', Ins(ln)))
    def label(self, n): self.items.append(('l', n))
    def newlabel(self, base):
        self.uid += 1
        return f"{base}_{self.uid}"
    def pad(self, verbose=False):
        out = []; win = []
        npad = 0
        for it in self.items:
            if it[0] != 'i':
                out.append(it); continue
            c = it[1]
            req = 0
            for j in range(len(win) - 1, -1, -1):
                k = need(win[j], c)
                if k:
                    while distance(win[j:] + ([Ins(f"s_nop {req-1}")] if req else []), c) < k: req += 1
            if req > 0:
                nop = Ins(f"s_nop {req-1}")
                out.append(('i', nop)); win.append(nop); npad += 1
                if verbose: print(f"pad {req} before: {c.text}")
            out.append(it); win.append(c)
            if c.op in ('s_branch', 's_endpgm', 's_setpc_b64'): win = []
            win = win[-24:]
        self.items = out
        self.check_branches()
        return npad
    def check_branches(self):
        idx = {it[1]: i for i, it in enumerate(self.items) if it[0] == 'l'}
        for i, it in enumerate(self.items):
            if it[0] != 'i': continue
            b = it[1]
            if not (b.op.startswith('s_cbranch') or b.op == 's_branch'): continue
            tgt = b.ops[0]
            if tgt not in idx: continue
            tail = []
            j = i
            while j >= 0 and len(tail) < 24:
                if self.items[j][0] == 'i':
                    if j != i and self.items[j][1].op in ('s_branch', 's_endpgm'): break
                    tail.append(self.items[j][1])
                j -= 1
            head = []
            j = idx[tgt]
            while j < len(self.items) and len(head) < 24:
                if self.items[j][0] == 'i':
                    head.append(self.items[j][1])
                    if self.items[j][1].op in ('s_branch', 's_endpgm'): break
                j += 1
            dh = 0
            for c in head:
                dist = dh
                for p in tail:
                    if need(p, c) > dist:
                        raise RuntimeError(f"branch hazard via {b.text}: '{p.text}' -> '{c.text}' needs {need(p,c)} has {dist}")
                    dist += p.states
                    if dist > 20: break
                dh += c.states
                if dh > 20: break
    def text(self):
        o = []
        for k, v in self.items:
            if k == 'i': o.append('    ' + v.text)
            elif k == 'l': o.append(v + ':')
            else: o.append(('    ' if k == 'c' else '') + v)
        return '\n'.join(o) + '\n'

def vr(base, n=1):
    return f"v{base}" if n == 1 else f"v[{base}:{base+n-1}]"
def ar(base, n=1):
    return f"a{base}" if n == 1 else f"a[{base}:{base+n-1}]"
def sr(base, n=1):
    return f"s{base}" if n == 1 else f"s[{base}:{base+n-1}]"
def ur(idx, n):
    if idx < 256:
        assert idx + n <= 256
        return vr(idx, n)
    return ar(idx - 256, n)

def interleave(asm, mains, fillers):
    for i, m in enumerate(mains):
        asm(m)
        for f in fillers.get(i, []): asm(f)

WAIT_RE = re.compile(r'(vmcnt|lgkmcnt)\((\d+)\)')

def autowait(asm, verbose=False):
    out = []; lg = []; vm = []; smem = False
    for it in asm.items:
        if it[0] == 'x':
            if it[1] == 'forget_vm': vm = []
            if it[1] == 'set_vm': vm = list(it[2])
            if it[1] == 'blank_last_vm': vm[-1] = set()
            if it[1] == 'drop_last_vm':
                k = max(i for i, d in enumerate(vm) if not d); vm = vm[:k] + vm[k+1:]
            continue
        if it[0] != 'i':
            out.append(it); continue
        c = it[1]
        if c.op == 's_waitcnt':
            for k, n in WAIT_RE.findall(c.text):
                n = int(n)
                if k == 'vmcnt': vm = vm[len(vm) - n:] if n < len(vm) else vm
                else:
                    lg = lg[len(lg) - n:] if n < len(lg) else lg
                    if n == 0: smem = False
            if 'vmcnt(0)' in c.text: vm = []
            if 'lgkmcnt(0)' in c.text: lg = []
            out.append(it); continue
        touch = vg(c.r | c.w)
        nl = None
        for i, d in enumerate(lg):
            if d & touch: nl = len(lg) - 1 - i
        nv = None
        for i, d in enumerate(vm):
            if d & touch: nv = len(vm) - 1 - i
        if nl is not None or nv is not None:
            s = 's_waitcnt'
            if nv is not None:
                nv = min(nv, 63); s += f' vmcnt({nv})'; vm = vm[len(vm) - nv:] if nv else []
            if nl is not None:
                if smem: nl = 0
                nl = min(nl, 15); s += f' lgkmcnt({nl})'; lg = lg[len(lg) - nl:] if nl else []
                if nl == 0: smem = False
            pos = len(out)
            if c.is_mfma:
                while pos > 0 and out[pos-1][0] == 'i' and len(out) - pos < 3:
                    q = out[pos-1][1]
                    if q.is_valu: pos -= 1
                    elif q.is_ds and nl is None: pos -= 1
                    elif q.is_ds and nl > 0 and not smem: nl -= 1; pos -= 1
                    elif q.is_vmem and nv is None: pos -= 1
                    else: break
                s = 's_waitcnt' + (f' vmcnt({nv})' if nv is not None else '') + (f' lgkmcnt({nl})' if nl is not None else '')
            out.insert(pos, ('i', Ins(s)))
            if verbose: print(f"{s}   before {c.text}")
        out.append(it)
        if c.is_ds: lg.append(vg(c.w))
        elif c.is_vmem and not c.op.startswith(('buffer_wbl2', 'buffer_inv')): vm.append(vg(c.w))
        elif c.op.startswith(('s_load', 's_memtime', 's_memrealtime', 's_atomic', 's_buffer_load')): smem = True
        if c.op in ('s_branch', 's_endpgm'): lg = []; vm = []; smem = False
    asm.items = out
```

```python
from common import *

MEMB = 131072
KB = (139264, 147456)
QB = 155648
KKB = QB + 4096
LDS_BYTES = 163840

V_LA, V_P1, V_MR1, V_MR2, V_MR3, V_QW, V_L4, V_QKR, V_WVO, V_OW, V_GATH, V_PST, V_PUB, V_IDX, V_SELX, V_FL = range(16)
V_ONES = 16
V_PB = 20
V_M = 24
V_AQ, V_AK, V_AV = 56, 64, 72
V_W = 80
V_VX = (112, 120)
WQ0, WK0, WV0, WO0 = 256, 384, 128, 192

def wq(t, s): return ur(WQ0 + (s * 2 + t) * 8, 8)
def wk(t, s): return ur(WK0 + (s * 2 + t) * 8, 8)
def wv_res(t, s): return ur(WV0 + ((s - 4) * 2 + t) * 8, 8)
def wo_res(t, kbo): return ur(WO0 + (t * 2 + kbo) * 8, 8)
def Mf(s): return vr(V_M + 4 * s, 4)
def Wb(j): return V_W + 8 * j

S_STEP = 30
S_MEMRD = 31
S_PST0, S_PST1 = 32, 33
S_INB0, S_INB1 = 34, 35
S_PUBN = 36
S_PUBC = 37
S_PH = 38
S_KPF, S_VPF = 39, 40
S_EXP = 41
S_FLP = 42
S_FLA = 43
S_AVAIL = 44
S_C = 45
S_LLO, S_LRG = 46, 47
S_SELM = 48
S_KM0 = 56
S_HB_PST, S_HB_INB, S_HB_PUB = 58, 59, 60
S_KD = 61
S_KE, S_KE2 = 62, 64
S_HST, S_HLD = 23, 29
S_HST2, S_HLD2 = 64, 65
S_L0 = 66
S_TS = 76
S_ACC = 94

def smf(d, A, B): return f"v_smfmac_f32_16x16x64_bf16 {vr(d,4)}, {A}, {B}, v{V_IDX}"
def mf32(d, A, B, C): return f"v_mfma_f32_16x16x32_bf16 {vr(d,4)}, {A}, {B}, {C}"
def mf16(d, A, B, C): return f"v_mfma_f32_16x16x16_bf16 {vr(d,4)}, {A}, {B}, {C}"

V_TID = 123
HINT_STRIDE = [4, 8]
S_KA = 40

def setup_lanes(a):
    L, T = 127, 126
    a(f"v_lshlrev_b32 v{V_LA}, 4, v{L}")
    a(f"s_lshl_b32 s{S_T0}, s{S_WV}, 13")
    a(f"v_add_u32 v{V_WVO}, s{S_T0}, v{V_LA}")
    a(f"v_add_u32 v{V_LA}, {MEMB}, v{V_LA}")
    for j, r in enumerate((V_P1, V_MR1, V_MR2, V_MR3)):
        a(f"s_xor_b32 s{S_T0}, s{S_WV}, {j}")
        a(f"s_lshl_b32 s{S_T0}, s{S_T0}, 11")
        a(f"v_add_u32 v{r}, s{S_T0}, v{V_LA}")
    bitpat(a, V_QW, L, [(5, 1, 8), (0, 15, 1)], T)
    a(f"v_and_b32 v{V_QW}, 15, v{V_QW}")
    a(f"v_and_b32 v{T}, 48, v{L}")
    a(f"v_add_u32 v{V_QW}, v{V_QW}, v{T}")
    a(f"v_lshlrev_b32 v{V_QW}, 3, v{V_QW}")
    a(f"s_lshl_b32 s{S_T0}, s{S_WV}, 10")
    a(f"s_add_u32 s{S_T0}, s{S_T0}, {QB}")
    a(f"v_add_u32 v{V_QW}, s{S_T0}, v{V_QW}")
    bitpat(a, V_QKR, L, [(1, 1, 8), (2, 15, 1)], T)
    a(f"v_and_b32 v{V_QKR}, 15, v{V_QKR}")
    a(f"v_and_b32 v{T}, 3, v{L}")
    a(f"v_lshl_add_u32 v{V_QKR}, v{T}, 4, v{V_QKR}")
    a(f"v_lshlrev_b32 v{V_QKR}, 3, v{V_QKR}")
    a(f"v_add_u32 v{V_QKR}, {QB}, v{V_QKR}")
    bitpat(a, V_OW, L, [(4, 3, 256), (2, 3, 64), (0, 1, 32), (1, 1, 4096)], T, MEMB)
    a(f"s_lshr_b32 s{S_T0}, s{S_WV}, 1")
    a(f"s_lshl_b32 s{S_T0}, s{S_T0}, 10")
    a(f"s_and_b32 s{S_T1}, s{S_WV}, 1")
    a(f"s_lshl_b32 s{S_T1}, s{S_T1}, 4")
    a(f"s_add_u32 s{S_T0}, s{S_T0}, s{S_T1}")
    a(f"v_add_u32 v{V_OW}, s{S_T0}, v{V_OW}")
    bitpat(a, T, L, [(1, 1, 16)], T)
    a(f"v_xor_b32 v{V_OW}, v{V_OW}, v{T}")
    HS = HINT_STRIDE[0]
    bitpat(a, V_L4, L, [(0, 31, HS), (5, 1, OOB)], T)
    NR = HINT_STRIDE[1]
    nb = NR.bit_length() - 1
    bitpat(a, V_GATH, L, [(0, NR - 1, 32 * HS)] + [(b, 1, OOB) for b in range(nb, 6)], T)
    a(f"s_cmp_eq_u32 s{S_WV}, 3")
    a(f"s_cselect_b64 vcc, -1, 0")
    a(f"v_cndmask_b32 v{V_L4}, v{V_L4}, v{V_GATH}, vcc")
    a(f"s_mul_i32 s{S_T0}, s{S_H}, {HS}")
    a(f"s_add_u32 s{S_T0}, s{S_T0}, {WS_HINT}")
    a(f"s_cmp_eq_u32 s{S_WV}, 3")
    a(f"s_cselect_b32 s{S_HST}, s{S_T0}, {OOB}")
    a(f"s_and_b32 s{S_T0}, s{S_H}, {NR - 1}")
    a(f"s_mul_i32 s{S_T0}, s{S_T0}, {32 * HS}")
    a(f"s_add_u32 s{S_T0}, s{S_T0}, {WS_HINT}")
    a(f"s_cmp_eq_u32 s{S_WV}, 0")
    a(f"s_cselect_b32 s{S_HLD}, s{S_T0}, {OOB}")
    bitpat(a, V_GATH, L, [(1, 7, 1024), (4, 3, 32), (0, 1, 16)], T)
    a(f"s_lshl_b32 s{S_T0}, s{S_WV}, 8")
    a(f"v_add_u32 v{V_GATH}, s{S_T0}, v{V_GATH}")
    bitpat(a, V_PST, L, [(4, 3, 8192), (0, 15, 16)], T)
    a(f"s_lshl_b32 s{S_T0}, s{S_WV}, 16")
    a(f"v_add_u32 v{V_PST}, s{S_T0}, v{V_PST}")
    bitpat(a, V_PUB, L, [(1, 3, 256), (0, 1, 32), (5, 1, 16), (4, 1, 8), (3, 1, OOB)], T)
    a(f"v_and_b32 v{T}, 1, v{L}")
    a(f"v_cmp_eq_u32 vcc, 1, v{T}")
    a(f"v_mov_b32 v{V_IDX}, 0x44444444")
    a(f"v_mov_b32 v{T}, 0xeeeeeeee")
    a(f"v_cndmask_b32 v{V_IDX}, v{V_IDX}, v{T}, vcc")
    a(f"v_mov_b32 v{V_SELX}, 0x3f80")
    a(f"v_mov_b32 v{T}, 0x3f800000")
    a(f"v_cndmask_b32 v{V_SELX}, v{V_SELX}, v{T}, vcc")
    a(f"v_bfe_u32 v{T}, v{L}, 1, 3")
    for r in range(4):
        a(f"v_cmp_eq_u32 s[{S_SELM+2*r}:{S_SELM+2*r+1}], {r}, v{T}")
    a(f"v_cmp_eq_u32 s[{S_L0}:{S_L0+1}], 64, v{V_TID}")
    for r in range(4):
        a(f"v_mov_b32 v{V_ONES+r}, 0x3f803f80")
        a(f"v_mov_b32 v{V_PB+r}, 0")

PSTAMP = [-1]
AHEAD = [2]
DEPTH0 = [3]
SFX = ['']
CODEPF = [0]
S_DQ = (68, 72, 76, 80)
V_SQ, V_SO = 125, 124
ROUNDS = []
def set_rounds(order):
    q = [('q', s) for s in (0, 1, 4, 5)]; k = [('k', s) for s in (0, 1, 4, 5)]; o = [('o', (0, 0)), ('o', (0, 1))]; v = [('v', 4), ('v', 5)]
    head = {0: q + k + v + o, 1: o + q + k + v, 2: [q[0], o[0]] + q[1:] + [k[0], o[1]] + k[1:] + v, 3: o + k + v + q}[order]
    ROUNDS[:] = head + [('o', (1, 0)), ('o', (1, 1)), ('v', 0), ('v', 1)]

def src_pattern(a, dst, L, T, bits, pitch):
    bitpat(a, dst, L, [(3, 1, pitch << bits[0]), (4, 1, pitch << bits[1]), (5, 1, pitch << bits[2]), (0, 1, 16)], T)
    for sh, bit in ((2, 4), (4, 2)):
        a(f"v_lshrrev_b32 v{T}, {sh}, v{L}")
        a(f"v_xor_b32 v{T}, v{T}, v{L}")
        a(f"v_and_b32 v{T}, {bit}, v{T}")
        a(f"v_lshl_add_u32 v{dst}, v{T}, 4, v{dst}")

class VmQueue:
    def __init__(self): self.q = []
    def add(self, tag, n=1): self.q += [tag] * n
    def wait(self, a, tag):
        last = max(i for i, t in enumerate(self.q) if t == tag)
        a(f"s_waitcnt vmcnt({len(self.q) - 1 - last})")
        self.q = self.q[last + 1:]
    def done(self, tag): return tag not in self.q

def issue_round(a, i, vq):
    kind, p = ROUNDS[i]
    if kind != 'o':
        a(f"s_xor_b32 s{S_T0}, s{S_WV}, {p >> 1}")
        a(f"s_lshl_b32 s{S_T0}, s{S_T0}, 20")
        a(f"s_add_u32 s{S_T0}, s{S_T0}, s{S_T2}")
        if p & 1: a(f"s_add_u32 s{S_T0}, s{S_T0}, {64 * 8192}")
        rows, pitch, v = (16, 2, 32), 8192, V_SQ
    else:
        a(f"s_lshl_b32 s{S_T0}, s{S_H}, 17")
        a(f"s_lshl_b32 s{S_T1}, s{S_WV}, 8")
        a(f"s_add_u32 s{S_T0}, s{S_T0}, s{S_T1}")
        a(f"s_add_u32 s{S_T0}, s{S_T0}, {p[1] * 65536 + p[0] * 128}")
        rows, pitch, v = (4, 2, 8), 1024, V_SO
    d = S_DQ['qkvo'.index(kind)]
    prev = 0
    for u in range(8):
        off = sum(rows[b] for b in range(3) if u >> b & 1) * pitch - (u & 3) * 1024
        if u & 3 == 0: a(f"s_add_u32 m0, s{S_T3}, {(i & 3) * 32768 + (u >> 2) * 4096}")
        if off != prev: a(f"s_add_u32 s{S_T0}, s{S_T0}, {(off - prev) & 0xffffffff:#x}")
        prev = off
        a(f"buffer_load_dwordx4 v{v}, s[{d}:{d+3}], s{S_T0} offen offset:{(u & 3)*1024} lds")
    vq.add(('w', i), 8)

def start_weights(a, vq):
    L, T = 127, 126
    a(f"v_mov_b32 v{V_TID}, v0")
    a(f"v_and_b32 v{L}, 63, v0")
    a(f"v_lshrrev_b32 v{T}, 6, v0")
    a(f"v_readfirstlane_b32 s{S_WV}, v{T}")
    if CODEPF[0]:
        a("s_getpc_b64 s[8:9]")
        a.label("L_pc")
        a("s_and_b32 s9, s9, 0xffff")
        a("s_mov_b32 s10, L_code_end-L_pc")
        a("s_mov_b32 s11, 0x20000")
        a(f"s_lshl_b32 s{S_T0}, s{S_H}, 12")
        a(f"v_lshlrev_b32 v{T}, 4, v0")
        a(f"buffer_load_dwordx4 v[24:27], v{T}, s[8:11], s{S_T0} offen")
        vq.add('code')
    src_pattern(a, V_SQ, L, T, (0, 3, 2), 8192)
    lazy = all(k == 'q' for k, _ in ROUNDS[:DEPTH0[0]])
    if not lazy: src_pattern(a, V_SO, L, T, (0, 5, 4), 1024)
    a(f"s_lshl_b32 s{S_T3}, s{S_WV}, 13")
    a(f"s_lshr_b32 s{S_T1}, s{S_WV}, 1")
    a(f"s_lshl_b32 s{S_T1}, s{S_T1}, 7")
    a(f"s_lshl_b32 s{S_T2}, s{S_H}, 8")
    a(f"s_add_u32 s{S_T2}, s{S_T2}, s{S_T1}")
    a("s_waitcnt lgkmcnt(0)")
    def desc(base, src, size):
        a(f"s_mov_b32 s{base}, s{src}")
        a(f"s_and_b32 s{base+1}, s{src+1}, 0xffff")
        a(f"s_mov_b32 s{base+2}, {size:#x}")
        a(f"s_mov_b32 s{base+3}, 0x20000")
    desc(S_D, S_KA + 8, 256)
    register_wg(a, V_W, "L_ch_noreg", barrier=False)
    for j, d in enumerate(S_DQ):
        desc(d, S_KA + 2 * j, 0x400000)
        if lazy and j == 0:
            for i in range(DEPTH0[0]): issue_round(a, i, vq)
    if not lazy:
        for i in range(DEPTH0[0]): issue_round(a, i, vq)
    else: src_pattern(a, V_SO, L, T, (0, 5, 4), 1024)
    desc(S_WS, S_KA + 10, WS_SIZE)

def load_weights(a, hooks, vq, depth=3):
    L, T = 127, 126
    TQ, TO = V_AQ, V_AQ + 4
    TMP = V_W
    S_CB = 64
    a(f"s_mov_b32 s{S_CB}, s{S_T2}")
    bitpat(a, TO, L, [(5, 1, 1024), (4, 1, 512 + 32), (3, 1, 256 + 64), (2, 1, 128), (0, 3, 8)], T)
    a(f"s_lshl_b32 s{S_T0}, s{S_WV}, 13")
    a(f"v_add_u32 v{TO}, s{S_T0}, v{TO}")
    for j in range(1, 4): a(f"v_xor_b32 v{TO + j}, {32 * j}, v{TO}")
    a(f"s_and_b32 s{S_T0}, s{S_WV}, 1")
    a(f"s_lshl_b32 s{S_T0}, s{S_T0}, 6")
    a(f"v_xor_b32 v{TQ}, s{S_T0}, v{TO}")
    a(f"v_xor_b32 v{TQ+1}, 32, v{TQ}")
    a(f"v_xor_b32 v{TQ+2}, 8192, v{TQ}")
    a(f"v_xor_b32 v{TQ+3}, 8192, v{TQ+1}")
    for i in range(DEPTH0[0], depth):
        a(f"s_mov_b32 s{S_T2}, s{S_CB}")
        a(f"s_lshl_b32 s{S_T3}, s{S_WV}, 13")
        issue_round(a, i, vq)
    for i in range(16):
        kind, p = ROUNDS[i]
        vq.wait(a, ('w', i))
        a("s_barrier")
        if i + depth < 16:
            a(f"s_mov_b32 s{S_T2}, s{S_CB}")
            a(f"s_lshl_b32 s{S_T3}, s{S_WV}, 13")
            issue_round(a, i + depth, vq)
        if i in hooks: hooks[i](a)
        if i == PSTAMP[0]:
            a("s_memrealtime s[62:63]"); a("s_waitcnt lgkmcnt(0)"); a(f"s_sub_u32 s{S_ACC}, s62, s92"); a(f"s_lshl_b32 s{S_ACC}, s{S_ACC}, 2")
        if i and i % 2 == 0:
            for j in range(8): a(f"v_xor_b32 v{TQ + j}, 0x10000, v{TQ + j}")
        for j in range(2):
            for t in range(2):
                if i >= 12: base = TMP + 16 * j + 8 * t
                elif kind == 'q': base = WQ0 + ((p + 2 * j) * 2 + t) * 8
                elif kind == 'k': base = WK0 + ((p + 2 * j) * 2 + t) * 8
                elif kind == 'v': base = WV0 + ((p + 2 * j - 4) * 2 + t) * 8
                else: base = WO0 + ((2 * j + t) * 2 + p[1]) * 8
                ad = (TO if kind == 'o' else TQ) + 2 * j + t
                for pr in range(4):
                    a(f"ds_read_b64_tr_b16 {ur(base + 2*pr, 2)}, v{ad} offset:{(i & 1)*32768 + (pr >> 1)*4096 + (pr & 1)*2048}")
            a("s_waitcnt lgkmcnt(0)")
        if i >= 12:
            a("s_barrier")
            if i == 14: a(f"v_xor_b32 v{V_WVO}, 0x10000, v{V_WVO}")
            for q in range(8):
                a(f"ds_write_b128 v{V_WVO}, {vr(TMP + 4*q, 4)} offset:{(i & 1)*32768 + q*1024}")
            a("s_waitcnt lgkmcnt(0)")

def lds_wv(s, t, h): return (s & 1) * 32768 + (s >> 1) * 4096 + t * 2048 + h * 1024
def lds_wo(t, kbo, h): return kbo * 32768 + ((t >> 1) - 2) * 4096 + (t & 1) * 2048 + h * 1024
FLIP = f"v_xor_b32 v{V_WVO}, 0x10000, v{V_WVO}"
def rd_wv(dst, s, t): return [f"ds_read_b128 {vr(dst + 4*h, 4)}, v{V_WVO} offset:{lds_wv(s, t, h)}" for h in range(2)]
def rd_wo(dst, t, kbo): return [f"ds_read_b128 {vr(dst + 4*h, 4)}, v{V_WVO} offset:{lds_wo(t, kbo, h)}" for h in range(2)]

def slot_lines():
    return [
        f"s_and_b32 s{S_T0}, s{S_STEP}, 3",
        f"s_lshl_b32 s{S_T1}, s{S_T0}, 13",
        f"s_add_u32 s{S_PUBC}, s{S_T1}, s{S_HB_PUB}",
        f"s_and_b32 s{S_T0}, s{S_T0}, 1",
        f"s_lshl_b32 s{S_T1}, s{S_T0}, 18",
        f"s_add_u32 s{S_PST0}, s{S_T1}, s{S_HB_PST}",
        f"s_add_u32 s{S_PST1}, s{S_PST0}, 32768",
        f"s_add_u32 s{S_INB0}, s{S_T1}, s{S_HB_INB}",
        f"s_add_u32 s{S_INB1}, s{S_INB0}, 4096",
        f"s_bfe_u32 s{S_PH}, s{S_STEP}, 0x10001",
        f"s_add_u32 s{S_T0}, s{S_STEP}, 1",
        f"s_and_b32 s{S_T0}, s{S_T0}, 3",
        f"s_lshl_b32 s{S_T0}, s{S_T0}, 13",
        f"s_add_u32 s{S_PUBN}, s{S_T0}, s{S_HB_PUB}",
        f"s_add_u32 s{S_MEMRD}, s{S_T0}, {WS_MEMRING - MEMB}"]

def idle_a(a, par_next):
    wv_preload(a)
    copy_export(a, par_next)

def wv_preload(a):
    for j in range(4):
        for x in rd_wv(Wb(j), j >> 1, j & 1): a(x)

def copy_export(a, par_next):
    vn = V_VX[1 - par_next]
    for r in range(4): a(f"v_mov_b32 v{vn + r}, v{V_AK + r}")

def zero_b(a):
    for r in list(range(V_AQ + 4, V_AQ + 8)) + list(range(V_AK, V_AK + 4)): a(f"v_mov_b32 v{r}, 0")

def idle_b(a, par_next, tag, young):
    zero_b(a)
    a(f"s_waitcnt vmcnt({young})")
    avail_check(a, tag)

def idle_c1(a):
    for r in list(range(V_AQ, V_AQ + 4)) + list(range(V_AV, V_AV + 8)): a(f"v_mov_b32 v{r}, 0")

def idle_c(a, par_next, done=False):
    if not done: idle_c1(a)
    a("s_waitcnt vmcnt(2)")
    for r in range(V_AK + 4, V_AK + 8): a(f"v_mov_b32 v{r}, 0")

def avail_check(a, tag):
    a(f"v_readfirstlane_b32 s{S_AVAIL}, v{V_FL}")
    a(f"s_lshr_b32 s{S_T0}, s{S_AVAIL}, 16")
    a(f"s_and_b32 s{S_AVAIL}, s{S_AVAIL}, 0xffff")
    a(f"s_min_u32 s{S_AVAIL}, s{S_AVAIL}, s{S_T0}")
    a(f"s_add_u32 s{S_T0}, s{S_STEP}, {AHEAD[0]}")
    a(f"s_min_u32 s{S_T0}, s{S_T0}, 64")
    a(f"s_cmp_ge_u32 s{S_AVAIL}, s{S_T0}")
    a(f"s_cbranch_scc0 {tag}_slow")
    a.label(f"{tag}_ok")

def avail_slow(a, tag):
    a.label(f"{tag}_slow")
    a(f"buffer_load_dword v{V_FL}, off, s[{S_WS}:{S_WS+3}], s{S_FLP} sc1")
    a(f"s_add_u32 s{S_SPIN}, s{S_SPIN}, 1")
    a(f"s_cmp_gt_u32 s{S_SPIN}, {SPIN_LIMIT}")
    a("s_cbranch_scc1 L_abort")
    a("s_waitcnt vmcnt(0)")
    a(f"v_readfirstlane_b32 s{S_AVAIL}, v{V_FL}")
    a(f"s_lshr_b32 s{S_T1}, s{S_AVAIL}, 16")
    a(f"s_and_b32 s{S_AVAIL}, s{S_AVAIL}, 0xffff")
    a(f"s_min_u32 s{S_AVAIL}, s{S_AVAIL}, s{S_T1}")
    a(f"s_cmp_ge_u32 s{S_AVAIL}, s{S_T0}")
    a(f"s_cbranch_scc0 {tag}_slow")
    a(f"s_branch {tag}_ok")

def step(a, par, st, tag, opt, nxt=None):
    WS = f"s[{S_WS}:{S_WS+3}]"
    VXc, VXn = V_VX[par], V_VX[1 - par]
    Kc = KB[par] - MEMB
    T0 = V_PB + 3
    stamp = opt.get('stamp') or (None, None)
    trace = opt.get('trace', [])
    def st_list(name):
        ser = opt.get('series')
        ser = [ser] if isinstance(ser, str) else (ser or [])
        if name in ser:
            adj = -4 if name in ('pst', 'oex', 'bar4x') else 0
            return [f"s_memtime s[{S_TS}:{S_TS+1}]", f"s_lshl_b32 s{S_TS+2}, s{S_STEP}, 2", f"s_lshl_b32 s{S_TS+3}, s{S_H}, 8", f"s_add_u32 s{S_TS+2}, s{S_TS+2}, s{S_TS+3}",
                    f"s_add_u32 s{S_TS+2}, s{S_TS+2}, {WS_STAMP + 0x30000 + 0x2000 * ser.index(name) + adj}", "s_waitcnt lgkmcnt(0)", f"v_mov_b32 v{V_FL}x, s{S_TS}".replace(f"v{V_FL}x", f"v{V_PB if name in ('bar1', 'bar2') else V_VX[par] + 7 if name == 'pst' else V_AQ + 2}"),
                    f"buffer_store_dword v{V_PB if name in ('bar1', 'bar2') else V_VX[par] + 7 if name == 'pst' else V_AQ + 2}, off, {WS}, s{S_TS+2}"]
        if name in trace:
            k = 68 + trace.index(name)
            return [f"s_memtime s[{S_TS}:{S_TS+1}]", "s_waitcnt lgkmcnt(0)", f"s_cmp_eq_u32 s{S_STEP}, {opt.get('tstep', 20) + (1 if name in ('join', 'pub', 'h2iss', 'h1iss', 'pst', 'oex') else 0) + (1 if name == 'entry' and opt.get('nextentry') else 0)}",
                    f"s_cselect_b32 s{k}, s{S_TS}, s{k}"]
        if stamp[0] == name:
            return [f"s_memtime s[{S_TS}:{S_TS+1}]", "s_waitcnt lgkmcnt(0)"]
        if stamp[1] == name:
            return [f"s_memtime s[{S_TS+2}:{S_TS+3}]", "s_waitcnt lgkmcnt(0)", f"s_sub_u32 s{S_TS+2}, s{S_TS+2}, s{S_TS}",
                    f"s_cmp_lt_u32 s{S_STEP}, 2", f"s_cselect_b32 s{S_TS+2}, 3000, s{S_TS+2}", f"s_cselect_b32 s{S_TS+3}, 3000, 0", f"s_sub_u32 s{S_ACC}, s{S_ACC}, s{S_TS+3}",
                    f"s_add_u32 s{S_ACC}, s{S_ACC}, s{S_TS+2}", f"s_max_u32 s74, s74, s{S_TS+2}", f"s_min_u32 s73, s73, s{S_TS+2}",
                    f"s_cmp_gt_u32 s{S_TS+2}, {opt.get('thr', 100000)}", "s_addc_u32 s72, s72, 0"]
        return []
    def st_at(name):
        for x in st_list(name): a(x)
    sg = opt.get('sg', 0)
    a.label(f"{tag}_h1")
    a(f"s_waitcnt vmcnt({1 if sg else 0})")
    a.label(f"{tag}_entry")
    st_at('entry')
    M = V_M
    if opt.get('w0', 1): a(f"ds_write_b128 v{V_P1}, {Mf(0)}")
    if not sg:
        a(f"v_max3_u32 v{T0}, v{M+1}, v{M+3}, v{M+5}")
        a(f"v_max_u32 v{T0}, v{T0}, v{M+7}")
        a(f"v_cmp_eq_u32 vcc, -1, v{T0}")
    elif opt.get('sg2'):
        a(f"v_max_u32 v{T0}, v{M+1}, v{M+3}")
    a.label(f"{tag}_entry2")
    mains = []; F = {}
    nobg = opt.get('nobg', '')
    def add(i, *xs): F.setdefault(i, []).extend(xs)
    AQ = lambda t: V_AQ + 4 * t
    AK = lambda t: V_AK + 4 * t
    AV = lambda t: V_AV + 4 * t
    if not sg:
        for s in range(2):
            for t in range(2): mains.append(smf(AQ(t), Mf(s), wq(t, s)))
        for s in range(2):
            for t in range(2): mains.append(smf(AK(t), Mf(s), wk(t, s)))
        for s in range(2):
            for t in range(2): mains.append(smf(AV(t), Mf(s), vr(Wb(2*s + t), 8)))
        add(1, f"s_cbranch_vccnz {tag}_h1retry")
        if not opt.get('w0', 1): add(1, f"ds_write_b128 v{V_P1}, {Mf(0)}")
        add(opt.get('w1', 2), f"ds_write_b128 v{V_P1}, {Mf(1)} offset:1024")
    else:
        for s in range(2):
            for t in range(2): mains.append(smf(AQ(t), Mf(s), wq(t, s)))
            for t in range(2): mains.append(smf(AK(t), Mf(s), wk(t, s)))
            for t in range(2): mains.append(smf(AV(t), Mf(s), vr(Wb(2*s + t), 8)))
        g = sg
        if not opt.get('sg2'): add(0, f"v_max_u32 v{T0}, v{M+1}, v{M+3}")
        add(g, "s_waitcnt vmcnt(0)", f"ds_write_b128 v{V_P1}, {Mf(1)} offset:1024", f"v_max3_u32 v{T0}, v{T0}, v{M+5}, v{M+7}")
        add(g + 1, f"v_cmp_eq_u32 vcc, -1, v{T0}")
        add(g + 3, f"s_cbranch_vccnz {tag}_h1retry")
    B1 = opt.get('b1', 6)
    add(B1, "s_waitcnt lgkmcnt(0)", *st_list('prebar1'), "s_barrier", *st_list('bar1'))
    mr = (V_MR1, V_MR2, V_MR3)
    for j, s in enumerate(range(2, 8)):
        add(B1 + j, f"ds_read_b128 {Mf(s)}, v{mr[(s >> 1) - 1]} offset:{(s & 1) * 1024}")
    for s in range(2, 8):
        for t in range(2): mains.append(smf(AQ(t), Mf(s), wq(t, s)))
    wvr = [x for j in range(4) for x in rd_wv(Wb(j), 2 + (j >> 1), j & 1)]
    for i, x in enumerate(wvr): add(14 + i, x)
    for s in range(2, 4):
        for t in range(2): mains.append(smf(AV(t), Mf(s), vr(Wb(2*(s-2) + t), 8)))
    for s in range(2, 8):
        for t in range(2): mains.append(smf(AK(t), Mf(s), wk(t, s)))
    ex4 = [f"buffer_store_dwordx4 {vr(VXn,4)}, v{V_LA}, {WS}, s{S_EXP} offen sc1"]
    bg = [f"buffer_load_dwordx4 v{V_P1}, {WS}, s{S_KPF} offen sc1 lds",
          f"buffer_load_dwordx4 v{V_P1}, {WS}, s{S_KPF} offen offset:1024 sc1 lds",
          f"buffer_load_dwordx4 {vr(VXn+4,4)}, v{V_P1}, {WS}, s{S_VPF} offen offset:1024 sc1",
          f"buffer_load_dwordx4 {vr(VXn,4)}, v{V_P1}, {WS}, s{S_VPF} offen sc1",
          f"buffer_load_dword v{V_FL}, off, {WS}, s{S_FLP} sc1"]
    tpos = opt.get('tpos')
    if tpos:
        add(tpos[0] - 1, f"s_add_u32 s{S_KD}, s{S_KPF}, {32*8192}")
        add(tpos[0], f"buffer_load_dwordx4 {vr(VXn+4,4)}, v{V_P1}, {WS}, s{S_KD} offen sc1", "#forget")
        add(tpos[1], f"buffer_load_dwordx4 {vr(VXn+4,4)}, v{V_P1}, {WS}, s{S_KD} offen offset:1024 sc1", "#forget")
    vpos = opt.get('vpos', (13, 15, 17, 19, 21, 22))
    add(5, f"s_mov_b32 m0, s{S_KM0 + (1 - par)}")
    late_bg = []; bub = {}; nbub = 0
    for x, i in zip(ex4 + bg, vpos):
        if i >= 200: bub.setdefault(i - 200, []).append(x); nbub += 1
        elif i >= 100: late_bg.append((i - 100, x))
        else: add(i, x)
    add(20, f"s_sub_u32 s{S_T2}, s{S_STEP}, 1", f"s_max_i32 s{S_T2}, s{S_T2}, 0")
    add(21, f"v_mov_b32 v{V_PB}, s{S_T2}")
    add(23, f"buffer_store_dword v{V_PB}, v{V_GATH}, {WS}, s{S_FLA} offen sc1")
    sal = slot_lines() + [f"s_add_u32 s{S_EXP}, s{S_EXP}, {32*4096}", f"s_add_u32 s{S_KPF}, s{S_KPF}, {32*8192}", f"s_add_u32 s{S_VPF}, s{S_VPF}, {32*8192}"]
    if opt.get('samekv'): sal = sal[:-2]
    late_sal = []
    if opt.get('sameexp'): sal = [x for x in sal if f"s{S_EXP}," not in x]
    for j, x in enumerate(sal): F.setdefault(23 + j, []).insert(0, x)
    QF, KF = Wb(0), Wb(2)
    KX = [V_M, V_M + 4, Wb(2), Wb(2) + 4, Wb(3), Wb(3) + 4, V_M + 8, V_M + 12]
    qtr = [f"ds_read_b64_tr_b16 {vr(QF + 4*i + 2*hh, 2)}, v{V_QKR} offset:{i*1024 + hh*512}" for i in range(4) for hh in range(2)]
    kxr = [f"ds_read_b128 {vr(KX[2*i + T], 4)}, v{V_LA} offset:{Kc + T*4096 + i*1024}" for i in range(4) for T in range(2)]
    q0, q1 = AQ(0), AQ(1)
    add(22, kxr[0]); add(23, kxr[1])
    add(24, f"v_add_f32 v{q0}, v{q0}, v{q0+1}")
    add(25, f"v_add_f32 v{q0+2}, v{q0+2}, v{q0+3}")
    add(26, f"v_cvt_pk_bf16_f32 v{q0}, v{q0}, v{q0+2}")
    add(27, f"ds_write_b32 v{V_QW}, v{q0}", f"v_add_f32 v{q1}, v{q1}, v{q1+1}")
    add(28, kxr[2], f"v_add_f32 v{q1+2}, v{q1+2}, v{q1+3}")
    add(29, kxr[3], f"v_cvt_pk_bf16_f32 v{q1}, v{q1}, v{q1+2}")
    add(30, f"ds_write_b32 v{V_QW}, v{q1} offset:512")
    add(31, kxr[4]); add(32, kxr[5]); add(33, kxr[6])
    add(33, FLIP)
    B2 = opt.get('b2', 34)
    add(B2, "s_waitcnt lgkmcnt(3)", *st_list('prebar2'), "s_barrier", *st_list('bar2'))
    for j, x in enumerate(qtr): add(B2 + j, x)
    SX = lambda T: V_AQ + 4 * T
    for s in (4,):
        for t in range(2): mains.append(smf(AV(t), Mf(s), wv_res(t, s)))
    for i in range(4):
        for T in range(2):
            mains.append(mf32(SX(T), vr(KX[2*i + T], 4), vr(QF + 4*i, 4), "0" if i == 0 else vr(SX(T), 4)))
    k0, k1 = AK(0), AK(1)
    add(40, f"v_add_f32 v{k0}, v{k0}, v{k0+1}")
    add(41, f"v_add_f32 v{k0+2}, v{k0+2}, v{k0+3}")
    add(42, f"v_cvt_pk_bf16_f32 v{k0}, v{k0}, v{k0+2}", f"v_add_f32 v{k1}, v{k1}, v{k1+1}")
    add(43, f"ds_write_b32 v{V_QW}, v{k0} offset:4096", f"v_add_f32 v{k1+2}, v{k1+2}, v{k1+3}")
    add(44, kxr[7], f"v_cvt_pk_bf16_f32 v{k0+1}, v{k1}, v{k1+2}")
    add(45, f"ds_write_b32 v{V_QW}, v{k0+1} offset:4608")
    B3 = opt.get('b3', 49)
    add(B3, "s_waitcnt lgkmcnt(0)", *st_list('prebar3'), "s_barrier", *st_list('bar3'))
    ktr = [f"ds_read_b64_tr_b16 {vr(KF + 4*i + 2*hh, 2)}, v{V_QKR} offset:{4096 + i*1024 + hh*512}" for i in range(4) for hh in range(2)]
    for s in (5, 6, 7):
        for t in range(2): mains.append(smf(AV(t), Mf(s), wv_res(t, s)))
    for x, i in zip(ktr, opt.get('ktrpos', (49, 49, 50, 51, 52, 53, 54, 55))): add(i, x)
    ex = [f"v_exp_f32 v{V_AQ + r}, v{V_AQ + r}" for r in range(8)]
    for x, i in zip(ex, opt.get('expos', (50, 51, 52, 53, 54, 55, 56, 57))): add(i, x)
    SM = V_AK + 4
    for i in range(4):
        mains.append(mf32(SM, vr(KF + 4*i, 4), vr(QF + 4*i, 4), "0" if i == 0 else vr(SM, 4)))
    PX = V_AQ
    v0_, v1_ = AV(0), AV(1)
    add(58, f"v_cvt_pk_bf16_f32 v{PX}, v{V_AQ}, v{V_AQ+1}", f"v_cvt_pk_bf16_f32 v{PX+1}, v{V_AQ+2}, v{V_AQ+3}")
    add(59, f"v_cvt_pk_bf16_f32 v{PX+2}, v{V_AQ+4}, v{V_AQ+5}", f"v_cvt_pk_bf16_f32 v{PX+3}, v{V_AQ+6}, v{V_AQ+7}",
            f"v_add_f32 v{v0_}, v{v0_}, v{v0_+1}", f"v_add_f32 v{v0_+2}, v{v0_+2}, v{v0_+3}")
    OA, LA = V_M, V_M + 8
    mains.append(mf32(LA, vr(V_ONES, 4), vr(PX, 4), "0"))
    mains.append(mf32(OA, vr(VXc, 4), vr(PX, 4), "0"))
    mains.append(mf32(OA + 4, vr(VXc + 4, 4), vr(PX, 4), "0"))
    add(60, f"v_mul_f32 v{SM}, s{S_C}, v{SM}", f"v_mul_f32 v{SM+1}, s{S_C}, v{SM+1}")
    add(61, f"v_exp_f32 v{SM}, v{SM}", f"v_exp_f32 v{SM+1}, v{SM+1}")
    add(62, f"v_cvt_pk_bf16_f32 v{V_AK+2}, v{v0_}, v{v0_+2}", f"v_cvt_pk_bf16_f32 v{V_PB}, v{SM}, v{SM+1}",
            f"v_add_f32 v{v1_}, v{v1_}, v{v1_+1}", f"v_add_f32 v{v1_+2}, v{v1_+2}, v{v1_+3}")
    mains.append(mf16(LA, vr(V_ONES, 2), vr(V_PB, 2), vr(LA, 4)))
    add(63, f"v_cvt_pk_bf16_f32 v{V_AK+3}, v{v1_}, v{v1_+2}", f"v_cvt_pk_bf16_f32 v{V_PB+3}, v{SM}, v{SM+1}")
    mains.append(mf16(OA, vr(V_AK + 2, 2), vr(V_PB, 2), vr(OA, 4)))
    mains.append(mf16(OA + 4, vr(V_AK + 2, 2), vr(V_PB + 2, 2), vr(OA + 4, 4)))
    wo_order = [(t, kbo) for t in range(4, 8) for kbo in range(2)]
    wor = [x for j in range(4) for x in rd_wo(Wb(j), *wo_order[j])]
    npre = opt.get('npre', 4)
    for x, i in zip(wor[:npre], (64, 64, 65, 65, 65, 65, 65, 65)): add(i, x)
    drop = opt.get('drop', [])
    if drop:
        F = {i: [x for x in xs if not any(x.startswith(d) for d in drop)] for i, xs in F.items()}
    interleave(a, mains, F)
    st_at('pv')
    INV, OW = V_AQ + 0, V_AQ + 4
    a(f"v_rcp_f32 v{INV}, v{LA}")
    for hh in range(2):
        if opt.get('pkn', 1):
            for r in range(4 * hh, 4 * hh + 4, 2): a(f"v_pk_mul_f32 {vr(OA+r,2)}, {vr(OA+r,2)}, {vr(INV,2)} op_sel_hi:[1,0]")
        else:
            for r in range(4 * hh, 4 * hh + 4): a(f"v_mul_f32 v{OA+r}, v{OA+r}, v{INV}")
        for r in range(2 * hh, 2 * hh + 2): a(f"v_cvt_pk_bf16_f32 v{OW+r}, v{OA+2*r}, v{OA+2*r+1}")
        if not opt.get('ow128'): a(f"ds_write_b64 v{V_OW}, {vr(OW + 2*hh, 2)} offset:{8*hh}")
    if opt.get('ow128'): a(f"ds_write_b128 v{V_OW}, {vr(OW, 4)}")
    a(f"v_subrev_u32 v{INV+1}, s{S_LLO}, v{LA}")
    a(f"v_cmp_le_u32 vcc, s{S_LRG}, v{INV+1}")
    zacc = lambda t: mf16(V_M + 4*t, vr(V_PB + 2, 2), vr(V_PB, 2), "0")
    nb1, nb2 = opt.get('nb1', 0), opt.get('nb2', 0)
    b1l = wor[npre:npre + nb1]
    for t in range(opt.get('z1', 4)):
        a(zacc(t))
        for x in bub.get(t, []): a(x)
        for x in b1l[t::4]: a(x)
    a(f"s_cbranch_vccnz {tag}_fallback")
    a.label(f"{tag}_fbdone")
    a(f"s_waitcnt lgkmcnt({nb1})")
    st_at('prebar4')
    a("s_barrier")
    st_at('bar4')
    OF = VXc
    a(f"ds_read_b128 {vr(OF,4)}, v{V_LA}")
    a(f"ds_read_b128 {vr(OF+4,4)}, v{V_LA} offset:1024")
    HV = V_AK + 4
    a(f"s_add_u32 s{S_STEP}, s{S_STEP}, 1")
    for t in range(opt.get('z1', 4), 8):
        a(zacc(t))
        for x in bub.get(t, []): a(x)
        for x in wor[npre + nb1:npre + nb1 + nb2][t - 4::4]: a(x)
        if t == 4: a(f"v_mov_b32 v{HV}, s{S_STEP}")
    st_at('oex')
    mains = []; F = {}
    P = lambda t: V_M + 4 * t
    for t in range(4):
        for kbo in range(2): mains.append(smf(P(t), vr(OF + 4*kbo, 4), wo_res(t, kbo)))
    src = [Wb(0), Wb(1), Wb(2), Wb(3), V_AQ, V_AV, Wb(0), Wb(1)]
    for j, (t, kbo) in enumerate(wo_order): mains.append(smf(P(t), vr(OF + 4*kbo, 4), vr(src[j], 8)))
    nd = npre + nb1 + nb2
    late = wor[nd:] + [x for j in range(4, 8) for x in rd_wo(src[j], *wo_order[j])]
    n1 = 12 - nd
    lpos = [min(7, (j * 8) // max(n1, 8)) for j in range(n1)] + list(opt.get('lp', (8, 9, 9, 10)))
    for x, i in zip(late, lpos): add(i, x)
    split = opt.get('split', 0)
    def fold(t, dst):
        p = P(t)
        return [f"v_add_f32 v{p}, v{p}, v{p+1}", f"v_add_f32 v{p+2}, v{p+2}, v{p+3}", f"v_cvt_pk_bf16_f32 v{dst}, v{p}, v{p+2}"]
    for t in range(6):
        y = fold(t, P(t & 4) + (t & 3))
        add(2 * t + 3, y[0]); add(2 * t + 4, y[1], y[2])
        if t & 3 == 0: add(2 * t + 5, f"v_and_or_b32 v{P(t)}, v{P(t)}, -2, s{S_PH}")
        if split and t == 2: add(2 * t + 5, f"v_and_or_b32 v{P(0)+2}, v{P(0)+2}, -2, s{S_PH}")
    add(11, FLIP)
    for i, x in late_bg: F.setdefault(i, []).insert(0, x)
    for j, x in enumerate(late_sal): F.setdefault(12 + j, []).insert(0, x)
    y6 = fold(6, P(4) + 2); add(15, y6[0])
    sp = opt.get('st0', 11)
    F[sp].insert(0, f"buffer_store_dwordx4 {vr(P(0),4)}, v{V_PST}, {WS}, s{S_PST0} offen {st}")
    if split: F[15].insert(0, f"buffer_store_dwordx2 {vr(P(4),2)}, v{V_PST}, {WS}, s{S_PST1} offen {st}")
    probes = opt.get('probes', (14, 16))
    F.setdefault(opt.get('hintpos', 7), []).insert(0, f"buffer_store_dword v{HV}, v{V_L4}, {WS}, s{S_HST} offen {st}")
    probe = lambda j: f"buffer_load_dword v{HV + 1 + j % 3}, v{V_L4}, {WS}, s{S_HLD} offen sc1"
    for j, g in enumerate(probes):
        if g < 16: F[g].insert(0, probe(j))
    interleave(a, mains, F)
    a(y6[1]); a(y6[2])
    if split: a(f"v_and_or_b32 v{P(4)+2}, v{P(4)+2}, -2, s{S_PH}")
    for j, g in enumerate(probes):
        if g == 16: a(probe(j))
    for y in fold(7, P(4) + 3): a(y)
    if split: a(f"buffer_store_dwordx2 {vr(P(4)+2,2)}, v{V_PST}, {WS}, s{S_PST1} offen offset:8 {st}")
    else: a(f"buffer_store_dwordx4 {vr(P(4),4)}, v{V_PST}, {WS}, s{S_PST1} offen {st}")
    st_at('pst')
    SEL, RA = V_AQ, V_AV
    def h2_issue():
        for i in range(8):
            a(f"buffer_load_dwordx4 {Mf(i)}, v{V_LA}, {WS}, s{S_INB0 if i < 4 else S_INB1} offen offset:{(i & 3)*1024} sc1")
    FLG = QB + 4 - MEMB
    a(f"s_cmp_lg_u32 s{S_WV}, 0")
    a(f"s_cbranch_scc1 {tag}_others")
    PR = [HV + 1, HV + 2, HV + 3, V_AV, V_AV + 1]
    probe_to = lambda r: f"buffer_load_dword v{r}, v{V_L4}, {WS}, s{S_HLD} offen sc1"
    def check(r):
        a(f"v_cmp_gt_u32 vcc, s{S_STEP}, v{r}")
        a(f"s_cmp_eq_u32 vcc_lo, 0")
        a(f"s_cbranch_scc1 {tag}_go")
    n = len(probes)
    depth = opt.get('pdepth', 4)
    queue = []
    for g in sorted(set(list(probes) + [sp, 17])):
        if g in probes: queue.append(PR[probes.index(g)])
        if g == sp or g == 17: queue.append(None)
    if sp in probes:
        pass
    def issue(r):
        a(probe_to(r)); queue.append(r)
    def wait_check(r):
        k = max(i for i, x in enumerate(queue) if x == r)
        return len(queue) - 1 - k
    sel = [f"v_cndmask_b32 v{SEL+r}, 0, v{V_SELX}, s[{S_SELM+2*r}:{S_SELM+2*r+1}]" for r in range(4)]
    nxtr = n
    issue(PR[nxtr]); nxtr += 1
    for x in sel: a(x)
    copy_export(a, 1 - par)
    if depth > nxtr:
        zero_b(a)
        issue(PR[nxtr]); nxtr += 1
    order = list(range(nxtr))
    first = True
    for j in range(n):
        a(f"s_waitcnt vmcnt({wait_check(PR[j])})")
        check(PR[j])
        if nxtr < depth:
            issue(PR[nxtr]); order.append(nxtr); nxtr += 1
            if first: wv_preload(a)
            issue(PR[j]); order.append(j)
        else:
            issue(PR[j]); order.append(j)
        first = False
    ring = order[n:]
    a.label(f"{tag}_hl")
    for j in ring:
        a(f"s_waitcnt vmcnt({len(ring) - 1})")
        check(PR[j])
        a(probe_to(PR[j]))
        a(f"s_add_u32 s{S_ACC+3}, s{S_ACC+3}, 1")
    a(f"s_add_u32 s{S_SPIN}, s{S_SPIN}, 1")
    a(f"s_cmp_gt_u32 s{S_SPIN}, {SPIN_LIMIT}")
    a(f"s_cbranch_scc0 {tag}_hl")
    a("s_branch L_abort")
    if opt.get('al', 1): a(".p2align 5")
    a.label(f"{tag}_go")
    for _ in range(opt.get('h2pad', 0)): a("s_nop 7")
    st_at('h2iss')
    h2_issue()
    ea = opt.get('ea', 3)
    if not ea & 1: wv_preload(a)
    if not ea & 2: idle_b(a, 1 - par, f"{tag}_av0", 10 + len(probes))
    a.label(f"{tag}_h2")
    TG = RA + 4
    for i in range(8):
        a(mf32(RA, Mf(i), vr(SEL, 4), "0" if i == 0 else vr(RA, 4)))
        if i == 0: a(f"v_xor_b32 v{TG}, s{S_PH}, v{V_M}")
        else: a(f"v_bitop3_b32 v{TG}, v{TG}, v{V_M + 4*i}, s{S_PH} bitop3:0xf6")
        if split: a(f"v_bitop3_b32 v{TG}, v{TG}, v{V_M + 4*i + 2}, s{S_PH} bitop3:0xf6")
    a(f"v_and_b32 v{TG}, 1, v{TG}")
    a(f"v_cmp_ne_u32 vcc, 0, v{TG}")
    a(f"v_mov_b32 v{TG}, -1")
    a(f"v_mov_b32 v{TG+1}, -1")
    a(f"v_cvt_pk_bf16_f32 v{RA+6}, v{RA}, v{RA+1}")
    a(f"v_cvt_pk_bf16_f32 v{RA+7}, v{RA+2}, v{RA+3}")
    a(f"s_cbranch_vccnz {tag}_h2r")
    a(f"buffer_store_dwordx2 {vr(RA+6,2)}, v{V_PUB}, {WS}, s{S_PUBN} offen {st}")
    st_at('pub')
    a(f"buffer_store_dwordx2 {vr(TG,2)}, v{V_PUB}, {WS}, s{S_PUBC} offen {st}")
    if ea & 1: wv_preload(a)
    if ea & 2: idle_b(a, 1 - par, f"{tag}_av0", 63)
    idle_c1(a)
    a(f"s_branch {tag}_join")
    if opt.get('al', 1): a(".p2align 5")
    for _ in range(opt.get('sh2', 4)): a(".long 0xbf800000")
    a.label(f"{tag}_others")
    if opt.get('time') or opt.get('probe_t') == 's':
        for k, (st_, reg) in enumerate(((8, 80), (62, 82))):
            a(f"s_cmp_lg_u32 s{S_STEP}, {st_}")
            a(f"s_cbranch_scc1 {tag}_nt{k}")
            a(f"s_memtime s[{reg}:{reg+1}]")
            a("s_waitcnt lgkmcnt(0)")
            a.label(f"{tag}_nt{k}")
    idle_c1(a)
    idle_a(a, 1 - par)
    zero_b(a)
    a(f"s_cmp_lg_u32 s{S_WV}, 1")
    a(f"s_cbranch_scc1 {tag}_av2_ok")
    a(f"s_waitcnt vmcnt({2 + len(probes) + len(late_bg) + nbub})")
    avail_check(a, f"{tag}_av2")
    for j in range(opt.get('dummy', 0)): a(smf(V_M + 8 + 4 * (j & 1), vr(V_W + 4 * (j & 3), 4), wq(j & 1, j & 7)))
    a.label(f"{tag}_join")
    a("s_barrier")
    for _ in range(opt.get('h1pad', 0)): a("s_nop 7")
    st_at('h1iss')
    if par == 0:
        a(f"s_cmp_eq_u32 s{S_STEP}, 63")
        a(f"s_cbranch_scc1 L_last")
    if sg and not opt.get('sgb2b'):
        a(f"buffer_load_dwordx4 {Mf(0)}, v{V_P1}, {WS}, s{S_MEMRD} offen sc1")
        a("s_waitcnt vmcnt(1)")
        for r in range(V_AK + 4, V_AK + 8): a(f"v_mov_b32 v{r}, 0")
        for _ in range(opt.get('sgpad', 0)): a("s_nop 3")
        a(f"buffer_load_dwordx4 {Mf(1)}, v{V_P1}, {WS}, s{S_MEMRD} offen offset:1024 sc1")
    else:
        h1_issue(a, 0)
        idle_c(a, 1 - par, True)
    for j in range(opt.get('dummy2', 0)): a(smf(V_M + 8 + 4 * (j & 1), vr(V_W + 4 * (j & 3), 4), wq(j & 1, j & 7)))
    a("s_waitcnt lgkmcnt(0)")
    st_at('join')
    return h2_issue, None

def h1_issue(a, j):
    WS = f"s[{S_WS}:{S_WS+3}]"
    a(f"buffer_load_dwordx4 {Mf(2*j)}, v{V_P1}, {WS}, s{S_MEMRD} offen sc1")
    a(f"buffer_load_dwordx4 {Mf(2*j + 1)}, v{V_P1}, {WS}, s{S_MEMRD} offen offset:1024 sc1")

def step_tails(a, par, tag, h2, opt):
    WS = f"s[{S_WS}:{S_WS+3}]"
    VXc = V_VX[par]
    Kc = KB[par] - MEMB
    T0 = V_PB + 3
    def spin(k):
        a(f"s_add_u32 s{S_SPIN}, s{S_SPIN}, 1")
        a(f"s_cmp_gt_u32 s{S_SPIN}, {SPIN_LIMIT}")
        a("s_cbranch_scc1 L_abort")
        a(f"s_add_u32 s{S_ACC+k}, s{S_ACC+k}, 1")
    a.label(f"{tag}_h1retry")
    a("s_mov_b64 exec, vcc")
    h1_issue(a, 0)
    a("s_mov_b64 exec, -1")
    spin(1)
    a("s_nop 2")
    for r in range(24 if opt.get('sg') else 8): a(f"v_mov_b32 v{V_AQ + r}, 0")
    a(f"s_branch {tag}_h1")
    a.label(f"{tag}_h2r")
    a("s_mov_b64 exec, vcc")
    h2[0]()
    a("s_mov_b64 exec, -1")
    if h2[1]: a(h2[1])
    spin(2)
    a(f"s_branch {tag}_h2")
    for j in (0, 2): avail_slow(a, f"{tag}_av{j}")
    a.label(f"{tag}_fallback")
    a("s_nop 7")
    a("s_nop 3")
    a("s_waitcnt lgkmcnt(0)")
    QF, KF = Wb(0), Wb(2)
    SX, SM = V_AV, V_AK + 4
    OA, LA = V_M, V_M + 8
    for i in range(4):
        for hh in range(2): a(f"ds_read_b64_tr_b16 {vr(QF + 4*i + 2*hh, 2)}, v{V_QKR} offset:{i*1024 + hh*512}")
    for T in range(2):
        for i in range(4): a(f"ds_read_b128 {vr(KF + 4*i, 4)}, v{V_LA} offset:{Kc + T*4096 + i*1024}")
        for i in range(4): a(mf32(SX + 4*T, vr(KF + 4*i, 4), vr(QF + 4*i, 4), "0" if i == 0 else vr(SX + 4*T, 4)))
        a("s_nop 7")
    for i in range(4):
        for hh in range(2): a(f"ds_read_b64_tr_b16 {vr(KF + 4*i + 2*hh, 2)}, v{V_QKR} offset:{4096 + i*1024 + hh*512}")
    for i in range(4): a(mf32(SM, vr(KF + 4*i, 4), vr(QF + 4*i, 4), "0" if i == 0 else vr(SM, 4)))
    a(f"v_mul_f32 v{SM}, s{S_C}, v{SM}")
    a(f"v_mul_f32 v{SM+1}, s{S_C}, v{SM+1}")
    MX, T2 = SM + 2, SM + 3
    a(f"v_max3_f32 v{MX}, v{SM}, v{SM+1}, v{SX}")
    for r in range(1, 7, 2): a(f"v_max3_f32 v{MX}, v{MX}, v{SX+r}, v{SX+r+1}")
    a(f"v_max_f32 v{MX}, v{MX}, v{SX+7}")
    for sw in ("v_permlane16_swap_b32", "v_permlane32_swap_b32"):
        a(f"v_mov_b32 v{T2}, v{MX}")
        a(f"{sw} v{MX}, v{T2}")
        a(f"v_max_f32 v{MX}, v{MX}, v{T2}")
    for r in list(range(SX, SX + 8)) + [SM, SM + 1]:
        a(f"v_sub_f32 v{r}, v{r}, v{MX}")
        a(f"v_exp_f32 v{r}, v{r}")
    PX = V_AQ
    for r in range(4): a(f"v_cvt_pk_bf16_f32 v{PX+r}, v{SX+2*r}, v{SX+2*r+1}")
    a(f"v_cvt_pk_bf16_f32 v{V_PB}, v{SM}, v{SM+1}")
    a(f"v_cvt_pk_bf16_f32 v{V_PB+3}, v{SM}, v{SM+1}")
    a(mf32(LA, vr(V_ONES, 4), vr(PX, 4), "0"))
    a(mf32(OA, vr(VXc, 4), vr(PX, 4), "0"))
    a(mf32(OA + 4, vr(VXc + 4, 4), vr(PX, 4), "0"))
    a(mf16(LA, vr(V_ONES, 2), vr(V_PB, 2), vr(LA, 4)))
    a(mf16(OA, vr(V_AK + 2, 2), vr(V_PB, 2), vr(OA, 4)))
    a(mf16(OA + 4, vr(V_AK + 2, 2), vr(V_PB + 2, 2), vr(OA + 4, 4)))
    wo_order = [(t, kbo) for t in range(4, 8) for kbo in range(2)]
    for j in range(4):
        for x in rd_wo(Wb(j), *wo_order[j]): a(x)
    INV, OW = V_AQ + 0, V_AQ + 4
    a(f"v_rcp_f32 v{INV}, v{LA}")
    for r in range(8): a(f"v_mul_f32 v{OA+r}, v{OA+r}, v{INV}")
    for r in range(4): a(f"v_cvt_pk_bf16_f32 v{OW+r}, v{OA+2*r}, v{OA+2*r+1}")
    a(f"ds_write_b128 v{V_OW}, {vr(OW,4)}")
    for r in range(16): a(f"v_mov_b32 v{V_M + r}, 0")
    a("s_waitcnt lgkmcnt(0)")
    a("s_nop 1")
    a(f"s_branch {tag}_fbdone")

def role_chain(a, opt):
    WS = f"s[{S_WS}:{S_WS+3}]"; DB = f"s[{S_D}:{S_D+3}]"
    vq = VmQueue()
    AHEAD[0] = 3 if opt.get('tpos') else 2
    set_rounds(opt.get('order', 0))
    DEPTH0[0] = 2 if opt.get('pace') else 3
    SFX[0] = ''
    HINT_STRIDE[0] = opt.get('hs', 4); HINT_STRIDE[1] = opt.get('nr', 8)
    CODEPF[0] = opt.get('codepf', 0)
    start_weights(a, vq)
    a(f"s_mov_b32 s65, s{S_T2}")
    if opt.get('dbgtime'):
        a("s_not_b32 s96, s98"); a("s_mov_b64 exec, 1"); a("v_mov_b32 v126, s96"); a(f"buffer_atomic_umax v126, off, s[{S_D}:{S_D+3}], 0 offset:48"); a("s_mov_b64 exec, -1"); vq.add('x')
    setup_lanes(a)
    a(f"s_mov_b32 s{S_C}, {f32bits(CSCALE):#x}")
    a(f"s_mov_b32 s{S_LLO}, 0x21800000")
    a(f"s_mov_b32 s{S_LRG}, {0 if opt.get('forcefb') else 0x3c000000:#x}")
    for r in range(S_ACC, S_ACC + 4): a(f"s_mov_b32 s{r}, 0")
    a(f"s_lshl_b32 s{S_T0}, s{S_H}, 8")
    a(f"s_add_u32 s{S_HB_PST}, s{S_T0}, {WS_PART}")
    a(f"s_lshl_b32 s{S_T0}, s{S_H}, 13")
    a(f"s_add_u32 s{S_HB_INB}, s{S_T0}, {WS_PART - MEMB}")
    a(f"s_add_u32 s{S_KPF}, s{S_T0}, {WS_KX - MEMB}")
    a(f"s_add_u32 s{S_VPF}, s{S_T0}, {WS_VX - MEMB}")
    a(f"s_and_b32 s{S_T0}, s{S_H}, 3")
    a(f"s_lshl_b32 s{S_T0}, s{S_T0}, 6")
    a(f"s_lshr_b32 s{S_T1}, s{S_H}, 2")
    a(f"s_lshl_b32 s{S_T1}, s{S_T1}, 10")
    a(f"s_add_u32 s{S_T0}, s{S_T0}, s{S_T1}")
    a(f"s_add_u32 s{S_HB_PUB}, s{S_T0}, {WS_MEMRING}")
    a(f"s_lshl_b32 s{S_T0}, s{S_H}, 12")
    a(f"s_lshl_b32 s{S_T1}, s{S_WV}, 10")
    a(f"s_add_u32 s{S_T0}, s{S_T0}, s{S_T1}")
    a(f"s_add_u32 s{S_EXP}, s{S_T0}, {WS_KVM - MEMB - 32*4096}")
    a(f"s_lshl_b32 s{S_T0}, s{S_H}, 7")
    a(f"s_add_u32 s{S_FLP}, s{S_T0}, {WS_FLAG + FLAG_P * 128}")
    a(f"s_add_u32 s{S_FLA}, s{S_T0}, {WS_FLAG + FLAG_A * 128}")
    a(f"s_lshl_b32 s{S_T0}, s{S_WV}, 11")
    a(f"s_add_u32 s{S_KM0}, s{S_T0}, {KB[0]}")
    a(f"s_add_u32 s{S_KM0+1}, s{S_T0}, {KB[1]}")
    SN = V_W
    a(f"s_mov_b32 s{S_T2}, s65")
    S_OK = S_AVAIL
    PSTAMP[0] = opt.get('pstamp', -1)
    groups = opt.get('groups', [0])
    IV = V_M + 16
    srd(a, S_W, KA_MEM0, 8192)
    def seg0_loads():
        a(f"s_mov_b32 m0, s{S_KM0}")
        a("s_nop 0")
        a(f"buffer_load_dwordx4 v{V_P1}, {WS}, s{S_KPF} offen sc1 lds")
        a(f"buffer_load_dwordx4 v{V_P1}, {WS}, s{S_KPF} offen offset:1024 sc1 lds")
        a(f"buffer_load_dwordx4 {vr(V_VX[0],4)}, v{V_P1}, {WS}, s{S_VPF} offen sc1")
        a(f"buffer_load_dwordx4 {vr(V_VX[0]+4,4)}, v{V_P1}, {WS}, s{S_VPF} offen offset:1024 sc1")
    def h8(a):
        init_issue(a, IV); vq.add('init', 3)
        a(f"s_mov_b32 s{S_OK}, 0")
    def h16(a):
        assert vq.done('init')
        vq.add('fl')
        a.items.append(('x', 'forget_vm'))
        init_check(a, IV, groups, "L_ch_h16" + SFX[0])
        a(f"s_mov_b32 s{S_OK}, 1")
        if opt.get('ringpf', 1):
            for sl in range(2):
                a(f"s_add_u32 s{S_T0}, s{S_HB_INB}, {sl << 18}")
                for j in range(2):
                    a(f"buffer_load_dwordx4 {vr(V_M + 8, 4)}, v{V_P1}, {WS}, s{S_T0} offen offset:{1024 * j} sc1")
                    a.items.append(('x', 'forget_vm'))
            a(f"s_lshl_b32 s{S_T0}, s{S_H}, 10")
            a(f"s_add_u32 s{S_T0}, s{S_T0}, {WS_MEMRING - MEMB}")
            a(f"buffer_load_dwordx4 {vr(V_M + 8, 4)}, v{V_LA}, {WS}, s{S_T0} offen sc1")
            a(f"buffer_load_dword v{V_M + 12}, v{V_L4}, {WS}, s{S_HLD} offen sc1")
            a.items.append(('x', 'forget_vm'))
        a.label("L_ch_h16" + SFX[0])
        a(f"buffer_load_dword v{V_FL}, off, {WS}, s{S_FLP} sc1")
    def h24(a):
        assert vq.done('fl')
        vq.add('mem0', 2)
        a.items.append(('x', 'forget_vm'))
        a(f"buffer_load_dwordx4 {Mf(0)}, v{V_GATH}, s[{S_W}:{S_W+3}], 0 offen")
        a(f"buffer_load_dwordx4 {Mf(1)}, v{V_GATH}, s[{S_W}:{S_W+3}], 0 offen offset:128")
        a(f"v_readfirstlane_b32 s{S_T0}, v{V_FL}")
        a(f"s_lshr_b32 s{S_T1}, s{S_T0}, 16")
        a(f"s_and_b32 s{S_T0}, s{S_T0}, 0xffff")
        a(f"s_min_u32 s{S_T0}, s{S_T0}, s{S_T1}")
        a(f"s_cmp_ge_u32 s{S_T0}, {AHEAD[0]}")
        a(f"s_cselect_b32 s{S_T0}, s{S_OK}, 0")
        a(f"s_lshl_b32 s{S_OK}, s{S_T0}, 1")
        a(f"s_cmp_eq_u32 s{S_OK}, 0")
        a("s_cbranch_scc1 L_ch_h24" + SFX[0])
        seg0_loads()
        a.label("L_ch_h24" + SFX[0])
    hk = dict(zip(opt.get('hooks', (7, 11, 15)), (h8, h16, h24)))
    if opt.get('late') == 2:
        def hrel(a):
            a(f"s_cmp_eq_u32 s{S_OK}, 0")
            a("s_cbranch_scc1 L_ch_norel" + SFX[0])
            a(f"v_mov_b32 v{IV}, 1")
            a(f"buffer_store_dword v{IV}, off, {WS}, s{S_FLA} offset:4 sc1")
            a.label("L_ch_norel" + SFX[0])
        hk[opt.get('relpos', 12)] = hrel
    if opt.get('pace'):
        import copy
        vq0 = copy.deepcopy(vq.q)
        a(f"s_and_b32 s{S_T0}, s{S_H}, 3")
        a(f"s_cmp_eq_u32 s{S_T0}, 1")
        a("s_cbranch_scc1 L_ch_deep")
        a(f"s_cmp_eq_u32 s{S_H}, 31")
        a("s_cbranch_scc1 L_ch_deep")
        SFX[0] = 'a'
        load_weights(a, hk, vq, 2)
        a("s_branch L_ch_loaded")
        a.label("L_ch_deep")
        SFX[0] = 'b'
        vq.q = vq0
        load_weights(a, hk, vq, 3)
        a.label("L_ch_loaded")
    else:
        load_weights(a, hk, vq)
    if opt.get('ptime') and 'pstamp' not in opt:
        a("s_memrealtime s[62:63]"); a("s_waitcnt lgkmcnt(0)"); a(f"s_sub_u32 s{S_ACC}, s62, s92"); a(f"s_lshl_b32 s{S_ACC}, s{S_ACC}, 2"); a(f"s_add_u32 s{S_ACC}, s{S_ACC}, s{S_OK}")
    if opt.get('ponly'):
        a(f"s_lshl_b32 s{S_T0}, s{S_H}, 2"); a(f"s_add_u32 s{S_T0}, s{S_T0}, s{S_WV}"); a(f"s_lshl_b32 s{S_T0}, s{S_T0}, 5"); a(f"s_add_u32 s{S_T0}, s{S_T0}, {WS_STAMP + 4}")
        a(f"v_mov_b32 v{V_M}, s{S_ACC}")
        a(f"buffer_store_dword v{V_M}, off, {WS}, s{S_T0}")
        a("s_endpgm")
    a(f"s_mov_b32 s{S_STEP}, 0")
    a(f"s_cmp_lg_u32 s{S_OK}, 0")
    a("s_cbranch_scc1 L_ch_ready")
    wait_init(a, IV, groups, "L_ch_init")
    a(f"v_mov_b32 v{V_FL}, 0")
    if opt.get('late') == 2:
        a(f"v_mov_b32 v{IV}, 1")
        a(f"buffer_store_dword v{IV}, off, {WS}, s{S_FLA} offset:4 sc1")
    avail_check(a, "L_ch_av")
    seg0_loads()
    a.label("L_ch_ready")
    if opt.get('nokv'):
        a(f"s_mov_b32 m0, s{S_KM0+1}")
        a(f"s_nop 0")
        a(f"buffer_load_dwordx4 v{V_P1}, {WS}, s{S_KPF} offen sc1 lds")
        a(f"buffer_load_dwordx4 v{V_P1}, {WS}, s{S_KPF} offen offset:1024 sc1 lds")
        a(f"buffer_load_dwordx4 {vr(V_VX[1]+4,4)}, v{V_P1}, {WS}, s{S_VPF} offen offset:1024 sc1")
    a(f"s_add_u32 s{S_KPF}, s{S_KPF}, {32*8192}")
    a(f"s_add_u32 s{S_VPF}, s{S_VPF}, {32*8192}")
    idle_a(a, 0)
    for r in range(24): a(f"v_mov_b32 v{V_AQ + r}, 0")
    a(f"s_mov_b32 s{S_MEMRD}, {WS_MEMRING - MEMB}")
    a("s_waitcnt vmcnt(0)")
    a(f"v_cndmask_b32 v{V_GATH}, v{V_ONES}, 0, s[{S_L0}:{S_L0+1}]")
    a(f"s_cmp_ge_u32 s{S_WV}, 2")
    a(f"s_cselect_b32 s{S_FLP}, {OOB}, s{S_FLP}")
    for r in range(4): a(f"v_mov_b32 v{V_M + 8 + r}, 0")
    for j in range(2): a(f"ds_write_b128 v{V_P1}, {vr(V_M + 8, 4)} offset:{QB - MEMB + 1024*j}")
    a("s_waitcnt vmcnt(0) lgkmcnt(0)")
    for r in range(8): a(f"v_min_u32 v{V_M+r}, -2, v{V_M+r}")
    if opt.get('time'):
        a("s_mov_b32 s74, 0"); a("s_mov_b32 s73, -1"); a("s_mov_b32 s72, 0")
        a(f"s_memtime s[84:85]")
        a(f"s_memrealtime s[88:89]")
        a("s_waitcnt lgkmcnt(0)")
    if opt.get('probe_t'):
        a("s_memrealtime s[88:89]"); a("s_memtime s[84:85]"); a("s_waitcnt lgkmcnt(0)")
    if opt.get('dbgtime'): dbg_stamp(a, 13, vt=V_M + 30); a("s_waitcnt vmcnt(0)")
    a(f"s_cmp_eq_u32 s{S_MODE}, {opt.get('fastmode', 1)}")
    a("s_cbranch_scc0 L_S0_entry")
    a("s_branch L_F0_entry")
    for tag, st in (("L_F", ""), ("L_S", "sc1")):
        a(".p2align 8")
        for _ in range(opt.get('shift', 0)): a(".long 0xbf800000")
        h20 = step(a, 0, st, tag + "0", opt)
        h21 = step(a, 1, st, tag + "1", opt)
        a(f"s_branch {tag}0_h1")
        step_tails(a, 0, tag + "0", h20, opt)
        step_tails(a, 1, tag + "1", h21, opt)
    avail_slow(a, "L_ch_av")
    a.label("L_last")
    VXn = V_VX[0]
    h1_issue(a, 0)
    a("s_waitcnt vmcnt(2)")
    for r in range(V_AK + 4, V_AK + 8): a(f"v_mov_b32 v{r}, 0")
    a.label("L_last_h1")
    a("s_waitcnt vmcnt(0) lgkmcnt(0)")
    a(f"ds_write_b128 v{V_P1}, {Mf(0)}")
    a(f"v_max3_u32 v{V_PB+3}, v{V_M+1}, v{V_M+3}, v{V_M+5}")
    a(f"v_max_u32 v{V_PB+3}, v{V_PB+3}, v{V_M+7}")
    a(f"v_cmp_eq_u32 vcc, -1, v{V_PB+3}")
    a(f"ds_write_b128 v{V_P1}, {Mf(1)} offset:1024")
    a("s_cbranch_vccz L_last_ok")
    a("s_mov_b64 exec, vcc")
    h1_issue(a, 0)
    a("s_mov_b64 exec, -1")
    a(f"s_add_u32 s{S_SPIN}, s{S_SPIN}, 1")
    a(f"s_cmp_gt_u32 s{S_SPIN}, {SPIN_LIMIT}")
    a("s_cbranch_scc0 L_last_h1")
    a("s_branch L_abort")
    a.label("L_last_ok")
    mains = []; F = {}
    AK = lambda t: V_AK + 4 * t
    AV = lambda t: V_AV + 4 * t
    for s_ in range(2):
        for t in range(2): mains.append(smf(AV(t), Mf(s_), vr(Wb(2*s_ + t), 8)))
    for s_ in range(8):
        for t in range(2): mains.append(smf(AK(t), Mf(s_), wk(t, s_)))
    for s_ in (4, 5, 6, 7):
        for t in range(2): mains.append(smf(AV(t), Mf(s_), wv_res(t, s_)))
    for s_ in (2, 3):
        for t in range(2): mains.append(smf(AV(t), Mf(s_), vr(Wb(2*(s_-2) + t), 8)))
    mr = (V_MR1, V_MR2, V_MR3)
    F[3] = ["s_waitcnt lgkmcnt(0)", "s_barrier"]
    for j, s_ in enumerate(range(2, 8)): F.setdefault(3 + j, []).append(f"ds_read_b128 {Mf(s_)}, v{mr[(s_ >> 1) - 1]} offset:{(s_ & 1) * 1024}")
    for j, x in enumerate([x for j in range(4) for x in rd_wv(Wb(j), 2 + (j >> 1), j & 1)]): F.setdefault(10 + j, []).append(x)
    F.setdefault(9, []).append(f"buffer_store_dwordx4 {vr(VXn,4)}, v{V_LA}, {WS}, s{S_EXP} offen sc1")
    F.setdefault(10, []).insert(0, f"s_add_u32 s{S_EXP}, s{S_EXP}, {32*4096}")
    F.setdefault(1, []).append(f"v_mov_b32 v{V_PB}, 62")
    F.setdefault(4, []).append(f"buffer_store_dword v{V_PB}, v{V_GATH}, {WS}, s{S_FLA} offen sc1")
    def fold2(a0, a1, d0, d1):
        return [f"v_add_f32 v{a0}, v{a0}, v{a0+1}", f"v_add_f32 v{a0+2}, v{a0+2}, v{a0+3}", f"v_cvt_pk_bf16_f32 v{d0}, v{a0}, v{a0+2}",
                f"v_add_f32 v{a1}, v{a1}, v{a1+1}", f"v_add_f32 v{a1+2}, v{a1+2}, v{a1+3}", f"v_cvt_pk_bf16_f32 v{d1}, v{a1}, v{a1+2}"]
    for j, x in enumerate(fold2(AK(0), AK(1), V_AK, V_AK + 1)): F.setdefault(22 + j, []).append(x)
    interleave(a, mains, F)
    for x in fold2(AV(0), AV(1), V_AK + 2, V_AK + 3): a(x)
    a(f"buffer_store_dwordx4 {vr(V_AK,4)}, v{V_LA}, {WS}, s{S_EXP} offen {opt.get('lastst', 'sc1')}")
    if opt.get('probe_t'):
        a("s_memrealtime s[90:91]"); a("s_waitcnt lgkmcnt(0)")
        k = opt['probe_t']
        if k == 'p': a("s_sub_u32 s42, s88, s92"); a("s_lshl_b32 s42, s42, 2")
        elif k == 'l': a("s_sub_u32 s42, s90, s88")
        elif k == 'y': a("s_memtime s[42:43]"); a("s_waitcnt lgkmcnt(0)"); a("s_sub_u32 s42, s42, s84"); a("s_lshr_b32 s42, s42, 5")
        elif k == 's': a("s_sub_u32 s42, s82, s80"); a("s_lshr_b32 s42, s42, 5"); a(f"s_cmp_eq_u32 s{S_WV}, 0"); a("s_cselect_b32 s42, 0, s42")
        else: a("s_mov_b32 s42, 5000")
        a.label("L_probe")
        a("s_sleep 1"); a("s_memrealtime s[44:45]"); a("s_waitcnt lgkmcnt(0)"); a("s_sub_u32 s44, s44, s90"); a("s_cmp_lt_u32 s44, s42"); a("s_cbranch_scc1 L_probe")
    if opt.get('lastwb'): a("s_waitcnt vmcnt(0)"); a("buffer_wbl2 sc1")
    if opt.get('drain'):
        a("s_memtime s[42:43]"); a("s_waitcnt lgkmcnt(0) vmcnt(0)"); a("s_memtime s[44:45]"); a("s_waitcnt lgkmcnt(0)"); a(f"s_sub_u32 s{S_ACC+2}, s44, s42")
    a("s_nop 1")
    if opt.get('wb'):
        a(f"s_or_b32 s{S_T0}, s{S_H}, s{S_WV}")
        a(f"s_cmp_lg_u32 s{S_T0}, 0")
        a("s_cbranch_scc1 L_ch_nowb")
        a("buffer_wbl2 sc1")
        a.label("L_ch_nowb")
    if opt.get('dbgtime'): dbg_stamp(a, 14, vt=V_M + 30)
    if opt.get('time'):
        a(f"s_memtime s[86:87]")
        a(f"s_memrealtime s[90:91]")
        a("s_waitcnt lgkmcnt(0)")
        a("s_sub_u32 s86, s86, s84")
        a(f"s_lshl_b32 s{S_T0}, s{S_H}, 2")
        a(f"s_add_u32 s{S_T0}, s{S_T0}, s{S_WV}")
        a(f"s_lshl_b32 s{S_T0}, s{S_T0}, 5")
        a(f"s_add_u32 s{S_T0}, s{S_T0}, {WS_STAMP}")
        for i, s in enumerate((86, S_ACC, S_ACC + 1, S_ACC + 2, 88, 90, 92, S_ACC + 3)):
            a(f"v_mov_b32 v{V_M+i}, s{s}")
        a(f"buffer_store_dwordx4 {vr(V_M,4)}, off, {WS}, s{S_T0}")
        a(f"buffer_store_dwordx4 {vr(V_M+4,4)}, off, {WS}, s{S_T0} offset:16")
        a(f"s_add_u32 s{S_T0}, s{S_T0}, 0x8000")
        if opt.get('trace'):
            a("s_mov_b32 s40, 0"); a("s_mov_b32 s41, 0"); a("s_mov_b32 s46, 0")
            a.label("L_cal")
            a("s_memtime s[42:43]"); a("s_memrealtime s[44:45]"); a("s_waitcnt lgkmcnt(0)")
            a("s_sub_u32 s42, s42, s84"); a("s_sub_u32 s44, s44, s88")
            a("s_add_u32 s40, s40, s42"); a("s_add_u32 s41, s41, s44")
            a("s_mul_i32 s47, s46, 7"); a("s_and_b32 s47, s47, 3")
            a.label("L_cal2")
            a("s_sub_u32 s47, s47, 1"); a("s_cbranch_scc0 L_cal2")
            a("s_add_u32 s46, s46, 1"); a("s_cmp_lt_u32 s46, 256"); a("s_cbranch_scc1 L_cal")
            a(f"v_mov_b32 v{V_M+20}, s40"); a(f"v_mov_b32 v{V_M+21}, s41")
            a(f"s_add_u32 s{S_T1}, s{S_T0}, 4096")
            a(f"buffer_store_dwordx2 {vr(V_M+20,2)}, off, {WS}, s{S_T1}")
        a("s_mov_b32 s75, s84")
        if not opt.get('trace') and not opt.get('stamp'): a("s_sub_u32 s68, s82, s80")
        for i in range(8): a(f"v_mov_b32 v{V_M+8+i}, s{68+i}")
        a(f"buffer_store_dwordx4 {vr(V_M+8,4)}, off, {WS}, s{S_T0}")
        a(f"buffer_store_dwordx4 {vr(V_M+12,4)}, off, {WS}, s{S_T0} offset:16")
    a("s_endpgm")
```

```python
from common import *

MEMB = 131072
KB = (139264, 147456)
QB = 155648
KKB = QB + 4096
LDS_BYTES = 163840

V_LA, V_P1, V_MR1, V_MR2, V_MR3, V_QW, V_L4, V_QKR, V_WVO, V_OW, V_GATH, V_PST, V_PUB, V_IDX, V_SELX, V_FL = range(16)
V_ONES = 16
V_PB = 20
V_M = 24
V_AQ, V_AK, V_AV = 56, 64, 72
V_W = 80
V_VX = (112, 120)
WQ0, WK0, WV0, WO0 = 256, 384, 128, 192

def wq(t, s): return ur(WQ0 + (s * 2 + t) * 8, 8)
def wk(t, s): return ur(WK0 + (s * 2 + t) * 8, 8)
def wv_res(t, s): return ur(WV0 + ((s - 4) * 2 + t) * 8, 8)
def wo_res(t, kbo): return ur(WO0 + (t * 2 + kbo) * 8, 8)
def Mf(s): return vr(V_M + 4 * s, 4)
def Wb(j): return V_W + 8 * j

S_STEP = 30
S_MEMRD = 31
S_PST0, S_PST1 = 32, 33
S_INB0, S_INB1 = 34, 35
S_PUBN = 36
S_PUBC = 37
S_PH = 38
S_KPF, S_VPF = 39, 40
S_EXP = 41
S_FLP = 42
S_FLA = 43
S_AVAIL = 44
S_C = 45
S_LLO, S_LRG = 46, 47
S_SELM = 48
S_KM0 = 56
S_HB_PST, S_HB_INB, S_HB_PUB = 58, 59, 60
S_KD = 61
S_KE, S_KE2 = 62, 64
S_HST, S_HLD = 23, 29
S_HST2, S_HLD2 = 64, 65
S_L0 = 66
S_TS = 76
S_ACC = 94

def smf(d, A, B): return f"v_smfmac_f32_16x16x64_bf16 {vr(d,4)}, {A}, {B}, v{V_IDX}"
def mf32(d, A, B, C): return f"v_mfma_f32_16x16x32_bf16 {vr(d,4)}, {A}, {B}, {C}"
def mf16(d, A, B, C): return f"v_mfma_f32_16x16x16_bf16 {vr(d,4)}, {A}, {B}, {C}"

V_TID = 123
HINT_STRIDE = [4, 8, 0]
S_KA = 40

def setup_lanes(a):
    L, T = 127, 126
    a(f"v_lshlrev_b32 v{V_LA}, 4, v{L}")
    a(f"s_lshl_b32 s{S_T0}, s{S_WV}, 13")
    a(f"v_add_u32 v{V_WVO}, s{S_T0}, v{V_LA}")
    a(f"v_add_u32 v{V_LA}, {MEMB}, v{V_LA}")
    for j, r in enumerate((V_P1, V_MR1, V_MR2, V_MR3)):
        a(f"s_xor_b32 s{S_T0}, s{S_WV}, {j}")
        a(f"s_lshl_b32 s{S_T0}, s{S_T0}, 11")
        a(f"v_add_u32 v{r}, s{S_T0}, v{V_LA}")
    bitpat(a, V_QW, L, [(5, 1, 8), (0, 15, 1)], T)
    a(f"v_and_b32 v{V_QW}, 15, v{V_QW}")
    a(f"v_and_b32 v{T}, 48, v{L}")
    a(f"v_add_u32 v{V_QW}, v{V_QW}, v{T}")
    a(f"v_lshlrev_b32 v{V_QW}, 3, v{V_QW}")
    a(f"s_lshl_b32 s{S_T0}, s{S_WV}, 10")
    a(f"s_add_u32 s{S_T0}, s{S_T0}, {QB}")
    a(f"v_add_u32 v{V_QW}, s{S_T0}, v{V_QW}")
    bitpat(a, V_QKR, L, [(1, 1, 8), (2, 15, 1)], T)
    a(f"v_and_b32 v{V_QKR}, 15, v{V_QKR}")
    a(f"v_and_b32 v{T}, 3, v{L}")
    a(f"v_lshl_add_u32 v{V_QKR}, v{T}, 4, v{V_QKR}")
    a(f"v_lshlrev_b32 v{V_QKR}, 3, v{V_QKR}")
    a(f"v_add_u32 v{V_QKR}, {QB}, v{V_QKR}")
    bitpat(a, V_OW, L, [(4, 3, 256), (2, 3, 64), (0, 1, 32), (1, 1, 4096)], T, MEMB)
    a(f"s_lshr_b32 s{S_T0}, s{S_WV}, 1")
    a(f"s_lshl_b32 s{S_T0}, s{S_T0}, 10")
    a(f"s_and_b32 s{S_T1}, s{S_WV}, 1")
    a(f"s_lshl_b32 s{S_T1}, s{S_T1}, 4")
    a(f"s_add_u32 s{S_T0}, s{S_T0}, s{S_T1}")
    a(f"v_add_u32 v{V_OW}, s{S_T0}, v{V_OW}")
    bitpat(a, T, L, [(1, 1, 16)], T)
    a(f"v_xor_b32 v{V_OW}, v{V_OW}, v{T}")
    HS = HINT_STRIDE[0]
    bitpat(a, V_L4, L, [(0, 31, HS)], T)
    NR = HINT_STRIDE[1]
    nb = NR.bit_length() - 1
    fb = (HS // 4).bit_length() - 1 if HINT_STRIDE[2] else 0
    bitpat(a, V_GATH, L, ([(0, (1 << fb) - 1, 4)] if fb else []) + [(fb, NR - 1, 32 * HS)] + [(b, 1, OOB) for b in range(nb + fb, 6)], T)
    a(f"s_cmp_eq_u32 s{S_WV}, 3")
    a(f"s_cselect_b64 vcc, -1, 0")
    a(f"v_cndmask_b32 v{V_L4}, v{V_L4}, v{V_GATH}, vcc")
    a(f"s_mul_i32 s{S_T0}, s{S_H}, {HS}")
    a(f"s_add_u32 s{S_T0}, s{S_T0}, {WS_HINT}")
    a(f"s_cmp_eq_u32 s{S_WV}, 3")
    a(f"s_cselect_b32 s{S_HST}, s{S_T0}, {OOB}")
    a(f"s_and_b32 s{S_T0}, s{S_H}, {NR - 1}")
    a(f"s_mul_i32 s{S_T0}, s{S_T0}, {32 * HS}")
    a(f"s_add_u32 s{S_T0}, s{S_T0}, {WS_HINT}")
    a(f"s_cmp_eq_u32 s{S_WV}, 0")
    a(f"s_cselect_b32 s{S_HLD}, s{S_T0}, {OOB}")
    bitpat(a, V_GATH, L, [(1, 7, 1024), (4, 3, 32), (0, 1, 16)], T)
    a(f"s_lshl_b32 s{S_T0}, s{S_WV}, 8")
    a(f"v_add_u32 v{V_GATH}, s{S_T0}, v{V_GATH}")
    bitpat(a, V_PST, L, [(4, 3, 8192), (0, 15, 16)], T)
    a(f"s_lshl_b32 s{S_T0}, s{S_WV}, 16")
    a(f"v_add_u32 v{V_PST}, s{S_T0}, v{V_PST}")
    bitpat(a, V_PUB, L, [(1, 3, 256), (0, 1, 32), (5, 1, 16), (4, 1, 8), (3, 1, OOB)], T)
    a(f"v_and_b32 v{T}, 1, v{L}")
    a(f"v_cmp_eq_u32 vcc, 1, v{T}")
    a(f"v_mov_b32 v{V_IDX}, 0x44444444")
    a(f"v_mov_b32 v{T}, 0xeeeeeeee")
    a(f"v_cndmask_b32 v{V_IDX}, v{V_IDX}, v{T}, vcc")
    a(f"v_mov_b32 v{V_SELX}, 0x3f80")
    a(f"v_mov_b32 v{T}, 0x3f800000")
    a(f"v_cndmask_b32 v{V_SELX}, v{V_SELX}, v{T}, vcc")
    a(f"v_bfe_u32 v{T}, v{L}, 1, 3")
    for r in range(4):
        a(f"v_cmp_eq_u32 s[{S_SELM+2*r}:{S_SELM+2*r+1}], {r}, v{T}")
    a(f"v_cmp_eq_u32 s[{S_L0}:{S_L0+1}], 64, v{V_TID}")
    for r in range(4):
        a(f"v_mov_b32 v{V_ONES+r}, 0x3f803f80")
        a(f"v_mov_b32 v{V_PB+r}, 0")

PSTAMP = [-1]
WPOL = ['']
AHEAD = [2]
DEPTH0 = [3]
SFX = ['']
CODEPF = [0]
S_DQ = (68, 72, 76, 80)
V_SQ, V_SO = 125, 124
ROUNDS = []
def set_rounds(order, vfirst=1):
    q = [('q', s) for s in (0, 1, 4, 5)]; k = [('k', s) for s in (0, 1, 4, 5)]; o = [('o', (0, 0)), ('o', (0, 1))]; v = [('v', 4), ('v', 5)]
    head = {0: q + k + v + o, 1: o + q + k + v, 2: [q[0], o[0]] + q[1:] + [k[0], o[1]] + k[1:] + v, 3: o + k + v + q, 4: o + q[:2] + k + q[2:] + v, 5: k + q + v + o, 6: o + v + k + q, 7: o + q + v + k}[order]
    lo, lv = [('o', (1, 0)), ('o', (1, 1))], [('v', 0), ('v', 1)]
    ROUNDS[:] = head + (lv + lo if vfirst else lo + lv)

def src_pattern(a, dst, L, T, bits, pitch):
    bitpat(a, dst, L, [(3, 1, pitch << bits[0]), (4, 1, pitch << bits[1]), (5, 1, pitch << bits[2]), (0, 1, 16)], T)
    for sh, bit in ((2, 4), (4, 2)):
        a(f"v_lshrrev_b32 v{T}, {sh}, v{L}")
        a(f"v_xor_b32 v{T}, v{T}, v{L}")
        a(f"v_and_b32 v{T}, {bit}, v{T}")
        a(f"v_lshl_add_u32 v{dst}, v{T}, 4, v{dst}")

class VmQueue:
    def __init__(self): self.q = []
    def add(self, tag, n=1): self.q += [tag] * n
    def wait(self, a, tag):
        last = max(i for i, t in enumerate(self.q) if t == tag)
        a(f"s_waitcnt vmcnt({len(self.q) - 1 - last})")
        self.q = self.q[last + 1:]
    def done(self, tag): return tag not in self.q

def issue_round(a, i, vq):
    kind, p = ROUNDS[i]
    if kind != 'o':
        a(f"s_xor_b32 s{S_T0}, s{S_WV}, {p >> 1}")
        a(f"s_lshl_b32 s{S_T0}, s{S_T0}, 20")
        a(f"s_add_u32 s{S_T0}, s{S_T0}, s{S_T2}")
        if p & 1: a(f"s_add_u32 s{S_T0}, s{S_T0}, {64 * 8192}")
        rows, pitch, v = (16, 2, 32), 8192, V_SQ
    else:
        a(f"s_lshl_b32 s{S_T0}, s{S_H}, 17")
        a(f"s_lshl_b32 s{S_T1}, s{S_WV}, 8")
        a(f"s_add_u32 s{S_T0}, s{S_T0}, s{S_T1}")
        a(f"s_add_u32 s{S_T0}, s{S_T0}, {p[1] * 65536 + p[0] * 128}")
        rows, pitch, v = (4, 2, 8), 1024, V_SO
    d = S_DQ['qkvo'.index(kind)]
    prev = 0
    for u in range(8):
        off = sum(rows[b] for b in range(3) if u >> b & 1) * pitch - (u & 3) * 1024
        if u & 3 == 0: a(f"s_add_u32 m0, s{S_T3}, {(i & 3) * 32768 + (u >> 2) * 4096}")
        if off != prev: a(f"s_add_u32 s{S_T0}, s{S_T0}, {(off - prev) & 0xffffffff:#x}")
        prev = off
        a(f"buffer_load_dwordx4 v{v}, s[{d}:{d+3}], s{S_T0} offen offset:{(u & 3)*1024} {WPOL[0]} lds")
    vq.add(('w', i), 8)

def start_weights(a, vq):
    L, T = 127, 126
    a(f"v_mov_b32 v{V_TID}, v0")
    a(f"v_and_b32 v{L}, 63, v0")
    a(f"v_lshrrev_b32 v{T}, 6, v0")
    a(f"v_readfirstlane_b32 s{S_WV}, v{T}")
    if CODEPF[0]:
        a("s_getpc_b64 s[8:9]")
        a.label("L_pc")
        a("s_and_b32 s9, s9, 0xffff")
        a("s_mov_b32 s10, L_code_end-L_pc")
        a("s_mov_b32 s11, 0x20000")
        a(f"s_lshl_b32 s{S_T0}, s{S_H}, 12")
        a(f"v_lshlrev_b32 v{T}, 4, v0")
        a(f"buffer_load_dwordx4 v[24:27], v{T}, s[8:11], s{S_T0} offen")
        vq.add('code')
    src_pattern(a, V_SQ, L, T, (0, 3, 2), 8192)
    lazy = all(k == 'q' for k, _ in ROUNDS[:DEPTH0[0]])
    if not lazy: src_pattern(a, V_SO, L, T, (0, 5, 4), 1024)
    a(f"s_lshl_b32 s{S_T3}, s{S_WV}, 13")
    a(f"s_lshr_b32 s{S_T1}, s{S_WV}, 1")
    a(f"s_lshl_b32 s{S_T1}, s{S_T1}, 7")
    a(f"s_lshl_b32 s{S_T2}, s{S_H}, 8")
    a(f"s_add_u32 s{S_T2}, s{S_T2}, s{S_T1}")
    a("s_waitcnt lgkmcnt(0)")
    def desc(base, src, size):
        a(f"s_mov_b32 s{base}, s{src}")
        a(f"s_and_b32 s{base+1}, s{src+1}, 0xffff")
        a(f"s_mov_b32 s{base+2}, {size:#x}")
        a(f"s_mov_b32 s{base+3}, 0x20000")
    desc(S_D, S_KA + 8, 256)
    register_wg(a, V_W, "L_ch_noreg", barrier=False)
    for j, d in enumerate(S_DQ):
        desc(d, S_KA + 2 * j, 0x400000)
        if lazy and j == 0:
            for i in range(DEPTH0[0]): issue_round(a, i, vq)
    if not lazy:
        for i in range(DEPTH0[0]): issue_round(a, i, vq)
    else: src_pattern(a, V_SO, L, T, (0, 5, 4), 1024)
    desc(S_WS, S_KA + 10, WS_SIZE)

def load_weights(a, hooks, vq, depth=3):
    L, T = 127, 126
    TQ, TO = V_AQ, V_AQ + 4
    TMP = V_W
    S_CB = 64
    a(f"s_mov_b32 s{S_CB}, s{S_T2}")
    bitpat(a, TO, L, [(5, 1, 1024), (4, 1, 512 + 32), (3, 1, 256 + 64), (2, 1, 128), (0, 3, 8)], T)
    a(f"s_lshl_b32 s{S_T0}, s{S_WV}, 13")
    a(f"v_add_u32 v{TO}, s{S_T0}, v{TO}")
    for j in range(1, 4): a(f"v_xor_b32 v{TO + j}, {32 * j}, v{TO}")
    a(f"s_and_b32 s{S_T0}, s{S_WV}, 1")
    a(f"s_lshl_b32 s{S_T0}, s{S_T0}, 6")
    a(f"v_xor_b32 v{TQ}, s{S_T0}, v{TO}")
    a(f"v_xor_b32 v{TQ+1}, 32, v{TQ}")
    a(f"v_xor_b32 v{TQ+2}, 8192, v{TQ}")
    a(f"v_xor_b32 v{TQ+3}, 8192, v{TQ+1}")
    for i in range(DEPTH0[0], depth):
        a(f"s_mov_b32 s{S_T2}, s{S_CB}")
        a(f"s_lshl_b32 s{S_T3}, s{S_WV}, 13")
        issue_round(a, i, vq)
    for i in range(16):
        kind, p = ROUNDS[i]
        vq.wait(a, ('w', i))
        a("s_barrier")
        if i + depth < 16:
            a(f"s_mov_b32 s{S_T2}, s{S_CB}")
            a(f"s_lshl_b32 s{S_T3}, s{S_WV}, 13")
            issue_round(a, i + depth, vq)
        if i in hooks: hooks[i](a)
        if i == PSTAMP[0]:
            a("s_memrealtime s[62:63]"); a("s_waitcnt lgkmcnt(0)"); a(f"s_sub_u32 s{S_ACC}, s62, s92"); a(f"s_lshl_b32 s{S_ACC}, s{S_ACC}, 2")
        if i and i % 2 == 0:
            for j in range(8): a(f"v_xor_b32 v{TQ + j}, 0x10000, v{TQ + j}")
        for j in range(2):
            for t in range(2):
                if i >= 12: base = TMP + 16 * j + 8 * t
                elif kind == 'q': base = WQ0 + ((p + 2 * j) * 2 + t) * 8
                elif kind == 'k': base = WK0 + ((p + 2 * j) * 2 + t) * 8
                elif kind == 'v': base = WV0 + ((p + 2 * j - 4) * 2 + t) * 8
                else: base = WO0 + ((2 * j + t) * 2 + p[1]) * 8
                ad = (TO if kind == 'o' else TQ) + 2 * j + t
                for pr in range(4):
                    a(f"ds_read_b64_tr_b16 {ur(base + 2*pr, 2)}, v{ad} offset:{(i & 1)*32768 + (pr >> 1)*4096 + (pr & 1)*2048}")
            a("s_waitcnt lgkmcnt(0)")
        if i >= 12:
            a("s_barrier")
            if i == 14: a(f"v_xor_b32 v{V_WVO}, 0x10000, v{V_WVO}")
            for q in range(8):
                a(f"ds_write_b128 v{V_WVO}, {vr(TMP + 4*q, 4)} offset:{(i & 1)*32768 + q*1024}")
            a("s_waitcnt lgkmcnt(0)")
    if ROUNDS[15][0] == 'o': a(f"v_xor_b32 v{V_WVO}, 0x10000, v{V_WVO}")

def lds_wv(s, t, h): return (s & 1) * 32768 + (s >> 1) * 4096 + t * 2048 + h * 1024
def lds_wo(t, kbo, h): return kbo * 32768 + ((t >> 1) - 2) * 4096 + (t & 1) * 2048 + h * 1024
FLIP = f"v_xor_b32 v{V_WVO}, 0x10000, v{V_WVO}"
def rd_wv(dst, s, t): return [f"ds_read_b128 {vr(dst + 4*h, 4)}, v{V_WVO} offset:{lds_wv(s, t, h)}" for h in range(2)]
def rd_wo(dst, t, kbo): return [f"ds_read_b128 {vr(dst + 4*h, 4)}, v{V_WVO} offset:{lds_wo(t, kbo, h)}" for h in range(2)]

def slot_lines():
    return [
        f"s_and_b32 s{S_T0}, s{S_STEP}, 3",
        f"s_lshl_b32 s{S_T1}, s{S_T0}, 13",
        f"s_add_u32 s{S_PUBC}, s{S_T1}, s{S_HB_PUB}",
        f"s_and_b32 s{S_T0}, s{S_T0}, 1",
        f"s_lshl_b32 s{S_T1}, s{S_T0}, 18",
        f"s_add_u32 s{S_PST0}, s{S_T1}, s{S_HB_PST}",
        f"s_add_u32 s{S_PST1}, s{S_PST0}, 32768",
        f"s_add_u32 s{S_INB0}, s{S_T1}, s{S_HB_INB}",
        f"s_add_u32 s{S_INB1}, s{S_INB0}, 4096",
        f"s_bfe_u32 s{S_PH}, s{S_STEP}, 0x10001",
        f"s_add_u32 s{S_T0}, s{S_STEP}, 1",
        f"s_and_b32 s{S_T0}, s{S_T0}, 3",
        f"s_lshl_b32 s{S_T0}, s{S_T0}, 13",
        f"s_add_u32 s{S_PUBN}, s{S_T0}, s{S_HB_PUB}",
        f"s_add_u32 s{S_MEMRD}, s{S_T0}, {WS_MEMRING - MEMB}"]

def idle_a(a, par_next):
    wv_preload(a)
    copy_export(a, par_next)

def wv_preload(a):
    for j in range(4):
        for x in rd_wv(Wb(j), j >> 1, j & 1): a(x)

def copy_export(a, par_next):
    vn = V_VX[1 - par_next]
    for r in range(4): a(f"v_mov_b32 v{vn + r}, v{V_AK + r}")

ZW = [0]
def zero_regs(a, regs):
    if ZW[0]:
        for r in regs[::2]: a(f"v_mov_b64 {vr(r, 2)}, 0")
    else:
        for r in regs: a(f"v_mov_b32 v{r}, 0")

def zero_b(a):
    zero_regs(a, list(range(V_AQ + 4, V_AQ + 8)) + list(range(V_AK, V_AK + 4)))

def idle_b(a, par_next, tag, young):
    zero_b(a)
    a(f"s_waitcnt vmcnt({young})")
    avail_check(a, tag)

def idle_c1(a):
    zero_regs(a, list(range(V_AQ, V_AQ + 4)) + list(range(V_AV, V_AV + 8)))

def idle_c(a, par_next, done=False):
    if not done: idle_c1(a)
    a("s_waitcnt vmcnt(2)")
    for r in range(V_AK + 4, V_AK + 8): a(f"v_mov_b32 v{r}, 0")

def avail_check(a, tag):
    a(f"v_readfirstlane_b32 s{S_AVAIL}, v{V_FL}")
    a(f"s_lshr_b32 s{S_T0}, s{S_AVAIL}, 16")
    a(f"s_and_b32 s{S_AVAIL}, s{S_AVAIL}, 0xffff")
    a(f"s_min_u32 s{S_AVAIL}, s{S_AVAIL}, s{S_T0}")
    a(f"s_add_u32 s{S_T0}, s{S_STEP}, {AHEAD[0]}")
    a(f"s_min_u32 s{S_T0}, s{S_T0}, 64")
    a(f"s_cmp_ge_u32 s{S_AVAIL}, s{S_T0}")
    a(f"s_cbranch_scc0 {tag}_slow")
    a.label(f"{tag}_ok")

def avail_slow(a, tag):
    a.label(f"{tag}_slow")
    a(f"buffer_load_dword v{V_FL}, off, s[{S_WS}:{S_WS+3}], s{S_FLP} sc1")
    a(f"s_add_u32 s{S_SPIN}, s{S_SPIN}, 1")
    a(f"s_cmp_gt_u32 s{S_SPIN}, {SPIN_LIMIT}")
    a("s_cbranch_scc1 L_abort")
    a("s_waitcnt vmcnt(0)")
    a(f"v_readfirstlane_b32 s{S_AVAIL}, v{V_FL}")
    a(f"s_lshr_b32 s{S_T1}, s{S_AVAIL}, 16")
    a(f"s_and_b32 s{S_AVAIL}, s{S_AVAIL}, 0xffff")
    a(f"s_min_u32 s{S_AVAIL}, s{S_AVAIL}, s{S_T1}")
    a(f"s_cmp_ge_u32 s{S_AVAIL}, s{S_T0}")
    a(f"s_cbranch_scc0 {tag}_slow")
    a(f"s_branch {tag}_ok")

def step(a, par, st, tag, opt, nxt=None):
    WS = f"s[{S_WS}:{S_WS+3}]"
    VXc, VXn = V_VX[par], V_VX[1 - par]
    Kc = KB[par] - MEMB
    T0 = V_PB + 3
    stamp = opt.get('stamp') or (None, None)
    trace = opt.get('trace', [])
    def st_list(name):
        ser = opt.get('series')
        ser = [ser] if isinstance(ser, str) else (ser or [])
        if name in ser:
            adj = -4 if name in ('pst', 'oex', 'bar4x') else 0
            return [f"s_memtime s[{S_TS}:{S_TS+1}]", f"s_lshl_b32 s{S_TS+2}, s{S_STEP}, 2", f"s_lshl_b32 s{S_TS+3}, s{S_H}, 8", f"s_add_u32 s{S_TS+2}, s{S_TS+2}, s{S_TS+3}",
                    f"s_add_u32 s{S_TS+2}, s{S_TS+2}, {WS_STAMP + 0x30000 + 0x2000 * ser.index(name) + adj}", "s_waitcnt lgkmcnt(0)", f"v_mov_b32 v{V_FL}x, s{S_TS}".replace(f"v{V_FL}x", f"v{V_PB if name in ('bar1', 'bar2') else V_VX[par] + 7 if name == 'pst' else V_AQ + 2}"),
                    f"buffer_store_dword v{V_PB if name in ('bar1', 'bar2') else V_VX[par] + 7 if name == 'pst' else V_AQ + 2}, off, {WS}, s{S_TS+2}"]
        if name in trace:
            k = 68 + trace.index(name)
            return [f"s_memtime s[{S_TS}:{S_TS+1}]", "s_waitcnt lgkmcnt(0)", f"s_cmp_eq_u32 s{S_STEP}, {opt.get('tstep', 20) + (1 if name in ('join', 'pub', 'h2iss', 'h1iss', 'pst', 'oex') else 0) + (1 if name == 'entry' and opt.get('nextentry') else 0)}",
                    f"s_cselect_b32 s{k}, s{S_TS}, s{k}"]
        if stamp[0] == name:
            return [f"s_memtime s[{S_TS}:{S_TS+1}]", "s_waitcnt lgkmcnt(0)"]
        if stamp[1] == name:
            return [f"s_memtime s[{S_TS+2}:{S_TS+3}]", "s_waitcnt lgkmcnt(0)", f"s_sub_u32 s{S_TS+2}, s{S_TS+2}, s{S_TS}",
                    f"s_cmp_lt_u32 s{S_STEP}, 2", f"s_cselect_b32 s{S_TS+2}, 3000, s{S_TS+2}", f"s_cselect_b32 s{S_TS+3}, 3000, 0", f"s_sub_u32 s{S_ACC}, s{S_ACC}, s{S_TS+3}",
                    f"s_add_u32 s{S_ACC}, s{S_ACC}, s{S_TS+2}", f"s_max_u32 s74, s74, s{S_TS+2}", f"s_min_u32 s73, s73, s{S_TS+2}",
                    f"s_cmp_gt_u32 s{S_TS+2}, {opt.get('thr', 100000)}", "s_addc_u32 s72, s72, 0"]
        return []
    def st_at(name):
        for x in st_list(name): a(x)
    sg = opt.get('sg', 0)
    a.label(f"{tag}_h1")
    a(f"s_waitcnt vmcnt({1 if sg else 0})")
    a.label(f"{tag}_entry")
    st_at('entry')
    M = V_M
    if opt.get('w0', 1): a(f"ds_write_b128 v{V_P1}, {Mf(0)}")
    if not sg:
        a(f"v_max3_u32 v{T0}, v{M+1}, v{M+3}, v{M+5}")
        a(f"v_max_u32 v{T0}, v{T0}, v{M+7}")
        a(f"v_cmp_eq_u32 vcc, -1, v{T0}")
    elif opt.get('sg2'):
        a(f"v_max_u32 v{T0}, v{M+1}, v{M+3}")
    a.label(f"{tag}_entry2")
    mains = []; F = {}
    nobg = opt.get('nobg', '')
    def add(i, *xs): F.setdefault(i, []).extend(xs)
    AQ = lambda t: V_AQ + 4 * t
    AK = lambda t: V_AK + 4 * t
    AV = lambda t: V_AV + 4 * t
    if not sg:
        for s in range(2):
            for t in range(2): mains.append(smf(AQ(t), Mf(s), wq(t, s)))
        for s in range(2):
            for t in range(2): mains.append(smf(AK(t), Mf(s), wk(t, s)))
        for s in range(2):
            for t in range(2): mains.append(smf(AV(t), Mf(s), vr(Wb(2*s + t), 8)))
        add(1, f"s_cbranch_vccnz {tag}_h1retry")
        if not opt.get('w0', 1): add(1, f"ds_write_b128 v{V_P1}, {Mf(0)}")
        add(opt.get('w1', 2), f"ds_write_b128 v{V_P1}, {Mf(1)} offset:1024")
    else:
        for s in range(2):
            for t in range(2): mains.append(smf(AQ(t), Mf(s), wq(t, s)))
            for t in range(2): mains.append(smf(AK(t), Mf(s), wk(t, s)))
            for t in range(2): mains.append(smf(AV(t), Mf(s), vr(Wb(2*s + t), 8)))
        g = sg
        if not opt.get('sg2'): add(0, f"v_max_u32 v{T0}, v{M+1}, v{M+3}")
        add(g, "s_waitcnt vmcnt(0)", f"ds_write_b128 v{V_P1}, {Mf(1)} offset:1024", f"v_max3_u32 v{T0}, v{T0}, v{M+5}, v{M+7}")
        add(g + 1, f"v_cmp_eq_u32 vcc, -1, v{T0}")
        add(g + 3, f"s_cbranch_vccnz {tag}_h1retry")
    B1 = opt.get('b1', 6)
    add(B1, "s_waitcnt lgkmcnt(0)", *st_list('prebar1'), "s_barrier", *st_list('bar1'))
    mr = (V_MR1, V_MR2, V_MR3)
    for j, s in enumerate(range(2, 8)):
        add(B1 + j, f"ds_read_b128 {Mf(s)}, v{mr[(s >> 1) - 1]} offset:{(s & 1) * 1024}")
    for s in range(2, 8):
        for t in range(2): mains.append(smf(AQ(t), Mf(s), wq(t, s)))
    wvr = [x for j in range(4) for x in rd_wv(Wb(j), 2 + (j >> 1), j & 1)]
    for i, x in enumerate(wvr): add(14 + i, x)
    for s in range(2, 4):
        for t in range(2): mains.append(smf(AV(t), Mf(s), vr(Wb(2*(s-2) + t), 8)))
    for s in range(2, 8):
        for t in range(2): mains.append(smf(AK(t), Mf(s), wk(t, s)))
    ex4 = [f"buffer_store_dwordx4 {vr(VXn,4)}, v{V_LA}, {WS}, s{S_EXP} offen sc1"]
    bg = [f"buffer_load_dwordx4 v{V_P1}, {WS}, s{S_KPF} offen sc1 lds",
          f"buffer_load_dwordx4 v{V_P1}, {WS}, s{S_KPF} offen offset:1024 sc1 lds",
          f"buffer_load_dwordx4 {vr(VXn+4,4)}, v{V_P1}, {WS}, s{S_VPF} offen offset:1024 sc1",
          f"buffer_load_dwordx4 {vr(VXn,4)}, v{V_P1}, {WS}, s{S_VPF} offen sc1",
          f"buffer_load_dword v{V_FL}, off, {WS}, s{S_FLP} sc1"]
    tpos = opt.get('tpos')
    if tpos:
        add(tpos[0] - 1, f"s_add_u32 s{S_KD}, s{S_KPF}, {32*8192}")
        add(tpos[0], f"buffer_load_dwordx4 {vr(VXn+4,4)}, v{V_P1}, {WS}, s{S_KD} offen sc1", "#forget")
        add(tpos[1], f"buffer_load_dwordx4 {vr(VXn+4,4)}, v{V_P1}, {WS}, s{S_KD} offen offset:1024 sc1", "#forget")
    vpos = opt.get('vpos', (13, 15, 17, 19, 21, 22))
    add(5, f"s_mov_b32 m0, s{S_KM0 + (1 - par)}")
    late_bg = []; bub = {}; nbub = 0
    for x, i in zip(ex4 + bg, vpos):
        if i >= 200: bub.setdefault(i - 200, []).append(x); nbub += 1
        elif i >= 100: late_bg.append((i - 100, x))
        else: add(i, x)
    add(20, f"s_sub_u32 s{S_T2}, s{S_STEP}, 1", f"s_max_i32 s{S_T2}, s{S_T2}, 0")
    add(21, f"v_mov_b32 v{V_PB}, s{S_T2}")
    add(23, f"buffer_store_dword v{V_PB}, v{V_GATH}, {WS}, s{S_FLA} offen sc1")
    sal = slot_lines() + [f"s_add_u32 s{S_EXP}, s{S_EXP}, {32*4096}", f"s_add_u32 s{S_KPF}, s{S_KPF}, {32*8192}", f"s_add_u32 s{S_VPF}, s{S_VPF}, {32*8192}"]
    if opt.get('samekv'): sal = sal[:-2]
    late_sal = []
    if opt.get('sameexp'): sal = [x for x in sal if f"s{S_EXP}," not in x]
    for j, x in enumerate(sal): F.setdefault(23 + j, []).insert(0, x)
    QF, KF = Wb(0), Wb(2)
    KX = [V_M, V_M + 4, Wb(2), Wb(2) + 4, Wb(3), Wb(3) + 4, V_M + 8, V_M + 12]
    qtr = [f"ds_read_b64_tr_b16 {vr(QF + 4*i + 2*hh, 2)}, v{V_QKR} offset:{i*1024 + hh*512}" for i in range(4) for hh in range(2)]
    kxr = [f"ds_read_b128 {vr(KX[2*i + T], 4)}, v{V_LA} offset:{Kc + T*4096 + i*1024}" for i in range(4) for T in range(2)]
    q0, q1 = AQ(0), AQ(1)
    add(22, kxr[0]); add(23, kxr[1])
    add(24, f"v_add_f32 v{q0}, v{q0}, v{q0+1}")
    add(25, f"v_add_f32 v{q0+2}, v{q0+2}, v{q0+3}")
    add(26, f"v_cvt_pk_bf16_f32 v{q0}, v{q0}, v{q0+2}")
    add(27, f"ds_write_b32 v{V_QW}, v{q0}", f"v_add_f32 v{q1}, v{q1}, v{q1+1}")
    add(28, kxr[2], f"v_add_f32 v{q1+2}, v{q1+2}, v{q1+3}")
    add(29, kxr[3], f"v_cvt_pk_bf16_f32 v{q1}, v{q1}, v{q1+2}")
    add(30, f"ds_write_b32 v{V_QW}, v{q1} offset:512")
    add(31, kxr[4]); add(32, kxr[5]); add(33, kxr[6])
    add(33, FLIP)
    B2 = opt.get('b2', 34)
    add(B2, "s_waitcnt lgkmcnt(3)", *st_list('prebar2'), "s_barrier", *st_list('bar2'))
    for j, x in enumerate(qtr): add(B2 + j, x)
    SX = lambda T: V_AQ + 4 * T
    for s in (4,):
        for t in range(2): mains.append(smf(AV(t), Mf(s), wv_res(t, s)))
    for i in range(4):
        for T in range(2):
            mains.append(mf32(SX(T), vr(KX[2*i + T], 4), vr(QF + 4*i, 4), "0" if i == 0 else vr(SX(T), 4)))
    k0, k1 = AK(0), AK(1)
    add(40, f"v_add_f32 v{k0}, v{k0}, v{k0+1}")
    add(41, f"v_add_f32 v{k0+2}, v{k0+2}, v{k0+3}")
    add(42, f"v_cvt_pk_bf16_f32 v{k0}, v{k0}, v{k0+2}", f"v_add_f32 v{k1}, v{k1}, v{k1+1}")
    add(43, f"ds_write_b32 v{V_QW}, v{k0} offset:4096", f"v_add_f32 v{k1+2}, v{k1+2}, v{k1+3}")
    add(44, kxr[7], f"v_cvt_pk_bf16_f32 v{k0+1}, v{k1}, v{k1+2}")
    add(45, f"ds_write_b32 v{V_QW}, v{k0+1} offset:4608")
    B3 = opt.get('b3', 49)
    add(B3, "s_waitcnt lgkmcnt(0)", *st_list('prebar3'), "s_barrier", *st_list('bar3'))
    ktr = [f"ds_read_b64_tr_b16 {vr(KF + 4*i + 2*hh, 2)}, v{V_QKR} offset:{4096 + i*1024 + hh*512}" for i in range(4) for hh in range(2)]
    for s in (5, 6, 7):
        for t in range(2): mains.append(smf(AV(t), Mf(s), wv_res(t, s)))
    for x, i in zip(ktr, opt.get('ktrpos', (49, 49, 50, 51, 52, 53, 54, 55))): add(i, x)
    ex = [f"v_exp_f32 v{V_AQ + r}, v{V_AQ + r}" for r in range(8)]
    for x, i in zip(ex, opt.get('expos', (50, 51, 52, 53, 54, 55, 56, 57))): add(i, x)
    SM = V_AK + 4
    for i in range(4):
        mains.append(mf32(SM, vr(KF + 4*i, 4), vr(QF + 4*i, 4), "0" if i == 0 else vr(SM, 4)))
    PX = V_AQ
    v0_, v1_ = AV(0), AV(1)
    add(58, f"v_cvt_pk_bf16_f32 v{PX}, v{V_AQ}, v{V_AQ+1}", f"v_cvt_pk_bf16_f32 v{PX+1}, v{V_AQ+2}, v{V_AQ+3}")
    add(59, f"v_cvt_pk_bf16_f32 v{PX+2}, v{V_AQ+4}, v{V_AQ+5}", f"v_cvt_pk_bf16_f32 v{PX+3}, v{V_AQ+6}, v{V_AQ+7}",
            f"v_add_f32 v{v0_}, v{v0_}, v{v0_+1}", f"v_add_f32 v{v0_+2}, v{v0_+2}, v{v0_+3}")
    OA, LA = V_M, V_M + 8
    mains.append(mf32(LA, vr(V_ONES, 4), vr(PX, 4), "0"))
    mains.append(mf32(OA, vr(VXc, 4), vr(PX, 4), "0"))
    mains.append(mf32(OA + 4, vr(VXc + 4, 4), vr(PX, 4), "0"))
    add(60, f"v_mul_f32 v{SM}, s{S_C}, v{SM}", f"v_mul_f32 v{SM+1}, s{S_C}, v{SM+1}")
    add(61, f"v_exp_f32 v{SM}, v{SM}", f"v_exp_f32 v{SM+1}, v{SM+1}")
    add(62, f"v_cvt_pk_bf16_f32 v{V_AK+2}, v{v0_}, v{v0_+2}", f"v_cvt_pk_bf16_f32 v{V_PB}, v{SM}, v{SM+1}",
            f"v_add_f32 v{v1_}, v{v1_}, v{v1_+1}", f"v_add_f32 v{v1_+2}, v{v1_+2}, v{v1_+3}")
    mains.append(mf16(LA, vr(V_ONES, 2), vr(V_PB, 2), vr(LA, 4)))
    add(63, f"v_cvt_pk_bf16_f32 v{V_AK+3}, v{v1_}, v{v1_+2}", f"v_cvt_pk_bf16_f32 v{V_PB+3}, v{SM}, v{SM+1}")
    mains.append(mf16(OA, vr(V_AK + 2, 2), vr(V_PB, 2), vr(OA, 4)))
    mains.append(mf16(OA + 4, vr(V_AK + 2, 2), vr(V_PB + 2, 2), vr(OA + 4, 4)))
    wo_order = [(t, kbo) for t in range(4, 8) for kbo in range(2)]
    wor = [x for j in range(4) for x in rd_wo(Wb(j), *wo_order[j])]
    npre = opt.get('npre', 4)
    for x, i in zip(wor[:npre], (64, 64, 65, 65, 65, 65, 65, 65)): add(i, x)
    drop = opt.get('drop', [])
    if drop:
        F = {i: [x for x in xs if not any(x.startswith(d) for d in drop)] for i, xs in F.items()}
    interleave(a, mains, F)
    st_at('pv')
    INV, OW = V_AQ + 0, V_AQ + 4
    a(f"v_rcp_f32 v{INV}, v{LA}")
    for hh in range(2):
        if opt.get('pkn', 1):
            for r in range(4 * hh, 4 * hh + 4, 2): a(f"v_pk_mul_f32 {vr(OA+r,2)}, {vr(OA+r,2)}, {vr(INV,2)} op_sel_hi:[1,0]")
        else:
            for r in range(4 * hh, 4 * hh + 4): a(f"v_mul_f32 v{OA+r}, v{OA+r}, v{INV}")
        for r in range(2 * hh, 2 * hh + 2): a(f"v_cvt_pk_bf16_f32 v{OW+r}, v{OA+2*r}, v{OA+2*r+1}")
        if not opt.get('ow128'): a(f"ds_write_b64 v{V_OW}, {vr(OW + 2*hh, 2)} offset:{8*hh}")
    if opt.get('ow128'): a(f"ds_write_b128 v{V_OW}, {vr(OW, 4)}")
    a(f"v_subrev_u32 v{INV+1}, s{S_LLO}, v{LA}")
    a(f"v_cmp_le_u32 vcc, s{S_LRG}, v{INV+1}")
    zm = opt.get('zm', 0)
    zacc = lambda t: mf16(V_M + 4*t, vr(V_PB + 2, 2), vr(V_PB, 2), "0") if zm == 0 else \
        "\n".join(f"v_mov_b64 {vr(V_M + 4*t + 2*j, 2)}, 0" for j in range(2)) if zm == 1 else \
        "\n".join(f"v_mov_b32 v{V_M + 4*t + j}, 0" for j in range(4))
    nb1, nb2 = opt.get('nb1', 0), opt.get('nb2', 0)
    b1l = wor[npre:npre + nb1]
    for t in range(opt.get('z1', 4)):
        a(zacc(t))
        for x in bub.get(t, []): a(x)
        for x in b1l[t::4]: a(x)
    a(f"s_cbranch_vccnz {tag}_fallback")
    a.label(f"{tag}_fbdone")
    a(f"s_waitcnt lgkmcnt({nb1})")
    st_at('prebar4')
    a("s_barrier")
    st_at('bar4')
    OF = VXc
    a(f"ds_read_b128 {vr(OF,4)}, v{V_LA}")
    a(f"ds_read_b128 {vr(OF+4,4)}, v{V_LA} offset:1024")
    HV = V_AK + 4
    a(f"s_add_u32 s{S_STEP}, s{S_STEP}, 1")
    for t in range(opt.get('z1', 4), 8):
        a(zacc(t))
        for x in bub.get(t, []): a(x)
        for x in wor[npre + nb1:npre + nb1 + nb2][t - 4::4]: a(x)
        if t == 4: a(f"v_mov_b32 v{HV}, s{S_STEP}")
    st_at('oex')
    mains = []; F = {}
    P = lambda t: V_M + 4 * t
    for t in range(4):
        for kbo in range(2): mains.append(smf(P(t), vr(OF + 4*kbo, 4), wo_res(t, kbo)))
    src = [Wb(0), Wb(1), Wb(2), Wb(3), V_AQ, V_AV, Wb(0), Wb(1)]
    for j, (t, kbo) in enumerate(wo_order): mains.append(smf(P(t), vr(OF + 4*kbo, 4), vr(src[j], 8)))
    nd = npre + nb1 + nb2
    late = wor[nd:] + [x for j in range(4, 8) for x in rd_wo(src[j], *wo_order[j])]
    n1 = 12 - nd
    lpos = [min(7, (j * 8) // max(n1, 8)) for j in range(n1)] + list(opt.get('lp', (8, 9, 9, 10)))
    for x, i in zip(late, lpos): add(i, x)
    split = opt.get('split', 0)
    def fold(t, dst):
        p = P(t)
        return [f"v_add_f32 v{p}, v{p}, v{p+1}", f"v_add_f32 v{p+2}, v{p+2}, v{p+3}", f"v_cvt_pk_bf16_f32 v{dst}, v{p}, v{p+2}"]
    for t in range(6):
        y = fold(t, P(t & 4) + (t & 3))
        add(2 * t + 3, y[0]); add(2 * t + 4, y[1], y[2])
        if t & 3 == 0: add(2 * t + 5, f"v_and_or_b32 v{P(t)}, v{P(t)}, -2, s{S_PH}")
        if split and t == 2: add(2 * t + 5, f"v_and_or_b32 v{P(0)+2}, v{P(0)+2}, -2, s{S_PH}")
    add(11, FLIP)
    for i, x in late_bg: F.setdefault(i, []).insert(0, x)
    for j, x in enumerate(late_sal): F.setdefault(12 + j, []).insert(0, x)
    y6 = fold(6, P(4) + 2); add(15, y6[0])
    sp = opt.get('st0', 11)
    F[sp].insert(0, f"buffer_store_dwordx4 {vr(P(0),4)}, v{V_PST}, {WS}, s{S_PST0} offen {st}")
    if split: F[15].insert(0, f"buffer_store_dwordx2 {vr(P(4),2)}, v{V_PST}, {WS}, s{S_PST1} offen {st}")
    probes = opt.get('probes', (14, 16))
    F.setdefault(opt.get('hintpos', 7), []).insert(0, f"buffer_store_dword v{HV}, v{V_L4}, {WS}, s{S_HST} offen {st}")
    probe = lambda j: f"buffer_load_dword v{HV + 1 + j % 3}, v{V_L4}, {WS}, s{S_HLD} offen sc1"
    for j, g in enumerate(probes):
        if g < 16: F[g].insert(0, probe(j))
    interleave(a, mains, F)
    a(y6[1]); a(y6[2])
    if split: a(f"v_and_or_b32 v{P(4)+2}, v{P(4)+2}, -2, s{S_PH}")
    for j, g in enumerate(probes):
        if g == 16: a(probe(j))
    for y in fold(7, P(4) + 3): a(y)
    if split: a(f"buffer_store_dwordx2 {vr(P(4)+2,2)}, v{V_PST}, {WS}, s{S_PST1} offen offset:8 {st}")
    else: a(f"buffer_store_dwordx4 {vr(P(4),4)}, v{V_PST}, {WS}, s{S_PST1} offen {st}")
    st_at('pst')
    SEL, RA = V_AQ, V_AV
    def h2_issue():
        for i in range(8):
            a(f"buffer_load_dwordx4 {Mf(i)}, v{V_LA}, {WS}, s{S_INB0 if i < 4 else S_INB1} offen offset:{(i & 3)*1024} sc1")
    FLG = QB + 4 - MEMB
    a(f"s_cmp_lg_u32 s{S_WV}, 0")
    a(f"s_cbranch_scc1 {tag}_others")
    PR = [HV + 1, HV + 2, HV + 3, V_AV, V_AV + 1]
    probe_to = lambda r: f"buffer_load_dword v{r}, v{V_L4}, {WS}, s{S_HLD} offen sc1"
    def check(r):
        a(f"v_cmp_gt_u32 vcc, s{S_STEP}, v{r}")
        a(f"s_cbranch_vccz {tag}_go")
    n = len(probes)
    depth = opt.get('pdepth', 4)
    queue = []
    for g in sorted(set(list(probes) + [sp, 17])):
        if g in probes: queue.append(PR[probes.index(g)])
        if g == sp or g == 17: queue.append(None)
    if sp in probes:
        pass
    def issue(r):
        a(probe_to(r)); queue.append(r)
    def wait_check(r):
        k = max(i for i, x in enumerate(queue) if x == r)
        return len(queue) - 1 - k
    sel = [f"v_cndmask_b32 v{SEL+r}, 0, v{V_SELX}, s[{S_SELM+2*r}:{S_SELM+2*r+1}]" for r in range(4)]
    nxtr = n
    issue(PR[nxtr]); nxtr += 1
    for x in sel: a(x)
    copy_export(a, 1 - par)
    if depth > nxtr:
        zero_b(a)
        issue(PR[nxtr]); nxtr += 1
    order = list(range(nxtr))
    first = True
    for j in range(n):
        a(f"s_waitcnt vmcnt({wait_check(PR[j])})")
        check(PR[j])
        if nxtr < depth:
            issue(PR[nxtr]); order.append(nxtr); nxtr += 1
            if first: wv_preload(a)
            issue(PR[j]); order.append(j)
        else:
            issue(PR[j]); order.append(j)
        first = False
    ring = order[n:]
    a.label(f"{tag}_hl")
    for j in ring:
        a(f"s_waitcnt vmcnt({len(ring) - 1})")
        check(PR[j])
        a(probe_to(PR[j]))
        a(f"s_add_u32 s{S_ACC+3}, s{S_ACC+3}, 1")
    a(f"s_add_u32 s{S_SPIN}, s{S_SPIN}, 1")
    a(f"s_cmp_gt_u32 s{S_SPIN}, {SPIN_LIMIT}")
    a(f"s_cbranch_scc0 {tag}_hl")
    a("s_branch L_abort")
    if opt.get('al', 1): a(".p2align 5")
    a.label(f"{tag}_go")
    for _ in range(opt.get('h2pad', 0)): a("s_nop 7")
    st_at('h2iss')
    h2_issue()
    ea = opt.get('ea', 3)
    if not ea & 1: wv_preload(a)
    if not ea & 2: idle_b(a, 1 - par, f"{tag}_av0", 10 + len(probes))
    a.label(f"{tag}_h2")
    TG = RA + 4
    for i in range(8):
        a(mf32(RA, Mf(i), vr(SEL, 4), "0" if i == 0 else vr(RA, 4)))
        if i == 0: a(f"v_xor_b32 v{TG}, s{S_PH}, v{V_M}")
        else: a(f"v_bitop3_b32 v{TG}, v{TG}, v{V_M + 4*i}, s{S_PH} bitop3:0xf6")
        if split: a(f"v_bitop3_b32 v{TG}, v{TG}, v{V_M + 4*i + 2}, s{S_PH} bitop3:0xf6")
    a(f"v_and_b32 v{TG}, 1, v{TG}")
    a(f"v_cmp_ne_u32 vcc, 0, v{TG}")
    a(f"v_mov_b32 v{TG}, -1")
    a(f"v_mov_b32 v{TG+1}, -1")
    a(f"v_cvt_pk_bf16_f32 v{RA+6}, v{RA}, v{RA+1}")
    a(f"v_cvt_pk_bf16_f32 v{RA+7}, v{RA+2}, v{RA+3}")
    a(f"s_cbranch_vccnz {tag}_h2r")
    a(f"buffer_store_dwordx2 {vr(RA+6,2)}, v{V_PUB}, {WS}, s{S_PUBN} offen {st}")
    st_at('pub')
    a(f"buffer_store_dwordx2 {vr(TG,2)}, v{V_PUB}, {WS}, s{S_PUBC} offen {st}")
    if ea & 1: wv_preload(a)
    if ea & 2: idle_b(a, 1 - par, f"{tag}_av0", 63)
    idle_c1(a)
    a(f"s_branch {tag}_join")
    if opt.get('al', 1): a(".p2align 5")
    for _ in range(opt.get('sh2', 0)): a(".long 0xbf800000")
    a.label(f"{tag}_others")
    if opt.get('time') or opt.get('probe_t') == 's':
        for k, (st_, reg) in enumerate(((8, 80), (62, 82))):
            a(f"s_cmp_lg_u32 s{S_STEP}, {st_}")
            a(f"s_cbranch_scc1 {tag}_nt{k}")
            a(f"s_memtime s[{reg}:{reg+1}]")
            a("s_waitcnt lgkmcnt(0)")
            a.label(f"{tag}_nt{k}")
    idle_c1(a)
    idle_a(a, 1 - par)
    zero_b(a)
    a(f"s_cmp_lg_u32 s{S_WV}, 1")
    a(f"s_cbranch_scc1 {tag}_av2_ok")
    a(f"s_waitcnt vmcnt({2 + len(probes) + len(late_bg) + nbub})")
    avail_check(a, f"{tag}_av2")
    for j in range(opt.get('dummy', 0)): a(smf(V_M + 8 + 4 * (j & 1), vr(V_W + 4 * (j & 3), 4), wq(j & 1, j & 7)))
    a.label(f"{tag}_join")
    a("s_barrier")
    for _ in range(opt.get('h1pad', 0)): a("s_nop 7")
    st_at('h1iss')
    if par == 0:
        a(f"s_cmp_eq_u32 s{S_STEP}, 63")
        a(f"s_cbranch_scc1 L_last")
    if sg and not opt.get('sgb2b'):
        a(f"buffer_load_dwordx4 {Mf(0)}, v{V_P1}, {WS}, s{S_MEMRD} offen sc1")
        a("s_waitcnt vmcnt(1)")
        for r in range(V_AK + 4, V_AK + 8): a(f"v_mov_b32 v{r}, 0")
        for _ in range(opt.get('sgpad', 0)): a("s_nop 3")
        a(f"buffer_load_dwordx4 {Mf(1)}, v{V_P1}, {WS}, s{S_MEMRD} offen offset:1024 sc1")
    else:
        h1_issue(a, 0)
        idle_c(a, 1 - par, True)
    for j in range(opt.get('dummy2', 0)): a(smf(V_M + 8 + 4 * (j & 1), vr(V_W + 4 * (j & 3), 4), wq(j & 1, j & 7)))
    a("s_waitcnt lgkmcnt(0)")
    st_at('join')
    return h2_issue, None

def h1_issue(a, j):
    WS = f"s[{S_WS}:{S_WS+3}]"
    a(f"buffer_load_dwordx4 {Mf(2*j)}, v{V_P1}, {WS}, s{S_MEMRD} offen sc1")
    a(f"buffer_load_dwordx4 {Mf(2*j + 1)}, v{V_P1}, {WS}, s{S_MEMRD} offen offset:1024 sc1")

def step_tails(a, par, tag, h2, opt):
    WS = f"s[{S_WS}:{S_WS+3}]"
    VXc = V_VX[par]
    Kc = KB[par] - MEMB
    T0 = V_PB + 3
    def spin(k):
        a(f"s_add_u32 s{S_SPIN}, s{S_SPIN}, 1")
        a(f"s_cmp_gt_u32 s{S_SPIN}, {SPIN_LIMIT}")
        a("s_cbranch_scc1 L_abort")
        a(f"s_add_u32 s{S_ACC+k}, s{S_ACC+k}, 1")
    a.label(f"{tag}_h1retry")
    a("s_mov_b64 exec, vcc")
    h1_issue(a, 0)
    a("s_mov_b64 exec, -1")
    spin(1)
    a("s_nop 2")
    for r in range(24 if opt.get('sg') else 8): a(f"v_mov_b32 v{V_AQ + r}, 0")
    a(f"s_branch {tag}_h1")
    a.label(f"{tag}_h2r")
    a("s_mov_b64 exec, vcc")
    h2[0]()
    a("s_mov_b64 exec, -1")
    if h2[1]: a(h2[1])
    spin(2)
    a(f"s_branch {tag}_h2")
    for j in (0, 2): avail_slow(a, f"{tag}_av{j}")
    a.label(f"{tag}_fallback")
    a("s_nop 7")
    a("s_nop 3")
    a("s_waitcnt lgkmcnt(0)")
    QF, KF = Wb(0), Wb(2)
    SX, SM = V_AV, V_AK + 4
    OA, LA = V_M, V_M + 8
    for i in range(4):
        for hh in range(2): a(f"ds_read_b64_tr_b16 {vr(QF + 4*i + 2*hh, 2)}, v{V_QKR} offset:{i*1024 + hh*512}")
    for T in range(2):
        for i in range(4): a(f"ds_read_b128 {vr(KF + 4*i, 4)}, v{V_LA} offset:{Kc + T*4096 + i*1024}")
        for i in range(4): a(mf32(SX + 4*T, vr(KF + 4*i, 4), vr(QF + 4*i, 4), "0" if i == 0 else vr(SX + 4*T, 4)))
        a("s_nop 7")
    for i in range(4):
        for hh in range(2): a(f"ds_read_b64_tr_b16 {vr(KF + 4*i + 2*hh, 2)}, v{V_QKR} offset:{4096 + i*1024 + hh*512}")
    for i in range(4): a(mf32(SM, vr(KF + 4*i, 4), vr(QF + 4*i, 4), "0" if i == 0 else vr(SM, 4)))
    a(f"v_mul_f32 v{SM}, s{S_C}, v{SM}")
    a(f"v_mul_f32 v{SM+1}, s{S_C}, v{SM+1}")
    MX, T2 = SM + 2, SM + 3
    a(f"v_max3_f32 v{MX}, v{SM}, v{SM+1}, v{SX}")
    for r in range(1, 7, 2): a(f"v_max3_f32 v{MX}, v{MX}, v{SX+r}, v{SX+r+1}")
    a(f"v_max_f32 v{MX}, v{MX}, v{SX+7}")
    for sw in ("v_permlane16_swap_b32", "v_permlane32_swap_b32"):
        a(f"v_mov_b32 v{T2}, v{MX}")
        a(f"{sw} v{MX}, v{T2}")
        a(f"v_max_f32 v{MX}, v{MX}, v{T2}")
    for r in list(range(SX, SX + 8)) + [SM, SM + 1]:
        a(f"v_sub_f32 v{r}, v{r}, v{MX}")
        a(f"v_exp_f32 v{r}, v{r}")
    PX = V_AQ
    for r in range(4): a(f"v_cvt_pk_bf16_f32 v{PX+r}, v{SX+2*r}, v{SX+2*r+1}")
    a(f"v_cvt_pk_bf16_f32 v{V_PB}, v{SM}, v{SM+1}")
    a(f"v_cvt_pk_bf16_f32 v{V_PB+3}, v{SM}, v{SM+1}")
    a(mf32(LA, vr(V_ONES, 4), vr(PX, 4), "0"))
    a(mf32(OA, vr(VXc, 4), vr(PX, 4), "0"))
    a(mf32(OA + 4, vr(VXc + 4, 4), vr(PX, 4), "0"))
    a(mf16(LA, vr(V_ONES, 2), vr(V_PB, 2), vr(LA, 4)))
    a(mf16(OA, vr(V_AK + 2, 2), vr(V_PB, 2), vr(OA, 4)))
    a(mf16(OA + 4, vr(V_AK + 2, 2), vr(V_PB + 2, 2), vr(OA + 4, 4)))
    wo_order = [(t, kbo) for t in range(4, 8) for kbo in range(2)]
    for j in range(4):
        for x in rd_wo(Wb(j), *wo_order[j]): a(x)
    INV, OW = V_AQ + 0, V_AQ + 4
    a(f"v_rcp_f32 v{INV}, v{LA}")
    for r in range(8): a(f"v_mul_f32 v{OA+r}, v{OA+r}, v{INV}")
    for r in range(4): a(f"v_cvt_pk_bf16_f32 v{OW+r}, v{OA+2*r}, v{OA+2*r+1}")
    a(f"ds_write_b128 v{V_OW}, {vr(OW,4)}")
    for r in range(16): a(f"v_mov_b32 v{V_M + r}, 0")
    a("s_waitcnt lgkmcnt(0)")
    a("s_nop 1")
    a(f"s_branch {tag}_fbdone")

def role_chain(a, opt):
    WS = f"s[{S_WS}:{S_WS+3}]"; DB = f"s[{S_D}:{S_D+3}]"
    vq = VmQueue()
    WPOL[0] = opt.get('wpol', '')
    ZW[0] = opt.get('zw', 0)
    AHEAD[0] = 3 if opt.get('tpos') else 2
    set_rounds(opt.get('order', 0), opt.get('vfirst', 1))
    DEPTH0[0] = 2 if opt.get('pace') else 3
    SFX[0] = ''
    HINT_STRIDE[0] = opt.get('hs', 4); HINT_STRIDE[1] = opt.get('nr', 8); HINT_STRIDE[2] = opt.get('hfull', 0)
    CODEPF[0] = opt.get('codepf', 0)
    start_weights(a, vq)
    a(f"s_mov_b32 s65, s{S_T2}")
    if opt.get('dbgtime'):
        a("s_not_b32 s96, s98"); a("s_mov_b64 exec, 1"); a("v_mov_b32 v126, s96"); a(f"buffer_atomic_umax v126, off, s[{S_D}:{S_D+3}], 0 offset:48"); a("s_mov_b64 exec, -1"); vq.add('x')
    setup_lanes(a)
    a(f"s_mov_b32 s{S_C}, {f32bits(CSCALE):#x}")
    a(f"s_mov_b32 s{S_LLO}, 0x21800000")
    a(f"s_mov_b32 s{S_LRG}, {0 if opt.get('forcefb') else 0x3c000000:#x}")
    for r in range(S_ACC, S_ACC + 4): a(f"s_mov_b32 s{r}, 0")
    a(f"s_lshl_b32 s{S_T0}, s{S_H}, 8")
    a(f"s_add_u32 s{S_HB_PST}, s{S_T0}, {WS_PART}")
    a(f"s_lshl_b32 s{S_T0}, s{S_H}, 13")
    a(f"s_add_u32 s{S_HB_INB}, s{S_T0}, {WS_PART - MEMB}")
    a(f"s_add_u32 s{S_KPF}, s{S_T0}, {WS_KX - MEMB}")
    a(f"s_add_u32 s{S_VPF}, s{S_T0}, {WS_VX - MEMB}")
    a(f"s_and_b32 s{S_T0}, s{S_H}, 3")
    a(f"s_lshl_b32 s{S_T0}, s{S_T0}, 6")
    a(f"s_lshr_b32 s{S_T1}, s{S_H}, 2")
    a(f"s_lshl_b32 s{S_T1}, s{S_T1}, 10")
    a(f"s_add_u32 s{S_T0}, s{S_T0}, s{S_T1}")
    a(f"s_add_u32 s{S_HB_PUB}, s{S_T0}, {WS_MEMRING}")
    a(f"s_lshl_b32 s{S_T0}, s{S_H}, 12")
    a(f"s_lshl_b32 s{S_T1}, s{S_WV}, 10")
    a(f"s_add_u32 s{S_T0}, s{S_T0}, s{S_T1}")
    a(f"s_add_u32 s{S_EXP}, s{S_T0}, {WS_KVM - MEMB - 32*4096}")
    a(f"s_lshl_b32 s{S_T0}, s{S_H}, 7")
    a(f"s_add_u32 s{S_FLP}, s{S_T0}, {WS_FLAG + FLAG_P * 128}")
    a(f"s_add_u32 s{S_FLA}, s{S_T0}, {WS_FLAG + FLAG_A * 128}")
    a(f"s_lshl_b32 s{S_T0}, s{S_WV}, 11")
    a(f"s_add_u32 s{S_KM0}, s{S_T0}, {KB[0]}")
    a(f"s_add_u32 s{S_KM0+1}, s{S_T0}, {KB[1]}")
    SN = V_W
    a(f"s_mov_b32 s{S_T2}, s65")
    S_OK = S_AVAIL
    PSTAMP[0] = opt.get('pstamp', -1)
    groups = opt.get('groups', [0])
    IV = V_M + 16
    srd(a, S_W, KA_MEM0, 8192)
    def seg0_loads():
        a(f"s_mov_b32 m0, s{S_KM0}")
        a("s_nop 0")
        a(f"buffer_load_dwordx4 v{V_P1}, {WS}, s{S_KPF} offen sc1 lds")
        a(f"buffer_load_dwordx4 v{V_P1}, {WS}, s{S_KPF} offen offset:1024 sc1 lds")
        a(f"buffer_load_dwordx4 {vr(V_VX[0],4)}, v{V_P1}, {WS}, s{S_VPF} offen sc1")
        a(f"buffer_load_dwordx4 {vr(V_VX[0]+4,4)}, v{V_P1}, {WS}, s{S_VPF} offen offset:1024 sc1")
    def h8(a):
        init_issue(a, IV); vq.add('init', 3)
        a(f"s_mov_b32 s{S_OK}, 0")
    def h16(a):
        assert vq.done('init')
        vq.add('fl')
        a.items.append(('x', 'forget_vm'))
        init_check(a, IV, groups, "L_ch_h16" + SFX[0])
        a(f"s_mov_b32 s{S_OK}, 1")
        if opt.get('ringpf', 1):
            for sl in range(2):
                a(f"s_add_u32 s{S_T0}, s{S_HB_INB}, {sl << 18}")
                for j in range(2):
                    a(f"buffer_load_dwordx4 {vr(V_M + 8, 4)}, v{V_P1}, {WS}, s{S_T0} offen offset:{1024 * j} sc1")
                    a.items.append(('x', 'forget_vm'))
            a(f"s_lshl_b32 s{S_T0}, s{S_H}, 10")
            a(f"s_add_u32 s{S_T0}, s{S_T0}, {WS_MEMRING - MEMB}")
            a(f"buffer_load_dwordx4 {vr(V_M + 8, 4)}, v{V_LA}, {WS}, s{S_T0} offen sc1")
            a(f"buffer_load_dword v{V_M + 12}, v{V_L4}, {WS}, s{S_HLD} offen sc1")
            a.items.append(('x', 'forget_vm'))
        a.label("L_ch_h16" + SFX[0])
        a(f"buffer_load_dword v{V_FL}, off, {WS}, s{S_FLP} sc1")
    def h24(a):
        assert vq.done('fl')
        vq.add('mem0', 2)
        a.items.append(('x', 'forget_vm'))
        a(f"buffer_load_dwordx4 {Mf(0)}, v{V_GATH}, s[{S_W}:{S_W+3}], 0 offen")
        a(f"buffer_load_dwordx4 {Mf(1)}, v{V_GATH}, s[{S_W}:{S_W+3}], 0 offen offset:128")
        a(f"v_readfirstlane_b32 s{S_T0}, v{V_FL}")
        a(f"s_lshr_b32 s{S_T1}, s{S_T0}, 16")
        a(f"s_and_b32 s{S_T0}, s{S_T0}, 0xffff")
        a(f"s_min_u32 s{S_T0}, s{S_T0}, s{S_T1}")
        a(f"s_cmp_ge_u32 s{S_T0}, {AHEAD[0]}")
        a(f"s_cselect_b32 s{S_T0}, s{S_OK}, 0")
        a(f"s_lshl_b32 s{S_OK}, s{S_T0}, 1")
        a(f"s_cmp_eq_u32 s{S_OK}, 0")
        a("s_cbranch_scc1 L_ch_h24" + SFX[0])
        seg0_loads()
        a.label("L_ch_h24" + SFX[0])
    hk = dict(zip(opt.get('hooks', (7, 11, 15)), (h8, h16, h24)))
    if opt.get('late') == 2:
        def hrel(a):
            a(f"s_cmp_eq_u32 s{S_OK}, 0")
            a("s_cbranch_scc1 L_ch_norel" + SFX[0])
            a(f"v_mov_b32 v{IV}, 1")
            a(f"buffer_store_dword v{IV}, off, {WS}, s{S_FLA} offset:4 sc1")
            a.label("L_ch_norel" + SFX[0])
        hk[opt.get('relpos', 12)] = hrel
    if opt.get('pace'):
        import copy
        vq0 = copy.deepcopy(vq.q)
        a(f"s_and_b32 s{S_T0}, s{S_H}, 3")
        a(f"s_cmp_eq_u32 s{S_T0}, 1")
        a("s_cbranch_scc1 L_ch_deep")
        a(f"s_cmp_eq_u32 s{S_H}, 31")
        a("s_cbranch_scc1 L_ch_deep")
        SFX[0] = 'a'
        load_weights(a, hk, vq, 2)
        a("s_branch L_ch_loaded")
        a.label("L_ch_deep")
        SFX[0] = 'b'
        vq.q = vq0
        load_weights(a, hk, vq, 3)
        a.label("L_ch_loaded")
    else:
        load_weights(a, hk, vq)
    if opt.get('ptime') and 'pstamp' not in opt:
        a("s_memrealtime s[62:63]"); a("s_waitcnt lgkmcnt(0)"); a(f"s_sub_u32 s{S_ACC}, s62, s92"); a(f"s_lshl_b32 s{S_ACC}, s{S_ACC}, 2"); a(f"s_add_u32 s{S_ACC}, s{S_ACC}, s{S_OK}")
    if opt.get('ponly'):
        a(f"s_lshl_b32 s{S_T0}, s{S_H}, 2"); a(f"s_add_u32 s{S_T0}, s{S_T0}, s{S_WV}"); a(f"s_lshl_b32 s{S_T0}, s{S_T0}, 5"); a(f"s_add_u32 s{S_T0}, s{S_T0}, {WS_STAMP + 4}")
        a(f"v_mov_b32 v{V_M}, s{S_ACC}")
        a(f"buffer_store_dword v{V_M}, off, {WS}, s{S_T0}")
        a("s_endpgm")
    a(f"s_mov_b32 s{S_STEP}, 0")
    a(f"s_cmp_lg_u32 s{S_OK}, 0")
    a("s_cbranch_scc1 L_ch_ready")
    wait_init(a, IV, groups, "L_ch_init")
    a(f"v_mov_b32 v{V_FL}, 0")
    if opt.get('late') == 2:
        a(f"v_mov_b32 v{IV}, 1")
        a(f"buffer_store_dword v{IV}, off, {WS}, s{S_FLA} offset:4 sc1")
    avail_check(a, "L_ch_av")
    seg0_loads()
    a.label("L_ch_ready")
    if opt.get('nokv'):
        a(f"s_mov_b32 m0, s{S_KM0+1}")
        a(f"s_nop 0")
        a(f"buffer_load_dwordx4 v{V_P1}, {WS}, s{S_KPF} offen sc1 lds")
        a(f"buffer_load_dwordx4 v{V_P1}, {WS}, s{S_KPF} offen offset:1024 sc1 lds")
        a(f"buffer_load_dwordx4 {vr(V_VX[1]+4,4)}, v{V_P1}, {WS}, s{S_VPF} offen offset:1024 sc1")
    a(f"s_add_u32 s{S_KPF}, s{S_KPF}, {32*8192}")
    a(f"s_add_u32 s{S_VPF}, s{S_VPF}, {32*8192}")
    idle_a(a, 0)
    for r in range(24): a(f"v_mov_b32 v{V_AQ + r}, 0")
    a(f"s_mov_b32 s{S_MEMRD}, {WS_MEMRING - MEMB}")
    a("s_waitcnt vmcnt(0)")
    a(f"v_cndmask_b32 v{V_GATH}, v{V_ONES}, 0, s[{S_L0}:{S_L0+1}]")
    a(f"s_cmp_ge_u32 s{S_WV}, 2")
    a(f"s_cselect_b32 s{S_FLP}, {OOB}, s{S_FLP}")
    for r in range(4): a(f"v_mov_b32 v{V_M + 8 + r}, 0")
    for j in range(2): a(f"ds_write_b128 v{V_P1}, {vr(V_M + 8, 4)} offset:{QB - MEMB + 1024*j}")
    a("s_waitcnt vmcnt(0) lgkmcnt(0)")
    for r in range(8): a(f"v_min_u32 v{V_M+r}, -2, v{V_M+r}")
    if opt.get('time'):
        a("s_mov_b32 s74, 0"); a("s_mov_b32 s73, -1"); a("s_mov_b32 s72, 0")
        a(f"s_memtime s[84:85]")
        a(f"s_memrealtime s[88:89]")
        a("s_waitcnt lgkmcnt(0)")
    if opt.get('probe_t'):
        a("s_memrealtime s[88:89]"); a("s_memtime s[84:85]"); a("s_waitcnt lgkmcnt(0)")
    if opt.get('dbgtime'): dbg_stamp(a, 13, vt=V_M + 30); a("s_waitcnt vmcnt(0)")
    a(f"s_cmp_eq_u32 s{S_MODE}, {opt.get('fastmode', 1)}")
    a("s_cbranch_scc0 L_S0_entry")
    a("s_branch L_F0_entry")
    for tag, st in (("L_F", ""), ("L_S", "sc1")):
        a(".p2align 8")
        for _ in range(opt.get('shift', 6)): a(".long 0xbf800000")
        h20 = step(a, 0, st, tag + "0", opt)
        h21 = step(a, 1, st, tag + "1", opt)
        a(f"s_branch {tag}0_h1")
        step_tails(a, 0, tag + "0", h20, opt)
        step_tails(a, 1, tag + "1", h21, opt)
    avail_slow(a, "L_ch_av")
    a.label("L_last")
    VXn = V_VX[0]
    h1_issue(a, 0)
    a("s_waitcnt vmcnt(2)")
    for r in range(V_AK + 4, V_AK + 8): a(f"v_mov_b32 v{r}, 0")
    a.label("L_last_h1")
    a("s_waitcnt vmcnt(0) lgkmcnt(0)")
    a(f"ds_write_b128 v{V_P1}, {Mf(0)}")
    a(f"v_max3_u32 v{V_PB+3}, v{V_M+1}, v{V_M+3}, v{V_M+5}")
    a(f"v_max_u32 v{V_PB+3}, v{V_PB+3}, v{V_M+7}")
    a(f"v_cmp_eq_u32 vcc, -1, v{V_PB+3}")
    a(f"ds_write_b128 v{V_P1}, {Mf(1)} offset:1024")
    a("s_cbranch_vccz L_last_ok")
    a("s_mov_b64 exec, vcc")
    h1_issue(a, 0)
    a("s_mov_b64 exec, -1")
    a(f"s_add_u32 s{S_SPIN}, s{S_SPIN}, 1")
    a(f"s_cmp_gt_u32 s{S_SPIN}, {SPIN_LIMIT}")
    a("s_cbranch_scc0 L_last_h1")
    a("s_branch L_abort")
    a.label("L_last_ok")
    mains = []; F = {}
    AK = lambda t: V_AK + 4 * t
    AV = lambda t: V_AV + 4 * t
    for s_ in range(2):
        for t in range(2): mains.append(smf(AV(t), Mf(s_), vr(Wb(2*s_ + t), 8)))
    for s_ in range(8):
        for t in range(2): mains.append(smf(AK(t), Mf(s_), wk(t, s_)))
    for s_ in (4, 5, 6, 7):
        for t in range(2): mains.append(smf(AV(t), Mf(s_), wv_res(t, s_)))
    for s_ in (2, 3):
        for t in range(2): mains.append(smf(AV(t), Mf(s_), vr(Wb(2*(s_-2) + t), 8)))
    mr = (V_MR1, V_MR2, V_MR3)
    F[3] = ["s_waitcnt lgkmcnt(0)", "s_barrier"]
    for j, s_ in enumerate(range(2, 8)): F.setdefault(3 + j, []).append(f"ds_read_b128 {Mf(s_)}, v{mr[(s_ >> 1) - 1]} offset:{(s_ & 1) * 1024}")
    for j, x in enumerate([x for j in range(4) for x in rd_wv(Wb(j), 2 + (j >> 1), j & 1)]): F.setdefault(10 + j, []).append(x)
    F.setdefault(9, []).append(f"buffer_store_dwordx4 {vr(VXn,4)}, v{V_LA}, {WS}, s{S_EXP} offen sc1")
    F.setdefault(10, []).insert(0, f"s_add_u32 s{S_EXP}, s{S_EXP}, {32*4096}")
    F.setdefault(1, []).append(f"v_mov_b32 v{V_PB}, 62")
    F.setdefault(4, []).append(f"buffer_store_dword v{V_PB}, v{V_GATH}, {WS}, s{S_FLA} offen sc1")
    def fold2(a0, a1, d0, d1):
        return [f"v_add_f32 v{a0}, v{a0}, v{a0+1}", f"v_add_f32 v{a0+2}, v{a0+2}, v{a0+3}", f"v_cvt_pk_bf16_f32 v{d0}, v{a0}, v{a0+2}",
                f"v_add_f32 v{a1}, v{a1}, v{a1+1}", f"v_add_f32 v{a1+2}, v{a1+2}, v{a1+3}", f"v_cvt_pk_bf16_f32 v{d1}, v{a1}, v{a1+2}"]
    for j, x in enumerate(fold2(AK(0), AK(1), V_AK, V_AK + 1)): F.setdefault(22 + j, []).append(x)
    interleave(a, mains, F)
    for x in fold2(AV(0), AV(1), V_AK + 2, V_AK + 3): a(x)
    a(f"buffer_store_dwordx4 {vr(V_AK,4)}, v{V_LA}, {WS}, s{S_EXP} offen {opt.get('lastst', 'sc1')}")
    if opt.get('probe_t'):
        a("s_memrealtime s[90:91]"); a("s_waitcnt lgkmcnt(0)")
        k = opt['probe_t']
        if k == 'p': a("s_sub_u32 s42, s88, s92"); a("s_lshl_b32 s42, s42, 2")
        elif k == 'l': a("s_sub_u32 s42, s90, s88")
        elif k == 'y': a("s_memtime s[42:43]"); a("s_waitcnt lgkmcnt(0)"); a("s_sub_u32 s42, s42, s84"); a("s_lshr_b32 s42, s42, 5")
        elif k == 's': a("s_sub_u32 s42, s82, s80"); a("s_lshr_b32 s42, s42, 5"); a(f"s_cmp_eq_u32 s{S_WV}, 0"); a("s_cselect_b32 s42, 0, s42")
        else: a("s_mov_b32 s42, 5000")
        a.label("L_probe")
        a("s_sleep 1"); a("s_memrealtime s[44:45]"); a("s_waitcnt lgkmcnt(0)"); a("s_sub_u32 s44, s44, s90"); a("s_cmp_lt_u32 s44, s42"); a("s_cbranch_scc1 L_probe")
    if opt.get('lastwb'): a("s_waitcnt vmcnt(0)"); a("buffer_wbl2 sc1")
    if opt.get('drain'):
        a("s_memtime s[42:43]"); a("s_waitcnt lgkmcnt(0) vmcnt(0)"); a("s_memtime s[44:45]"); a("s_waitcnt lgkmcnt(0)"); a(f"s_sub_u32 s{S_ACC+2}, s44, s42")
    a("s_nop 1")
    if opt.get('wb'):
        a(f"s_or_b32 s{S_T0}, s{S_H}, s{S_WV}")
        a(f"s_cmp_lg_u32 s{S_T0}, 0")
        a("s_cbranch_scc1 L_ch_nowb")
        a("buffer_wbl2 sc1")
        a.label("L_ch_nowb")
    if opt.get('dbgtime'): dbg_stamp(a, 14, vt=V_M + 30)
    if opt.get('time'):
        a(f"s_memtime s[86:87]")
        a(f"s_memrealtime s[90:91]")
        a("s_waitcnt lgkmcnt(0)")
        a("s_sub_u32 s86, s86, s84")
        a(f"s_lshl_b32 s{S_T0}, s{S_H}, 2")
        a(f"s_add_u32 s{S_T0}, s{S_T0}, s{S_WV}")
        a(f"s_lshl_b32 s{S_T0}, s{S_T0}, 5")
        a(f"s_add_u32 s{S_T0}, s{S_T0}, {WS_STAMP}")
        for i, s in enumerate((86, S_ACC, S_ACC + 1, S_ACC + 2, 88, 90, 92, S_ACC + 3)):
            a(f"v_mov_b32 v{V_M+i}, s{s}")
        a(f"buffer_store_dwordx4 {vr(V_M,4)}, off, {WS}, s{S_T0}")
        a(f"buffer_store_dwordx4 {vr(V_M+4,4)}, off, {WS}, s{S_T0} offset:16")
        a(f"s_add_u32 s{S_T0}, s{S_T0}, 0x8000")
        if opt.get('trace'):
            a("s_mov_b32 s40, 0"); a("s_mov_b32 s41, 0"); a("s_mov_b32 s46, 0")
            a.label("L_cal")
            a("s_memtime s[42:43]"); a("s_memrealtime s[44:45]"); a("s_waitcnt lgkmcnt(0)")
            a("s_sub_u32 s42, s42, s84"); a("s_sub_u32 s44, s44, s88")
            a("s_add_u32 s40, s40, s42"); a("s_add_u32 s41, s41, s44")
            a("s_mul_i32 s47, s46, 7"); a("s_and_b32 s47, s47, 3")
            a.label("L_cal2")
            a("s_sub_u32 s47, s47, 1"); a("s_cbranch_scc0 L_cal2")
            a("s_add_u32 s46, s46, 1"); a("s_cmp_lt_u32 s46, 256"); a("s_cbranch_scc1 L_cal")
            a(f"v_mov_b32 v{V_M+20}, s40"); a(f"v_mov_b32 v{V_M+21}, s41")
            a(f"s_add_u32 s{S_T1}, s{S_T0}, 4096")
            a(f"buffer_store_dwordx2 {vr(V_M+20,2)}, off, {WS}, s{S_T1}")
        a("s_mov_b32 s75, s84")
        if not opt.get('trace') and not opt.get('stamp'): a("s_sub_u32 s68, s82, s80")
        for i in range(8): a(f"v_mov_b32 v{V_M+8+i}, s{68+i}")
        a(f"buffer_store_dwordx4 {vr(V_M+8,4)}, off, {WS}, s{S_T0}")
        a(f"buffer_store_dwordx4 {vr(V_M+12,4)}, off, {WS}, s{S_T0} offset:16")
    a("s_endpgm")
```

```python
from stream import *
from rolepf import clear_flag, late_start, gate_tokens, S_FLG

NDIRECT = 5
KXB = 73728
KMB = 81920
S_CNT = 43
S_C = 44
S_GRP = 45
S_KV = 46
S_KVM = 47
S_PST, S_INB = 48, 49
S_FP = 50
S_NEED = 51
S_FLPA = 52
S_PH = 53
S_FLF = 54
S_OUTO = 55
S_GO = 56
S_PSTB, S_INBB = 57, 58
S_SEENP, S_SEENF = 59, 90
S_MASK = 60
S_SELM = 76
S_LM2 = 84
S_LM32 = 86
S_LMF = 88
S_O = 92

V_EXW, V_EXR, V_QRD, V_KMW, V_KMR, V_OWR, V_FLG, V_INB, V_INBF, V_OUT, V_GOF, V_SELX, V_VRD, V_L4 = range(9, 23)
V_ONES = 24
V_PB = 28
XF, AQ = 32, 48
QF = 64
KF = 80
VF = 128
VM = 144
KM = 148
SS = 152
OA = 164
HF = 184
AO = 216
TM = 232
WQ, WO = 256, 384

def role_c(a, opt):
    WS = f"s[{S_WS}:{S_WS+3}]"
    NG = opt.get('ng', 4)
    global NDIRECT
    NDIRECT = opt.get('nd', 5)
    L, T = 127, 126
    if opt.get('warm_llc', 0):
        a(f"v_lshlrev_b32 v1, 4, v0")
        a(f"s_sub_u32 s{S_T0}, s{S_XG}, 1")
        a(f"s_lshl_b32 s{S_T1}, s{S_H}, 2")
        a(f"s_add_u32 s{S_T0}, s{S_T0}, s{S_T1}")
        a(f"s_lshl_b32 s{S_T0}, s{S_T0}, 12")
        for j in opt.get('warm_mats', (0, 1, 2)):
            d = S_DESC[0]
            a(f"s_mov_b32 s{d}, s{40 + 2*j}")
            a(f"s_and_b32 s{d+1}, s{41 + 2*j}, 0xffff")
            a(f"s_mov_b32 s{d+2}, 0x400000")
            a(f"s_mov_b32 s{d+3}, 0x20000")
            a(f"s_mov_b32 s{S_T1}, s{S_T0}")
            for u in range(8):
                a(f"buffer_load_dwordx4 {vr(128 + 4 * (8*j + u), 4)}, v1, s[{d}:{d+3}], s{S_T1} offen")
                if u < 7: a(f"s_add_u32 s{S_T1}, s{S_T1}, {128 * 4096}")
    setup(a)
    a(f"s_sub_u32 s{S_GRP}, s{S_XG}, 1")
    a(f"s_lshl_b32 s{S_T2}, s{S_GRP}, 5")
    a(f"s_add_u32 s{S_T2}, s{S_T2}, s{S_H}")
    for r in range(4): a(f"v_mov_b32 v{16+r}, -1")
    a(f"v_mov_b32 v20, 0")
    a(f"s_lshl_b32 s{S_T0}, s{S_T2}, 12")
    a(f"s_add_u32 s{S_T0}, s{S_T0}, {WS_PART}")
    a(f"buffer_store_dwordx4 v[16:19], v{V_P1K}, {WS}, s{S_T0} offen sc1")
    a(f"s_mul_i32 s{S_T0}, s{S_T2}, {NDIRECT * 1024}")
    a(f"s_add_u32 s{S_T0}, s{S_T0}, {WS_KVM + (64 - NDIRECT) * 32 * 4096}")
    for j in range(NDIRECT // 4):
        a(f"buffer_store_dwordx4 v[16:19], v{V_P1K}, {WS}, s{S_T0} offen sc1")
        a(f"s_add_u32 s{S_T0}, s{S_T0}, 4096")
    if NDIRECT % 4:
        a(f"s_cmp_lt_u32 s{S_WV}, {NDIRECT % 4}")
        a(f"s_cselect_b32 s{S_T0}, s{S_T0}, {OOB}")
        a(f"buffer_store_dwordx4 v[16:19], v{V_P1K}, {WS}, s{S_T0} offen sc1")
    a(f"s_cmp_ge_u32 s{S_T2}, 8")
    a("s_cbranch_scc1 L_c_noarm")
    a(f"s_lshl_b32 s{S_T0}, s{S_T2}, 12")
    a(f"s_add_u32 s{S_T0}, s{S_T0}, {WS_MEMRING}")
    a(f"buffer_store_dwordx4 v[16:19], v{V_P1K}, {WS}, s{S_T0} offen sc1")
    a(f"s_cmp_lg_u32 s{S_T2}, 0")
    a("s_cbranch_scc1 L_c_noarm")
    for r in range(3): a(f"v_mov_b32 v{21+r}, 0")
    for j in range(2):
        a(f"s_mov_b32 s{S_T0}, {WS_HINT + 4096 * j}")
        a(f"buffer_store_dwordx4 v[20:23], v{V_P1K}, {WS}, s{S_T0} offen sc1")
    a(f"s_mov_b32 s{S_T0}, {WS_FLAG + FLAG_A * 128}")
    a(f"buffer_store_dwordx4 v[20:23], v{V_P1K}, {WS}, s{S_T0} offen sc1")
    a.label("L_c_noarm")
    gate_tokens(a, S_T2, L)
    late_start(a, opt, "L_c")
    srd(a, S_DESC[0], KA_WQ, 0x400000)
    srd(a, S_DESC[1], KA_WO, 0x400000)
    col = [f"s_lshl_b32 s{S_T0}, s{S_H}, 8", f"s_lshl_b32 s{S_T1}, s{S_WV}, 6", f"s_add_u32 s{S_T0}, s{S_T0}, s{S_T1}"]
    load_weights(a, proj_chunks(S_DESC[0], 8192, col, WQ) + out_chunks(S_DESC[1], [f"s_lshl_b32 s{S_T0}, s{S_H}, 17"], WO),
                 lambda a: None)
    srd(a, S_O, KA_OUT, 2048 * 1024)
    a(f"s_mov_b32 s{S_C}, {f32bits(CSCALE):#x}")
    a(f"v_add_u32 v{V_EXW}, {EXB}, v{V_P1K}")
    a(f"v_add_u32 v{V_EXR}, {EXB}, v{V_L16}")
    a(f"s_and_b32 s{S_T0}, s{S_WV}, 1")
    a(f"s_lshr_b32 s{S_T1}, s{S_WV}, 1")
    a(f"s_lshl_b32 s{S_T2}, s{S_T0}, 12")
    a(f"v_add_u32 v{V_QRD}, s{S_T2}, v{V_EXR}")
    a(f"s_lshl_b32 s{S_T3}, s{S_T1}, 11")
    a(f"v_add_u32 v{V_OWR}, s{S_T3}, v{V_QRD}")
    a(f"s_lshl_b32 s{S_T3}, s{S_T1}, 12")
    a(f"v_add_u32 v{V_VRD}, s{S_T3}, v{V_L16}")
    a(f"s_lshl_b32 s{S_T2}, s{S_T0}, 4")
    a(f"v_and_b32 v{V_T0}, 15, v{L}")
    a(f"v_add_u32 v{V_T0}, s{S_T2}, v{V_T0}")
    bitpat(a, V_T1, L, [(4, 3, 4)], T)
    a(f"v_sub_u32 v{V_T0}, v{V_T0}, v{V_T1}")
    for Tt in range(2):
        for r in range(4):
            k = S_MASK + 2 * (4 * Tt + r)
            a(f"v_cmp_le_i32 s[{k}:{k+1}], {16*Tt + r}, v{V_T0}")
    bitpat(a, V_KMW, L, [(5, 1, 8), (0, 15, 1)], T)
    a(f"v_and_b32 v{V_KMW}, 15, v{V_KMW}")
    a(f"v_and_b32 v{T}, 48, v{L}")
    a(f"v_add_u32 v{V_KMW}, v{V_KMW}, v{T}")
    a(f"v_lshlrev_b32 v{V_KMW}, 3, v{V_KMW}")
    a(f"s_lshl_b32 s{S_T0}, s{S_WV}, 10")
    a(f"s_add_u32 s{S_T0}, s{S_T0}, {KMB}")
    a(f"v_add_u32 v{V_KMW}, s{S_T0}, v{V_KMW}")
    bitpat(a, V_KMR, L, [(1, 1, 8), (2, 15, 1)], T)
    a(f"v_and_b32 v{V_KMR}, 15, v{V_KMR}")
    a(f"v_and_b32 v{T}, 3, v{L}")
    a(f"v_lshl_add_u32 v{V_KMR}, v{T}, 4, v{V_KMR}")
    a(f"v_lshlrev_b32 v{V_KMR}, 3, v{V_KMR}")
    a(f"v_add_u32 v{V_KMR}, {KMB}, v{V_KMR}")
    for r in range(4):
        a(f"v_mov_b32 v{V_ONES+r}, 0x3f803f80")
        a(f"v_mov_b32 v{V_PB+r}, 0")
    a(f"v_add_u32 v{V_T0}, {KMB}, v{V_P1K}")
    a(f"ds_write_b128 v{V_T0}, {vr(V_PB,4)}")
    a(f"v_lshlrev_b32 v{V_FLG}, 7, v{L}")
    a(f"v_lshlrev_b32 v{V_L4}, 2, v{L}")
    a(f"v_cmp_gt_u32 s[{S_LM32}:{S_LM32+1}], 32, v{L}")
    a(f"s_lshl_b32 s{S_T0}, s{S_H}, 7")
    a(f"s_add_u32 s{S_FLPA}, s{S_T0}, {WS_FLAG + FLAG_P * 128}")
    a(f"s_mov_b32 s{S_FLF}, {WS_FLAG + FLAG_F * 128}")
    a(f"s_mov_b64 s[{S_LM2}:{S_LM2+1}], 0")
    a(f"s_bitset1_b64 s[{S_LM2}:{S_LM2+1}], 0")
    bitpat(a, V_INB, L, [(4, 3, 1024), (0, 15, 16)], T)
    a(f"s_lshl_b32 s{S_T0}, s{S_WV}, 8")
    a(f"v_add_u32 v{V_INB}, s{S_T0}, v{V_INB}")
    bitpat(a, V_T0, L, [(5, 1, OOB)], T)
    a(f"v_add_u32 v{V_INBF}, v{V_T0}, v{V_INB}")
    bitpat(a, V_GOF, L, [(2, 1, 16), (0, 3, 1)], T)
    a(f"s_lshl_b32 s{S_T0}, s{S_WV}, 2")
    a(f"v_add_u32 v{V_GOF}, s{S_T0}, v{V_GOF}")
    bitpat(a, V_OUT, L, [(4, 3, 8), (3, 1, OOB)], T)
    a(f"v_lshl_add_u32 v{V_OUT}, v{V_GOF}, 10, v{V_OUT}")
    a(f"v_lshlrev_b32 v{V_GOF}, 2, v{V_GOF}")
    a(f"v_and_b32 v{T}, 1, v{L}")
    a(f"v_cmp_eq_u32 vcc, 1, v{T}")
    a(f"v_mov_b32 v{V_SELX}, 0x3f80")
    a(f"v_mov_b32 v{T}, 0x3f800000")
    a(f"v_cndmask_b32 v{V_SELX}, v{V_SELX}, v{T}, vcc")
    a(f"v_bfe_u32 v{T}, v{L}, 1, 3")
    for r in range(4):
        a(f"v_cmp_eq_u32 s[{S_SELM+2*r}:{S_SELM+2*r+1}], {r}, v{T}")
    a(f"s_lshl_b32 s{S_T0}, s{S_GRP}, 21")
    a(f"s_add_u32 s{S_T0}, s{S_T0}, {WS_CP}")
    a(f"s_lshl_b32 s{S_T1}, s{S_H}, 10")
    a(f"s_add_u32 s{S_PSTB}, s{S_T0}, s{S_T1}")
    a(f"s_lshl_b32 s{S_T1}, s{S_WV}, 18")
    a(f"s_add_u32 s{S_PSTB}, s{S_PSTB}, s{S_T1}")
    a(f"s_lshl_b32 s{S_T1}, s{S_H}, 15")
    a(f"s_add_u32 s{S_INBB}, s{S_T0}, s{S_T1}")
    a(f"s_mov_b32 s{S_SEG}, s{S_GRP}")
    a(f"s_mov_b32 s{S_CNT}, 0")
    a(f"s_mov_b32 s{S_SEENP}, 0")
    a(f"s_mov_b32 s{S_SEENF}, 0")
    a(f"s_and_b32 s{S_T0}, s{S_GRP}, 1")
    a(f"s_mul_i32 s{S_T0}, s{S_T0}, 14")
    a(f"s_lshl_b64 s[{S_LMF}:{S_LMF+1}], 0x3fff, s{S_T0}")
    x_issue(a, 0, S_SEG)
    wait_init(a, TM, opt['groups'], "L_c_init2")
    a("s_waitcnt lgkmcnt(0)")
    a(f"s_cmp_eq_u32 s{S_MODE}, {opt.get('fastmode', 1)}")
    a("s_cbranch_scc0 L_cS_arm")
    for tag, st in (("L_cF", ""), ("L_cS", "sc1")):
        a.label(f"{tag}_arm")
        for r in range(4): a(f"v_mov_b32 v{TM+r}, -1")
        for sl in range(2):
            a(f"s_add_u32 s{S_T0}, s{S_INBB}, {sl << 20}")
            for j in range(8):
                a(f"buffer_store_dwordx4 {vr(TM,4)}, v{V_P1K}, {WS}, s{S_T0} offen {st}")
                if j < 7: a(f"s_add_u32 s{S_T0}, s{S_T0}, 4096")
        a("s_waitcnt vmcnt(0)")
        a("s_barrier")
        a(f"s_cmp_lg_u32 s{S_WV}, 0")
        a(f"s_cbranch_scc1 {tag}_met")
        a(f"s_lshl_b32 s{S_T1}, s{S_GRP}, 2")
        a("s_mov_b64 exec, 1")
        a(f"v_mov_b32 v{TM}, 1")
        a(f"buffer_atomic_add v{TM}, off, s[{S_D}:{S_D+3}], s{S_T1} offset:32")
        a.label(f"{tag}_meet")
        a("s_sleep 8")
        a(f"buffer_load_dword v{TM+1}, off, s[{S_D}:{S_D+3}], s{S_T1} offset:32 sc1")
        a(f"s_add_u32 s{S_SPIN}, s{S_SPIN}, 1")
        a(f"s_cmp_gt_u32 s{S_SPIN}, {SPIN_LIMIT}")
        a("s_cbranch_scc1 L_abort")
        a("s_waitcnt vmcnt(0)")
        a(f"v_readfirstlane_b32 s{S_T0}, v{TM+1}")
        a(f"s_cmp_ge_u32 s{S_T0}, 32")
        a(f"s_cbranch_scc0 {tag}_meet")
        a("s_mov_b64 exec, -1")
        a.label(f"{tag}_met")
        a.label(f"{tag}_loop")
        for par in range(2):
            segment(a, par, st, f"{tag}{par}", NG, opt)
            a(f"s_cmp_ge_u32 s{S_SEG}, 64")
            a("s_cbranch_scc1 L_done")
        a(f"s_branch {tag}_loop")

def segment(a, par, st, tag, NG, opt):
    WS = f"s[{S_WS}:{S_WS+3}]"
    a("s_waitcnt vmcnt(0)")
    a("s_barrier")
    a(f"s_lshl_b32 s{S_T0}, s{S_SEG}, 5")
    a(f"s_add_u32 s{S_T0}, s{S_T0}, s{S_H}")
    a(f"s_lshl_b32 s{S_KV}, s{S_T0}, 13")
    a(f"s_lshl_b32 s{S_KVM}, s{S_T0}, 12")
    a(f"s_add_u32 s{S_KVM}, s{S_KVM}, {WS_KVM}")
    a(f"s_add_u32 s{S_NEED}, s{S_SEG}, 1")
    SEL, RA, RB, GV = TM + 4, TM + 8, TM + 12, TM + 3
    poll_flags(a, f"{tag}_pp", TM, V_FLG, S_FLPA, S_NEED, S_LM2, halves=True, seen=S_SEENP)
    a(f"s_lshl_b32 s{S_T0}, s{S_WV}, 10")
    a(f"s_add_u32 s{S_T1}, s{S_KV}, s{S_T0}")
    a(f"s_add_u32 s{S_T1}, s{S_T1}, {WS_KX}")
    a(f"s_lshl_b32 s{S_T0}, s{S_WV}, 11")
    a(f"s_add_u32 m0, s{S_T0}, {KXB}")
    a(f"s_add_u32 s{S_T2}, s{S_KV}, {WS_VX}")
    for j in range(2): a(f"buffer_load_dwordx4 v{V_P1K}, {WS}, s{S_T1} offen offset:{j*1024} sc1 lds")
    for j in range(4): a(f"buffer_load_dwordx4 {vr(VF + 4*j, 4)}, v{V_VRD}, {WS}, s{S_T2} offen offset:{j*1024} sc1")
    for r in range(4): a(f"v_cndmask_b32 v{SEL+r}, 0, v{V_SELX}, s[{S_SELM+2*r}:{S_SELM+2*r+1}]")
    a(f"s_lshr_b32 s{S_T2}, s{S_SEG}, 1")
    a(f"s_add_u32 s{S_T2}, s{S_T2}, 1")
    poll_flags(a, f"{tag}_pf", TM, V_FLG, S_FLF, S_T2, S_LMF, seen=S_SEENF, top=32)
    a(f"s_lshl_b32 s{S_FP}, s{S_SEG}, 19")
    a(f"s_lshl_b32 s{S_T0}, s{S_H}, 14")
    a(f"s_add_u32 s{S_FP}, s{S_FP}, s{S_T0}")
    a(f"s_add_u32 s{S_FP}, s{S_FP}, {WS_FP}")
    for i in range(4):
        a(f"buffer_load_dwordx4 {vr(HF + 4*i, 4)}, v{V_INBF if i == 3 else V_INB}, {WS}, s{S_FP} offen sc1")
        if i < 3: a(f"s_add_u32 s{S_FP}, s{S_FP}, 4096")
    a(f"s_lshl_b32 s{S_GO}, s{S_SEG}, 7")
    a(f"s_add_u32 s{S_GO}, s{S_GO}, {WS_G}")
    a(f"buffer_load_dword v{GV}, v{V_GOF}, {WS}, s{S_GO} offen sc1")
    a(f"s_add_u32 s{S_T2}, s{S_SEG}, {NG}")
    a(f"s_min_u32 s{S_T2}, s{S_T2}, 63")
    xi = x_issue_groups(1 - par, S_T2)
    def mm(ks, xf):
        o = []
        for t in range(2):
            for tt in range(2):
                d = AQ + (tt * 2 + t) * 4
                o.append(mf32(d, ur(WQ + (t * 16 + ks) * 4, 4), xf[tt], "0" if ks == 0 else vr(d, 4)))
        if ks < len(xi): o[2] += "\n" + xi[ks]
        return o
    proj_phase(a, par, XF, mm)
    for tt in range(2):
        d = AQ + 8 * tt
        for r in range(4): a(f"v_cvt_pk_bf16_f32 v{d+r}, v{d+2*r}, v{d+2*r+1}")
        a(f"ds_write_b128 v{V_EXW}, {vr(d,4)} offset:{tt*4096}")
    a("s_waitcnt vmcnt(8)")
    for i in range(4): a(mf32(RB, vr(HF + 4*i, 4), vr(SEL, 4), "0" if i == 0 else vr(RB, 4)))
    OM = TM
    a(f"v_sub_f32 v{OM}, 1.0, v{GV}")
    a(f"v_cvt_pk_bf16_f32 v{OM}, v{OM}, v{OM}")
    a(f"v_and_b32 v{OM}, 0xffff0000, v{OM}")
    def rnd(R):
        a(f"v_cvt_pk_bf16_f32 v{R}, v{R}, v{R+1}")
        a(f"v_cvt_pk_bf16_f32 v{R+2}, v{R+2}, v{R+3}")
        for q in (0, 2):
            a(f"v_and_b32 v{R+q+1}, 0xffff0000, v{R+q}")
            a(f"v_lshlrev_b32 v{R+q}, 16, v{R+q}")
    rnd(RB)
    for r in range(4): a(f"v_mul_f32 v{RB+r}, v{RB+r}, v{OM}")
    rnd(RB)
    a("s_waitcnt lgkmcnt(0)")
    a("s_barrier")
    for i in range(4): a(f"ds_read_b128 {vr(QF + 4*i, 4)}, v{V_QRD} offset:{i*1024}")
    for j in range(8): a(f"ds_read_b128 {vr(KF + 4*j, 4)}, v{V_EXR} offset:{KXB - EXB + j*1024}")
    for i in range(4):
        for Tt in range(2):
            d = SS + 4 * Tt
            a(mf32(d, vr(KF + 16*Tt + 4*i, 4), vr(QF + 4*i, 4), "0" if i == 0 else vr(d, 4)))
    SM = SS + 8
    NEG, MX, T2 = TM, TM + 1, TM + 2
    a(f"v_mov_b32 v{NEG}, 0xff800000")
    for r in range(8): a(f"v_cndmask_b32 v{SS+r}, v{NEG}, v{SS+r}, s[{S_MASK+2*r}:{S_MASK+2*r+1}]")
    a(f"v_max3_f32 v{MX}, v{SS}, v{SS+1}, v{SS+2}")
    a(f"v_max3_f32 v{MX}, v{MX}, v{SS+3}, v{SS+4}")
    a(f"v_max3_f32 v{MX}, v{MX}, v{SS+5}, v{SS+6}")
    a(f"v_max_f32 v{MX}, v{MX}, v{SS+7}")
    def xmax(R):
        for sw in ("v_permlane16_swap_b32", "v_permlane32_swap_b32"):
            a(f"v_mov_b32 v{T2}, v{R}")
            a(f"{sw} v{R}, v{T2}")
            a(f"v_max_f32 v{R}, v{R}, v{T2}")
    xmax(MX)
    for r in range(8): a(f"v_sub_f32 v{SS+r}, v{SS+r}, v{MX}")
    for r in range(8): a(f"v_exp_f32 v{SS+r}, v{SS+r}")
    for r in range(4): a(f"v_cvt_pk_bf16_f32 v{SS+r}, v{SS+2*r}, v{SS+2*r+1}")
    LA = OA + 16
    a(mf32(LA, vr(V_ONES, 4), vr(SS, 4), "0"))
    for j in range(4): a(mf32(OA + 4*j, vr(VF + 4*j, 4), vr(SS, 4), "0"))
    a(f"s_and_b32 s{S_T0}, s{S_CNT}, 1")
    a(f"s_lshl_b32 s{S_T0}, s{S_T0}, 20")
    a(f"s_add_u32 s{S_PST}, s{S_PSTB}, s{S_T0}")
    a(f"s_add_u32 s{S_INB}, s{S_INBB}, s{S_T0}")
    a(f"s_bfe_u32 s{S_PH}, s{S_CNT}, 0x10001")
    a(f"s_add_u32 s{S_CNT}, s{S_CNT}, 1")
    a(f"s_min_u32 s{S_T0}, s{S_SEG}, 62")
    a(f"s_cmp_ge_u32 s{S_SEG}, {64 - NDIRECT}")
    a(f"s_cselect_b32 s{S_NEED}, s{S_T0}, s{S_NEED}")
    a(f"s_add_u32 s{S_T3}, s{S_FLPA}, {(FLAG_A - FLAG_P) * 128}")
    poll_flags(a, f"{tag}_pa", T2, V_FLG, S_T3, S_NEED, S_LM2, pause=opt.get('papause', 3))
    a(f"s_lshr_b32 s{S_T0}, s{S_WV}, 1")
    a(f"s_lshl_b32 s{S_T0}, s{S_T0}, 11")
    a(f"s_add_u32 s{S_T0}, s{S_T0}, s{S_KVM}")
    a(f"s_branch {tag}_km1")
    a.label(f"{tag}_km")
    if opt.get('kmpause', 1): a(f"s_sleep {opt.get('kmpause', 1)}")
    a.label(f"{tag}_km1")
    a(f"buffer_load_dwordx2 {vr(KM,2)}, v{V_P1K}, {WS}, s{S_KVM} offen sc1")
    for j in range(2): a(f"buffer_load_dwordx2 {vr(VM + 2*j, 2)}, v{V_L16}, {WS}, s{S_T0} offen offset:{j*1024 + 8} sc1")
    a(f"s_add_u32 s{S_SPIN}, s{S_SPIN}, 1")
    a(f"s_cmp_gt_u32 s{S_SPIN}, {SPIN_LIMIT}")
    a("s_cbranch_scc1 L_abort")
    a("s_waitcnt vmcnt(0)")
    a(f"v_max3_u32 v{T2}, v{KM}, v{VM}, v{VM+2}")
    a(f"v_cmp_eq_u32 vcc, -1, v{T2}")
    a(f"ds_write_b32 v{V_KMW}, v{KM}")
    a(f"ds_write_b32 v{V_KMW}, v{KM+1} offset:512")
    a(f"s_cbranch_vccnz {tag}_km")
    if opt.get('time'):
        a("s_memrealtime s[96:97]"); a("s_waitcnt lgkmcnt(0)"); a("s_mov_b32 s99, s96")
    a("s_waitcnt lgkmcnt(0)")
    a("s_barrier")
    for i in range(4):
        for hh in range(2): a(f"ds_read_b64_tr_b16 {vr(KF + 32 + 4*i + 2*hh, 2)}, v{V_KMR} offset:{i*1024 + hh*512}")
    for i in range(4): a(mf32(SM, vr(KF + 32 + 4*i, 4), vr(QF + 4*i, 4), "0" if i == 0 else vr(SM, 4)))
    a(f"v_mul_f32 v{SM}, s{S_C}, v{SM}")
    a(f"v_mul_f32 v{SM+1}, s{S_C}, v{SM+1}")
    M2, AL = SS + 4, SS + 5
    a(f"v_max3_f32 v{M2}, v{MX}, v{SM}, v{SM+1}")
    xmax(M2)
    a(f"v_sub_f32 v{AL}, v{MX}, v{M2}")
    a(f"v_sub_f32 v{SM}, v{SM}, v{M2}")
    a(f"v_sub_f32 v{SM+1}, v{SM+1}, v{M2}")
    for r in (AL, SM, SM + 1): a(f"v_exp_f32 v{r}, v{r}")
    OM_, LM = KF, KF + 16
    a(f"v_cvt_pk_bf16_f32 v{V_PB}, v{SM}, v{SM+1}")
    a(f"v_cvt_pk_bf16_f32 v{V_PB+3}, v{SM}, v{SM+1}")
    a(mf16(LM, vr(V_ONES, 2), vr(V_PB, 2), "0"))
    for j in range(4): a(mf16(OM_ + 4*j, vr(VM + 2*(j >> 1), 2), vr(V_PB + 2*(j & 1), 2), "0"))
    a(f"v_fma_f32 v{LA}, v{LA}, v{AL}, v{LM}")
    if opt.get('dumpc'):
        a("s_nop 7")
        a(f"s_lshl_b32 s{S_T0}, s{S_GRP}, 5"); a(f"s_add_u32 s{S_T0}, s{S_T0}, s{S_H}"); a(f"s_lshl_b32 s{S_T0}, s{S_T0}, 2")
        a(f"s_add_u32 s{S_T0}, s{S_T0}, s{S_WV}"); a(f"s_lshl_b32 s{S_T0}, s{S_T0}, 14"); a(f"s_add_u32 s{S_T0}, s{S_T0}, 0x8000000")
        for j, r in enumerate((QF, KF, KF + 32, VF, SS, V_PB, OA, LA, VM, TM, V_ONES, SS + 8)):
            a(f"buffer_store_dwordx4 {vr(r,4)}, v{V_L16}, {WS}, s{S_T0} offen")
            a(f"s_add_u32 s{S_T0}, s{S_T0}, 1024")
    a(f"v_rcp_f32 v{T2}, v{LA}")
    for r in range(16): a(f"v_fma_f32 v{OA+r}, v{OA+r}, v{AL}, v{OM_+r}")
    for r in range(0, 16, 2): a(f"v_pk_mul_f32 {vr(OA+r,2)}, {vr(OA+r,2)}, {vr(T2,2)} op_sel_hi:[1,0]")
    for r in range(8): a(f"v_cvt_pk_bf16_f32 v{OA+r}, v{OA+2*r}, v{OA+2*r+1}")
    for j in range(2): a(f"ds_write_b128 v{V_OWR}, {vr(OA + 4*j, 4)} offset:{j*1024}")
    a("s_waitcnt lgkmcnt(0)")
    a("s_barrier")
    for j in range(8): a(f"ds_read_b128 {vr(HF + 4*j, 4)}, v{V_EXR} offset:{j*1024}")
    def store(ct, reg):
        return (f"v_and_or_b32 v{reg}, v{reg}, -2, s{S_PH}\ns_add_u32 s{S_T0}, s{S_PST}, {ct * 32768}\n"
                f"buffer_store_dwordx4 {vr(reg,4)}, v{V_L16}, {WS}, s{S_T0} offen {st}")
    out_phase(a, HF, WO, AO, store)
    a(f"s_waitcnt vmcnt({opt.get('cdrain', 0)})")
    if opt.get('time'):
        a("s_memrealtime s[96:97]"); a("s_waitcnt lgkmcnt(0)"); a("s_mov_b32 s100, s96")
    a.label(f"{tag}_in")
    a(f"s_mov_b32 s{S_T0}, s{S_INB}")
    for i in range(8):
        a(f"buffer_load_dwordx4 {vr(HF + 4*i, 4)}, v{V_INB}, {WS}, s{S_T0} offen sc1")
        if i < 7: a(f"s_add_u32 s{S_T0}, s{S_T0}, 4096")
    a("s_mov_b64 exec, -1")
    a(f"s_add_u32 s{S_SPIN}, s{S_SPIN}, 1")
    a(f"s_cmp_gt_u32 s{S_SPIN}, {SPIN_LIMIT}")
    a("s_cbranch_scc1 L_abort")
    for i in range(8):
        a(mf32(RA, vr(HF + 4*i, 4), vr(SEL, 4), "0" if i == 0 else vr(RA, 4)))
        if i == 0: a(f"v_xor_b32 v{T2}, s{S_PH}, v{HF}")
        else: a(f"v_bitop3_b32 v{T2}, v{T2}, v{HF + 4*i}, s{S_PH} bitop3:0xf6")
    a(f"v_and_b32 v{T2}, 1, v{T2}")
    a(f"v_cmp_ne_u32 vcc, 0, v{T2}")
    a(f"s_cbranch_vccz {tag}_inok")
    a("s_mov_b64 exec, vcc")
    a(f"s_branch {tag}_in")
    a.label(f"{tag}_inok")
    a("s_nop 3")
    rnd(RA)
    for r in range(4): a(f"v_mul_f32 v{RA+r}, v{RA+r}, v{GV}")
    rnd(RA)
    for r in range(4): a(f"v_add_f32 v{RA+r}, v{RA+r}, v{RB+r}")
    a(f"v_cvt_pk_bf16_f32 v{RA}, v{RA}, v{RA+1}")
    a(f"v_cvt_pk_bf16_f32 v{RA+1}, v{RA+2}, v{RA+3}")
    a(f"s_lshl_b32 s{S_OUTO}, s{S_SEG}, 15")
    a(f"s_lshl_b32 s{S_T0}, s{S_H}, 5")
    a(f"s_add_u32 s{S_OUTO}, s{S_OUTO}, s{S_T0}")
    a(f"buffer_store_dwordx2 {vr(RA,2)}, v{V_OUT}, s[{S_O}:{S_O+3}], s{S_OUTO} offen")
    if opt.get('wb'):
        a(f"s_or_b32 s{S_T0}, s{S_H}, s{S_WV}")
        a(f"s_cmp_lg_u32 s{S_T0}, 0")
        a(f"s_cbranch_scc1 {tag}_nowb")
        a(f"s_cmp_lt_u32 s{S_SEG}, {opt['wb']}")
        a(f"s_cbranch_scc1 {tag}_nowb")
        a(f"s_cmp_eq_u32 s{S_SEG}, 63")
        a(f"s_cbranch_scc1 {tag}_nowb")
        a("buffer_wbl2 sc1")
        a.label(f"{tag}_nowb")
    a(f"s_add_u32 s{S_SEG}, s{S_SEG}, {NG}")
```

```python
from common import *

MEMB = 131072
KB = (139264, 147456)
QB = 155648
KKB = QB + 4096
LDS_BYTES = 163840

V_LA, V_P1, V_MR1, V_MR2, V_MR3, V_QW, V_L4, V_QKR, V_WVO, V_OW, V_GATH, V_PST, V_PUB, V_IDX, V_SELX, V_FL = range(16)
V_ONES = 16
V_PB = 20
V_M = 24
V_AQ, V_AK, V_AV = 56, 64, 72
V_W = 80
V_VX = (112, 120)
WQ0, WK0, WV0, WO0 = 256, 384, 128, 192

def wq(t, s): return ur(WQ0 + (s * 2 + t) * 8, 8)
def wk(t, s): return ur(WK0 + (s * 2 + t) * 8, 8)
def wv_res(t, s): return ur(WV0 + ((s - 4) * 2 + t) * 8, 8)
def wo_res(t, kbo): return ur(WO0 + (t * 2 + kbo) * 8, 8)
def Mf(s): return vr(V_M + 4 * s, 4)
def Wb(j): return V_W + 8 * j

S_STEP = 30
S_MEMRD = 31
S_PST0, S_PST1 = 32, 33
S_INB0, S_INB1 = 34, 35
S_PUBN = 36
S_PUBC = 37
S_PH = 38
S_KPF, S_VPF = 39, 40
S_EXP = 41
S_FLP = 42
S_FLA = 43
S_AVAIL = 44
S_C = 45
S_LLO, S_LRG = 46, 47
S_SELM = 48
S_KM0 = 56
S_HB_PST, S_HB_INB, S_HB_PUB = 58, 59, 60
S_KD = 61
S_SHORT = 62
S_KE, S_KE2 = 62, 64
S_HST, S_HLD = 23, 29
S_HST2, S_HLD2 = 64, 65
S_L0 = 66
S_TS = 76
S_ACC = 94

def smf(d, A, B): return f"v_smfmac_f32_16x16x64_bf16 {vr(d,4)}, {A}, {B}, v{V_IDX}"
def mf32(d, A, B, C): return f"v_mfma_f32_16x16x32_bf16 {vr(d,4)}, {A}, {B}, {C}"
def mf16(d, A, B, C): return f"v_mfma_f32_16x16x16_bf16 {vr(d,4)}, {A}, {B}, {C}"

V_TID = 123
HINT_STRIDE = [4, 8, 0]
S_KA = 40

def setup_lanes(a):
    L, T = 127, 126
    a(f"v_lshlrev_b32 v{V_LA}, 4, v{L}")
    a(f"s_lshl_b32 s{S_T0}, s{S_WV}, 13")
    a(f"v_add_u32 v{V_WVO}, s{S_T0}, v{V_LA}")
    a(f"v_add_u32 v{V_LA}, {MEMB}, v{V_LA}")
    for j, r in enumerate((V_P1, V_MR1, V_MR2, V_MR3)):
        a(f"s_xor_b32 s{S_T0}, s{S_WV}, {j}")
        a(f"s_lshl_b32 s{S_T0}, s{S_T0}, 11")
        a(f"v_add_u32 v{r}, s{S_T0}, v{V_LA}")
    bitpat(a, V_QW, L, [(5, 1, 8), (0, 15, 1)], T)
    a(f"v_and_b32 v{V_QW}, 15, v{V_QW}")
    a(f"v_and_b32 v{T}, 48, v{L}")
    a(f"v_add_u32 v{V_QW}, v{V_QW}, v{T}")
    a(f"v_lshlrev_b32 v{V_QW}, 3, v{V_QW}")
    a(f"s_lshl_b32 s{S_T0}, s{S_WV}, 10")
    a(f"s_add_u32 s{S_T0}, s{S_T0}, {QB}")
    a(f"v_add_u32 v{V_QW}, s{S_T0}, v{V_QW}")
    bitpat(a, V_QKR, L, [(1, 1, 8), (2, 15, 1)], T)
    a(f"v_and_b32 v{V_QKR}, 15, v{V_QKR}")
    a(f"v_and_b32 v{T}, 3, v{L}")
    a(f"v_lshl_add_u32 v{V_QKR}, v{T}, 4, v{V_QKR}")
    a(f"v_lshlrev_b32 v{V_QKR}, 3, v{V_QKR}")
    a(f"v_add_u32 v{V_QKR}, {QB}, v{V_QKR}")
    bitpat(a, V_OW, L, [(4, 3, 256), (2, 3, 64), (0, 1, 32), (1, 1, 4096)], T, MEMB)
    a(f"s_lshr_b32 s{S_T0}, s{S_WV}, 1")
    a(f"s_lshl_b32 s{S_T0}, s{S_T0}, 10")
    a(f"s_and_b32 s{S_T1}, s{S_WV}, 1")
    a(f"s_lshl_b32 s{S_T1}, s{S_T1}, 4")
    a(f"s_add_u32 s{S_T0}, s{S_T0}, s{S_T1}")
    a(f"v_add_u32 v{V_OW}, s{S_T0}, v{V_OW}")
    bitpat(a, T, L, [(1, 1, 16)], T)
    a(f"v_xor_b32 v{V_OW}, v{V_OW}, v{T}")
    HS = HINT_STRIDE[0]
    bitpat(a, V_L4, L, [(0, 31, HS)], T)
    NR = HINT_STRIDE[1]
    nb = NR.bit_length() - 1
    fb = (HS // 4).bit_length() - 1 if HINT_STRIDE[2] else 0
    bitpat(a, V_GATH, L, ([(0, (1 << fb) - 1, 4)] if fb else []) + [(fb, NR - 1, 32 * HS)] + [(b, 1, OOB) for b in range(nb + fb, 6)], T)
    a(f"s_cmp_eq_u32 s{S_WV}, 3")
    a(f"s_cselect_b64 vcc, -1, 0")
    a(f"v_cndmask_b32 v{V_L4}, v{V_L4}, v{V_GATH}, vcc")
    a(f"s_mul_i32 s{S_T0}, s{S_H}, {HS}")
    a(f"s_add_u32 s{S_T0}, s{S_T0}, {WS_HINT}")
    a(f"s_cmp_eq_u32 s{S_WV}, 3")
    a(f"s_cselect_b32 s{S_HST}, s{S_T0}, {OOB}")
    a(f"s_and_b32 s{S_T0}, s{S_H}, {NR - 1}")
    a(f"s_mul_i32 s{S_T0}, s{S_T0}, {32 * HS}")
    a(f"s_add_u32 s{S_T0}, s{S_T0}, {WS_HINT}")
    a(f"s_cmp_eq_u32 s{S_WV}, 0")
    a(f"s_cselect_b32 s{S_HLD}, s{S_T0}, {OOB}")
    bitpat(a, V_GATH, L, [(1, 7, 1024), (4, 3, 32), (0, 1, 16)], T)
    a(f"s_lshl_b32 s{S_T0}, s{S_WV}, 8")
    a(f"v_add_u32 v{V_GATH}, s{S_T0}, v{V_GATH}")
    bitpat(a, V_PST, L, [(4, 3, 8192), (0, 15, 16)], T)
    a(f"s_lshl_b32 s{S_T0}, s{S_WV}, 16")
    a(f"v_add_u32 v{V_PST}, s{S_T0}, v{V_PST}")
    bitpat(a, V_PUB, L, [(1, 3, 256), (0, 1, 32), (5, 1, 16), (4, 1, 8), (3, 1, OOB)], T)
    a(f"v_and_b32 v{T}, 1, v{L}")
    a(f"v_cmp_eq_u32 vcc, 1, v{T}")
    a(f"v_mov_b32 v{V_IDX}, 0x44444444")
    a(f"v_mov_b32 v{T}, 0xeeeeeeee")
    a(f"v_cndmask_b32 v{V_IDX}, v{V_IDX}, v{T}, vcc")
    a(f"v_mov_b32 v{V_SELX}, 0x3f80")
    a(f"v_mov_b32 v{T}, 0x3f800000")
    a(f"v_cndmask_b32 v{V_SELX}, v{V_SELX}, v{T}, vcc")
    a(f"v_bfe_u32 v{T}, v{L}, 1, 3")
    for r in range(4):
        a(f"v_cmp_eq_u32 s[{S_SELM+2*r}:{S_SELM+2*r+1}], {r}, v{T}")
    a(f"v_cmp_eq_u32 s[{S_L0}:{S_L0+1}], 64, v{V_TID}")
    for r in range(4):
        a(f"v_mov_b32 v{V_ONES+r}, 0x3f803f80")
        a(f"v_mov_b32 v{V_PB+r}, 0")

PSTAMP = [-1]
WPOL = ['']
AHEAD = [2]
DEPTH0 = [3]
SFX = ['']
CODEPF = [0]
S_DQ = (68, 72, 76, 80)
V_SQ, V_SO = 125, 124
ROUNDS = []
def set_rounds(order, vfirst=1):
    q = [('q', s) for s in (0, 1, 4, 5)]; k = [('k', s) for s in (0, 1, 4, 5)]; o = [('o', (0, 0)), ('o', (0, 1))]; v = [('v', 4), ('v', 5)]
    head = {0: q + k + v + o, 1: o + q + k + v, 2: [q[0], o[0]] + q[1:] + [k[0], o[1]] + k[1:] + v, 3: o + k + v + q, 4: o + q[:2] + k + q[2:] + v, 5: k + q + v + o, 6: o + v + k + q, 7: o + q + v + k}[order]
    lo, lv = [('o', (1, 0)), ('o', (1, 1))], [('v', 0), ('v', 1)]
    ROUNDS[:] = head + (lv + lo if vfirst else lo + lv)

def src_pattern(a, dst, L, T, bits, pitch):
    bitpat(a, dst, L, [(3, 1, pitch << bits[0]), (4, 1, pitch << bits[1]), (5, 1, pitch << bits[2]), (0, 1, 16)], T)
    for sh, bit in ((2, 4), (4, 2)):
        a(f"v_lshrrev_b32 v{T}, {sh}, v{L}")
        a(f"v_xor_b32 v{T}, v{T}, v{L}")
        a(f"v_and_b32 v{T}, {bit}, v{T}")
        a(f"v_lshl_add_u32 v{dst}, v{T}, 4, v{dst}")

class VmQueue:
    def __init__(self): self.q = []
    def add(self, tag, n=1): self.q += [tag] * n
    def wait(self, a, tag):
        last = max(i for i, t in enumerate(self.q) if t == tag)
        a(f"s_waitcnt vmcnt({len(self.q) - 1 - last})")
        self.q = self.q[last + 1:]
    def done(self, tag): return tag not in self.q

def issue_round(a, i, vq):
    kind, p = ROUNDS[i]
    if kind != 'o':
        a(f"s_xor_b32 s{S_T0}, s{S_WV}, {p >> 1}")
        a(f"s_lshl_b32 s{S_T0}, s{S_T0}, 20")
        a(f"s_add_u32 s{S_T0}, s{S_T0}, s{S_T2}")
        if p & 1: a(f"s_add_u32 s{S_T0}, s{S_T0}, {64 * 8192}")
        rows, pitch, v = (16, 2, 32), 8192, V_SQ
    else:
        a(f"s_lshl_b32 s{S_T0}, s{S_H}, 17")
        a(f"s_lshl_b32 s{S_T1}, s{S_WV}, 8")
        a(f"s_add_u32 s{S_T0}, s{S_T0}, s{S_T1}")
        a(f"s_add_u32 s{S_T0}, s{S_T0}, {p[1] * 65536 + p[0] * 128}")
        rows, pitch, v = (4, 2, 8), 1024, V_SO
    d = S_DQ['qkvo'.index(kind)]
    prev = 0
    for u in range(8):
        off = sum(rows[b] for b in range(3) if u >> b & 1) * pitch - (u & 3) * 1024
        if u & 3 == 0: a(f"s_add_u32 m0, s{S_T3}, {(i & 3) * 32768 + (u >> 2) * 4096}")
        if off != prev: a(f"s_add_u32 s{S_T0}, s{S_T0}, {(off - prev) & 0xffffffff:#x}")
        prev = off
        a(f"buffer_load_dwordx4 v{v}, s[{d}:{d+3}], s{S_T0} offen offset:{(u & 3)*1024} {WPOL[0]} lds")
    vq.add(('w', i), 8)

def start_weights(a, vq):
    L, T = 127, 126
    a(f"v_mov_b32 v{V_TID}, v0")
    a(f"v_and_b32 v{L}, 63, v0")
    a(f"v_lshrrev_b32 v{T}, 6, v0")
    a(f"v_readfirstlane_b32 s{S_WV}, v{T}")
    if CODEPF[0]:
        a("s_getpc_b64 s[8:9]")
        a.label("L_pc")
        a("s_and_b32 s9, s9, 0xffff")
        a("s_mov_b32 s10, L_code_end-L_pc")
        a("s_mov_b32 s11, 0x20000")
        a(f"s_lshl_b32 s{S_T0}, s{S_H}, 12")
        a(f"v_lshlrev_b32 v{T}, 4, v0")
        a(f"buffer_load_dwordx4 v[24:27], v{T}, s[8:11], s{S_T0} offen")
        vq.add('code')
    src_pattern(a, V_SQ, L, T, (0, 3, 2), 8192)
    lazy = all(k == 'q' for k, _ in ROUNDS[:DEPTH0[0]])
    if not lazy: src_pattern(a, V_SO, L, T, (0, 5, 4), 1024)
    a(f"s_lshl_b32 s{S_T3}, s{S_WV}, 13")
    a(f"s_lshr_b32 s{S_T1}, s{S_WV}, 1")
    a(f"s_lshl_b32 s{S_T1}, s{S_T1}, 7")
    a(f"s_lshl_b32 s{S_T2}, s{S_H}, 8")
    a(f"s_add_u32 s{S_T2}, s{S_T2}, s{S_T1}")
    a("s_waitcnt lgkmcnt(0)")
    def desc(base, src, size):
        a(f"s_mov_b32 s{base}, s{src}")
        a(f"s_and_b32 s{base+1}, s{src+1}, 0xffff")
        a(f"s_mov_b32 s{base+2}, {size:#x}")
        a(f"s_mov_b32 s{base+3}, 0x20000")
    desc(S_D, S_KA + 8, 256)
    register_wg(a, V_W, "L_ch_noreg", barrier=False)
    for j, d in enumerate(S_DQ):
        desc(d, S_KA + 2 * j, 0x400000)
        if lazy and j == 0:
            for i in range(DEPTH0[0]): issue_round(a, i, vq)
    if not lazy:
        for i in range(DEPTH0[0]): issue_round(a, i, vq)
    else: src_pattern(a, V_SO, L, T, (0, 5, 4), 1024)
    desc(S_WS, S_KA + 10, WS_SIZE)

def load_weights(a, hooks, vq, depth=3):
    L, T = 127, 126
    TQ, TO = V_AQ, V_AQ + 4
    TMP = V_W
    S_CB = 64
    a(f"s_mov_b32 s{S_CB}, s{S_T2}")
    bitpat(a, TO, L, [(5, 1, 1024), (4, 1, 512 + 32), (3, 1, 256 + 64), (2, 1, 128), (0, 3, 8)], T)
    a(f"s_lshl_b32 s{S_T0}, s{S_WV}, 13")
    a(f"v_add_u32 v{TO}, s{S_T0}, v{TO}")
    for j in range(1, 4): a(f"v_xor_b32 v{TO + j}, {32 * j}, v{TO}")
    a(f"s_and_b32 s{S_T0}, s{S_WV}, 1")
    a(f"s_lshl_b32 s{S_T0}, s{S_T0}, 6")
    a(f"v_xor_b32 v{TQ}, s{S_T0}, v{TO}")
    a(f"v_xor_b32 v{TQ+1}, 32, v{TQ}")
    a(f"v_xor_b32 v{TQ+2}, 8192, v{TQ}")
    a(f"v_xor_b32 v{TQ+3}, 8192, v{TQ+1}")
    for i in range(DEPTH0[0], depth):
        a(f"s_mov_b32 s{S_T2}, s{S_CB}")
        a(f"s_lshl_b32 s{S_T3}, s{S_WV}, 13")
        issue_round(a, i, vq)
    for i in range(16):
        kind, p = ROUNDS[i]
        vq.wait(a, ('w', i))
        a("s_barrier")
        if i + depth < 16:
            a(f"s_mov_b32 s{S_T2}, s{S_CB}")
            a(f"s_lshl_b32 s{S_T3}, s{S_WV}, 13")
            issue_round(a, i + depth, vq)
        if i in hooks: hooks[i](a)
        if i == PSTAMP[0]:
            a("s_memrealtime s[62:63]"); a("s_waitcnt lgkmcnt(0)"); a(f"s_sub_u32 s{S_ACC}, s62, s92"); a(f"s_lshl_b32 s{S_ACC}, s{S_ACC}, 2")
        if i and i % 2 == 0:
            for j in range(8): a(f"v_xor_b32 v{TQ + j}, 0x10000, v{TQ + j}")
        for j in range(2):
            for t in range(2):
                if i >= 12: base = TMP + 16 * j + 8 * t
                elif kind == 'q': base = WQ0 + ((p + 2 * j) * 2 + t) * 8
                elif kind == 'k': base = WK0 + ((p + 2 * j) * 2 + t) * 8
                elif kind == 'v': base = WV0 + ((p + 2 * j - 4) * 2 + t) * 8
                else: base = WO0 + ((2 * j + t) * 2 + p[1]) * 8
                ad = (TO if kind == 'o' else TQ) + 2 * j + t
                for pr in range(4):
                    a(f"ds_read_b64_tr_b16 {ur(base + 2*pr, 2)}, v{ad} offset:{(i & 1)*32768 + (pr >> 1)*4096 + (pr & 1)*2048}")
            a("s_waitcnt lgkmcnt(0)")
        if i >= 12:
            a("s_barrier")
            if i == 14: a(f"v_xor_b32 v{V_WVO}, 0x10000, v{V_WVO}")
            for q in range(8):
                a(f"ds_write_b128 v{V_WVO}, {vr(TMP + 4*q, 4)} offset:{(i & 1)*32768 + q*1024}")
            a("s_waitcnt lgkmcnt(0)")
    if ROUNDS[15][0] == 'o': a(f"v_xor_b32 v{V_WVO}, 0x10000, v{V_WVO}")

def lds_wv(s, t, h): return (s & 1) * 32768 + (s >> 1) * 4096 + t * 2048 + h * 1024
def lds_wo(t, kbo, h): return kbo * 32768 + ((t >> 1) - 2) * 4096 + (t & 1) * 2048 + h * 1024
FLIP = f"v_xor_b32 v{V_WVO}, 0x10000, v{V_WVO}"
def rd_wv(dst, s, t): return [f"ds_read_b128 {vr(dst + 4*h, 4)}, v{V_WVO} offset:{lds_wv(s, t, h)}" for h in range(2)]
def rd_wo(dst, t, kbo): return [f"ds_read_b128 {vr(dst + 4*h, 4)}, v{V_WVO} offset:{lds_wo(t, kbo, h)}" for h in range(2)]

def slot_lines():
    return [
        f"s_and_b32 s{S_T0}, s{S_STEP}, 3",
        f"s_lshl_b32 s{S_T1}, s{S_T0}, 13",
        f"s_add_u32 s{S_PUBC}, s{S_T1}, s{S_HB_PUB}",
        f"s_and_b32 s{S_T0}, s{S_T0}, 1",
        f"s_lshl_b32 s{S_T1}, s{S_T0}, 18",
        f"s_add_u32 s{S_PST0}, s{S_T1}, s{S_HB_PST}",
        f"s_add_u32 s{S_PST1}, s{S_PST0}, 32768",
        f"s_add_u32 s{S_INB0}, s{S_T1}, s{S_HB_INB}",
        f"s_add_u32 s{S_INB1}, s{S_INB0}, 4096",
        f"s_bfe_u32 s{S_PH}, s{S_STEP}, 0x10001",
        f"s_add_u32 s{S_T0}, s{S_STEP}, 1",
        f"s_and_b32 s{S_T0}, s{S_T0}, 3",
        f"s_lshl_b32 s{S_T0}, s{S_T0}, 13",
        f"s_add_u32 s{S_PUBN}, s{S_T0}, s{S_HB_PUB}",
        f"s_add_u32 s{S_MEMRD}, s{S_T0}, {WS_MEMRING - MEMB}"]

def idle_a(a, par_next):
    wv_preload(a)
    copy_export(a, par_next)

def wv_preload(a):
    for j in range(4):
        for x in rd_wv(Wb(j), j >> 1, j & 1): a(x)

def copy_export(a, par_next):
    vn = V_VX[1 - par_next]
    for r in range(4): a(f"v_mov_b32 v{vn + r}, v{V_AK + r}")

ZW = [0]
def zero_regs(a, regs):
    if ZW[0]:
        for r in regs[::2]: a(f"v_mov_b64 {vr(r, 2)}, 0")
    else:
        for r in regs: a(f"v_mov_b32 v{r}, 0")

def zero_b(a):
    zero_regs(a, list(range(V_AQ + 4, V_AQ + 8)) + list(range(V_AK, V_AK + 4)))

def idle_b(a, par_next, tag, young):
    zero_b(a)
    a(f"s_waitcnt vmcnt({young})")
    avail_check(a, tag)

def idle_c1(a):
    zero_regs(a, list(range(V_AQ, V_AQ + 4)) + list(range(V_AV, V_AV + 8)))

def idle_c(a, par_next, done=False):
    if not done: idle_c1(a)
    a("s_waitcnt vmcnt(2)")
    for r in range(V_AK + 4, V_AK + 8): a(f"v_mov_b32 v{r}, 0")

def avail_check(a, tag):
    a(f"v_readfirstlane_b32 s{S_AVAIL}, v{V_FL}")
    a(f"s_lshr_b32 s{S_T0}, s{S_AVAIL}, 16")
    a(f"s_and_b32 s{S_AVAIL}, s{S_AVAIL}, 0xffff")
    a(f"s_min_u32 s{S_AVAIL}, s{S_AVAIL}, s{S_T0}")
    a(f"s_add_u32 s{S_T0}, s{S_STEP}, {AHEAD[0]}")
    a(f"s_min_u32 s{S_T0}, s{S_T0}, 64")
    a(f"s_cmp_ge_u32 s{S_AVAIL}, s{S_T0}")
    a(f"s_cbranch_scc0 {tag}_slow")
    a.label(f"{tag}_ok")

def avail_slow(a, tag):
    a.label(f"{tag}_slow")
    a(f"buffer_load_dword v{V_FL}, off, s[{S_WS}:{S_WS+3}], s{S_FLP} sc1")
    a(f"s_add_u32 s{S_SPIN}, s{S_SPIN}, 1")
    a(f"s_cmp_gt_u32 s{S_SPIN}, {SPIN_LIMIT}")
    a("s_cbranch_scc1 L_abort")
    a("s_waitcnt vmcnt(0)")
    a(f"v_readfirstlane_b32 s{S_AVAIL}, v{V_FL}")
    a(f"s_lshr_b32 s{S_T1}, s{S_AVAIL}, 16")
    a(f"s_and_b32 s{S_AVAIL}, s{S_AVAIL}, 0xffff")
    a(f"s_min_u32 s{S_AVAIL}, s{S_AVAIL}, s{S_T1}")
    a(f"s_cmp_ge_u32 s{S_AVAIL}, s{S_T0}")
    a(f"s_cbranch_scc0 {tag}_slow")
    a(f"s_branch {tag}_ok")

def step(a, par, st, tag, opt, nxt=None):
    WS = f"s[{S_WS}:{S_WS+3}]"
    VXc, VXn = V_VX[par], V_VX[1 - par]
    Kc = KB[par] - MEMB
    T0 = V_PB + 3
    stamp = opt.get('stamp') or (None, None)
    trace = opt.get('trace', [])
    def st_list(name):
        ser = opt.get('series')
        ser = [ser] if isinstance(ser, str) else (ser or [])
        if name in ser:
            adj = -4 if name in ('pst', 'oex', 'bar4x') else 0
            return [f"s_memtime s[{S_TS}:{S_TS+1}]", f"s_lshl_b32 s{S_TS+2}, s{S_STEP}, 2", f"s_lshl_b32 s{S_TS+3}, s{S_H}, 8", f"s_add_u32 s{S_TS+2}, s{S_TS+2}, s{S_TS+3}",
                    f"s_add_u32 s{S_TS+2}, s{S_TS+2}, {WS_STAMP + 0x30000 + 0x2000 * ser.index(name) + adj}", "s_waitcnt lgkmcnt(0)", f"v_mov_b32 v{V_FL}x, s{S_TS}".replace(f"v{V_FL}x", f"v{V_PB if name in ('bar1', 'bar2') else V_VX[par] + 7 if name == 'pst' else V_AQ + 2}"),
                    f"buffer_store_dword v{V_PB if name in ('bar1', 'bar2') else V_VX[par] + 7 if name == 'pst' else V_AQ + 2}, off, {WS}, s{S_TS+2}"]
        if name in trace:
            k = 68 + trace.index(name)
            return [f"s_memtime s[{S_TS}:{S_TS+1}]", "s_waitcnt lgkmcnt(0)", f"s_cmp_eq_u32 s{S_STEP}, {opt.get('tstep', 20) + (1 if name in ('join', 'pub', 'h2iss', 'h1iss', 'pst', 'oex') else 0) + (1 if name == 'entry' and opt.get('nextentry') else 0)}",
                    f"s_cselect_b32 s{k}, s{S_TS}, s{k}"]
        if stamp[0] == name:
            return [f"s_memtime s[{S_TS}:{S_TS+1}]", "s_waitcnt lgkmcnt(0)"]
        if stamp[1] == name:
            return [f"s_memtime s[{S_TS+2}:{S_TS+3}]", "s_waitcnt lgkmcnt(0)", f"s_sub_u32 s{S_TS+2}, s{S_TS+2}, s{S_TS}",
                    f"s_cmp_lt_u32 s{S_STEP}, 2", f"s_cselect_b32 s{S_TS+2}, 3000, s{S_TS+2}", f"s_cselect_b32 s{S_TS+3}, 3000, 0", f"s_sub_u32 s{S_ACC}, s{S_ACC}, s{S_TS+3}",
                    f"s_add_u32 s{S_ACC}, s{S_ACC}, s{S_TS+2}", f"s_max_u32 s74, s74, s{S_TS+2}", f"s_min_u32 s73, s73, s{S_TS+2}",
                    f"s_cmp_gt_u32 s{S_TS+2}, {opt.get('thr', 100000)}", "s_addc_u32 s72, s72, 0"]
        return []
    def st_at(name):
        for x in st_list(name): a(x)
    sg = opt.get('sg', 0)
    a.label(f"{tag}_h1")
    a(f"s_waitcnt vmcnt({1 if sg else 0})")
    a.label(f"{tag}_entry")
    st_at('entry')
    M = V_M
    if opt.get('w0', 1): a(f"ds_write_b128 v{V_P1}, {Mf(0)}")
    if not sg:
        a(f"v_max3_u32 v{T0}, v{M+1}, v{M+3}, v{M+5}")
        a(f"v_max_u32 v{T0}, v{T0}, v{M+7}")
        a(f"v_cmp_eq_u32 vcc, -1, v{T0}")
    elif opt.get('sg2'):
        a(f"v_max_u32 v{T0}, v{M+1}, v{M+3}")
    a.label(f"{tag}_entry2")
    mains = []; F = {}
    nobg = opt.get('nobg', '')
    def add(i, *xs): F.setdefault(i, []).extend(xs)
    AQ = lambda t: V_AQ + 4 * t
    AK = lambda t: V_AK + 4 * t
    AV = lambda t: V_AV + 4 * t
    if not sg:
        for s in range(2):
            for t in range(2): mains.append(smf(AQ(t), Mf(s), wq(t, s)))
        for s in range(2):
            for t in range(2): mains.append(smf(AK(t), Mf(s), wk(t, s)))
        for s in range(2):
            for t in range(2): mains.append(smf(AV(t), Mf(s), vr(Wb(2*s + t), 8)))
        add(1, f"s_cbranch_vccnz {tag}_h1retry")
        if not opt.get('w0', 1): add(1, f"ds_write_b128 v{V_P1}, {Mf(0)}")
        add(opt.get('w1', 2), f"ds_write_b128 v{V_P1}, {Mf(1)} offset:1024")
    else:
        for s in range(2):
            for t in range(2): mains.append(smf(AQ(t), Mf(s), wq(t, s)))
            for t in range(2): mains.append(smf(AK(t), Mf(s), wk(t, s)))
            for t in range(2): mains.append(smf(AV(t), Mf(s), vr(Wb(2*s + t), 8)))
        g = sg
        if not opt.get('sg2'): add(0, f"v_max_u32 v{T0}, v{M+1}, v{M+3}")
        add(g, "s_waitcnt vmcnt(0)", f"ds_write_b128 v{V_P1}, {Mf(1)} offset:1024", f"v_max3_u32 v{T0}, v{T0}, v{M+5}, v{M+7}")
        add(g + 1, f"v_cmp_eq_u32 vcc, -1, v{T0}")
        add(g + 3, f"s_cbranch_vccnz {tag}_h1retry")
    B1 = opt.get('b1', 6)
    add(B1, "s_waitcnt lgkmcnt(0)", *st_list('prebar1'), "s_barrier", *st_list('bar1'))
    mr = (V_MR1, V_MR2, V_MR3)
    for j, s in enumerate(range(2, 8)):
        add(B1 + j, f"ds_read_b128 {Mf(s)}, v{mr[(s >> 1) - 1]} offset:{(s & 1) * 1024}")
    for s in range(2, 8):
        for t in range(2): mains.append(smf(AQ(t), Mf(s), wq(t, s)))
    wvr = [x for j in range(4) for x in rd_wv(Wb(j), 2 + (j >> 1), j & 1)]
    for i, x in enumerate(wvr): add(14 + i, x)
    for s in range(2, 4):
        for t in range(2): mains.append(smf(AV(t), Mf(s), vr(Wb(2*(s-2) + t), 8)))
    for s in range(2, 8):
        for t in range(2): mains.append(smf(AK(t), Mf(s), wk(t, s)))
    ex4 = [f"buffer_store_dwordx4 {vr(VXn,4)}, v{V_LA}, {WS}, s{S_EXP} offen sc1"]
    bg = [f"buffer_load_dwordx4 v{V_P1}, {WS}, s{S_KPF} offen sc1 lds",
          f"buffer_load_dwordx4 v{V_P1}, {WS}, s{S_KPF} offen offset:1024 sc1 lds",
          f"buffer_load_dwordx4 {vr(VXn+4,4)}, v{V_P1}, {WS}, s{S_VPF} offen offset:1024 sc1",
          f"buffer_load_dwordx4 {vr(VXn,4)}, v{V_P1}, {WS}, s{S_VPF} offen sc1",
          f"buffer_load_dword v{V_FL}, off, {WS}, s{S_FLP} sc1"]
    tpos = opt.get('tpos')
    if tpos:
        add(tpos[0] - 1, f"s_add_u32 s{S_KD}, s{S_KPF}, {32*8192}")
        add(tpos[0], f"buffer_load_dwordx4 {vr(VXn+4,4)}, v{V_P1}, {WS}, s{S_KD} offen sc1", "#forget")
        add(tpos[1], f"buffer_load_dwordx4 {vr(VXn+4,4)}, v{V_P1}, {WS}, s{S_KD} offen offset:1024 sc1", "#forget")
    vpos = opt.get('vpos', (13, 15, 17, 19, 21, 22))
    add(5, f"s_mov_b32 m0, s{S_KM0 + (1 - par)}")
    late_bg = []; bub = {}; nbub = 0
    for x, i in zip(ex4 + bg, vpos):
        if i >= 200: bub.setdefault(i - 200, []).append(x); nbub += 1
        elif i >= 100: late_bg.append((i - 100, x))
        else: add(i, x)
    add(20, f"s_sub_u32 s{S_T2}, s{S_STEP}, 1", f"s_max_i32 s{S_T2}, s{S_T2}, 0")
    add(21, f"v_mov_b32 v{V_PB}, s{S_T2}")
    add(23, f"buffer_store_dword v{V_PB}, v{V_GATH}, {WS}, s{S_FLA} offen sc1")
    sal = slot_lines() + [f"s_add_u32 s{S_EXP}, s{S_EXP}, {32*4096}", f"s_add_u32 s{S_KPF}, s{S_KPF}, {32*8192}", f"s_add_u32 s{S_VPF}, s{S_VPF}, {32*8192}"]
    if opt.get('samekv'): sal = sal[:-2]
    late_sal = []
    if opt.get('sameexp'): sal = [x for x in sal if f"s{S_EXP}," not in x]
    for j, x in enumerate(sal): F.setdefault(23 + j, []).insert(0, x)
    QF, KF = Wb(0), Wb(2)
    KX = [V_M, V_M + 4, Wb(2), Wb(2) + 4, Wb(3), Wb(3) + 4, V_M + 8, V_M + 12]
    qtr = [f"ds_read_b64_tr_b16 {vr(QF + 4*i + 2*hh, 2)}, v{V_QKR} offset:{i*1024 + hh*512}" for i in range(4) for hh in range(2)]
    kxr = [f"ds_read_b128 {vr(KX[2*i + T], 4)}, v{V_LA} offset:{Kc + T*4096 + i*1024}" for i in range(4) for T in range(2)]
    q0, q1 = AQ(0), AQ(1)
    add(22, kxr[0]); add(23, kxr[1])
    add(24, f"v_add_f32 v{q0}, v{q0}, v{q0+1}")
    add(25, f"v_add_f32 v{q0+2}, v{q0+2}, v{q0+3}")
    add(26, f"v_cvt_pk_bf16_f32 v{q0}, v{q0}, v{q0+2}")
    add(27, f"ds_write_b32 v{V_QW}, v{q0}", f"v_add_f32 v{q1}, v{q1}, v{q1+1}")
    add(28, kxr[2], f"v_add_f32 v{q1+2}, v{q1+2}, v{q1+3}")
    add(29, kxr[3], f"v_cvt_pk_bf16_f32 v{q1}, v{q1}, v{q1+2}")
    add(30, f"ds_write_b32 v{V_QW}, v{q1} offset:512")
    add(31, kxr[4]); add(32, kxr[5]); add(33, kxr[6])
    add(33, FLIP)
    B2 = opt.get('b2', 34)
    add(B2, "s_waitcnt lgkmcnt(3)", *st_list('prebar2'), "s_barrier", *st_list('bar2'))
    for j, x in enumerate(qtr): add(B2 + j, x)
    SX = lambda T: V_AQ + 4 * T
    nv4 = opt.get('nv4', 2)
    vrest = [smf(AV(t), Mf(s), wv_res(t, s)) for s in (4, 5, 6, 7) for t in range(2)]
    mains += vrest[:nv4]
    for i in range(4):
        for T in range(2):
            mains.append(mf32(SX(T), vr(KX[2*i + T], 4), vr(QF + 4*i, 4), "0" if i == 0 else vr(SX(T), 4)))
    k0, k1 = AK(0), AK(1)
    add(40, f"v_add_f32 v{k0}, v{k0}, v{k0+1}")
    add(41, f"v_add_f32 v{k0+2}, v{k0+2}, v{k0+3}")
    add(42, f"v_cvt_pk_bf16_f32 v{k0}, v{k0}, v{k0+2}", f"v_add_f32 v{k1}, v{k1}, v{k1+1}")
    add(43, f"ds_write_b32 v{V_QW}, v{k0} offset:4096", f"v_add_f32 v{k1+2}, v{k1+2}, v{k1+3}")
    add(opt.get('kx7', 44), kxr[7])
    add(44, f"v_cvt_pk_bf16_f32 v{k0+1}, v{k1}, v{k1+2}")
    add(45, f"ds_write_b32 v{V_QW}, v{k0+1} offset:4608")
    B3 = opt.get('b3', 49)
    add(B3, "s_waitcnt lgkmcnt(0)", *st_list('prebar3'), "s_barrier", *st_list('bar3'))
    ktr = [f"ds_read_b64_tr_b16 {vr(KF + 4*i + 2*hh, 2)}, v{V_QKR} offset:{4096 + i*1024 + hh*512}" for i in range(4) for hh in range(2)]
    mains += vrest[nv4:]
    for x, i in zip(ktr, opt.get('ktrpos', (49, 49, 50, 51, 52, 53, 54, 55))): add(i, x)
    ex = [f"v_exp_f32 v{V_AQ + r}, v{V_AQ + r}" for r in range(8)]
    for x, i in zip(ex, opt.get('expos', (50, 51, 52, 53, 54, 55, 56, 57))): add(i, x)
    SM = V_AK + 4
    for i in range(4):
        mains.append(mf32(SM, vr(KF + 4*i, 4), vr(QF + 4*i, 4), "0" if i == 0 else vr(SM, 4)))
    PX = V_AQ
    v0_, v1_ = AV(0), AV(1)
    add(58, f"v_cvt_pk_bf16_f32 v{PX}, v{V_AQ}, v{V_AQ+1}", f"v_cvt_pk_bf16_f32 v{PX+1}, v{V_AQ+2}, v{V_AQ+3}")
    add(59, f"v_cvt_pk_bf16_f32 v{PX+2}, v{V_AQ+4}, v{V_AQ+5}", f"v_cvt_pk_bf16_f32 v{PX+3}, v{V_AQ+6}, v{V_AQ+7}",
            f"v_add_f32 v{v0_}, v{v0_}, v{v0_+1}", f"v_add_f32 v{v0_+2}, v{v0_+2}, v{v0_+3}")
    OA, LA = V_M, V_M + 8
    mains.append(mf32(LA, vr(V_ONES, 4), vr(PX, 4), "0"))
    mains.append(mf32(OA, vr(VXc, 4), vr(PX, 4), "0"))
    mains.append(mf32(OA + 4, vr(VXc + 4, 4), vr(PX, 4), "0"))
    add(60, f"v_mul_f32 v{SM}, s{S_C}, v{SM}", f"v_mul_f32 v{SM+1}, s{S_C}, v{SM+1}")
    add(61, f"v_exp_f32 v{SM}, v{SM}", f"v_exp_f32 v{SM+1}, v{SM+1}")
    add(62, f"v_cvt_pk_bf16_f32 v{V_AK+2}, v{v0_}, v{v0_+2}", f"v_cvt_pk_bf16_f32 v{V_PB}, v{SM}, v{SM+1}",
            f"v_add_f32 v{v1_}, v{v1_}, v{v1_+1}", f"v_add_f32 v{v1_+2}, v{v1_+2}, v{v1_+3}")
    mains.append(mf16(LA, vr(V_ONES, 2), vr(V_PB, 2), vr(LA, 4)))
    add(63, f"v_cvt_pk_bf16_f32 v{V_AK+3}, v{v1_}, v{v1_+2}", f"v_cvt_pk_bf16_f32 v{V_PB+3}, v{SM}, v{SM+1}")
    mains.append(mf16(OA, vr(V_AK + 2, 2), vr(V_PB, 2), vr(OA, 4)))
    mains.append(mf16(OA + 4, vr(V_AK + 2, 2), vr(V_PB + 2, 2), vr(OA + 4, 4)))
    wo_order = [(t, kbo) for t in range(4, 8) for kbo in range(2)]
    wor = [x for j in range(4) for x in rd_wo(Wb(j), *wo_order[j])]
    npre = opt.get('npre', 4)
    for x, i in zip(wor[:npre], (64, 64, 65, 65, 65, 65, 65, 65)): add(i, x)
    drop = opt.get('drop', [])
    if drop:
        F = {i: [x for x in xs if not any(x.startswith(d) for d in drop)] for i, xs in F.items()}
    interleave(a, mains, F)
    st_at('pv')
    INV, OW = V_AQ + 0, V_AQ + 4
    a(f"v_rcp_f32 v{INV}, v{LA}")
    for hh in range(2):
        if opt.get('pkn', 1):
            for r in range(4 * hh, 4 * hh + 4, 2): a(f"v_pk_mul_f32 {vr(OA+r,2)}, {vr(OA+r,2)}, {vr(INV,2)} op_sel_hi:[1,0]")
        else:
            for r in range(4 * hh, 4 * hh + 4): a(f"v_mul_f32 v{OA+r}, v{OA+r}, v{INV}")
        for r in range(2 * hh, 2 * hh + 2): a(f"v_cvt_pk_bf16_f32 v{OW+r}, v{OA+2*r}, v{OA+2*r+1}")
        if not opt.get('ow128'): a(f"ds_write_b64 v{V_OW}, {vr(OW + 2*hh, 2)} offset:{8*hh}")
    if opt.get('ow128'): a(f"ds_write_b128 v{V_OW}, {vr(OW, 4)}")
    a(f"v_subrev_u32 v{INV+1}, s{S_LLO}, v{LA}")
    a(f"v_cmp_le_u32 vcc, s{S_LRG}, v{INV+1}")
    zm = opt.get('zm', 0)
    zacc = lambda t: mf16(V_M + 4*t, vr(V_PB + 2, 2), vr(V_PB, 2), "0") if zm == 0 else \
        "\n".join(f"v_mov_b64 {vr(V_M + 4*t + 2*j, 2)}, 0" for j in range(2)) if zm == 1 else \
        "\n".join(f"v_mov_b32 v{V_M + 4*t + j}, 0" for j in range(4))
    nb1, nb2 = opt.get('nb1', 0), opt.get('nb2', 0)
    b1l = wor[npre:npre + nb1]
    for t in range(opt.get('z1', 4)):
        a(zacc(t))
        for x in bub.get(t, []): a(x)
        for x in b1l[t::4]: a(x)
    a(f"s_cbranch_vccnz {tag}_fallback")
    a.label(f"{tag}_fbdone")
    a(f"s_waitcnt lgkmcnt({nb1})")
    st_at('prebar4')
    a("s_barrier")
    st_at('bar4')
    OF = VXc
    a(f"ds_read_b128 {vr(OF,4)}, v{V_LA}")
    a(f"ds_read_b128 {vr(OF+4,4)}, v{V_LA} offset:1024")
    HV = V_AK + 4
    a(f"s_add_u32 s{S_STEP}, s{S_STEP}, 1")
    for t in range(opt.get('z1', 4), 8):
        a(zacc(t))
        for x in bub.get(t, []): a(x)
        for x in wor[npre + nb1:npre + nb1 + nb2][t - 4::4]: a(x)
        if t == 4: a(f"v_mov_b32 v{HV}, s{S_STEP}")
    st_at('oex')
    mains = []; F = {}
    P = lambda t: V_M + 4 * t
    for t in range(4):
        for kbo in range(2): mains.append(smf(P(t), vr(OF + 4*kbo, 4), wo_res(t, kbo)))
    src = [Wb(0), Wb(1), Wb(2), Wb(3), V_AQ, V_AV, Wb(0), Wb(1)]
    for j, (t, kbo) in enumerate(wo_order): mains.append(smf(P(t), vr(OF + 4*kbo, 4), vr(src[j], 8)))
    nd = npre + nb1 + nb2
    late = wor[nd:] + [x for j in range(4, 8) for x in rd_wo(src[j], *wo_order[j])]
    n1 = 12 - nd
    lpos = [min(7, (j * 8) // max(n1, 8)) for j in range(n1)] + list(opt.get('lp', (8, 9, 9, 10)))
    for x, i in zip(late, lpos): add(i, x)
    split = opt.get('split', 0)
    def fold(t, dst):
        p = P(t)
        return [f"v_add_f32 v{p}, v{p}, v{p+1}", f"v_add_f32 v{p+2}, v{p+2}, v{p+3}", f"v_cvt_pk_bf16_f32 v{dst}, v{p}, v{p+2}"]
    for t in range(6):
        y = fold(t, P(t & 4) + (t & 3))
        add(2 * t + 3, y[0]); add(2 * t + 4, y[1], y[2])
        if t & 3 == 0: add(2 * t + 5, f"v_and_or_b32 v{P(t)}, v{P(t)}, -2, s{S_PH}")
        if split and t == 2: add(2 * t + 5, f"v_and_or_b32 v{P(0)+2}, v{P(0)+2}, -2, s{S_PH}")
    add(11, FLIP)
    for i, x in late_bg: F.setdefault(i, []).insert(0, x)
    for j, x in enumerate(late_sal): F.setdefault(12 + j, []).insert(0, x)
    y6 = fold(6, P(4) + 2); add(15, y6[0])
    sp = opt.get('st0', 11)
    F[sp].insert(0, f"buffer_store_dwordx4 {vr(P(0),4)}, v{V_PST}, {WS}, s{S_PST0} offen {st}")
    if split: F[15].insert(0, f"buffer_store_dwordx2 {vr(P(4),2)}, v{V_PST}, {WS}, s{S_PST1} offen {st}")
    probes = opt.get('probes', (14, 16))
    F.setdefault(opt.get('hintpos', 7), []).insert(0, f"buffer_store_dword v{HV}, v{V_L4}, {WS}, s{S_HST} offen {st}")
    probe = lambda j: f"buffer_load_dword v{HV + 1 + j % 3}, v{V_L4}, {WS}, s{S_HLD} offen sc1"
    for j, g in enumerate(probes):
        if g < 16: F[g].insert(0, probe(j))
    interleave(a, mains, F)
    a(y6[1]); a(y6[2])
    if split: a(f"v_and_or_b32 v{P(4)+2}, v{P(4)+2}, -2, s{S_PH}")
    for j, g in enumerate(probes):
        if g == 16: a(probe(j))
    for y in fold(7, P(4) + 3): a(y)
    if split: a(f"buffer_store_dwordx2 {vr(P(4)+2,2)}, v{V_PST}, {WS}, s{S_PST1} offen offset:8 {st}")
    else: a(f"buffer_store_dwordx4 {vr(P(4),4)}, v{V_PST}, {WS}, s{S_PST1} offen {st}")
    st_at('pst')
    SEL, RA = V_AQ, V_AV
    def h2_issue():
        for i in range(8):
            a(f"buffer_load_dwordx4 {Mf(i)}, v{V_LA}, {WS}, s{S_INB0 if i < 4 else S_INB1} offen offset:{(i & 3)*1024} sc1")
    FLG = QB + 4 - MEMB
    a(f"s_cmp_lg_u32 s{S_WV}, 0")
    a(f"s_cbranch_scc1 {tag}_others")
    PR = [HV + 1, HV + 2, HV + 3, V_AV, V_AV + 1]
    probe_to = lambda r: f"buffer_load_dword v{r}, v{V_L4}, {WS}, s{S_HLD} offen sc1"
    def check(r):
        a(f"v_cmp_gt_u32 vcc, s{S_STEP}, v{r}")
        a(f"s_cbranch_vccz {tag}_go")
    n = len(probes)
    depth = opt.get('pdepth', 4)
    queue = []
    for g in sorted(set(list(probes) + [sp, 17])):
        if g in probes: queue.append(PR[probes.index(g)])
        if g == sp or g == 17: queue.append(None)
    if sp in probes:
        pass
    def issue(r):
        a(probe_to(r)); queue.append(r)
    def wait_check(r):
        k = max(i for i, x in enumerate(queue) if x == r)
        return len(queue) - 1 - k
    sel = [f"v_cndmask_b32 v{SEL+r}, 0, v{V_SELX}, s[{S_SELM+2*r}:{S_SELM+2*r+1}]" for r in range(4)]
    nxtr = n
    issue(PR[nxtr]); nxtr += 1
    for x in sel: a(x)
    copy_export(a, 1 - par)
    if depth > nxtr:
        zero_b(a)
        issue(PR[nxtr]); nxtr += 1
    order = list(range(nxtr))
    first = True
    short = opt.get('short')
    for j in range(n):
        if short is not None: a(f"s_mov_b32 s{S_SHORT}, {1 if j in short else 0}")
        a(f"s_waitcnt vmcnt({wait_check(PR[j])})")
        check(PR[j])
        if nxtr < depth:
            issue(PR[nxtr]); order.append(nxtr); nxtr += 1
            if first: wv_preload(a)
            issue(PR[j]); order.append(j)
        else:
            issue(PR[j]); order.append(j)
        first = False
    if short is not None: a(f"s_mov_b32 s{S_SHORT}, {1 if 9 in short else 0}")
    ring = order[n:]
    a.label(f"{tag}_hl")
    for j in ring:
        a(f"s_waitcnt vmcnt({len(ring) - 1})")
        check(PR[j])
        a(probe_to(PR[j]))
        a(f"s_add_u32 s{S_ACC+3}, s{S_ACC+3}, 1")
    a(f"s_add_u32 s{S_SPIN}, s{S_SPIN}, 1")
    a(f"s_cmp_gt_u32 s{S_SPIN}, {SPIN_LIMIT}")
    a(f"s_cbranch_scc0 {tag}_hl")
    a("s_branch L_abort")
    if opt.get('al', 1): a(".p2align 5")
    a.label(f"{tag}_go")
    for _ in range(opt.get('h2pad', 0)): a("s_nop 7")
    st_at('h2iss')
    h2_issue()
    ea = opt.get('ea', 3)
    if not ea & 1: wv_preload(a)
    if not ea & 2: idle_b(a, 1 - par, f"{tag}_av0", 10 + len(probes))
    a.label(f"{tag}_h2")
    TG = RA + 4
    for i in range(8):
        a(mf32(RA, Mf(i), vr(SEL, 4), "0" if i == 0 else vr(RA, 4)))
        if i == 0: a(f"v_xor_b32 v{TG}, s{S_PH}, v{V_M}")
        else: a(f"v_bitop3_b32 v{TG}, v{TG}, v{V_M + 4*i}, s{S_PH} bitop3:0xf6")
        if split: a(f"v_bitop3_b32 v{TG}, v{TG}, v{V_M + 4*i + 2}, s{S_PH} bitop3:0xf6")
    a(f"v_and_b32 v{TG}, 1, v{TG}")
    a(f"v_cmp_ne_u32 vcc, 0, v{TG}")
    a(f"v_mov_b32 v{TG}, -1")
    a(f"v_mov_b32 v{TG+1}, -1")
    a(f"v_cvt_pk_bf16_f32 v{RA+6}, v{RA}, v{RA+1}")
    a(f"v_cvt_pk_bf16_f32 v{RA+7}, v{RA+2}, v{RA+3}")
    a(f"s_cbranch_vccnz {tag}_h2r")
    a(f"buffer_store_dwordx2 {vr(RA+6,2)}, v{V_PUB}, {WS}, s{S_PUBN} offen {st}")
    st_at('pub')
    a(f"buffer_store_dwordx2 {vr(TG,2)}, v{V_PUB}, {WS}, s{S_PUBC} offen {st}")
    if short is not None:
        a(f"s_cmp_eq_u32 s{S_SHORT}, 0")
        a(f"s_cbranch_scc1 {tag}_long")
        sw = opt.get('sw', 1)
        if sw & 1: idle_c1(a)
        if sw & 2: wv_preload(a)
        if sw & 4: idle_b(a, 1 - par, f"{tag}_av1", 63)
        avfirst = not sw & 4
        if avfirst: avail_check(a, f"{tag}_av1")
        a("s_barrier")
        if par == 0:
            a(f"s_cmp_eq_u32 s{S_STEP}, 63")
            a(f"s_cbranch_scc1 {tag}_shortlast")
        h1_issue(a, 0)
        if not sw & 1: idle_c1(a)
        if not sw & 2: wv_preload(a)
        if not sw & 4: zero_b(a)
        idle_c(a, 1 - par, True)
        a("s_waitcnt lgkmcnt(0)")
        a(f"s_branch {nxt}_h1")
        if par == 0:
            a.label(f"{tag}_shortlast")
            idle_c1(a); wv_preload(a); zero_b(a)
            a("s_branch L_last")
        a.label(f"{tag}_long")
    if ea & 1: wv_preload(a)
    if ea & 2: idle_b(a, 1 - par, f"{tag}_av0", 63)
    idle_c1(a)
    a(f"s_branch {tag}_join")
    if opt.get('al', 1): a(".p2align 5")
    for _ in range(opt.get('sh2', 0)): a(".long 0xbf800000")
    a.label(f"{tag}_others")
    if opt.get('time') or opt.get('probe_t') == 's':
        for k, (st_, reg) in enumerate(((8, 80), (62, 82))):
            a(f"s_cmp_lg_u32 s{S_STEP}, {st_}")
            a(f"s_cbranch_scc1 {tag}_nt{k}")
            a(f"s_memtime s[{reg}:{reg+1}]")
            a("s_waitcnt lgkmcnt(0)")
            a.label(f"{tag}_nt{k}")
    idle_c1(a)
    idle_a(a, 1 - par)
    zero_b(a)
    a(f"s_cmp_lg_u32 s{S_WV}, 1")
    a(f"s_cbranch_scc1 {tag}_av2_ok")
    a(f"s_waitcnt vmcnt({2 + len(probes) + len(late_bg) + nbub})")
    avail_check(a, f"{tag}_av2")
    for j in range(opt.get('dummy', 0)): a(smf(V_M + 8 + 4 * (j & 1), vr(V_W + 4 * (j & 3), 4), wq(j & 1, j & 7)))
    a.label(f"{tag}_join")
    a("s_barrier")
    for _ in range(opt.get('h1pad', 0)): a("s_nop 7")
    st_at('h1iss')
    if par == 0:
        a(f"s_cmp_eq_u32 s{S_STEP}, 63")
        a(f"s_cbranch_scc1 L_last")
    if sg and not opt.get('sgb2b'):
        a(f"buffer_load_dwordx4 {Mf(0)}, v{V_P1}, {WS}, s{S_MEMRD} offen sc1")
        a("s_waitcnt vmcnt(1)")
        for r in range(V_AK + 4, V_AK + 8): a(f"v_mov_b32 v{r}, 0")
        for _ in range(opt.get('sgpad', 0)): a("s_nop 3")
        a(f"buffer_load_dwordx4 {Mf(1)}, v{V_P1}, {WS}, s{S_MEMRD} offen offset:1024 sc1")
    else:
        h1_issue(a, 0)
        idle_c(a, 1 - par, True)
    for j in range(opt.get('dummy2', 0)): a(smf(V_M + 8 + 4 * (j & 1), vr(V_W + 4 * (j & 3), 4), wq(j & 1, j & 7)))
    a("s_waitcnt lgkmcnt(0)")
    st_at('join')
    return h2_issue, None

def h1_issue(a, j):
    WS = f"s[{S_WS}:{S_WS+3}]"
    a(f"buffer_load_dwordx4 {Mf(2*j)}, v{V_P1}, {WS}, s{S_MEMRD} offen sc1")
    a(f"buffer_load_dwordx4 {Mf(2*j + 1)}, v{V_P1}, {WS}, s{S_MEMRD} offen offset:1024 sc1")

def step_tails(a, par, tag, h2, opt):
    WS = f"s[{S_WS}:{S_WS+3}]"
    VXc = V_VX[par]
    Kc = KB[par] - MEMB
    T0 = V_PB + 3
    def spin(k):
        a(f"s_add_u32 s{S_SPIN}, s{S_SPIN}, 1")
        a(f"s_cmp_gt_u32 s{S_SPIN}, {SPIN_LIMIT}")
        a("s_cbranch_scc1 L_abort")
        a(f"s_add_u32 s{S_ACC+k}, s{S_ACC+k}, 1")
    a.label(f"{tag}_h1retry")
    a("s_mov_b64 exec, vcc")
    h1_issue(a, 0)
    a("s_mov_b64 exec, -1")
    spin(1)
    a("s_nop 2")
    for r in range(24 if opt.get('sg') else 8): a(f"v_mov_b32 v{V_AQ + r}, 0")
    a(f"s_branch {tag}_h1")
    a.label(f"{tag}_h2r")
    a("s_mov_b64 exec, vcc")
    h2[0]()
    a("s_mov_b64 exec, -1")
    if h2[1]: a(h2[1])
    spin(2)
    a(f"s_branch {tag}_h2")
    for j in (0, 2) if opt.get('short') is None else (0, 1, 2): avail_slow(a, f"{tag}_av{j}")
    a.label(f"{tag}_fallback")
    a("s_nop 7")
    a("s_nop 3")
    a("s_waitcnt lgkmcnt(0)")
    QF, KF = Wb(0), Wb(2)
    SX, SM = V_AV, V_AK + 4
    OA, LA = V_M, V_M + 8
    for i in range(4):
        for hh in range(2): a(f"ds_read_b64_tr_b16 {vr(QF + 4*i + 2*hh, 2)}, v{V_QKR} offset:{i*1024 + hh*512}")
    for T in range(2):
        for i in range(4): a(f"ds_read_b128 {vr(KF + 4*i, 4)}, v{V_LA} offset:{Kc + T*4096 + i*1024}")
        for i in range(4): a(mf32(SX + 4*T, vr(KF + 4*i, 4), vr(QF + 4*i, 4), "0" if i == 0 else vr(SX + 4*T, 4)))
        a("s_nop 7")
    for i in range(4):
        for hh in range(2): a(f"ds_read_b64_tr_b16 {vr(KF + 4*i + 2*hh, 2)}, v{V_QKR} offset:{4096 + i*1024 + hh*512}")
    for i in range(4): a(mf32(SM, vr(KF + 4*i, 4), vr(QF + 4*i, 4), "0" if i == 0 else vr(SM, 4)))
    a(f"v_mul_f32 v{SM}, s{S_C}, v{SM}")
    a(f"v_mul_f32 v{SM+1}, s{S_C}, v{SM+1}")
    MX, T2 = SM + 2, SM + 3
    a(f"v_max3_f32 v{MX}, v{SM}, v{SM+1}, v{SX}")
    for r in range(1, 7, 2): a(f"v_max3_f32 v{MX}, v{MX}, v{SX+r}, v{SX+r+1}")
    a(f"v_max_f32 v{MX}, v{MX}, v{SX+7}")
    for sw in ("v_permlane16_swap_b32", "v_permlane32_swap_b32"):
        a(f"v_mov_b32 v{T2}, v{MX}")
        a(f"{sw} v{MX}, v{T2}")
        a(f"v_max_f32 v{MX}, v{MX}, v{T2}")
    for r in list(range(SX, SX + 8)) + [SM, SM + 1]:
        a(f"v_sub_f32 v{r}, v{r}, v{MX}")
        a(f"v_exp_f32 v{r}, v{r}")
    PX = V_AQ
    for r in range(4): a(f"v_cvt_pk_bf16_f32 v{PX+r}, v{SX+2*r}, v{SX+2*r+1}")
    a(f"v_cvt_pk_bf16_f32 v{V_PB}, v{SM}, v{SM+1}")
    a(f"v_cvt_pk_bf16_f32 v{V_PB+3}, v{SM}, v{SM+1}")
    a(mf32(LA, vr(V_ONES, 4), vr(PX, 4), "0"))
    a(mf32(OA, vr(VXc, 4), vr(PX, 4), "0"))
    a(mf32(OA + 4, vr(VXc + 4, 4), vr(PX, 4), "0"))
    a(mf16(LA, vr(V_ONES, 2), vr(V_PB, 2), vr(LA, 4)))
    a(mf16(OA, vr(V_AK + 2, 2), vr(V_PB, 2), vr(OA, 4)))
    a(mf16(OA + 4, vr(V_AK + 2, 2), vr(V_PB + 2, 2), vr(OA + 4, 4)))
    wo_order = [(t, kbo) for t in range(4, 8) for kbo in range(2)]
    for j in range(4):
        for x in rd_wo(Wb(j), *wo_order[j]): a(x)
    INV, OW = V_AQ + 0, V_AQ + 4
    a(f"v_rcp_f32 v{INV}, v{LA}")
    for r in range(8): a(f"v_mul_f32 v{OA+r}, v{OA+r}, v{INV}")
    for r in range(4): a(f"v_cvt_pk_bf16_f32 v{OW+r}, v{OA+2*r}, v{OA+2*r+1}")
    a(f"ds_write_b128 v{V_OW}, {vr(OW,4)}")
    for r in range(16): a(f"v_mov_b32 v{V_M + r}, 0")
    a("s_waitcnt lgkmcnt(0)")
    a("s_nop 1")
    a(f"s_branch {tag}_fbdone")

def role_chain(a, opt):
    WS = f"s[{S_WS}:{S_WS+3}]"; DB = f"s[{S_D}:{S_D+3}]"
    vq = VmQueue()
    WPOL[0] = opt.get('wpol', '')
    ZW[0] = opt.get('zw', 0)
    AHEAD[0] = 3 if opt.get('tpos') else 2
    set_rounds(opt.get('order', 0), opt.get('vfirst', 1))
    DEPTH0[0] = 2 if opt.get('pace') else 3
    SFX[0] = ''
    HINT_STRIDE[0] = opt.get('hs', 4); HINT_STRIDE[1] = opt.get('nr', 8); HINT_STRIDE[2] = opt.get('hfull', 0)
    CODEPF[0] = opt.get('codepf', 0)
    start_weights(a, vq)
    a(f"s_mov_b32 s65, s{S_T2}")
    if opt.get('dbgtime'):
        a("s_not_b32 s96, s98"); a("s_mov_b64 exec, 1"); a("v_mov_b32 v126, s96"); a(f"buffer_atomic_umax v126, off, s[{S_D}:{S_D+3}], 0 offset:48"); a("s_mov_b64 exec, -1"); vq.add('x')
    setup_lanes(a)
    a(f"s_mov_b32 s{S_C}, {f32bits(CSCALE):#x}")
    a(f"s_mov_b32 s{S_LLO}, 0x21800000")
    a(f"s_mov_b32 s{S_LRG}, {0 if opt.get('forcefb') else 0x3c000000:#x}")
    for r in range(S_ACC, S_ACC + 4): a(f"s_mov_b32 s{r}, 0")
    a(f"s_lshl_b32 s{S_T0}, s{S_H}, 8")
    a(f"s_add_u32 s{S_HB_PST}, s{S_T0}, {WS_PART}")
    a(f"s_lshl_b32 s{S_T0}, s{S_H}, 13")
    a(f"s_add_u32 s{S_HB_INB}, s{S_T0}, {WS_PART - MEMB}")
    a(f"s_add_u32 s{S_KPF}, s{S_T0}, {WS_KX - MEMB}")
    a(f"s_add_u32 s{S_VPF}, s{S_T0}, {WS_VX - MEMB}")
    a(f"s_and_b32 s{S_T0}, s{S_H}, 3")
    a(f"s_lshl_b32 s{S_T0}, s{S_T0}, 6")
    a(f"s_lshr_b32 s{S_T1}, s{S_H}, 2")
    a(f"s_lshl_b32 s{S_T1}, s{S_T1}, 10")
    a(f"s_add_u32 s{S_T0}, s{S_T0}, s{S_T1}")
    a(f"s_add_u32 s{S_HB_PUB}, s{S_T0}, {WS_MEMRING}")
    a(f"s_lshl_b32 s{S_T0}, s{S_H}, 12")
    a(f"s_lshl_b32 s{S_T1}, s{S_WV}, 10")
    a(f"s_add_u32 s{S_T0}, s{S_T0}, s{S_T1}")
    a(f"s_add_u32 s{S_EXP}, s{S_T0}, {WS_KVM - MEMB - 32*4096}")
    a(f"s_lshl_b32 s{S_T0}, s{S_H}, 7")
    a(f"s_add_u32 s{S_FLP}, s{S_T0}, {WS_FLAG + FLAG_P * 128}")
    a(f"s_add_u32 s{S_FLA}, s{S_T0}, {WS_FLAG + FLAG_A * 128}")
    a(f"s_lshl_b32 s{S_T0}, s{S_WV}, 11")
    a(f"s_add_u32 s{S_KM0}, s{S_T0}, {KB[0]}")
    a(f"s_add_u32 s{S_KM0+1}, s{S_T0}, {KB[1]}")
    SN = V_W
    a(f"s_mov_b32 s{S_T2}, s65")
    S_OK = S_AVAIL
    PSTAMP[0] = opt.get('pstamp', -1)
    groups = opt.get('groups', [0])
    IV = V_M + 16
    srd(a, S_W, KA_MEM0, 8192)
    def seg0_loads():
        a(f"s_mov_b32 m0, s{S_KM0}")
        a("s_nop 0")
        a(f"buffer_load_dwordx4 v{V_P1}, {WS}, s{S_KPF} offen sc1 lds")
        a(f"buffer_load_dwordx4 v{V_P1}, {WS}, s{S_KPF} offen offset:1024 sc1 lds")
        a(f"buffer_load_dwordx4 {vr(V_VX[0],4)}, v{V_P1}, {WS}, s{S_VPF} offen sc1")
        a(f"buffer_load_dwordx4 {vr(V_VX[0]+4,4)}, v{V_P1}, {WS}, s{S_VPF} offen offset:1024 sc1")
    def h8(a):
        init_issue(a, IV); vq.add('init', 3)
        a(f"s_mov_b32 s{S_OK}, 0")
    def h16(a):
        assert vq.done('init')
        vq.add('fl')
        a.items.append(('x', 'forget_vm'))
        init_check(a, IV, groups, "L_ch_h16" + SFX[0])
        a(f"s_mov_b32 s{S_OK}, 1")
        if opt.get('ringpf', 1):
            for sl in range(2):
                a(f"s_add_u32 s{S_T0}, s{S_HB_INB}, {sl << 18}")
                for j in range(2):
                    a(f"buffer_load_dwordx4 {vr(V_M + 8, 4)}, v{V_P1}, {WS}, s{S_T0} offen offset:{1024 * j} sc1")
                    a.items.append(('x', 'forget_vm'))
            a(f"s_lshl_b32 s{S_T0}, s{S_H}, 10")
            a(f"s_add_u32 s{S_T0}, s{S_T0}, {WS_MEMRING - MEMB}")
            a(f"buffer_load_dwordx4 {vr(V_M + 8, 4)}, v{V_LA}, {WS}, s{S_T0} offen sc1")
            a(f"buffer_load_dword v{V_M + 12}, v{V_L4}, {WS}, s{S_HLD} offen sc1")
            a.items.append(('x', 'forget_vm'))
        a.label("L_ch_h16" + SFX[0])
        a(f"buffer_load_dword v{V_FL}, off, {WS}, s{S_FLP} sc1")
    def h24(a):
        assert vq.done('fl')
        vq.add('mem0', 2)
        a.items.append(('x', 'forget_vm'))
        a(f"buffer_load_dwordx4 {Mf(0)}, v{V_GATH}, s[{S_W}:{S_W+3}], 0 offen")
        a(f"buffer_load_dwordx4 {Mf(1)}, v{V_GATH}, s[{S_W}:{S_W+3}], 0 offen offset:128")
        a(f"v_readfirstlane_b32 s{S_T0}, v{V_FL}")
        a(f"s_lshr_b32 s{S_T1}, s{S_T0}, 16")
        a(f"s_and_b32 s{S_T0}, s{S_T0}, 0xffff")
        a(f"s_min_u32 s{S_T0}, s{S_T0}, s{S_T1}")
        a(f"s_cmp_ge_u32 s{S_T0}, {AHEAD[0]}")
        a(f"s_cselect_b32 s{S_T0}, s{S_OK}, 0")
        a(f"s_lshl_b32 s{S_OK}, s{S_T0}, 1")
        a(f"s_cmp_eq_u32 s{S_OK}, 0")
        a("s_cbranch_scc1 L_ch_h24" + SFX[0])
        seg0_loads()
        a.label("L_ch_h24" + SFX[0])
    hk = dict(zip(opt.get('hooks', (7, 11, 15)), (h8, h16, h24)))
    if opt.get('late') == 2:
        def hrel(a):
            a(f"s_cmp_eq_u32 s{S_OK}, 0")
            a("s_cbranch_scc1 L_ch_norel" + SFX[0])
            a(f"v_mov_b32 v{IV}, 1")
            a(f"buffer_store_dword v{IV}, off, {WS}, s{S_FLA} offset:4 sc1")
            a.label("L_ch_norel" + SFX[0])
        hk[opt.get('relpos', 12)] = hrel
    if opt.get('pace'):
        import copy
        vq0 = copy.deepcopy(vq.q)
        a(f"s_and_b32 s{S_T0}, s{S_H}, 3")
        a(f"s_cmp_eq_u32 s{S_T0}, 1")
        a("s_cbranch_scc1 L_ch_deep")
        a(f"s_cmp_eq_u32 s{S_H}, 31")
        a("s_cbranch_scc1 L_ch_deep")
        SFX[0] = 'a'
        load_weights(a, hk, vq, 2)
        a("s_branch L_ch_loaded")
        a.label("L_ch_deep")
        SFX[0] = 'b'
        vq.q = vq0
        load_weights(a, hk, vq, 3)
        a.label("L_ch_loaded")
    else:
        load_weights(a, hk, vq)
    if opt.get('ptime') and 'pstamp' not in opt:
        a("s_memrealtime s[62:63]"); a("s_waitcnt lgkmcnt(0)"); a(f"s_sub_u32 s{S_ACC}, s62, s92"); a(f"s_lshl_b32 s{S_ACC}, s{S_ACC}, 2"); a(f"s_add_u32 s{S_ACC}, s{S_ACC}, s{S_OK}")
    if opt.get('ponly'):
        a(f"s_lshl_b32 s{S_T0}, s{S_H}, 2"); a(f"s_add_u32 s{S_T0}, s{S_T0}, s{S_WV}"); a(f"s_lshl_b32 s{S_T0}, s{S_T0}, 5"); a(f"s_add_u32 s{S_T0}, s{S_T0}, {WS_STAMP + 4}")
        a(f"v_mov_b32 v{V_M}, s{S_ACC}")
        a(f"buffer_store_dword v{V_M}, off, {WS}, s{S_T0}")
        a("s_endpgm")
    a(f"s_mov_b32 s{S_STEP}, 0")
    a(f"s_cmp_lg_u32 s{S_OK}, 0")
    a("s_cbranch_scc1 L_ch_ready")
    wait_init(a, IV, groups, "L_ch_init")
    a(f"v_mov_b32 v{V_FL}, 0")
    if opt.get('late') == 2:
        a(f"v_mov_b32 v{IV}, 1")
        a(f"buffer_store_dword v{IV}, off, {WS}, s{S_FLA} offset:4 sc1")
    avail_check(a, "L_ch_av")
    seg0_loads()
    a.label("L_ch_ready")
    if opt.get('nokv'):
        a(f"s_mov_b32 m0, s{S_KM0+1}")
        a(f"s_nop 0")
        a(f"buffer_load_dwordx4 v{V_P1}, {WS}, s{S_KPF} offen sc1 lds")
        a(f"buffer_load_dwordx4 v{V_P1}, {WS}, s{S_KPF} offen offset:1024 sc1 lds")
        a(f"buffer_load_dwordx4 {vr(V_VX[1]+4,4)}, v{V_P1}, {WS}, s{S_VPF} offen offset:1024 sc1")
    a(f"s_add_u32 s{S_KPF}, s{S_KPF}, {32*8192}")
    a(f"s_add_u32 s{S_VPF}, s{S_VPF}, {32*8192}")
    idle_a(a, 0)
    for r in range(24): a(f"v_mov_b32 v{V_AQ + r}, 0")
    a(f"s_mov_b32 s{S_MEMRD}, {WS_MEMRING - MEMB}")
    a("s_waitcnt vmcnt(0)")
    a(f"v_cndmask_b32 v{V_GATH}, v{V_ONES}, 0, s[{S_L0}:{S_L0+1}]")
    a(f"s_cmp_ge_u32 s{S_WV}, 2")
    a(f"s_cselect_b32 s{S_FLP}, {OOB}, s{S_FLP}")
    for r in range(4): a(f"v_mov_b32 v{V_M + 8 + r}, 0")
    for j in range(2): a(f"ds_write_b128 v{V_P1}, {vr(V_M + 8, 4)} offset:{QB - MEMB + 1024*j}")
    a("s_waitcnt vmcnt(0) lgkmcnt(0)")
    for r in range(8): a(f"v_min_u32 v{V_M+r}, -2, v{V_M+r}")
    if opt.get('time'):
        a("s_mov_b32 s74, 0"); a("s_mov_b32 s73, -1"); a("s_mov_b32 s72, 0")
        a(f"s_memtime s[84:85]")
        a(f"s_memrealtime s[88:89]")
        a("s_waitcnt lgkmcnt(0)")
    if opt.get('probe_t'):
        a("s_memrealtime s[88:89]"); a("s_memtime s[84:85]"); a("s_waitcnt lgkmcnt(0)")
    if opt.get('dbgtime'): dbg_stamp(a, 13, vt=V_M + 30); a("s_waitcnt vmcnt(0)")
    a(f"s_cmp_eq_u32 s{S_MODE}, {opt.get('fastmode', 1)}")
    a("s_cbranch_scc0 L_S0_entry")
    a("s_branch L_F0_entry")
    for tag, st in (("L_F", ""), ("L_S", "sc1")):
        a(".p2align 8")
        for _ in range(opt.get('shift', 6)): a(".long 0xbf800000")
        h20 = step(a, 0, st, tag + "0", opt, tag + "1")
        h21 = step(a, 1, st, tag + "1", opt, tag + "0")
        a(f"s_branch {tag}0_h1")
        step_tails(a, 0, tag + "0", h20, opt)
        step_tails(a, 1, tag + "1", h21, opt)
    avail_slow(a, "L_ch_av")
    a.label("L_last")
    VXn = V_VX[0]
    h1_issue(a, 0)
    a("s_waitcnt vmcnt(2)")
    for r in range(V_AK + 4, V_AK + 8): a(f"v_mov_b32 v{r}, 0")
    a.label("L_last_h1")
    a("s_waitcnt vmcnt(0) lgkmcnt(0)")
    a(f"ds_write_b128 v{V_P1}, {Mf(0)}")
    a(f"v_max3_u32 v{V_PB+3}, v{V_M+1}, v{V_M+3}, v{V_M+5}")
    a(f"v_max_u32 v{V_PB+3}, v{V_PB+3}, v{V_M+7}")
    a(f"v_cmp_eq_u32 vcc, -1, v{V_PB+3}")
    a(f"ds_write_b128 v{V_P1}, {Mf(1)} offset:1024")
    a("s_cbranch_vccz L_last_ok")
    a("s_mov_b64 exec, vcc")
    h1_issue(a, 0)
    a("s_mov_b64 exec, -1")
    a(f"s_add_u32 s{S_SPIN}, s{S_SPIN}, 1")
    a(f"s_cmp_gt_u32 s{S_SPIN}, {SPIN_LIMIT}")
    a("s_cbranch_scc0 L_last_h1")
    a("s_branch L_abort")
    a.label("L_last_ok")
    mains = []; F = {}
    AK = lambda t: V_AK + 4 * t
    AV = lambda t: V_AV + 4 * t
    for s_ in range(2):
        for t in range(2): mains.append(smf(AV(t), Mf(s_), vr(Wb(2*s_ + t), 8)))
    for s_ in range(8):
        for t in range(2): mains.append(smf(AK(t), Mf(s_), wk(t, s_)))
    for s_ in (4, 5, 6, 7):
        for t in range(2): mains.append(smf(AV(t), Mf(s_), wv_res(t, s_)))
    for s_ in (2, 3):
        for t in range(2): mains.append(smf(AV(t), Mf(s_), vr(Wb(2*(s_-2) + t), 8)))
    mr = (V_MR1, V_MR2, V_MR3)
    F[3] = ["s_waitcnt lgkmcnt(0)", "s_barrier"]
    for j, s_ in enumerate(range(2, 8)): F.setdefault(3 + j, []).append(f"ds_read_b128 {Mf(s_)}, v{mr[(s_ >> 1) - 1]} offset:{(s_ & 1) * 1024}")
    for j, x in enumerate([x for j in range(4) for x in rd_wv(Wb(j), 2 + (j >> 1), j & 1)]): F.setdefault(10 + j, []).append(x)
    F.setdefault(9, []).append(f"buffer_store_dwordx4 {vr(VXn,4)}, v{V_LA}, {WS}, s{S_EXP} offen sc1")
    F.setdefault(10, []).insert(0, f"s_add_u32 s{S_EXP}, s{S_EXP}, {32*4096}")
    F.setdefault(1, []).append(f"v_mov_b32 v{V_PB}, 62")
    F.setdefault(4, []).append(f"buffer_store_dword v{V_PB}, v{V_GATH}, {WS}, s{S_FLA} offen sc1")
    def fold2(a0, a1, d0, d1):
        return [f"v_add_f32 v{a0}, v{a0}, v{a0+1}", f"v_add_f32 v{a0+2}, v{a0+2}, v{a0+3}", f"v_cvt_pk_bf16_f32 v{d0}, v{a0}, v{a0+2}",
                f"v_add_f32 v{a1}, v{a1}, v{a1+1}", f"v_add_f32 v{a1+2}, v{a1+2}, v{a1+3}", f"v_cvt_pk_bf16_f32 v{d1}, v{a1}, v{a1+2}"]
    for j, x in enumerate(fold2(AK(0), AK(1), V_AK, V_AK + 1)): F.setdefault(22 + j, []).append(x)
    interleave(a, mains, F)
    for x in fold2(AV(0), AV(1), V_AK + 2, V_AK + 3): a(x)
    a(f"buffer_store_dwordx4 {vr(V_AK,4)}, v{V_LA}, {WS}, s{S_EXP} offen {opt.get('lastst', 'sc1')}")
    if opt.get('probe_t'):
        a("s_memrealtime s[90:91]"); a("s_waitcnt lgkmcnt(0)")
        k = opt['probe_t']
        if k == 'p': a("s_sub_u32 s42, s88, s92"); a("s_lshl_b32 s42, s42, 2")
        elif k == 'l': a("s_sub_u32 s42, s90, s88")
        elif k == 'y': a("s_memtime s[42:43]"); a("s_waitcnt lgkmcnt(0)"); a("s_sub_u32 s42, s42, s84"); a("s_lshr_b32 s42, s42, 5")
        elif k == 's': a("s_sub_u32 s42, s82, s80"); a("s_lshr_b32 s42, s42, 5"); a(f"s_cmp_eq_u32 s{S_WV}, 0"); a("s_cselect_b32 s42, 0, s42")
        else: a("s_mov_b32 s42, 5000")
        a.label("L_probe")
        a("s_sleep 1"); a("s_memrealtime s[44:45]"); a("s_waitcnt lgkmcnt(0)"); a("s_sub_u32 s44, s44, s90"); a("s_cmp_lt_u32 s44, s42"); a("s_cbranch_scc1 L_probe")
    if opt.get('lastwb'): a("s_waitcnt vmcnt(0)"); a("buffer_wbl2 sc1")
    if opt.get('drain'):
        a("s_memtime s[42:43]"); a("s_waitcnt lgkmcnt(0) vmcnt(0)"); a("s_memtime s[44:45]"); a("s_waitcnt lgkmcnt(0)"); a(f"s_sub_u32 s{S_ACC+2}, s44, s42")
    a("s_nop 1")
    if opt.get('wb'):
        a(f"s_or_b32 s{S_T0}, s{S_H}, s{S_WV}")
        a(f"s_cmp_lg_u32 s{S_T0}, 0")
        a("s_cbranch_scc1 L_ch_nowb")
        a("buffer_wbl2 sc1")
        a.label("L_ch_nowb")
    if opt.get('dbgtime'): dbg_stamp(a, 14, vt=V_M + 30)
    if opt.get('time'):
        a(f"s_memtime s[86:87]")
        a(f"s_memrealtime s[90:91]")
        a("s_waitcnt lgkmcnt(0)")
        a("s_sub_u32 s86, s86, s84")
        a(f"s_lshl_b32 s{S_T0}, s{S_H}, 2")
        a(f"s_add_u32 s{S_T0}, s{S_T0}, s{S_WV}")
        a(f"s_lshl_b32 s{S_T0}, s{S_T0}, 5")
        a(f"s_add_u32 s{S_T0}, s{S_T0}, {WS_STAMP}")
        for i, s in enumerate((86, S_ACC, S_ACC + 1, S_ACC + 2, 88, 90, 92, S_ACC + 3)):
            a(f"v_mov_b32 v{V_M+i}, s{s}")
        a(f"buffer_store_dwordx4 {vr(V_M,4)}, off, {WS}, s{S_T0}")
        a(f"buffer_store_dwordx4 {vr(V_M+4,4)}, off, {WS}, s{S_T0} offset:16")
        a(f"s_add_u32 s{S_T0}, s{S_T0}, 0x8000")
        if opt.get('trace'):
            a("s_mov_b32 s40, 0"); a("s_mov_b32 s41, 0"); a("s_mov_b32 s46, 0")
            a.label("L_cal")
            a("s_memtime s[42:43]"); a("s_memrealtime s[44:45]"); a("s_waitcnt lgkmcnt(0)")
            a("s_sub_u32 s42, s42, s84"); a("s_sub_u32 s44, s44, s88")
            a("s_add_u32 s40, s40, s42"); a("s_add_u32 s41, s41, s44")
            a("s_mul_i32 s47, s46, 7"); a("s_and_b32 s47, s47, 3")
            a.label("L_cal2")
            a("s_sub_u32 s47, s47, 1"); a("s_cbranch_scc0 L_cal2")
            a("s_add_u32 s46, s46, 1"); a("s_cmp_lt_u32 s46, 256"); a("s_cbranch_scc1 L_cal")
            a(f"v_mov_b32 v{V_M+20}, s40"); a(f"v_mov_b32 v{V_M+21}, s41")
            a(f"s_add_u32 s{S_T1}, s{S_T0}, 4096")
            a(f"buffer_store_dwordx2 {vr(V_M+20,2)}, off, {WS}, s{S_T1}")
        a("s_mov_b32 s75, s84")
        if not opt.get('trace') and not opt.get('stamp'): a("s_sub_u32 s68, s82, s80")
        for i in range(8): a(f"v_mov_b32 v{V_M+8+i}, s{68+i}")
        a(f"buffer_store_dwordx4 {vr(V_M+8,4)}, off, {WS}, s{S_T0}")
        a(f"buffer_store_dwordx4 {vr(V_M+12,4)}, off, {WS}, s{S_T0} offset:16")
    a("s_endpgm")
```

```python
from common import *

MEMB = 131072
KB = (139264, 147456)
QB = 155648
KKB = QB + 4096
LDS_BYTES = 163840

V_LA, V_P1, V_MR1, V_MR2, V_MR3, V_QW, V_L4, V_QKR, V_WVO, V_OW, V_GATH, V_PST, V_PUB, V_IDX, V_SELX, V_FL = range(16)
V_ONES = 16
V_PB = 20
V_M = 24
V_AQ, V_AK, V_AV = 56, 64, 72
V_W = 80
V_VX = (112, 120)
WQ0, WK0, WV0, WO0 = 256, 384, 128, 192

def wq(t, s): return ur(WQ0 + (s * 2 + t) * 8, 8)
def wk(t, s): return ur(WK0 + (s * 2 + t) * 8, 8)
def wv_res(t, s): return ur(WV0 + ((s - 4) * 2 + t) * 8, 8)
def wo_res(t, kbo): return ur(WO0 + (t * 2 + kbo) * 8, 8)
def Mf(s): return vr(V_M + 4 * s, 4)
def Wb(j): return V_W + 8 * j

S_STEP = 30
S_MEMRD = 31
S_PST0, S_PST1 = 32, 33
S_INB0, S_INB1 = 34, 35
S_PUBN = 36
S_PUBC = 37
S_PH = 38
S_KPF, S_VPF = 39, 40
S_EXP = 41
S_FLP = 42
S_FLA = 43
S_AVAIL = 44
S_C = 45
S_LLO, S_LRG = 46, 47
S_SELM = 48
S_KM0 = 56
S_HB_PST, S_HB_INB, S_HB_PUB = 58, 59, 60
S_KD = 61
S_SHORT = 62
S_KE, S_KE2 = 62, 64
S_HST, S_HLD = 23, 29
S_HST2, S_HLD2 = 64, 65
S_L0 = 66
S_TS = 76
S_ACC = 94

def smf(d, A, B): return f"v_smfmac_f32_16x16x64_bf16 {vr(d,4)}, {A}, {B}, v{V_IDX}"
def mf32(d, A, B, C): return f"v_mfma_f32_16x16x32_bf16 {vr(d,4)}, {A}, {B}, {C}"
def mf16(d, A, B, C): return f"v_mfma_f32_16x16x16_bf16 {vr(d,4)}, {A}, {B}, {C}"

V_TID = 123
HINT_STRIDE = [4, 8, 0]
S_KA = 40

def setup_lanes(a):
    L, T = 127, 126
    a(f"v_lshlrev_b32 v{V_LA}, 4, v{L}")
    a(f"s_lshl_b32 s{S_T0}, s{S_WV}, 13")
    a(f"v_add_u32 v{V_WVO}, s{S_T0}, v{V_LA}")
    a(f"v_add_u32 v{V_LA}, {MEMB}, v{V_LA}")
    for j, r in enumerate((V_P1, V_MR1, V_MR2, V_MR3)):
        a(f"s_xor_b32 s{S_T0}, s{S_WV}, {j}")
        a(f"s_lshl_b32 s{S_T0}, s{S_T0}, 11")
        a(f"v_add_u32 v{r}, s{S_T0}, v{V_LA}")
    bitpat(a, V_QW, L, [(5, 1, 8), (0, 15, 1)], T)
    a(f"v_and_b32 v{V_QW}, 15, v{V_QW}")
    a(f"v_and_b32 v{T}, 48, v{L}")
    a(f"v_add_u32 v{V_QW}, v{V_QW}, v{T}")
    a(f"v_lshlrev_b32 v{V_QW}, 3, v{V_QW}")
    a(f"s_lshl_b32 s{S_T0}, s{S_WV}, 10")
    a(f"s_add_u32 s{S_T0}, s{S_T0}, {QB}")
    a(f"v_add_u32 v{V_QW}, s{S_T0}, v{V_QW}")
    bitpat(a, V_QKR, L, [(1, 1, 8), (2, 15, 1)], T)
    a(f"v_and_b32 v{V_QKR}, 15, v{V_QKR}")
    a(f"v_and_b32 v{T}, 3, v{L}")
    a(f"v_lshl_add_u32 v{V_QKR}, v{T}, 4, v{V_QKR}")
    a(f"v_lshlrev_b32 v{V_QKR}, 3, v{V_QKR}")
    a(f"v_add_u32 v{V_QKR}, {QB}, v{V_QKR}")
    bitpat(a, V_OW, L, [(4, 3, 256), (2, 3, 64), (0, 1, 32), (1, 1, 4096)], T, MEMB)
    a(f"s_lshr_b32 s{S_T0}, s{S_WV}, 1")
    a(f"s_lshl_b32 s{S_T0}, s{S_T0}, 10")
    a(f"s_and_b32 s{S_T1}, s{S_WV}, 1")
    a(f"s_lshl_b32 s{S_T1}, s{S_T1}, 4")
    a(f"s_add_u32 s{S_T0}, s{S_T0}, s{S_T1}")
    a(f"v_add_u32 v{V_OW}, s{S_T0}, v{V_OW}")
    bitpat(a, T, L, [(1, 1, 16)], T)
    a(f"v_xor_b32 v{V_OW}, v{V_OW}, v{T}")
    HS = HINT_STRIDE[0]
    bitpat(a, V_L4, L, [(0, 31, HS)], T)
    NR = HINT_STRIDE[1]
    nb = NR.bit_length() - 1
    fb = (HS // 4).bit_length() - 1 if HINT_STRIDE[2] else 0
    bitpat(a, V_GATH, L, ([(0, (1 << fb) - 1, 4)] if fb else []) + [(fb, NR - 1, 32 * HS)] + [(b, 1, OOB) for b in range(nb + fb, 6)], T)
    a(f"s_cmp_eq_u32 s{S_WV}, 3")
    a(f"s_cselect_b64 vcc, -1, 0")
    a(f"v_cndmask_b32 v{V_L4}, v{V_L4}, v{V_GATH}, vcc")
    a(f"s_mul_i32 s{S_T0}, s{S_H}, {HS}")
    a(f"s_add_u32 s{S_T0}, s{S_T0}, {WS_HINT}")
    a(f"s_cmp_eq_u32 s{S_WV}, 3")
    a(f"s_cselect_b32 s{S_HST}, s{S_T0}, {OOB}")
    a(f"s_and_b32 s{S_T0}, s{S_H}, {NR - 1}")
    a(f"s_mul_i32 s{S_T0}, s{S_T0}, {32 * HS}")
    a(f"s_add_u32 s{S_T0}, s{S_T0}, {WS_HINT}")
    a(f"s_cmp_eq_u32 s{S_WV}, 0")
    a(f"s_cselect_b32 s{S_HLD}, s{S_T0}, {OOB}")
    bitpat(a, V_GATH, L, [(1, 7, 1024), (4, 3, 32), (0, 1, 16)], T)
    a(f"s_lshl_b32 s{S_T0}, s{S_WV}, 8")
    a(f"v_add_u32 v{V_GATH}, s{S_T0}, v{V_GATH}")
    bitpat(a, V_PST, L, [(4, 3, 8192), (0, 15, 16)], T)
    a(f"s_lshl_b32 s{S_T0}, s{S_WV}, 16")
    a(f"v_add_u32 v{V_PST}, s{S_T0}, v{V_PST}")
    bitpat(a, V_PUB, L, [(1, 3, 256), (0, 1, 32), (5, 1, 16), (4, 1, 8), (3, 1, OOB)], T)
    a(f"v_and_b32 v{T}, 1, v{L}")
    a(f"v_cmp_eq_u32 vcc, 1, v{T}")
    a(f"v_mov_b32 v{V_IDX}, 0x44444444")
    a(f"v_mov_b32 v{T}, 0xeeeeeeee")
    a(f"v_cndmask_b32 v{V_IDX}, v{V_IDX}, v{T}, vcc")
    a(f"v_mov_b32 v{V_SELX}, 0x3f80")
    a(f"v_mov_b32 v{T}, 0x3f800000")
    a(f"v_cndmask_b32 v{V_SELX}, v{V_SELX}, v{T}, vcc")
    a(f"v_bfe_u32 v{T}, v{L}, 1, 3")
    for r in range(4):
        a(f"v_cmp_eq_u32 s[{S_SELM+2*r}:{S_SELM+2*r+1}], {r}, v{T}")
    a(f"v_cmp_eq_u32 s[{S_L0}:{S_L0+1}], 64, v{V_TID}")
    for r in range(4):
        a(f"v_mov_b32 v{V_ONES+r}, 0x3f803f80")
        a(f"v_mov_b32 v{V_PB+r}, 0")

PSTAMP = [-1]
HPERM = [0]
WPOL = ['']
AHEAD = [2]
DEPTH0 = [3]
SFX = ['']
CODEPF = [0]
S_DQ = (68, 72, 76, 80)
V_SQ, V_SO = 125, 124
ROUNDS = []
def set_rounds(order, vfirst=1):
    q = [('q', s) for s in (0, 1, 4, 5)]; k = [('k', s) for s in (0, 1, 4, 5)]; o = [('o', (0, 0)), ('o', (0, 1))]; v = [('v', 4), ('v', 5)]
    head = {0: q + k + v + o, 1: o + q + k + v, 2: [q[0], o[0]] + q[1:] + [k[0], o[1]] + k[1:] + v, 3: o + k + v + q, 4: o + q[:2] + k + q[2:] + v, 5: k + q + v + o, 6: o + v + k + q, 7: o + q + v + k}[order]
    lo, lv = [('o', (1, 0)), ('o', (1, 1))], [('v', 0), ('v', 1)]
    ROUNDS[:] = head + (lv + lo if vfirst else lo + lv)

def src_pattern(a, dst, L, T, bits, pitch):
    bitpat(a, dst, L, [(3, 1, pitch << bits[0]), (4, 1, pitch << bits[1]), (5, 1, pitch << bits[2]), (0, 1, 16)], T)
    for sh, bit in ((2, 4), (4, 2)):
        a(f"v_lshrrev_b32 v{T}, {sh}, v{L}")
        a(f"v_xor_b32 v{T}, v{T}, v{L}")
        a(f"v_and_b32 v{T}, {bit}, v{T}")
        a(f"v_lshl_add_u32 v{dst}, v{T}, 4, v{dst}")

class VmQueue:
    def __init__(self): self.q = []
    def add(self, tag, n=1): self.q += [tag] * n
    def wait(self, a, tag):
        last = max(i for i, t in enumerate(self.q) if t == tag)
        a(f"s_waitcnt vmcnt({len(self.q) - 1 - last})")
        self.q = self.q[last + 1:]
    def done(self, tag): return tag not in self.q

def issue_round(a, i, vq):
    kind, p = ROUNDS[i]
    if kind != 'o':
        a(f"s_xor_b32 s{S_T0}, s{S_WV}, {p >> 1}")
        a(f"s_lshl_b32 s{S_T0}, s{S_T0}, 20")
        a(f"s_add_u32 s{S_T0}, s{S_T0}, s{S_T2}")
        if p & 1: a(f"s_add_u32 s{S_T0}, s{S_T0}, {64 * 8192}")
        rows, pitch, v = (16, 2, 32), 8192, V_SQ
    else:
        a(f"s_lshl_b32 s{S_T0}, s{S_H}, 17")
        a(f"s_lshl_b32 s{S_T1}, s{S_WV}, 8")
        a(f"s_add_u32 s{S_T0}, s{S_T0}, s{S_T1}")
        a(f"s_add_u32 s{S_T0}, s{S_T0}, {p[1] * 65536 + p[0] * 128}")
        rows, pitch, v = (4, 2, 8), 1024, V_SO
    d = S_DQ['qkvo'.index(kind)]
    prev = 0
    for u in range(8):
        off = sum(rows[b] for b in range(3) if u >> b & 1) * pitch - (u & 3) * 1024
        if u & 3 == 0: a(f"s_add_u32 m0, s{S_T3}, {(i & 3) * 32768 + (u >> 2) * 4096}")
        if off != prev: a(f"s_add_u32 s{S_T0}, s{S_T0}, {(off - prev) & 0xffffffff:#x}")
        prev = off
        a(f"buffer_load_dwordx4 v{v}, s[{d}:{d+3}], s{S_T0} offen offset:{(u & 3)*1024} {WPOL[0]} lds")
    vq.add(('w', i), 8)

def start_weights(a, vq):
    L, T = 127, 126
    if HPERM[0]:
        a(f"s_sub_u32 s{S_T0}, s{S_H}, 9")
        a(f"s_mul_i32 s{S_T1}, s{S_T0}, 86")
        a(f"s_lshr_b32 s{S_T1}, s{S_T1}, 8")
        a(f"s_add_u32 s{S_T2}, s{S_T0}, s{S_T1}")
        a(f"s_mul_i32 s{S_T1}, s{S_T1}, 3")
        a(f"s_cmp_lg_u32 s{S_T0}, s{S_T1}")
        a(f"s_addc_u32 s{S_T2}, s{S_T2}, 0")
        a(f"s_lshl_b32 s{S_T0}, s{S_H}, 2")
        a(f"s_add_u32 s{S_T0}, s{S_T0}, 1")
        a(f"s_min_u32 s{S_T0}, s{S_T0}, 31")
        a(f"s_cmp_le_u32 s{S_H}, 8")
        a(f"s_cselect_b32 s{S_H}, s{S_T0}, s{S_T2}")
    a(f"v_mov_b32 v{V_TID}, v0")
    a(f"v_and_b32 v{L}, 63, v0")
    a(f"v_lshrrev_b32 v{T}, 6, v0")
    a(f"v_readfirstlane_b32 s{S_WV}, v{T}")
    if CODEPF[0]:
        a("s_getpc_b64 s[8:9]")
        a.label("L_pc")
        a("s_and_b32 s9, s9, 0xffff")
        a("s_mov_b32 s10, L_code_end-L_pc")
        a("s_mov_b32 s11, 0x20000")
        a(f"s_lshl_b32 s{S_T0}, s{S_H}, 12")
        a(f"v_lshlrev_b32 v{T}, 4, v0")
        a(f"buffer_load_dwordx4 v[24:27], v{T}, s[8:11], s{S_T0} offen")
        vq.add('code')
    src_pattern(a, V_SQ, L, T, (0, 3, 2), 8192)
    lazy = all(k == 'q' for k, _ in ROUNDS[:DEPTH0[0]])
    if not lazy: src_pattern(a, V_SO, L, T, (0, 5, 4), 1024)
    a(f"s_lshl_b32 s{S_T3}, s{S_WV}, 13")
    a(f"s_lshr_b32 s{S_T1}, s{S_WV}, 1")
    a(f"s_lshl_b32 s{S_T1}, s{S_T1}, 7")
    a(f"s_lshl_b32 s{S_T2}, s{S_H}, 8")
    a(f"s_add_u32 s{S_T2}, s{S_T2}, s{S_T1}")
    a("s_waitcnt lgkmcnt(0)")
    def desc(base, src, size):
        a(f"s_mov_b32 s{base}, s{src}")
        a(f"s_and_b32 s{base+1}, s{src+1}, 0xffff")
        a(f"s_mov_b32 s{base+2}, {size:#x}")
        a(f"s_mov_b32 s{base+3}, 0x20000")
    desc(S_D, S_KA + 8, 256)
    register_wg(a, V_W, "L_ch_noreg", barrier=False)
    for j, d in enumerate(S_DQ):
        desc(d, S_KA + 2 * j, 0x400000)
        if lazy and j == 0:
            for i in range(DEPTH0[0]): issue_round(a, i, vq)
    if not lazy:
        for i in range(DEPTH0[0]): issue_round(a, i, vq)
    else: src_pattern(a, V_SO, L, T, (0, 5, 4), 1024)
    desc(S_WS, S_KA + 10, WS_SIZE)

def load_weights(a, hooks, vq, depth=3):
    L, T = 127, 126
    TQ, TO = V_AQ, V_AQ + 4
    TMP = V_W
    S_CB = 64
    a(f"s_mov_b32 s{S_CB}, s{S_T2}")
    bitpat(a, TO, L, [(5, 1, 1024), (4, 1, 512 + 32), (3, 1, 256 + 64), (2, 1, 128), (0, 3, 8)], T)
    a(f"s_lshl_b32 s{S_T0}, s{S_WV}, 13")
    a(f"v_add_u32 v{TO}, s{S_T0}, v{TO}")
    for j in range(1, 4): a(f"v_xor_b32 v{TO + j}, {32 * j}, v{TO}")
    a(f"s_and_b32 s{S_T0}, s{S_WV}, 1")
    a(f"s_lshl_b32 s{S_T0}, s{S_T0}, 6")
    a(f"v_xor_b32 v{TQ}, s{S_T0}, v{TO}")
    a(f"v_xor_b32 v{TQ+1}, 32, v{TQ}")
    a(f"v_xor_b32 v{TQ+2}, 8192, v{TQ}")
    a(f"v_xor_b32 v{TQ+3}, 8192, v{TQ+1}")
    for i in range(DEPTH0[0], depth):
        a(f"s_mov_b32 s{S_T2}, s{S_CB}")
        a(f"s_lshl_b32 s{S_T3}, s{S_WV}, 13")
        issue_round(a, i, vq)
    for i in range(16):
        kind, p = ROUNDS[i]
        vq.wait(a, ('w', i))
        a("s_barrier")
        if i + depth < 16:
            a(f"s_mov_b32 s{S_T2}, s{S_CB}")
            a(f"s_lshl_b32 s{S_T3}, s{S_WV}, 13")
            issue_round(a, i + depth, vq)
        if i in hooks: hooks[i](a)
        if i == PSTAMP[0]:
            a("s_memrealtime s[62:63]"); a("s_waitcnt lgkmcnt(0)"); a(f"s_sub_u32 s{S_ACC}, s62, s92"); a(f"s_lshl_b32 s{S_ACC}, s{S_ACC}, 2")
        if i and i % 2 == 0:
            for j in range(8): a(f"v_xor_b32 v{TQ + j}, 0x10000, v{TQ + j}")
        for j in range(2):
            for t in range(2):
                if i >= 12: base = TMP + 16 * j + 8 * t
                elif kind == 'q': base = WQ0 + ((p + 2 * j) * 2 + t) * 8
                elif kind == 'k': base = WK0 + ((p + 2 * j) * 2 + t) * 8
                elif kind == 'v': base = WV0 + ((p + 2 * j - 4) * 2 + t) * 8
                else: base = WO0 + ((2 * j + t) * 2 + p[1]) * 8
                ad = (TO if kind == 'o' else TQ) + 2 * j + t
                for pr in range(4):
                    a(f"ds_read_b64_tr_b16 {ur(base + 2*pr, 2)}, v{ad} offset:{(i & 1)*32768 + (pr >> 1)*4096 + (pr & 1)*2048}")
            a("s_waitcnt lgkmcnt(0)")
        if i >= 12:
            a("s_barrier")
            if i == 14: a(f"v_xor_b32 v{V_WVO}, 0x10000, v{V_WVO}")
            for q in range(8):
                a(f"ds_write_b128 v{V_WVO}, {vr(TMP + 4*q, 4)} offset:{(i & 1)*32768 + q*1024}")
            a("s_waitcnt lgkmcnt(0)")
    if ROUNDS[15][0] == 'o': a(f"v_xor_b32 v{V_WVO}, 0x10000, v{V_WVO}")

def lds_wv(s, t, h): return (s & 1) * 32768 + (s >> 1) * 4096 + t * 2048 + h * 1024
def lds_wo(t, kbo, h): return kbo * 32768 + ((t >> 1) - 2) * 4096 + (t & 1) * 2048 + h * 1024
FLIP = f"v_xor_b32 v{V_WVO}, 0x10000, v{V_WVO}"
def rd_wv(dst, s, t): return [f"ds_read_b128 {vr(dst + 4*h, 4)}, v{V_WVO} offset:{lds_wv(s, t, h)}" for h in range(2)]
def rd_wo(dst, t, kbo): return [f"ds_read_b128 {vr(dst + 4*h, 4)}, v{V_WVO} offset:{lds_wo(t, kbo, h)}" for h in range(2)]

def slot_lines():
    return [
        f"s_and_b32 s{S_T0}, s{S_STEP}, 3",
        f"s_lshl_b32 s{S_T1}, s{S_T0}, 13",
        f"s_add_u32 s{S_PUBC}, s{S_T1}, s{S_HB_PUB}",
        f"s_and_b32 s{S_T0}, s{S_T0}, 1",
        f"s_lshl_b32 s{S_T1}, s{S_T0}, 18",
        f"s_add_u32 s{S_PST0}, s{S_T1}, s{S_HB_PST}",
        f"s_add_u32 s{S_PST1}, s{S_PST0}, 32768",
        f"s_add_u32 s{S_INB0}, s{S_T1}, s{S_HB_INB}",
        f"s_add_u32 s{S_INB1}, s{S_INB0}, 4096",
        f"s_bfe_u32 s{S_PH}, s{S_STEP}, 0x10001",
        f"s_add_u32 s{S_T0}, s{S_STEP}, 1",
        f"s_and_b32 s{S_T0}, s{S_T0}, 3",
        f"s_lshl_b32 s{S_T0}, s{S_T0}, 13",
        f"s_add_u32 s{S_PUBN}, s{S_T0}, s{S_HB_PUB}",
        f"s_add_u32 s{S_MEMRD}, s{S_T0}, {WS_MEMRING - MEMB}"]

def idle_a(a, par_next):
    wv_preload(a)
    copy_export(a, par_next)

def wv_preload(a):
    for j in range(4):
        for x in rd_wv(Wb(j), j >> 1, j & 1): a(x)

def copy_export(a, par_next):
    vn = V_VX[1 - par_next]
    for r in range(4): a(f"v_mov_b32 v{vn + r}, v{V_AK + r}")

ZW = [0]
def zero_regs(a, regs):
    if ZW[0]:
        for r in regs[::2]: a(f"v_mov_b64 {vr(r, 2)}, 0")
    else:
        for r in regs: a(f"v_mov_b32 v{r}, 0")

def zero_b(a):
    zero_regs(a, list(range(V_AQ + 4, V_AQ + 8)) + list(range(V_AK, V_AK + 4)))

def idle_b(a, par_next, tag, young):
    zero_b(a)
    a(f"s_waitcnt vmcnt({young})")
    avail_check(a, tag)

def idle_c1(a):
    zero_regs(a, list(range(V_AQ, V_AQ + 4)) + list(range(V_AV, V_AV + 8)))

def idle_c(a, par_next, done=False):
    if not done: idle_c1(a)
    a("s_waitcnt vmcnt(2)")
    for r in range(V_AK + 4, V_AK + 8): a(f"v_mov_b32 v{r}, 0")

def avail_check(a, tag):
    a(f"v_readfirstlane_b32 s{S_AVAIL}, v{V_FL}")
    a(f"s_lshr_b32 s{S_T0}, s{S_AVAIL}, 16")
    a(f"s_and_b32 s{S_AVAIL}, s{S_AVAIL}, 0xffff")
    a(f"s_min_u32 s{S_AVAIL}, s{S_AVAIL}, s{S_T0}")
    a(f"s_add_u32 s{S_T0}, s{S_STEP}, {AHEAD[0]}")
    a(f"s_min_u32 s{S_T0}, s{S_T0}, 64")
    a(f"s_cmp_ge_u32 s{S_AVAIL}, s{S_T0}")
    a(f"s_cbranch_scc0 {tag}_slow")
    a.label(f"{tag}_ok")

def avail_slow(a, tag):
    a.label(f"{tag}_slow")
    a(f"buffer_load_dword v{V_FL}, off, s[{S_WS}:{S_WS+3}], s{S_FLP} sc1")
    a(f"s_add_u32 s{S_SPIN}, s{S_SPIN}, 1")
    a(f"s_cmp_gt_u32 s{S_SPIN}, {SPIN_LIMIT}")
    a("s_cbranch_scc1 L_abort")
    a("s_waitcnt vmcnt(0)")
    a(f"v_readfirstlane_b32 s{S_AVAIL}, v{V_FL}")
    a(f"s_lshr_b32 s{S_T1}, s{S_AVAIL}, 16")
    a(f"s_and_b32 s{S_AVAIL}, s{S_AVAIL}, 0xffff")
    a(f"s_min_u32 s{S_AVAIL}, s{S_AVAIL}, s{S_T1}")
    a(f"s_cmp_ge_u32 s{S_AVAIL}, s{S_T0}")
    a(f"s_cbranch_scc0 {tag}_slow")
    a(f"s_branch {tag}_ok")

def step(a, par, st, tag, opt, nxt=None):
    WS = f"s[{S_WS}:{S_WS+3}]"
    VXc, VXn = V_VX[par], V_VX[1 - par]
    Kc = KB[par] - MEMB
    T0 = V_PB + 3
    stamp = opt.get('stamp') or (None, None)
    trace = opt.get('trace', [])
    def st_list(name):
        ser = opt.get('series')
        ser = [ser] if isinstance(ser, str) else (ser or [])
        if name in ser:
            adj = -4 if name in ('pst', 'oex', 'bar4x') else 0
            return [f"s_memtime s[{S_TS}:{S_TS+1}]", f"s_lshl_b32 s{S_TS+2}, s{S_STEP}, 2", f"s_lshl_b32 s{S_TS+3}, s{S_H}, 8", f"s_add_u32 s{S_TS+2}, s{S_TS+2}, s{S_TS+3}",
                    f"s_add_u32 s{S_TS+2}, s{S_TS+2}, {WS_STAMP + 0x30000 + 0x2000 * ser.index(name) + adj}", "s_waitcnt lgkmcnt(0)", f"v_mov_b32 v{V_FL}x, s{S_TS}".replace(f"v{V_FL}x", f"v{V_PB if name in ('bar1', 'bar2') else V_VX[par] + 7 if name == 'pst' else V_AQ + 2}"),
                    f"buffer_store_dword v{V_PB if name in ('bar1', 'bar2') else V_VX[par] + 7 if name == 'pst' else V_AQ + 2}, off, {WS}, s{S_TS+2}"]
        if name in trace:
            k = 68 + trace.index(name)
            return [f"s_memtime s[{S_TS}:{S_TS+1}]", "s_waitcnt lgkmcnt(0)", f"s_cmp_eq_u32 s{S_STEP}, {opt.get('tstep', 20) + (1 if name in ('join', 'pub', 'h2iss', 'h1iss', 'pst', 'oex') else 0) + (1 if name == 'entry' and opt.get('nextentry') else 0)}",
                    f"s_cselect_b32 s{k}, s{S_TS}, s{k}"]
        if stamp[0] == name:
            return [f"s_memtime s[{S_TS}:{S_TS+1}]", "s_waitcnt lgkmcnt(0)"]
        if stamp[1] == name:
            return [f"s_memtime s[{S_TS+2}:{S_TS+3}]", "s_waitcnt lgkmcnt(0)", f"s_sub_u32 s{S_TS+2}, s{S_TS+2}, s{S_TS}",
                    f"s_cmp_lt_u32 s{S_STEP}, 2", f"s_cselect_b32 s{S_TS+2}, 3000, s{S_TS+2}", f"s_cselect_b32 s{S_TS+3}, 3000, 0", f"s_sub_u32 s{S_ACC}, s{S_ACC}, s{S_TS+3}",
                    f"s_add_u32 s{S_ACC}, s{S_ACC}, s{S_TS+2}", f"s_max_u32 s74, s74, s{S_TS+2}", f"s_min_u32 s73, s73, s{S_TS+2}",
                    f"s_cmp_gt_u32 s{S_TS+2}, {opt.get('thr', 100000)}", "s_addc_u32 s72, s72, 0"]
        return []
    def st_at(name):
        for x in st_list(name): a(x)
    sg = opt.get('sg', 0)
    a.label(f"{tag}_h1")
    b2 = opt.get('b2nd', 0)
    a(f"s_waitcnt vmcnt({2 if b2 else 1 if sg else 0})")
    a.label(f"{tag}_entry")
    st_at('entry')
    M = V_M
    if opt.get('w0', 1): a(f"ds_write_b128 v{V_P1}, {Mf(0)}")
    if not sg:
        a(f"v_max3_u32 v{T0}, v{M+1}, v{M+3}, v{M+5}")
        a(f"v_max_u32 v{T0}, v{T0}, v{M+7}")
        a(f"v_cmp_eq_u32 vcc, -1, v{T0}")
    elif opt.get('sg2'):
        a(f"v_max_u32 v{T0}, v{M+1}, v{M+3}")
    a.label(f"{tag}_entry2")
    mains = []; F = {}
    nobg = opt.get('nobg', '')
    def add(i, *xs): F.setdefault(i, []).extend(xs)
    AQ = lambda t: V_AQ + 4 * t
    AK = lambda t: V_AK + 4 * t
    AV = lambda t: V_AV + 4 * t
    if not sg:
        for s in range(2):
            for t in range(2): mains.append(smf(AQ(t), Mf(s), wq(t, s)))
        for s in range(2):
            for t in range(2): mains.append(smf(AK(t), Mf(s), wk(t, s)))
        for s in range(2):
            for t in range(2): mains.append(smf(AV(t), Mf(s), vr(Wb(2*s + t), 8)))
        add(1, f"s_cbranch_vccnz {tag}_h1retry")
        if not opt.get('w0', 1): add(1, f"ds_write_b128 v{V_P1}, {Mf(0)}")
        add(opt.get('w1', 2), f"ds_write_b128 v{V_P1}, {Mf(1)} offset:1024")
    else:
        for s in range(2):
            for t in range(2): mains.append(smf(AQ(t), Mf(s), wq(t, s)))
            for t in range(2): mains.append(smf(AK(t), Mf(s), wk(t, s)))
            for t in range(2): mains.append(smf(AV(t), Mf(s), vr(Wb(2*s + t), 8)))
        g = sg
        if not opt.get('sg2'): add(0, f"v_max_u32 v{T0}, v{M+1}, v{M+3}")
        add(g, "s_waitcnt vmcnt(0)", f"ds_write_b128 v{V_P1}, {Mf(1)} offset:1024", f"v_max3_u32 v{T0}, v{T0}, v{M+5}, v{M+7}")
        add(g + 1, f"v_cmp_eq_u32 vcc, -1, v{T0}")
        add(g + 3, f"s_cbranch_vccnz {tag}_h1retry")
    B1 = opt.get('b1', 6)
    add(B1, "s_waitcnt lgkmcnt(0)", *st_list('prebar1'), "s_barrier", *st_list('bar1'))
    mr = (V_MR1, V_MR2, V_MR3)
    for j, s in enumerate(range(2, 8)):
        add(B1 + j, f"ds_read_b128 {Mf(s)}, v{mr[(s >> 1) - 1]} offset:{(s & 1) * 1024}")
    for s in range(2, 8):
        for t in range(2): mains.append(smf(AQ(t), Mf(s), wq(t, s)))
    wvr = [x for j in range(4) for x in rd_wv(Wb(j), 2 + (j >> 1), j & 1)]
    for i, x in enumerate(wvr): add(14 + i, x)
    for s in range(2, 4):
        for t in range(2): mains.append(smf(AV(t), Mf(s), vr(Wb(2*(s-2) + t), 8)))
    for s in range(2, 8):
        for t in range(2): mains.append(smf(AK(t), Mf(s), wk(t, s)))
    ex4 = [f"buffer_store_dwordx4 {vr(VXn,4)}, v{V_LA}, {WS}, s{S_EXP} offen sc1"]
    bg = [f"buffer_load_dwordx4 v{V_P1}, {WS}, s{S_KPF} offen sc1 lds",
          f"buffer_load_dwordx4 v{V_P1}, {WS}, s{S_KPF} offen offset:1024 sc1 lds",
          f"buffer_load_dwordx4 {vr(VXn+4,4)}, v{V_P1}, {WS}, s{S_VPF} offen offset:1024 sc1",
          f"buffer_load_dwordx4 {vr(VXn,4)}, v{V_P1}, {WS}, s{S_VPF} offen sc1",
          f"buffer_load_dword v{V_FL}, off, {WS}, s{S_FLP} sc1"]
    tpos = opt.get('tpos')
    if tpos:
        add(tpos[0] - 1, f"s_add_u32 s{S_KD}, s{S_KPF}, {32*8192}")
        add(tpos[0], f"buffer_load_dwordx4 {vr(VXn+4,4)}, v{V_P1}, {WS}, s{S_KD} offen sc1", "#forget")
        add(tpos[1], f"buffer_load_dwordx4 {vr(VXn+4,4)}, v{V_P1}, {WS}, s{S_KD} offen offset:1024 sc1", "#forget")
    vpos = opt.get('vpos', (13, 15, 17, 19, 21, 22))
    add(5, f"s_mov_b32 m0, s{S_KM0 + (1 - par)}")
    late_bg = []; bub = {}; nbub = 0
    for x, i in zip(ex4 + bg, vpos):
        if i >= 200: bub.setdefault(i - 200, []).append(x); nbub += 1
        elif i >= 100: late_bg.append((i - 100, x))
        else: add(i, x)
    if b2: add(38, f"s_waitcnt vmcnt({len(ex4) + len(bg) + 1 + (2 if tpos else 0)})")
    add(20, f"s_sub_u32 s{S_T2}, s{S_STEP}, 1", f"s_max_i32 s{S_T2}, s{S_T2}, 0")
    add(21, f"v_mov_b32 v{V_PB}, s{S_T2}")
    add(23, f"buffer_store_dword v{V_PB}, v{V_GATH}, {WS}, s{S_FLA} offen sc1")
    sal = slot_lines() + [f"s_add_u32 s{S_EXP}, s{S_EXP}, {32*4096}", f"s_add_u32 s{S_KPF}, s{S_KPF}, {32*8192}", f"s_add_u32 s{S_VPF}, s{S_VPF}, {32*8192}"]
    if opt.get('samekv'): sal = sal[:-2]
    late_sal = []
    if opt.get('sameexp'): sal = [x for x in sal if f"s{S_EXP}," not in x]
    for j, x in enumerate(sal): F.setdefault(23 + j, []).insert(0, x)
    QF, KF = Wb(0), Wb(2)
    KX = [V_M, V_M + 4, Wb(2), Wb(2) + 4, Wb(3), Wb(3) + 4, V_M + 8, V_M + 12]
    qtr = [f"ds_read_b64_tr_b16 {vr(QF + 4*i + 2*hh, 2)}, v{V_QKR} offset:{i*1024 + hh*512}" for i in range(4) for hh in range(2)]
    kxr = [f"ds_read_b128 {vr(KX[2*i + T], 4)}, v{V_LA} offset:{Kc + T*4096 + i*1024}" for i in range(4) for T in range(2)]
    q0, q1 = AQ(0), AQ(1)
    add(22, kxr[0]); add(23, kxr[1])
    add(24, f"v_add_f32 v{q0}, v{q0}, v{q0+1}")
    add(25, f"v_add_f32 v{q0+2}, v{q0+2}, v{q0+3}")
    add(26, f"v_cvt_pk_bf16_f32 v{q0}, v{q0}, v{q0+2}")
    add(27, f"ds_write_b32 v{V_QW}, v{q0}", f"v_add_f32 v{q1}, v{q1}, v{q1+1}")
    add(28, kxr[2], f"v_add_f32 v{q1+2}, v{q1+2}, v{q1+3}")
    add(29, kxr[3], f"v_cvt_pk_bf16_f32 v{q1}, v{q1}, v{q1+2}")
    add(30, f"ds_write_b32 v{V_QW}, v{q1} offset:512")
    add(31, kxr[4]); add(32, kxr[5]); add(33, kxr[6])
    add(33, FLIP)
    B2 = opt.get('b2', 34)
    add(B2, "s_waitcnt lgkmcnt(3)", *st_list('prebar2'), "s_barrier", *st_list('bar2'))
    for j, x in enumerate(qtr): add(B2 + j, x)
    SX = lambda T: V_AQ + 4 * T
    nv4 = opt.get('nv4', 2)
    vrest = [smf(AV(t), Mf(s), wv_res(t, s)) for s in (4, 5, 6, 7) for t in range(2)]
    mains += vrest[:nv4]
    for i in range(4):
        for T in range(2):
            mains.append(mf32(SX(T), vr(KX[2*i + T], 4), vr(QF + 4*i, 4), "0" if i == 0 else vr(SX(T), 4)))
    k0, k1 = AK(0), AK(1)
    add(40, f"v_add_f32 v{k0}, v{k0}, v{k0+1}")
    add(41, f"v_add_f32 v{k0+2}, v{k0+2}, v{k0+3}")
    add(42, f"v_cvt_pk_bf16_f32 v{k0}, v{k0}, v{k0+2}", f"v_add_f32 v{k1}, v{k1}, v{k1+1}")
    add(43, f"ds_write_b32 v{V_QW}, v{k0} offset:4096", f"v_add_f32 v{k1+2}, v{k1+2}, v{k1+3}")
    add(opt.get('kx7', 44), kxr[7])
    add(44, f"v_cvt_pk_bf16_f32 v{k0+1}, v{k1}, v{k1+2}")
    add(45, f"ds_write_b32 v{V_QW}, v{k0+1} offset:4608")
    B3 = opt.get('b3', 49)
    add(B3, "s_waitcnt lgkmcnt(0)", *st_list('prebar3'), "s_barrier", *st_list('bar3'))
    ktr = [f"ds_read_b64_tr_b16 {vr(KF + 4*i + 2*hh, 2)}, v{V_QKR} offset:{4096 + i*1024 + hh*512}" for i in range(4) for hh in range(2)]
    mains += vrest[nv4:]
    for x, i in zip(ktr, opt.get('ktrpos', (49, 49, 50, 51, 52, 53, 54, 55))): add(i, x)
    ex = [f"v_exp_f32 v{V_AQ + r}, v{V_AQ + r}" for r in range(8)]
    for x, i in zip(ex, opt.get('expos', (50, 51, 52, 53, 54, 55, 56, 57))): add(i, x)
    SM = V_AK + 4
    for i in range(4):
        mains.append(mf32(SM, vr(KF + 4*i, 4), vr(QF + 4*i, 4), "0" if i == 0 else vr(SM, 4)))
    PX = V_AQ
    v0_, v1_ = AV(0), AV(1)
    add(58, f"v_cvt_pk_bf16_f32 v{PX}, v{V_AQ}, v{V_AQ+1}", f"v_cvt_pk_bf16_f32 v{PX+1}, v{V_AQ+2}, v{V_AQ+3}")
    add(59, f"v_cvt_pk_bf16_f32 v{PX+2}, v{V_AQ+4}, v{V_AQ+5}", f"v_cvt_pk_bf16_f32 v{PX+3}, v{V_AQ+6}, v{V_AQ+7}",
            f"v_add_f32 v{v0_}, v{v0_}, v{v0_+1}", f"v_add_f32 v{v0_+2}, v{v0_+2}, v{v0_+3}")
    OA, LA = V_M, V_M + 8
    mains.append(mf32(LA, vr(V_ONES, 4), vr(PX, 4), "0"))
    mains.append(mf32(OA, vr(VXc, 4), vr(PX, 4), "0"))
    mains.append(mf32(OA + 4, vr(VXc + 4, 4), vr(PX, 4), "0"))
    add(60, f"v_mul_f32 v{SM}, s{S_C}, v{SM}", f"v_mul_f32 v{SM+1}, s{S_C}, v{SM+1}")
    add(61, f"v_exp_f32 v{SM}, v{SM}", f"v_exp_f32 v{SM+1}, v{SM+1}")
    add(62, f"v_cvt_pk_bf16_f32 v{V_AK+2}, v{v0_}, v{v0_+2}", f"v_cvt_pk_bf16_f32 v{V_PB}, v{SM}, v{SM+1}",
            f"v_add_f32 v{v1_}, v{v1_}, v{v1_+1}", f"v_add_f32 v{v1_+2}, v{v1_+2}, v{v1_+3}")
    mains.append(mf16(LA, vr(V_ONES, 2), vr(V_PB, 2), vr(LA, 4)))
    add(63, f"v_cvt_pk_bf16_f32 v{V_AK+3}, v{v1_}, v{v1_+2}", f"v_cvt_pk_bf16_f32 v{V_PB+3}, v{SM}, v{SM+1}")
    mains.append(mf16(OA, vr(V_AK + 2, 2), vr(V_PB, 2), vr(OA, 4)))
    mains.append(mf16(OA + 4, vr(V_AK + 2, 2), vr(V_PB + 2, 2), vr(OA + 4, 4)))
    wo_order = [(t, kbo) for t in range(4, 8) for kbo in range(2)]
    wor = [x for j in range(4) for x in rd_wo(Wb(j), *wo_order[j])]
    npre = opt.get('npre', 4)
    for x, i in zip(wor[:npre], (64, 64, 65, 65, 65, 65, 65, 65)): add(i, x)
    drop = opt.get('drop', [])
    if drop:
        F = {i: [x for x in xs if not any(x.startswith(d) for d in drop)] for i, xs in F.items()}
    interleave(a, mains, F)
    st_at('pv')
    INV, OW = V_AQ + 0, V_AQ + 4
    a(f"v_rcp_f32 v{INV}, v{LA}")
    for hh in range(2):
        if opt.get('pkn', 1):
            for r in range(4 * hh, 4 * hh + 4, 2): a(f"v_pk_mul_f32 {vr(OA+r,2)}, {vr(OA+r,2)}, {vr(INV,2)} op_sel_hi:[1,0]")
        else:
            for r in range(4 * hh, 4 * hh + 4): a(f"v_mul_f32 v{OA+r}, v{OA+r}, v{INV}")
        for r in range(2 * hh, 2 * hh + 2): a(f"v_cvt_pk_bf16_f32 v{OW+r}, v{OA+2*r}, v{OA+2*r+1}")
        if not opt.get('ow128'): a(f"ds_write_b64 v{V_OW}, {vr(OW + 2*hh, 2)} offset:{8*hh}")
    if opt.get('ow128'): a(f"ds_write_b128 v{V_OW}, {vr(OW, 4)}")
    a(f"v_subrev_u32 v{INV+1}, s{S_LLO}, v{LA}")
    a(f"v_cmp_le_u32 vcc, s{S_LRG}, v{INV+1}")
    zm = opt.get('zm', 0)
    zacc = lambda t: mf16(V_M + 4*t, vr(V_PB + 2, 2), vr(V_PB, 2), "0") if zm == 0 else \
        "\n".join(f"v_mov_b64 {vr(V_M + 4*t + 2*j, 2)}, 0" for j in range(2)) if zm == 1 else \
        "\n".join(f"v_mov_b32 v{V_M + 4*t + j}, 0" for j in range(4))
    nb1, nb2 = opt.get('nb1', 0), opt.get('nb2', 0)
    b1l = wor[npre:npre + nb1]
    for t in range(opt.get('z1', 4)):
        a(zacc(t))
        for x in bub.get(t, []): a(x)
        for x in b1l[t::4]: a(x)
    a(f"s_cbranch_vccnz {tag}_fallback")
    a.label(f"{tag}_fbdone")
    a(f"s_waitcnt lgkmcnt({nb1})")
    st_at('prebar4')
    a("s_barrier")
    st_at('bar4')
    OF = VXc
    a(f"ds_read_b128 {vr(OF,4)}, v{V_LA}")
    a(f"ds_read_b128 {vr(OF+4,4)}, v{V_LA} offset:1024")
    HV = V_AK + 4
    a(f"s_add_u32 s{S_STEP}, s{S_STEP}, 1")
    for t in range(opt.get('z1', 4), 8):
        a(zacc(t))
        for x in bub.get(t, []): a(x)
        for x in wor[npre + nb1:npre + nb1 + nb2][t - 4::4]: a(x)
        if t == 4: a(f"v_mov_b32 v{HV}, s{S_STEP}")
    st_at('oex')
    mains = []; F = {}
    P = lambda t: V_M + 4 * t
    for t in range(4):
        for kbo in range(2): mains.append(smf(P(t), vr(OF + 4*kbo, 4), wo_res(t, kbo)))
    src = [Wb(0), Wb(1), Wb(2), Wb(3), V_AQ, V_AV, Wb(0), Wb(1)]
    for j, (t, kbo) in enumerate(wo_order): mains.append(smf(P(t), vr(OF + 4*kbo, 4), vr(src[j], 8)))
    nd = npre + nb1 + nb2
    late = wor[nd:] + [x for j in range(4, 8) for x in rd_wo(src[j], *wo_order[j])]
    n1 = 12 - nd
    lpos = [min(7, (j * 8) // max(n1, 8)) for j in range(n1)] + list(opt.get('lp', (8, 9, 9, 10)))
    for x, i in zip(late, lpos): add(i, x)
    split = opt.get('split', 0)
    def fold(t, dst):
        p = P(t)
        return [f"v_add_f32 v{p}, v{p}, v{p+1}", f"v_add_f32 v{p+2}, v{p+2}, v{p+3}", f"v_cvt_pk_bf16_f32 v{dst}, v{p}, v{p+2}"]
    for t in range(6):
        y = fold(t, P(t & 4) + (t & 3))
        add(2 * t + 3, y[0]); add(2 * t + 4, y[1], y[2])
        if t & 3 == 0: add(2 * t + 5, f"v_and_or_b32 v{P(t)}, v{P(t)}, -2, s{S_PH}")
        if split and t == 2: add(2 * t + 5, f"v_and_or_b32 v{P(0)+2}, v{P(0)+2}, -2, s{S_PH}")
    add(11, FLIP)
    for i, x in late_bg: F.setdefault(i, []).insert(0, x)
    for j, x in enumerate(late_sal): F.setdefault(12 + j, []).insert(0, x)
    y6 = fold(6, P(4) + 2); add(15, y6[0])
    sp = opt.get('st0', 11)
    F[sp].insert(0, f"buffer_store_dwordx4 {vr(P(0),4)}, v{V_PST}, {WS}, s{S_PST0} offen {st}")
    if split: F[15].insert(0, f"buffer_store_dwordx2 {vr(P(4),2)}, v{V_PST}, {WS}, s{S_PST1} offen {st}")
    probes = opt.get('probes', (14, 16))
    blind = opt.get('blind')
    if blind is not None: probes = ()
    else: F.setdefault(opt.get('hintpos', 7), []).insert(0, f"buffer_store_dword v{HV}, v{V_L4}, {WS}, s{S_HST} offen {st}")
    probe = lambda j: f"buffer_load_dword v{HV + 1 + j % 3}, v{V_L4}, {WS}, s{S_HLD} offen sc1"
    for j, g in enumerate(probes):
        if g < 16: F[g].insert(0, probe(j))
    interleave(a, mains, F)
    a(y6[1]); a(y6[2])
    if split: a(f"v_and_or_b32 v{P(4)+2}, v{P(4)+2}, -2, s{S_PH}")
    for j, g in enumerate(probes):
        if g == 16: a(probe(j))
    for y in fold(7, P(4) + 3): a(y)
    if split: a(f"buffer_store_dwordx2 {vr(P(4)+2,2)}, v{V_PST}, {WS}, s{S_PST1} offen offset:8 {st}")
    else: a(f"buffer_store_dwordx4 {vr(P(4),4)}, v{V_PST}, {WS}, s{S_PST1} offen {st}")
    st_at('pst')
    SEL, RA = V_AQ, V_AV
    def h2_issue():
        for i in range(8):
            a(f"buffer_load_dwordx4 {Mf(i)}, v{V_LA}, {WS}, s{S_INB0 if i < 4 else S_INB1} offen offset:{(i & 3)*1024} sc1")
    FLG = QB + 4 - MEMB
    a(f"s_cmp_lg_u32 s{S_WV}, 0")
    a(f"s_cbranch_scc1 {tag}_others")
    if blind is not None:
        TG = RA + 4
        for r in range(4): a(f"v_cndmask_b32 v{SEL+r}, 0, v{V_SELX}, s[{S_SELM+2*r}:{S_SELM+2*r+1}]")
        copy_export(a, 1 - par)
        if blind & 1: zero_b(a)
        if blind & 2:
            a("s_waitcnt vmcnt(2)")
            avail_check(a, f"{tag}_av0")
        if blind & 4:
            for r in range(V_AK + 4, V_AK + 8): a(f"v_mov_b32 v{r}, 0")
        for _ in range(opt.get('h2pad', 0)): a("s_nop 7")
        h2_issue()
        for _ in range(opt.get('h2gap', 0)): a("s_nop 7")
        for i in range(8):
            a(f"buffer_load_dwordx4 {vr(V_W + 4*i, 4)}, v{V_LA}, {WS}, s{S_INB0 if i < 4 else S_INB1} offen offset:{(i & 3)*1024} sc1")
        def red(base, fail):
            for i in range(8):
                a(mf32(RA, vr(base + 4*i, 4), vr(SEL, 4), "0" if i == 0 else vr(RA, 4)))
                if i == 0: a(f"v_xor_b32 v{TG}, s{S_PH}, v{base}")
                else: a(f"v_bitop3_b32 v{TG}, v{TG}, v{base + 4*i}, s{S_PH} bitop3:0xf6")
            a(f"v_and_b32 v{TG}, 1, v{TG}")
            a(f"v_cmp_ne_u32 vcc, 0, v{TG}")
            a(f"v_mov_b32 v{TG}, -1")
            a(f"v_mov_b32 v{TG+1}, -1")
            a(f"v_cvt_pk_bf16_f32 v{RA+6}, v{RA}, v{RA+1}")
            a(f"v_cvt_pk_bf16_f32 v{RA+7}, v{RA+2}, v{RA+3}")
            a(f"s_cbranch_vccnz {fail}")
        red(V_M, f"{tag}_b2")
        a(f"s_branch {tag}_pubit")
        a.label(f"{tag}_b2")
        a.items.append(('x', 'set_vm', [set(('v', r) for r in range(V_W + 4*i, V_W + 4*i + 4)) for i in range(8)]))
        a(f"s_add_u32 s{S_ACC+3}, s{S_ACC+3}, 1")
        red(V_W, f"{tag}_b3")
        a(f"s_branch {tag}_pubit")
        a.label(f"{tag}_b3")
        a("s_mov_b64 vcc, -1")
        a(f"s_branch {tag}_h2r")
    PR = [HV + 1, HV + 2, HV + 3, V_AV, V_AV + 1]
    probe_to = lambda r: f"buffer_load_dword v{r}, v{V_L4}, {WS}, s{S_HLD} offen sc1"
    def check(r):
        a(f"v_cmp_gt_u32 vcc, s{S_STEP}, v{r}")
        a(f"s_cbranch_vccz {tag}_go")
    n = len(probes)
    depth = opt.get('pdepth', 4)
    queue = []
    for g in sorted(set(list(probes) + [sp, 17])):
        if g in probes: queue.append(PR[probes.index(g)])
        if g == sp or g == 17: queue.append(None)
    if sp in probes:
        pass
    def issue(r):
        a(probe_to(r)); queue.append(r)
    def wait_check(r):
        k = max(i for i, x in enumerate(queue) if x == r)
        return len(queue) - 1 - k
    sel = [f"v_cndmask_b32 v{SEL+r}, 0, v{V_SELX}, s[{S_SELM+2*r}:{S_SELM+2*r+1}]" for r in range(4)]
    nxtr = n
    issue(PR[nxtr]); nxtr += 1
    for x in sel: a(x)
    copy_export(a, 1 - par)
    if depth > nxtr:
        zero_b(a)
        issue(PR[nxtr]); nxtr += 1
    order = list(range(nxtr))
    first = True
    short = opt.get('short')
    for j in range(n):
        if short is not None: a(f"s_mov_b32 s{S_SHORT}, {1 if j in short else 0}")
        a(f"s_waitcnt vmcnt({wait_check(PR[j])})")
        check(PR[j])
        if nxtr < depth:
            issue(PR[nxtr]); order.append(nxtr); nxtr += 1
            if first: wv_preload(a)
            issue(PR[j]); order.append(j)
        else:
            issue(PR[j]); order.append(j)
        first = False
    if short is not None: a(f"s_mov_b32 s{S_SHORT}, {1 if 9 in short else 0}")
    ring = order[n:]
    a.label(f"{tag}_hl")
    for j in ring:
        a(f"s_waitcnt vmcnt({len(ring) - 1})")
        check(PR[j])
        a(probe_to(PR[j]))
        a(f"s_add_u32 s{S_ACC+3}, s{S_ACC+3}, 1")
    a(f"s_add_u32 s{S_SPIN}, s{S_SPIN}, 1")
    a(f"s_cmp_gt_u32 s{S_SPIN}, {SPIN_LIMIT}")
    a(f"s_cbranch_scc0 {tag}_hl")
    a("s_branch L_abort")
    if opt.get('al', 1): a(".p2align 5")
    a.label(f"{tag}_go")
    for _ in range(opt.get('h2pad', 0)): a("s_nop 7")
    st_at('h2iss')
    h2_issue()
    ea = opt.get('ea', 3)
    if not ea & 1: wv_preload(a)
    if not ea & 2: idle_b(a, 1 - par, f"{tag}_av0", 10 + len(probes))
    a.label(f"{tag}_h2")
    TG = RA + 4
    for i in range(8):
        a(mf32(RA, Mf(i), vr(SEL, 4), "0" if i == 0 else vr(RA, 4)))
        if i == 0: a(f"v_xor_b32 v{TG}, s{S_PH}, v{V_M}")
        else: a(f"v_bitop3_b32 v{TG}, v{TG}, v{V_M + 4*i}, s{S_PH} bitop3:0xf6")
        if split: a(f"v_bitop3_b32 v{TG}, v{TG}, v{V_M + 4*i + 2}, s{S_PH} bitop3:0xf6")
    a(f"v_and_b32 v{TG}, 1, v{TG}")
    a(f"v_cmp_ne_u32 vcc, 0, v{TG}")
    a(f"v_mov_b32 v{TG}, -1")
    a(f"v_mov_b32 v{TG+1}, -1")
    a(f"v_cvt_pk_bf16_f32 v{RA+6}, v{RA}, v{RA+1}")
    a(f"v_cvt_pk_bf16_f32 v{RA+7}, v{RA+2}, v{RA+3}")
    a(f"s_cbranch_vccnz {tag}_h2r")
    a.label(f"{tag}_pubit")
    a(f"buffer_store_dwordx2 {vr(RA+6,2)}, v{V_PUB}, {WS}, s{S_PUBN} offen {st}")
    st_at('pub')
    a(f"buffer_store_dwordx2 {vr(TG,2)}, v{V_PUB}, {WS}, s{S_PUBC} offen {st}")
    if short is not None:
        a(f"s_cmp_eq_u32 s{S_SHORT}, 0")
        a(f"s_cbranch_scc1 {tag}_long")
        sw = opt.get('sw', 1)
        if sw & 1: idle_c1(a)
        if sw & 2: wv_preload(a)
        if sw & 4: idle_b(a, 1 - par, f"{tag}_av1", 63)
        avfirst = not sw & 4
        if avfirst: avail_check(a, f"{tag}_av1")
        a("s_barrier")
        if par == 0:
            a(f"s_cmp_eq_u32 s{S_STEP}, 63")
            a(f"s_cbranch_scc1 {tag}_shortlast")
        h1_issue(a, 0)
        if not sw & 1: idle_c1(a)
        if not sw & 2: wv_preload(a)
        if not sw & 4: zero_b(a)
        idle_c(a, 1 - par, True)
        a("s_waitcnt lgkmcnt(0)")
        a(f"s_branch {nxt}_h1")
        if par == 0:
            a.label(f"{tag}_shortlast")
            idle_c1(a); wv_preload(a); zero_b(a)
            a("s_branch L_last")
        a.label(f"{tag}_long")
    if blind is not None:
        if not blind & 1: zero_b(a)
        if not blind & 2: avail_check(a, f"{tag}_av0")
        idle_c1(a)
        a("s_waitcnt vmcnt(2)")
        wv_preload(a)
    else:
        if ea & 1: wv_preload(a)
        if ea & 2: idle_b(a, 1 - par, f"{tag}_av0", 63)
        idle_c1(a)
    a(f"s_branch {tag}_join")
    if opt.get('al', 1): a(".p2align 5")
    for _ in range(opt.get('sh2', 0)): a(".long 0xbf800000")
    a.label(f"{tag}_others")
    if opt.get('time') or opt.get('probe_t') == 's':
        for k, (st_, reg) in enumerate(((8, 80), (62, 82))):
            a(f"s_cmp_lg_u32 s{S_STEP}, {st_}")
            a(f"s_cbranch_scc1 {tag}_nt{k}")
            a(f"s_memtime s[{reg}:{reg+1}]")
            a("s_waitcnt lgkmcnt(0)")
            a.label(f"{tag}_nt{k}")
    if not b2 & 2: idle_c1(a)
    if not b2 & 8: wv_preload(a)
    copy_export(a, 1 - par)
    if not b2 & 4: zero_b(a)
    a(f"s_cmp_lg_u32 s{S_WV}, 1")
    a(f"s_cbranch_scc1 {tag}_av2_ok")
    a(f"s_waitcnt vmcnt({2 + len(probes) + len(late_bg) + nbub})")
    avail_check(a, f"{tag}_av2")
    for j in range(opt.get('dummy', 0)): a(smf(V_M + 8 + 4 * (j & 1), vr(V_W + 4 * (j & 3), 4), wq(j & 1, j & 7)))
    a.label(f"{tag}_join")
    a("s_barrier")
    for _ in range(opt.get('h1pad', 0)): a("s_nop 7")
    st_at('h1iss')
    if par == 0:
        a(f"s_cmp_eq_u32 s{S_STEP}, 63")
        a(f"s_cbranch_scc1 L_last")
    if sg and not opt.get('sgb2b'):
        a(f"buffer_load_dwordx4 {Mf(0)}, v{V_P1}, {WS}, s{S_MEMRD} offen sc1")
        a("s_waitcnt vmcnt(1)")
        for r in range(V_AK + 4, V_AK + 8): a(f"v_mov_b32 v{r}, 0")
        for _ in range(opt.get('sgpad', 0)): a("s_nop 3")
        a(f"buffer_load_dwordx4 {Mf(1)}, v{V_P1}, {WS}, s{S_MEMRD} offen offset:1024 sc1")
    else:
        h1_issue(a, 0)
        if b2:
            a(f"s_cmp_eq_u32 s{S_WV}, 0")
            a(f"s_cbranch_scc1 {tag}_w0b")
            if b2 & 2: idle_c1(a)
            if b2 & 4: zero_b(a)
            if b2 & 8: wv_preload(a)
            a.label(f"{tag}_w0b")
        idle_c(a, 1 - par, True)
        if b2:
            a(f"s_sub_u32 m0, s{S_KM0}, {KB[0] - MEMB}")
            a("s_nop 0")
            a(f"buffer_load_dwordx4 v{V_P1}, {WS}, s{S_MEMRD} offen sc1 lds")
            a(f"buffer_load_dwordx4 v{V_P1}, {WS}, s{S_MEMRD} offen offset:1024 sc1 lds")
    for j in range(opt.get('dummy2', 0)): a(smf(V_M + 8 + 4 * (j & 1), vr(V_W + 4 * (j & 3), 4), wq(j & 1, j & 7)))
    a("s_waitcnt lgkmcnt(0)")
    st_at('join')
    return h2_issue, None

def h1_issue(a, j):
    WS = f"s[{S_WS}:{S_WS+3}]"
    a(f"buffer_load_dwordx4 {Mf(2*j)}, v{V_P1}, {WS}, s{S_MEMRD} offen sc1")
    a(f"buffer_load_dwordx4 {Mf(2*j + 1)}, v{V_P1}, {WS}, s{S_MEMRD} offen offset:1024 sc1")

def step_tails(a, par, tag, h2, opt):
    WS = f"s[{S_WS}:{S_WS+3}]"
    VXc = V_VX[par]
    Kc = KB[par] - MEMB
    T0 = V_PB + 3
    def spin(k):
        a(f"s_add_u32 s{S_SPIN}, s{S_SPIN}, 1")
        a(f"s_cmp_gt_u32 s{S_SPIN}, {SPIN_LIMIT}")
        a("s_cbranch_scc1 L_abort")
        a(f"s_add_u32 s{S_ACC+k}, s{S_ACC+k}, 1")
    a.label(f"{tag}_h1retry")
    if opt.get('b2nd'):
        a("s_waitcnt vmcnt(0)")
        a(f"ds_read_b128 {Mf(0)}, v{V_P1}")
        a(f"ds_read_b128 {Mf(1)}, v{V_P1} offset:1024")
        a(f"s_add_u32 s{S_ACC+1}, s{S_ACC+1}, 1")
        a("s_nop 2")
        for r in range(8): a(f"v_mov_b32 v{V_AQ + r}, 0")
        a.label(f"{tag}_h1chk")
        a("s_waitcnt vmcnt(0) lgkmcnt(0)")
        a(f"v_max3_u32 v{T0}, v{V_M}, v{V_M+1}, v{V_M+2}")
        a(f"v_max3_u32 v{T0}, v{T0}, v{V_M+3}, v{V_M+4}")
        a(f"v_max3_u32 v{T0}, v{T0}, v{V_M+5}, v{V_M+6}")
        a(f"v_max_u32 v{T0}, v{T0}, v{V_M+7}")
        a(f"v_cmp_eq_u32 vcc, -1, v{T0}")
        a(f"s_cbranch_vccz {tag}_entry")
        a("s_mov_b64 exec, vcc")
        h1_issue(a, 0)
        a("s_mov_b64 exec, -1")
        spin(0)
        a(f"s_branch {tag}_h1chk")
    else:
        a("s_mov_b64 exec, vcc")
        h1_issue(a, 0)
        a("s_mov_b64 exec, -1")
        spin(1)
        a("s_nop 2")
        for r in range(24 if opt.get('sg') else 8): a(f"v_mov_b32 v{V_AQ + r}, 0")
        a(f"s_branch {tag}_h1")
    a.label(f"{tag}_h2r")
    a("s_mov_b64 exec, vcc")
    h2[0]()
    a("s_mov_b64 exec, -1")
    if h2[1]: a(h2[1])
    spin(2)
    a(f"s_branch {tag}_h2")
    for j in (0, 2) if opt.get('short') is None else (0, 1, 2): avail_slow(a, f"{tag}_av{j}")
    a.label(f"{tag}_fallback")
    a("s_nop 7")
    a("s_nop 3")
    a("s_waitcnt lgkmcnt(0)")
    QF, KF = Wb(0), Wb(2)
    SX, SM = V_AV, V_AK + 4
    OA, LA = V_M, V_M + 8
    for i in range(4):
        for hh in range(2): a(f"ds_read_b64_tr_b16 {vr(QF + 4*i + 2*hh, 2)}, v{V_QKR} offset:{i*1024 + hh*512}")
    for T in range(2):
        for i in range(4): a(f"ds_read_b128 {vr(KF + 4*i, 4)}, v{V_LA} offset:{Kc + T*4096 + i*1024}")
        for i in range(4): a(mf32(SX + 4*T, vr(KF + 4*i, 4), vr(QF + 4*i, 4), "0" if i == 0 else vr(SX + 4*T, 4)))
        a("s_nop 7")
    for i in range(4):
        for hh in range(2): a(f"ds_read_b64_tr_b16 {vr(KF + 4*i + 2*hh, 2)}, v{V_QKR} offset:{4096 + i*1024 + hh*512}")
    for i in range(4): a(mf32(SM, vr(KF + 4*i, 4), vr(QF + 4*i, 4), "0" if i == 0 else vr(SM, 4)))
    a(f"v_mul_f32 v{SM}, s{S_C}, v{SM}")
    a(f"v_mul_f32 v{SM+1}, s{S_C}, v{SM+1}")
    MX, T2 = SM + 2, SM + 3
    a(f"v_max3_f32 v{MX}, v{SM}, v{SM+1}, v{SX}")
    for r in range(1, 7, 2): a(f"v_max3_f32 v{MX}, v{MX}, v{SX+r}, v{SX+r+1}")
    a(f"v_max_f32 v{MX}, v{MX}, v{SX+7}")
    for sw in ("v_permlane16_swap_b32", "v_permlane32_swap_b32"):
        a(f"v_mov_b32 v{T2}, v{MX}")
        a(f"{sw} v{MX}, v{T2}")
        a(f"v_max_f32 v{MX}, v{MX}, v{T2}")
    for r in list(range(SX, SX + 8)) + [SM, SM + 1]:
        a(f"v_sub_f32 v{r}, v{r}, v{MX}")
        a(f"v_exp_f32 v{r}, v{r}")
    PX = V_AQ
    for r in range(4): a(f"v_cvt_pk_bf16_f32 v{PX+r}, v{SX+2*r}, v{SX+2*r+1}")
    a(f"v_cvt_pk_bf16_f32 v{V_PB}, v{SM}, v{SM+1}")
    a(f"v_cvt_pk_bf16_f32 v{V_PB+3}, v{SM}, v{SM+1}")
    a(mf32(LA, vr(V_ONES, 4), vr(PX, 4), "0"))
    a(mf32(OA, vr(VXc, 4), vr(PX, 4), "0"))
    a(mf32(OA + 4, vr(VXc + 4, 4), vr(PX, 4), "0"))
    a(mf16(LA, vr(V_ONES, 2), vr(V_PB, 2), vr(LA, 4)))
    a(mf16(OA, vr(V_AK + 2, 2), vr(V_PB, 2), vr(OA, 4)))
    a(mf16(OA + 4, vr(V_AK + 2, 2), vr(V_PB + 2, 2), vr(OA + 4, 4)))
    wo_order = [(t, kbo) for t in range(4, 8) for kbo in range(2)]
    for j in range(4):
        for x in rd_wo(Wb(j), *wo_order[j]): a(x)
    INV, OW = V_AQ + 0, V_AQ + 4
    a(f"v_rcp_f32 v{INV}, v{LA}")
    for r in range(8): a(f"v_mul_f32 v{OA+r}, v{OA+r}, v{INV}")
    for r in range(4): a(f"v_cvt_pk_bf16_f32 v{OW+r}, v{OA+2*r}, v{OA+2*r+1}")
    a(f"ds_write_b128 v{V_OW}, {vr(OW,4)}")
    for r in range(16): a(f"v_mov_b32 v{V_M + r}, 0")
    a("s_waitcnt lgkmcnt(0)")
    a("s_nop 1")
    a(f"s_branch {tag}_fbdone")

def role_chain(a, opt):
    WS = f"s[{S_WS}:{S_WS+3}]"; DB = f"s[{S_D}:{S_D+3}]"
    vq = VmQueue()
    HPERM[0] = opt.get('hperm', 0)
    WPOL[0] = opt.get('wpol', '')
    ZW[0] = opt.get('zw', 0)
    AHEAD[0] = 3 if opt.get('tpos') else 2
    set_rounds(opt.get('order', 0), opt.get('vfirst', 1))
    DEPTH0[0] = 2 if opt.get('pace') else 3
    SFX[0] = ''
    HINT_STRIDE[0] = opt.get('hs', 4); HINT_STRIDE[1] = opt.get('nr', 8); HINT_STRIDE[2] = opt.get('hfull', 0)
    CODEPF[0] = opt.get('codepf', 0)
    start_weights(a, vq)
    a(f"s_mov_b32 s65, s{S_T2}")
    if opt.get('dbgtime'):
        a("s_not_b32 s96, s98"); a("s_mov_b64 exec, 1"); a("v_mov_b32 v126, s96"); a(f"buffer_atomic_umax v126, off, s[{S_D}:{S_D+3}], 0 offset:48"); a("s_mov_b64 exec, -1"); vq.add('x')
    setup_lanes(a)
    a(f"s_mov_b32 s{S_C}, {f32bits(CSCALE):#x}")
    a(f"s_mov_b32 s{S_LLO}, 0x21800000")
    a(f"s_mov_b32 s{S_LRG}, {0 if opt.get('forcefb') else 0x3c000000:#x}")
    for r in range(S_ACC, S_ACC + 4): a(f"s_mov_b32 s{r}, 0")
    a(f"s_lshl_b32 s{S_T0}, s{S_H}, 8")
    a(f"s_add_u32 s{S_HB_PST}, s{S_T0}, {WS_PART}")
    a(f"s_lshl_b32 s{S_T0}, s{S_H}, 13")
    a(f"s_add_u32 s{S_HB_INB}, s{S_T0}, {WS_PART - MEMB}")
    a(f"s_add_u32 s{S_KPF}, s{S_T0}, {WS_KX - MEMB}")
    a(f"s_add_u32 s{S_VPF}, s{S_T0}, {WS_VX - MEMB}")
    a(f"s_and_b32 s{S_T0}, s{S_H}, 3")
    a(f"s_lshl_b32 s{S_T0}, s{S_T0}, 6")
    a(f"s_lshr_b32 s{S_T1}, s{S_H}, 2")
    a(f"s_lshl_b32 s{S_T1}, s{S_T1}, 10")
    a(f"s_add_u32 s{S_T0}, s{S_T0}, s{S_T1}")
    a(f"s_add_u32 s{S_HB_PUB}, s{S_T0}, {WS_MEMRING}")
    a(f"s_lshl_b32 s{S_T0}, s{S_H}, 12")
    a(f"s_lshl_b32 s{S_T1}, s{S_WV}, 10")
    a(f"s_add_u32 s{S_T0}, s{S_T0}, s{S_T1}")
    a(f"s_add_u32 s{S_EXP}, s{S_T0}, {WS_KVM - MEMB - 32*4096}")
    a(f"s_lshl_b32 s{S_T0}, s{S_H}, 7")
    a(f"s_add_u32 s{S_FLP}, s{S_T0}, {WS_FLAG + FLAG_P * 128}")
    a(f"s_add_u32 s{S_FLA}, s{S_T0}, {WS_FLAG + FLAG_A * 128}")
    a(f"s_lshl_b32 s{S_T0}, s{S_WV}, 11")
    a(f"s_add_u32 s{S_KM0}, s{S_T0}, {KB[0]}")
    a(f"s_add_u32 s{S_KM0+1}, s{S_T0}, {KB[1]}")
    SN = V_W
    a(f"s_mov_b32 s{S_T2}, s65")
    S_OK = S_AVAIL
    PSTAMP[0] = opt.get('pstamp', -1)
    groups = opt.get('groups', [0])
    IV = V_M + 16
    srd(a, S_W, KA_MEM0, 8192)
    def seg0_loads():
        a(f"s_mov_b32 m0, s{S_KM0}")
        a("s_nop 0")
        a(f"buffer_load_dwordx4 v{V_P1}, {WS}, s{S_KPF} offen sc1 lds")
        a(f"buffer_load_dwordx4 v{V_P1}, {WS}, s{S_KPF} offen offset:1024 sc1 lds")
        a(f"buffer_load_dwordx4 {vr(V_VX[0],4)}, v{V_P1}, {WS}, s{S_VPF} offen sc1")
        a(f"buffer_load_dwordx4 {vr(V_VX[0]+4,4)}, v{V_P1}, {WS}, s{S_VPF} offen offset:1024 sc1")
    def h8(a):
        init_issue(a, IV); vq.add('init', 3)
        a(f"s_mov_b32 s{S_OK}, 0")
    def h16(a):
        assert vq.done('init')
        vq.add('fl')
        a.items.append(('x', 'forget_vm'))
        init_check(a, IV, groups, "L_ch_h16" + SFX[0])
        a(f"s_mov_b32 s{S_OK}, 1")
        if opt.get('ringpf', 1):
            for sl in range(2):
                a(f"s_add_u32 s{S_T0}, s{S_HB_INB}, {sl << 18}")
                for j in range(2):
                    a(f"buffer_load_dwordx4 {vr(V_M + 8, 4)}, v{V_P1}, {WS}, s{S_T0} offen offset:{1024 * j} sc1")
                    a.items.append(('x', 'forget_vm'))
            a(f"s_lshl_b32 s{S_T0}, s{S_H}, 10")
            a(f"s_add_u32 s{S_T0}, s{S_T0}, {WS_MEMRING - MEMB}")
            a(f"buffer_load_dwordx4 {vr(V_M + 8, 4)}, v{V_LA}, {WS}, s{S_T0} offen sc1")
            a(f"buffer_load_dword v{V_M + 12}, v{V_L4}, {WS}, s{S_HLD} offen sc1")
        if opt.get('preown', 0):
            a(f"s_cmp_eq_u32 s{S_MODE}, {opt.get('fastmode', 1)}")
            a("s_cbranch_scc0 L_ch_h16" + SFX[0])
            for r in range(4): a(f"v_mov_b32 v{V_M + 28 + r}, -1")
            for sl in range(2):
                for j in range(2):
                    a(f"s_add_u32 s{S_T0}, s{S_HB_PST}, {(sl << 18) + j * 32768}")
                    a(f"buffer_store_dwordx4 {vr(V_M + 28, 4)}, v{V_PST}, {WS}, s{S_T0} offen")
            for sl in range(1, 4):
                a(f"s_add_u32 s{S_T0}, s{S_HB_PUB}, {sl << 13}")
                a(f"buffer_store_dwordx2 {vr(V_M + 28, 2)}, v{V_PUB}, {WS}, s{S_T0} offen")
            a.items.append(('x', 'forget_vm'))
        a.label("L_ch_h16" + SFX[0])
        a(f"buffer_load_dword v{V_FL}, off, {WS}, s{S_FLP} sc1")
    def h24(a):
        assert vq.done('fl')
        vq.add('mem0', 2)
        a.items.append(('x', 'forget_vm'))
        a(f"buffer_load_dwordx4 {Mf(0)}, v{V_GATH}, s[{S_W}:{S_W+3}], 0 offen")
        a(f"buffer_load_dwordx4 {Mf(1)}, v{V_GATH}, s[{S_W}:{S_W+3}], 0 offen offset:128")
        a(f"v_readfirstlane_b32 s{S_T0}, v{V_FL}")
        a(f"s_lshr_b32 s{S_T1}, s{S_T0}, 16")
        a(f"s_and_b32 s{S_T0}, s{S_T0}, 0xffff")
        a(f"s_min_u32 s{S_T0}, s{S_T0}, s{S_T1}")
        a(f"s_cmp_ge_u32 s{S_T0}, {AHEAD[0]}")
        a(f"s_cselect_b32 s{S_T0}, s{S_OK}, 0")
        a(f"s_lshl_b32 s{S_OK}, s{S_T0}, 1")
        a(f"s_cmp_eq_u32 s{S_OK}, 0")
        a("s_cbranch_scc1 L_ch_h24" + SFX[0])
        seg0_loads()
        a.label("L_ch_h24" + SFX[0])
    hk = dict(zip(opt.get('hooks', (7, 11, 15)), (h8, h16, h24)))
    if 2 in (opt.get('late'), opt.get('latef')):
        def hrel(a):
            a(f"s_cmp_eq_u32 s{S_OK}, 0")
            a("s_cbranch_scc1 L_ch_norel" + SFX[0])
            a(f"v_mov_b32 v{IV}, 1")
            a(f"buffer_store_dword v{IV}, off, {WS}, s{S_FLA} offset:4 sc1")
            a.label("L_ch_norel" + SFX[0])
        hk[opt.get('relpos', 12)] = hrel
    if opt.get('pace'):
        import copy
        vq0 = copy.deepcopy(vq.q)
        a(f"s_and_b32 s{S_T0}, s{S_H}, 3")
        a(f"s_cmp_eq_u32 s{S_T0}, 1")
        a("s_cbranch_scc1 L_ch_deep")
        a(f"s_cmp_eq_u32 s{S_H}, 31")
        a("s_cbranch_scc1 L_ch_deep")
        SFX[0] = 'a'
        load_weights(a, hk, vq, 2)
        a("s_branch L_ch_loaded")
        a.label("L_ch_deep")
        SFX[0] = 'b'
        vq.q = vq0
        load_weights(a, hk, vq, 3)
        a.label("L_ch_loaded")
    else:
        load_weights(a, hk, vq)
    if opt.get('ptime') and 'pstamp' not in opt:
        a("s_memrealtime s[62:63]"); a("s_waitcnt lgkmcnt(0)"); a(f"s_sub_u32 s{S_ACC}, s62, s92"); a(f"s_lshl_b32 s{S_ACC}, s{S_ACC}, 2"); a(f"s_add_u32 s{S_ACC}, s{S_ACC}, s{S_OK}")
    if opt.get('ponly'):
        a(f"s_lshl_b32 s{S_T0}, s{S_H}, 2"); a(f"s_add_u32 s{S_T0}, s{S_T0}, s{S_WV}"); a(f"s_lshl_b32 s{S_T0}, s{S_T0}, 5"); a(f"s_add_u32 s{S_T0}, s{S_T0}, {WS_STAMP + 4}")
        a(f"v_mov_b32 v{V_M}, s{S_ACC}")
        a(f"buffer_store_dword v{V_M}, off, {WS}, s{S_T0}")
        a("s_endpgm")
    a(f"s_mov_b32 s{S_STEP}, 0")
    a(f"s_cmp_lg_u32 s{S_OK}, 0")
    a("s_cbranch_scc1 L_ch_ready")
    wait_init(a, IV, groups, "L_ch_init")
    a(f"v_mov_b32 v{V_FL}, 0")
    if 2 in (opt.get('late'), opt.get('latef')):
        a(f"v_mov_b32 v{IV}, 1")
        a(f"buffer_store_dword v{IV}, off, {WS}, s{S_FLA} offset:4 sc1")
    avail_check(a, "L_ch_av")
    seg0_loads()
    a.label("L_ch_ready")
    if opt.get('nokv'):
        a(f"s_mov_b32 m0, s{S_KM0+1}")
        a(f"s_nop 0")
        a(f"buffer_load_dwordx4 v{V_P1}, {WS}, s{S_KPF} offen sc1 lds")
        a(f"buffer_load_dwordx4 v{V_P1}, {WS}, s{S_KPF} offen offset:1024 sc1 lds")
        a(f"buffer_load_dwordx4 {vr(V_VX[1]+4,4)}, v{V_P1}, {WS}, s{S_VPF} offen offset:1024 sc1")
    a(f"s_add_u32 s{S_KPF}, s{S_KPF}, {32*8192}")
    a(f"s_add_u32 s{S_VPF}, s{S_VPF}, {32*8192}")
    idle_a(a, 0)
    for r in range(24): a(f"v_mov_b32 v{V_AQ + r}, 0")
    a(f"s_mov_b32 s{S_MEMRD}, {WS_MEMRING - MEMB}")
    a("s_waitcnt vmcnt(0)")
    a(f"v_cndmask_b32 v{V_GATH}, v{V_ONES}, 0, s[{S_L0}:{S_L0+1}]")
    a(f"s_cmp_ge_u32 s{S_WV}, 2")
    a(f"s_cselect_b32 s{S_FLP}, {OOB}, s{S_FLP}")
    for r in range(4): a(f"v_mov_b32 v{V_M + 8 + r}, 0")
    for j in range(2): a(f"ds_write_b128 v{V_P1}, {vr(V_M + 8, 4)} offset:{QB - MEMB + 1024*j}")
    a("s_waitcnt vmcnt(0) lgkmcnt(0)")
    for r in range(8): a(f"v_min_u32 v{V_M+r}, -2, v{V_M+r}")
    if opt.get('time'):
        a("s_mov_b32 s74, 0"); a("s_mov_b32 s73, -1"); a("s_mov_b32 s72, 0")
        a(f"s_memtime s[84:85]")
        a(f"s_memrealtime s[88:89]")
        a("s_waitcnt lgkmcnt(0)")
    if opt.get('probe_t'):
        a("s_memrealtime s[88:89]"); a("s_memtime s[84:85]"); a("s_waitcnt lgkmcnt(0)")
    if opt.get('dbgtime'): dbg_stamp(a, 13, vt=V_M + 30); a("s_waitcnt vmcnt(0)")
    a(f"s_cmp_eq_u32 s{S_MODE}, {opt.get('fastmode', 1)}")
    a("s_cbranch_scc0 L_S0_entry")
    a("s_branch L_F0_entry")
    for tag, st in (("L_F", ""), ("L_S", "sc1")):
        a(".p2align 8")
        for _ in range(opt.get('shift', 6)): a(".long 0xbf800000")
        h20 = step(a, 0, st, tag + "0", opt, tag + "1")
        h21 = step(a, 1, st, tag + "1", opt, tag + "0")
        a(f"s_branch {tag}0_h1")
        step_tails(a, 0, tag + "0", h20, opt)
        step_tails(a, 1, tag + "1", h21, opt)
    avail_slow(a, "L_ch_av")
    a.label("L_last")
    VXn = V_VX[0]
    h1_issue(a, 0)
    if opt.get('b2nd'): zero_b(a); idle_c1(a); wv_preload(a)
    a("s_waitcnt vmcnt(2)")
    for r in range(V_AK + 4, V_AK + 8): a(f"v_mov_b32 v{r}, 0")
    a.label("L_last_h1")
    a("s_waitcnt vmcnt(0) lgkmcnt(0)")
    a(f"ds_write_b128 v{V_P1}, {Mf(0)}")
    a(f"v_max3_u32 v{V_PB+3}, v{V_M+1}, v{V_M+3}, v{V_M+5}")
    a(f"v_max_u32 v{V_PB+3}, v{V_PB+3}, v{V_M+7}")
    a(f"v_cmp_eq_u32 vcc, -1, v{V_PB+3}")
    a(f"ds_write_b128 v{V_P1}, {Mf(1)} offset:1024")
    a("s_cbranch_vccz L_last_ok")
    a("s_mov_b64 exec, vcc")
    h1_issue(a, 0)
    a("s_mov_b64 exec, -1")
    a(f"s_add_u32 s{S_SPIN}, s{S_SPIN}, 1")
    a(f"s_cmp_gt_u32 s{S_SPIN}, {SPIN_LIMIT}")
    a("s_cbranch_scc0 L_last_h1")
    a("s_branch L_abort")
    a.label("L_last_ok")
    mains = []; F = {}
    AK = lambda t: V_AK + 4 * t
    AV = lambda t: V_AV + 4 * t
    for s_ in range(2):
        for t in range(2): mains.append(smf(AV(t), Mf(s_), vr(Wb(2*s_ + t), 8)))
    for s_ in range(8):
        for t in range(2): mains.append(smf(AK(t), Mf(s_), wk(t, s_)))
    for s_ in (4, 5, 6, 7):
        for t in range(2): mains.append(smf(AV(t), Mf(s_), wv_res(t, s_)))
    for s_ in (2, 3):
        for t in range(2): mains.append(smf(AV(t), Mf(s_), vr(Wb(2*(s_-2) + t), 8)))
    mr = (V_MR1, V_MR2, V_MR3)
    F[3] = ["s_waitcnt lgkmcnt(0)", "s_barrier"]
    for j, s_ in enumerate(range(2, 8)): F.setdefault(3 + j, []).append(f"ds_read_b128 {Mf(s_)}, v{mr[(s_ >> 1) - 1]} offset:{(s_ & 1) * 1024}")
    for j, x in enumerate([x for j in range(4) for x in rd_wv(Wb(j), 2 + (j >> 1), j & 1)]): F.setdefault(10 + j, []).append(x)
    F.setdefault(9, []).append(f"buffer_store_dwordx4 {vr(VXn,4)}, v{V_LA}, {WS}, s{S_EXP} offen sc1")
    F.setdefault(10, []).insert(0, f"s_add_u32 s{S_EXP}, s{S_EXP}, {32*4096}")
    F.setdefault(1, []).append(f"v_mov_b32 v{V_PB}, 62")
    F.setdefault(4, []).append(f"buffer_store_dword v{V_PB}, v{V_GATH}, {WS}, s{S_FLA} offen sc1")
    def fold2(a0, a1, d0, d1):
        return [f"v_add_f32 v{a0}, v{a0}, v{a0+1}", f"v_add_f32 v{a0+2}, v{a0+2}, v{a0+3}", f"v_cvt_pk_bf16_f32 v{d0}, v{a0}, v{a0+2}",
                f"v_add_f32 v{a1}, v{a1}, v{a1+1}", f"v_add_f32 v{a1+2}, v{a1+2}, v{a1+3}", f"v_cvt_pk_bf16_f32 v{d1}, v{a1}, v{a1+2}"]
    for j, x in enumerate(fold2(AK(0), AK(1), V_AK, V_AK + 1)): F.setdefault(22 + j, []).append(x)
    interleave(a, mains, F)
    for x in fold2(AV(0), AV(1), V_AK + 2, V_AK + 3): a(x)
    a(f"buffer_store_dwordx4 {vr(V_AK,4)}, v{V_LA}, {WS}, s{S_EXP} offen {opt.get('lastst', 'sc1')}")
    if opt.get('probe_t'):
        a("s_memrealtime s[90:91]"); a("s_waitcnt lgkmcnt(0)")
        k = opt['probe_t']
        if k == 'p': a("s_sub_u32 s42, s88, s92"); a("s_lshl_b32 s42, s42, 2")
        elif k == 'l': a("s_sub_u32 s42, s90, s88")
        elif k == 'y': a("s_memtime s[42:43]"); a("s_waitcnt lgkmcnt(0)"); a("s_sub_u32 s42, s42, s84"); a("s_lshr_b32 s42, s42, 5")
        elif k == 's': a("s_sub_u32 s42, s82, s80"); a("s_lshr_b32 s42, s42, 5"); a(f"s_cmp_eq_u32 s{S_WV}, 0"); a("s_cselect_b32 s42, 0, s42")
        else: a("s_mov_b32 s42, 5000")
        a.label("L_probe")
        a("s_sleep 1"); a("s_memrealtime s[44:45]"); a("s_waitcnt lgkmcnt(0)"); a("s_sub_u32 s44, s44, s90"); a("s_cmp_lt_u32 s44, s42"); a("s_cbranch_scc1 L_probe")
    if opt.get('lastwb'): a("s_waitcnt vmcnt(0)"); a("buffer_wbl2 sc1")
    if opt.get('drain'):
        a("s_memtime s[42:43]"); a("s_waitcnt lgkmcnt(0) vmcnt(0)"); a("s_memtime s[44:45]"); a("s_waitcnt lgkmcnt(0)"); a(f"s_sub_u32 s{S_ACC+2}, s44, s42")
    a("s_nop 1")
    if opt.get('wb'):
        a(f"s_or_b32 s{S_T0}, s{S_H}, s{S_WV}")
        a(f"s_cmp_lg_u32 s{S_T0}, 0")
        a("s_cbranch_scc1 L_ch_nowb")
        a("buffer_wbl2 sc1")
        a.label("L_ch_nowb")
    if opt.get('dbgtime'): dbg_stamp(a, 14, vt=V_M + 30)
    if opt.get('time'):
        a(f"s_memtime s[86:87]")
        a(f"s_memrealtime s[90:91]")
        a("s_waitcnt lgkmcnt(0)")
        a("s_sub_u32 s86, s86, s84")
        a(f"s_lshl_b32 s{S_T0}, s{S_H}, 2")
        a(f"s_add_u32 s{S_T0}, s{S_T0}, s{S_WV}")
        a(f"s_lshl_b32 s{S_T0}, s{S_T0}, 5")
        a(f"s_add_u32 s{S_T0}, s{S_T0}, {WS_STAMP}")
        for i, s in enumerate((86, S_ACC, S_ACC + 1, S_ACC + 2, 88, 90, 92, S_ACC + 3)):
            a(f"v_mov_b32 v{V_M+i}, s{s}")
        a(f"buffer_store_dwordx4 {vr(V_M,4)}, off, {WS}, s{S_T0}")
        a(f"buffer_store_dwordx4 {vr(V_M+4,4)}, off, {WS}, s{S_T0} offset:16")
        a(f"s_add_u32 s{S_T0}, s{S_T0}, 0x8000")
        if opt.get('trace'):
            a("s_mov_b32 s40, 0"); a("s_mov_b32 s41, 0"); a("s_mov_b32 s46, 0")
            a.label("L_cal")
            a("s_memtime s[42:43]"); a("s_memrealtime s[44:45]"); a("s_waitcnt lgkmcnt(0)")
            a("s_sub_u32 s42, s42, s84"); a("s_sub_u32 s44, s44, s88")
            a("s_add_u32 s40, s40, s42"); a("s_add_u32 s41, s41, s44")
            a("s_mul_i32 s47, s46, 7"); a("s_and_b32 s47, s47, 3")
            a.label("L_cal2")
            a("s_sub_u32 s47, s47, 1"); a("s_cbranch_scc0 L_cal2")
            a("s_add_u32 s46, s46, 1"); a("s_cmp_lt_u32 s46, 256"); a("s_cbranch_scc1 L_cal")
            a(f"v_mov_b32 v{V_M+20}, s40"); a(f"v_mov_b32 v{V_M+21}, s41")
            a(f"s_add_u32 s{S_T1}, s{S_T0}, 4096")
            a(f"buffer_store_dwordx2 {vr(V_M+20,2)}, off, {WS}, s{S_T1}")
        a("s_mov_b32 s75, s84")
        if not opt.get('trace') and not opt.get('stamp'): a("s_sub_u32 s68, s82, s80")
        for i in range(8): a(f"v_mov_b32 v{V_M+8+i}, s{68+i}")
        a(f"buffer_store_dwordx4 {vr(V_M+8,4)}, off, {WS}, s{S_T0}")
        a(f"buffer_store_dwordx4 {vr(V_M+12,4)}, off, {WS}, s{S_T0} offset:16")
    a("s_endpgm")
```

```python
from common import *

MEMB = 131072
KB = (139264, 147456)
QB = 155648
KKB = QB + 4096
LDS_BYTES = 163840

V_LA, V_P1, V_MR1, V_MR2, V_MR3, V_QW, V_L4, V_QKR, V_WVO, V_OW, V_GATH, V_PST, V_PUB, V_IDX, V_SELX, V_FL = range(16)
V_ONES = 16
V_PB = 20
V_M = 24
V_AQ, V_AK, V_AV = 56, 64, 72
V_W = 80
V_VX = (112, 120)
WQ0, WK0, WV0, WO0 = 256, 384, 128, 192

def wq(t, s): return ur(WQ0 + (s * 2 + t) * 8, 8)
def wk(t, s): return ur(WK0 + (s * 2 + t) * 8, 8)
def wv_res(t, s): return ur(WV0 + ((s - 4) * 2 + t) * 8, 8)
def wo_res(t, kbo): return ur(WO0 + (t * 2 + kbo) * 8, 8)
def Mf(s): return vr(V_M + 4 * s, 4)
def Wb(j): return V_W + 8 * j

S_STEP = 30
S_MEMRD = 31
S_PST0, S_PST1 = 32, 33
S_INB0, S_INB1 = 34, 35
S_PUBN = 36
S_PUBC = 37
S_PH = 38
S_KPF, S_VPF = 39, 40
S_EXP = 41
S_FLP = 42
S_FLA = 43
S_AVAIL = 44
S_C = 45
S_LLO, S_LRG = 46, 47
S_SELM = 48
S_KM0 = 56
S_HB_PST, S_HB_INB, S_HB_PUB = 58, 59, 60
S_KD = 61
S_SHORT = 62
S_KE, S_KE2 = 62, 64
S_HST, S_HLD = 23, 29
S_HST2, S_HLD2 = 64, 65
S_L0 = 66
S_TS = 76
S_ACC = 94

def smf(d, A, B): return f"v_smfmac_f32_16x16x64_bf16 {vr(d,4)}, {A}, {B}, v{V_IDX}"
def mf32(d, A, B, C): return f"v_mfma_f32_16x16x32_bf16 {vr(d,4)}, {A}, {B}, {C}"
def mf16(d, A, B, C): return f"v_mfma_f32_16x16x16_bf16 {vr(d,4)}, {A}, {B}, {C}"

V_TID = 123
HINT_STRIDE = [4, 8, 0]
S_KA = 40

def setup_lanes(a):
    L, T = 127, 126
    a(f"v_lshlrev_b32 v{V_LA}, 4, v{L}")
    a(f"s_lshl_b32 s{S_T0}, s{S_WV}, 13")
    a(f"v_add_u32 v{V_WVO}, s{S_T0}, v{V_LA}")
    a(f"v_add_u32 v{V_LA}, {MEMB}, v{V_LA}")
    for j, r in enumerate((V_P1, V_MR1, V_MR2, V_MR3)):
        a(f"s_xor_b32 s{S_T0}, s{S_WV}, {j}")
        a(f"s_lshl_b32 s{S_T0}, s{S_T0}, 11")
        a(f"v_add_u32 v{r}, s{S_T0}, v{V_LA}")
    bitpat(a, V_QW, L, [(5, 1, 8), (0, 15, 1)], T)
    a(f"v_and_b32 v{V_QW}, 15, v{V_QW}")
    a(f"v_and_b32 v{T}, 48, v{L}")
    a(f"v_add_u32 v{V_QW}, v{V_QW}, v{T}")
    a(f"v_lshlrev_b32 v{V_QW}, 3, v{V_QW}")
    a(f"s_lshl_b32 s{S_T0}, s{S_WV}, 10")
    a(f"s_add_u32 s{S_T0}, s{S_T0}, {QB}")
    a(f"v_add_u32 v{V_QW}, s{S_T0}, v{V_QW}")
    bitpat(a, V_QKR, L, [(1, 1, 8), (2, 15, 1)], T)
    a(f"v_and_b32 v{V_QKR}, 15, v{V_QKR}")
    a(f"v_and_b32 v{T}, 3, v{L}")
    a(f"v_lshl_add_u32 v{V_QKR}, v{T}, 4, v{V_QKR}")
    a(f"v_lshlrev_b32 v{V_QKR}, 3, v{V_QKR}")
    a(f"v_add_u32 v{V_QKR}, {QB}, v{V_QKR}")
    bitpat(a, V_OW, L, [(4, 3, 256), (2, 3, 64), (0, 1, 32), (1, 1, 4096)], T, MEMB)
    a(f"s_lshr_b32 s{S_T0}, s{S_WV}, 1")
    a(f"s_lshl_b32 s{S_T0}, s{S_T0}, 10")
    a(f"s_and_b32 s{S_T1}, s{S_WV}, 1")
    a(f"s_lshl_b32 s{S_T1}, s{S_T1}, 4")
    a(f"s_add_u32 s{S_T0}, s{S_T0}, s{S_T1}")
    a(f"v_add_u32 v{V_OW}, s{S_T0}, v{V_OW}")
    bitpat(a, T, L, [(1, 1, 16)], T)
    a(f"v_xor_b32 v{V_OW}, v{V_OW}, v{T}")
    HS = HINT_STRIDE[0]
    bitpat(a, V_L4, L, [(0, 31, HS)], T)
    NR = HINT_STRIDE[1]
    nb = NR.bit_length() - 1
    fb = (HS // 4).bit_length() - 1 if HINT_STRIDE[2] else 0
    bitpat(a, V_GATH, L, ([(0, (1 << fb) - 1, 4)] if fb else []) + [(fb, NR - 1, 32 * HS)] + [(b, 1, OOB) for b in range(nb + fb, 6)], T)
    a(f"s_cmp_eq_u32 s{S_WV}, 3")
    a(f"s_cselect_b64 vcc, -1, 0")
    a(f"v_cndmask_b32 v{V_L4}, v{V_L4}, v{V_GATH}, vcc")
    a(f"s_mul_i32 s{S_T0}, s{S_H}, {HS}")
    a(f"s_add_u32 s{S_T0}, s{S_T0}, {WS_HINT}")
    a(f"s_cmp_eq_u32 s{S_WV}, 3")
    a(f"s_cselect_b32 s{S_HST}, s{S_T0}, {OOB}")
    a(f"s_and_b32 s{S_T0}, s{S_H}, {NR - 1}")
    a(f"s_mul_i32 s{S_T0}, s{S_T0}, {32 * HS}")
    a(f"s_add_u32 s{S_T0}, s{S_T0}, {WS_HINT}")
    a(f"s_cmp_eq_u32 s{S_WV}, 0")
    a(f"s_cselect_b32 s{S_HLD}, s{S_T0}, {OOB}")
    bitpat(a, V_GATH, L, [(1, 7, 1024), (4, 3, 32), (0, 1, 16)], T)
    a(f"s_lshl_b32 s{S_T0}, s{S_WV}, 8")
    a(f"v_add_u32 v{V_GATH}, s{S_T0}, v{V_GATH}")
    bitpat(a, V_PST, L, [(4, 3, 8192), (0, 15, 16)], T)
    a(f"s_lshl_b32 s{S_T0}, s{S_WV}, 16")
    a(f"v_add_u32 v{V_PST}, s{S_T0}, v{V_PST}")
    bitpat(a, V_PUB, L, [(1, 3, 256), (0, 1, 32), (5, 1, 16), (4, 1, 8), (3, 1, OOB)], T)
    a(f"v_and_b32 v{T}, 1, v{L}")
    a(f"v_cmp_eq_u32 vcc, 1, v{T}")
    a(f"v_mov_b32 v{V_IDX}, 0x44444444")
    a(f"v_mov_b32 v{T}, 0xeeeeeeee")
    a(f"v_cndmask_b32 v{V_IDX}, v{V_IDX}, v{T}, vcc")
    a(f"v_mov_b32 v{V_SELX}, 0x3f80")
    a(f"v_mov_b32 v{T}, 0x3f800000")
    a(f"v_cndmask_b32 v{V_SELX}, v{V_SELX}, v{T}, vcc")
    a(f"v_bfe_u32 v{T}, v{L}, 1, 3")
    for r in range(4):
        a(f"v_cmp_eq_u32 s[{S_SELM+2*r}:{S_SELM+2*r+1}], {r}, v{T}")
    a(f"v_cmp_eq_u32 s[{S_L0}:{S_L0+1}], 64, v{V_TID}")
    for r in range(4):
        a(f"v_mov_b32 v{V_ONES+r}, 0x3f803f80")
        a(f"v_mov_b32 v{V_PB+r}, 0")

PSTAMP = [-1]
HPERM = [0]
WPOL = ['']
AHEAD = [2]
DEPTH0 = [3]
SFX = ['']
CODEPF = [0]
S_DQ = (68, 72, 76, 80)
V_SQ, V_SO = 125, 124
ROUNDS = []
def set_rounds(order, vfirst=1):
    q = [('q', s) for s in (0, 1, 4, 5)]; k = [('k', s) for s in (0, 1, 4, 5)]; o = [('o', (0, 0)), ('o', (0, 1))]; v = [('v', 4), ('v', 5)]
    head = {0: q + k + v + o, 1: o + q + k + v, 2: [q[0], o[0]] + q[1:] + [k[0], o[1]] + k[1:] + v, 3: o + k + v + q, 4: o + q[:2] + k + q[2:] + v, 5: k + q + v + o, 6: o + v + k + q, 7: o + q + v + k}[order]
    lo, lv = [('o', (1, 0)), ('o', (1, 1))], [('v', 0), ('v', 1)]
    ROUNDS[:] = head + (lv + lo if vfirst else lo + lv)

def src_pattern(a, dst, L, T, bits, pitch):
    bitpat(a, dst, L, [(3, 1, pitch << bits[0]), (4, 1, pitch << bits[1]), (5, 1, pitch << bits[2]), (0, 1, 16)], T)
    for sh, bit in ((2, 4), (4, 2)):
        a(f"v_lshrrev_b32 v{T}, {sh}, v{L}")
        a(f"v_xor_b32 v{T}, v{T}, v{L}")
        a(f"v_and_b32 v{T}, {bit}, v{T}")
        a(f"v_lshl_add_u32 v{dst}, v{T}, 4, v{dst}")

class VmQueue:
    def __init__(self): self.q = []
    def add(self, tag, n=1): self.q += [tag] * n
    def wait(self, a, tag):
        last = max(i for i, t in enumerate(self.q) if t == tag)
        a(f"s_waitcnt vmcnt({len(self.q) - 1 - last})")
        self.q = self.q[last + 1:]
    def done(self, tag): return tag not in self.q

def issue_round(a, i, vq):
    kind, p = ROUNDS[i]
    if kind != 'o':
        a(f"s_xor_b32 s{S_T0}, s{S_WV}, {p >> 1}")
        a(f"s_lshl_b32 s{S_T0}, s{S_T0}, 20")
        a(f"s_add_u32 s{S_T0}, s{S_T0}, s{S_T2}")
        if p & 1: a(f"s_add_u32 s{S_T0}, s{S_T0}, {64 * 8192}")
        rows, pitch, v = (16, 2, 32), 8192, V_SQ
    else:
        a(f"s_lshl_b32 s{S_T0}, s{S_H}, 17")
        a(f"s_lshl_b32 s{S_T1}, s{S_WV}, 8")
        a(f"s_add_u32 s{S_T0}, s{S_T0}, s{S_T1}")
        a(f"s_add_u32 s{S_T0}, s{S_T0}, {p[1] * 65536 + p[0] * 128}")
        rows, pitch, v = (4, 2, 8), 1024, V_SO
    d = S_DQ['qkvo'.index(kind)]
    prev = 0
    for u in range(8):
        off = sum(rows[b] for b in range(3) if u >> b & 1) * pitch - (u & 3) * 1024
        if u & 3 == 0: a(f"s_add_u32 m0, s{S_T3}, {(i & 3) * 32768 + (u >> 2) * 4096}")
        if off != prev: a(f"s_add_u32 s{S_T0}, s{S_T0}, {(off - prev) & 0xffffffff:#x}")
        prev = off
        a(f"buffer_load_dwordx4 v{v}, s[{d}:{d+3}], s{S_T0} offen offset:{(u & 3)*1024} {WPOL[0]} lds")
    vq.add(('w', i), 8)

def start_weights(a, vq):
    L, T = 127, 126
    if HPERM[0]:
        a(f"s_sub_u32 s{S_T0}, s{S_H}, 9")
        a(f"s_mul_i32 s{S_T1}, s{S_T0}, 86")
        a(f"s_lshr_b32 s{S_T1}, s{S_T1}, 8")
        a(f"s_add_u32 s{S_T2}, s{S_T0}, s{S_T1}")
        a(f"s_mul_i32 s{S_T1}, s{S_T1}, 3")
        a(f"s_cmp_lg_u32 s{S_T0}, s{S_T1}")
        a(f"s_addc_u32 s{S_T2}, s{S_T2}, 0")
        a(f"s_lshl_b32 s{S_T0}, s{S_H}, 2")
        a(f"s_add_u32 s{S_T0}, s{S_T0}, 1")
        a(f"s_min_u32 s{S_T0}, s{S_T0}, 31")
        a(f"s_cmp_le_u32 s{S_H}, 8")
        a(f"s_cselect_b32 s{S_H}, s{S_T0}, s{S_T2}")
    a(f"v_mov_b32 v{V_TID}, v0")
    a(f"v_and_b32 v{L}, 63, v0")
    a(f"v_lshrrev_b32 v{T}, 6, v0")
    a(f"v_readfirstlane_b32 s{S_WV}, v{T}")
    if CODEPF[0] & 1:
        a(f"s_and_b32 s{S_T1}, s{S_H}, 3")
        a(f"s_lshl_b32 s{S_T1}, s{S_T1}, 2")
        a(f"s_add_u32 s{S_T1}, s{S_T1}, s{S_WV}")
        code_prefetch(a, "L_role_a0", "L_F0_h1", 24, 28, L, S_T1, True)
        vq.add('code')
    src_pattern(a, V_SQ, L, T, (0, 3, 2), 8192)
    lazy = all(k == 'q' for k, _ in ROUNDS[:DEPTH0[0]])
    if not lazy: src_pattern(a, V_SO, L, T, (0, 5, 4), 1024)
    a(f"s_lshl_b32 s{S_T3}, s{S_WV}, 13")
    a(f"s_lshr_b32 s{S_T1}, s{S_WV}, 1")
    a(f"s_lshl_b32 s{S_T1}, s{S_T1}, 7")
    a(f"s_lshl_b32 s{S_T2}, s{S_H}, 8")
    a(f"s_add_u32 s{S_T2}, s{S_T2}, s{S_T1}")
    a("s_waitcnt lgkmcnt(0)")
    def desc(base, src, size):
        a(f"s_mov_b32 s{base}, s{src}")
        a(f"s_and_b32 s{base+1}, s{src+1}, 0xffff")
        a(f"s_mov_b32 s{base+2}, {size:#x}")
        a(f"s_mov_b32 s{base+3}, 0x20000")
    desc(S_D, S_KA + 8, 256)
    register_wg(a, V_W, "L_ch_noreg", barrier=False)
    for j, d in enumerate(S_DQ):
        desc(d, S_KA + 2 * j, 0x400000)
        if lazy and j == 0:
            for i in range(DEPTH0[0]): issue_round(a, i, vq)
    if not lazy:
        for i in range(DEPTH0[0]): issue_round(a, i, vq)
    else: src_pattern(a, V_SO, L, T, (0, 5, 4), 1024)
    desc(S_WS, S_KA + 10, WS_SIZE)

def load_weights(a, hooks, vq, depth=3):
    L, T = 127, 126
    TQ, TO = V_AQ, V_AQ + 4
    TMP = V_W
    S_CB = 64
    a(f"s_mov_b32 s{S_CB}, s{S_T2}")
    bitpat(a, TO, L, [(5, 1, 1024), (4, 1, 512 + 32), (3, 1, 256 + 64), (2, 1, 128), (0, 3, 8)], T)
    a(f"s_lshl_b32 s{S_T0}, s{S_WV}, 13")
    a(f"v_add_u32 v{TO}, s{S_T0}, v{TO}")
    for j in range(1, 4): a(f"v_xor_b32 v{TO + j}, {32 * j}, v{TO}")
    a(f"s_and_b32 s{S_T0}, s{S_WV}, 1")
    a(f"s_lshl_b32 s{S_T0}, s{S_T0}, 6")
    a(f"v_xor_b32 v{TQ}, s{S_T0}, v{TO}")
    a(f"v_xor_b32 v{TQ+1}, 32, v{TQ}")
    a(f"v_xor_b32 v{TQ+2}, 8192, v{TQ}")
    a(f"v_xor_b32 v{TQ+3}, 8192, v{TQ+1}")
    for i in range(DEPTH0[0], depth):
        a(f"s_mov_b32 s{S_T2}, s{S_CB}")
        a(f"s_lshl_b32 s{S_T3}, s{S_WV}, 13")
        issue_round(a, i, vq)
    for i in range(16):
        kind, p = ROUNDS[i]
        vq.wait(a, ('w', i))
        a("s_barrier")
        if i + depth < 16:
            a(f"s_mov_b32 s{S_T2}, s{S_CB}")
            a(f"s_lshl_b32 s{S_T3}, s{S_WV}, 13")
            issue_round(a, i + depth, vq)
        if i in hooks: hooks[i](a)
        if i == PSTAMP[0]:
            a("s_memrealtime s[62:63]"); a("s_waitcnt lgkmcnt(0)"); a(f"s_sub_u32 s{S_ACC}, s62, s92"); a(f"s_lshl_b32 s{S_ACC}, s{S_ACC}, 2")
        if i and i % 2 == 0:
            for j in range(8): a(f"v_xor_b32 v{TQ + j}, 0x10000, v{TQ + j}")
        for j in range(2):
            for t in range(2):
                if i >= 12: base = TMP + 16 * j + 8 * t
                elif kind == 'q': base = WQ0 + ((p + 2 * j) * 2 + t) * 8
                elif kind == 'k': base = WK0 + ((p + 2 * j) * 2 + t) * 8
                elif kind == 'v': base = WV0 + ((p + 2 * j - 4) * 2 + t) * 8
                else: base = WO0 + ((2 * j + t) * 2 + p[1]) * 8
                ad = (TO if kind == 'o' else TQ) + 2 * j + t
                for pr in range(4):
                    a(f"ds_read_b64_tr_b16 {ur(base + 2*pr, 2)}, v{ad} offset:{(i & 1)*32768 + (pr >> 1)*4096 + (pr & 1)*2048}")
            a("s_waitcnt lgkmcnt(0)")
        if i >= 12:
            a("s_barrier")
            if i == 14: a(f"v_xor_b32 v{V_WVO}, 0x10000, v{V_WVO}")
            for q in range(8):
                a(f"ds_write_b128 v{V_WVO}, {vr(TMP + 4*q, 4)} offset:{(i & 1)*32768 + q*1024}")
            a("s_waitcnt lgkmcnt(0)")
    if ROUNDS[15][0] == 'o': a(f"v_xor_b32 v{V_WVO}, 0x10000, v{V_WVO}")

def lds_wv(s, t, h): return (s & 1) * 32768 + (s >> 1) * 4096 + t * 2048 + h * 1024
def lds_wo(t, kbo, h): return kbo * 32768 + ((t >> 1) - 2) * 4096 + (t & 1) * 2048 + h * 1024
FLIP = f"v_xor_b32 v{V_WVO}, 0x10000, v{V_WVO}"
def rd_wv(dst, s, t): return [f"ds_read_b128 {vr(dst + 4*h, 4)}, v{V_WVO} offset:{lds_wv(s, t, h)}" for h in range(2)]
def rd_wo(dst, t, kbo): return [f"ds_read_b128 {vr(dst + 4*h, 4)}, v{V_WVO} offset:{lds_wo(t, kbo, h)}" for h in range(2)]

def slot_lines():
    return [
        f"s_and_b32 s{S_T0}, s{S_STEP}, 3",
        f"s_lshl_b32 s{S_T1}, s{S_T0}, 13",
        f"s_add_u32 s{S_PUBC}, s{S_T1}, s{S_HB_PUB}",
        f"s_and_b32 s{S_T0}, s{S_T0}, 1",
        f"s_lshl_b32 s{S_T1}, s{S_T0}, 18",
        f"s_add_u32 s{S_PST0}, s{S_T1}, s{S_HB_PST}",
        f"s_add_u32 s{S_PST1}, s{S_PST0}, 32768",
        f"s_add_u32 s{S_INB0}, s{S_T1}, s{S_HB_INB}",
        f"s_add_u32 s{S_INB1}, s{S_INB0}, 4096",
        f"s_bfe_u32 s{S_PH}, s{S_STEP}, 0x10001",
        f"s_add_u32 s{S_T0}, s{S_STEP}, 1",
        f"s_and_b32 s{S_T0}, s{S_T0}, 3",
        f"s_lshl_b32 s{S_T0}, s{S_T0}, 13",
        f"s_add_u32 s{S_PUBN}, s{S_T0}, s{S_HB_PUB}",
        f"s_add_u32 s{S_MEMRD}, s{S_T0}, {WS_MEMRING - MEMB}"]

def idle_a(a, par_next):
    wv_preload(a)
    copy_export(a, par_next)

def wv_preload(a):
    for j in range(4):
        for x in rd_wv(Wb(j), j >> 1, j & 1): a(x)

def copy_export(a, par_next):
    vn = V_VX[1 - par_next]
    for r in range(4): a(f"v_mov_b32 v{vn + r}, v{V_AK + r}")

ZW = [0]
def zero_regs(a, regs):
    if ZW[0]:
        for r in regs[::2]: a(f"v_mov_b64 {vr(r, 2)}, 0")
    else:
        for r in regs: a(f"v_mov_b32 v{r}, 0")

def zero_b(a):
    zero_regs(a, list(range(V_AQ + 4, V_AQ + 8)) + list(range(V_AK, V_AK + 4)))

def idle_b(a, par_next, tag, young):
    zero_b(a)
    a(f"s_waitcnt vmcnt({young})")
    avail_check(a, tag)

def idle_c1(a):
    zero_regs(a, list(range(V_AQ, V_AQ + 4)) + list(range(V_AV, V_AV + 8)))

def idle_c(a, par_next, done=False):
    if not done: idle_c1(a)
    a("s_waitcnt vmcnt(2)")
    for r in range(V_AK + 4, V_AK + 8): a(f"v_mov_b32 v{r}, 0")

def avail_check(a, tag):
    a(f"v_readfirstlane_b32 s{S_AVAIL}, v{V_FL}")
    a(f"s_lshr_b32 s{S_T0}, s{S_AVAIL}, 16")
    a(f"s_and_b32 s{S_AVAIL}, s{S_AVAIL}, 0xffff")
    a(f"s_min_u32 s{S_AVAIL}, s{S_AVAIL}, s{S_T0}")
    a(f"s_add_u32 s{S_T0}, s{S_STEP}, {AHEAD[0]}")
    a(f"s_min_u32 s{S_T0}, s{S_T0}, 64")
    a(f"s_cmp_ge_u32 s{S_AVAIL}, s{S_T0}")
    a(f"s_cbranch_scc0 {tag}_slow")
    a.label(f"{tag}_ok")

def avail_slow(a, tag):
    a.label(f"{tag}_slow")
    a(f"buffer_load_dword v{V_FL}, off, s[{S_WS}:{S_WS+3}], s{S_FLP} sc1")
    a(f"s_add_u32 s{S_SPIN}, s{S_SPIN}, 1")
    a(f"s_cmp_gt_u32 s{S_SPIN}, {SPIN_LIMIT}")
    a("s_cbranch_scc1 L_abort")
    a("s_waitcnt vmcnt(0)")
    a(f"v_readfirstlane_b32 s{S_AVAIL}, v{V_FL}")
    a(f"s_lshr_b32 s{S_T1}, s{S_AVAIL}, 16")
    a(f"s_and_b32 s{S_AVAIL}, s{S_AVAIL}, 0xffff")
    a(f"s_min_u32 s{S_AVAIL}, s{S_AVAIL}, s{S_T1}")
    a(f"s_cmp_ge_u32 s{S_AVAIL}, s{S_T0}")
    a(f"s_cbranch_scc0 {tag}_slow")
    a(f"s_branch {tag}_ok")

def step(a, par, st, tag, opt, nxt=None):
    WS = f"s[{S_WS}:{S_WS+3}]"
    VXc, VXn = V_VX[par], V_VX[1 - par]
    Kc = KB[par] - MEMB
    T0 = V_PB + 3
    stamp = opt.get('stamp') or (None, None)
    trace = opt.get('trace', [])
    def st_list(name):
        ser = opt.get('series')
        ser = [ser] if isinstance(ser, str) else (ser or [])
        if name in ser:
            adj = -4 if name in ('pst', 'oex', 'bar4x') else 0
            return [f"s_memtime s[{S_TS}:{S_TS+1}]", f"s_lshl_b32 s{S_TS+2}, s{S_STEP}, 2", f"s_lshl_b32 s{S_TS+3}, s{S_H}, 8", f"s_add_u32 s{S_TS+2}, s{S_TS+2}, s{S_TS+3}",
                    f"s_add_u32 s{S_TS+2}, s{S_TS+2}, {WS_STAMP + 0x30000 + 0x2000 * ser.index(name) + adj}", "s_waitcnt lgkmcnt(0)", f"v_mov_b32 v{V_FL}x, s{S_TS}".replace(f"v{V_FL}x", f"v{V_PB if name in ('bar1', 'bar2') else V_VX[par] + 7 if name == 'pst' else V_AQ + 2}"),
                    f"buffer_store_dword v{V_PB if name in ('bar1', 'bar2') else V_VX[par] + 7 if name == 'pst' else V_AQ + 2}, off, {WS}, s{S_TS+2}"]
        if name in trace:
            k = 68 + trace.index(name)
            return [f"s_memtime s[{S_TS}:{S_TS+1}]", "s_waitcnt lgkmcnt(0)", f"s_cmp_eq_u32 s{S_STEP}, {opt.get('tstep', 20) + (1 if name in ('join', 'pub', 'h2iss', 'h1iss', 'pst', 'oex') else 0) + (1 if name == 'entry' and opt.get('nextentry') else 0)}",
                    f"s_cselect_b32 s{k}, s{S_TS}, s{k}"]
        if stamp[0] == name:
            return [f"s_memtime s[{S_TS}:{S_TS+1}]", "s_waitcnt lgkmcnt(0)"]
        if stamp[1] == name:
            return [f"s_memtime s[{S_TS+2}:{S_TS+3}]", "s_waitcnt lgkmcnt(0)", f"s_sub_u32 s{S_TS+2}, s{S_TS+2}, s{S_TS}",
                    f"s_cmp_lt_u32 s{S_STEP}, 2", f"s_cselect_b32 s{S_TS+2}, 3000, s{S_TS+2}", f"s_cselect_b32 s{S_TS+3}, 3000, 0", f"s_sub_u32 s{S_ACC}, s{S_ACC}, s{S_TS+3}",
                    f"s_add_u32 s{S_ACC}, s{S_ACC}, s{S_TS+2}", f"s_max_u32 s74, s74, s{S_TS+2}", f"s_min_u32 s73, s73, s{S_TS+2}",
                    f"s_cmp_gt_u32 s{S_TS+2}, {opt.get('thr', 100000)}", "s_addc_u32 s72, s72, 0"]
        return []
    def st_at(name):
        for x in st_list(name): a(x)
    sg = opt.get('sg', 0)
    a.label(f"{tag}_h1")
    b2 = opt.get('b2nd', 0)
    a(f"s_waitcnt vmcnt({2 if b2 else 1 if sg else 0})")
    a.label(f"{tag}_entry")
    st_at('entry')
    M = V_M
    if opt.get('w0', 1): a(f"ds_write_b128 v{V_P1}, {Mf(0)}")
    if not sg:
        a(f"v_max3_u32 v{T0}, v{M+1}, v{M+3}, v{M+5}")
        a(f"v_max_u32 v{T0}, v{T0}, v{M+7}")
        a(f"v_cmp_eq_u32 vcc, -1, v{T0}")
    elif opt.get('sg2'):
        a(f"v_max_u32 v{T0}, v{M+1}, v{M+3}")
    a.label(f"{tag}_entry2")
    mains = []; F = {}
    nobg = opt.get('nobg', '')
    def add(i, *xs): F.setdefault(i, []).extend(xs)
    AQ = lambda t: V_AQ + 4 * t
    AK = lambda t: V_AK + 4 * t
    AV = lambda t: V_AV + 4 * t
    if not sg:
        for s in range(2):
            for t in range(2): mains.append(smf(AQ(t), Mf(s), wq(t, s)))
        for s in range(2):
            for t in range(2): mains.append(smf(AK(t), Mf(s), wk(t, s)))
        for s in range(2):
            for t in range(2): mains.append(smf(AV(t), Mf(s), vr(Wb(2*s + t), 8)))
        add(1, f"s_cbranch_vccnz {tag}_h1retry")
        if not opt.get('w0', 1): add(1, f"ds_write_b128 v{V_P1}, {Mf(0)}")
        add(opt.get('w1', 2), f"ds_write_b128 v{V_P1}, {Mf(1)} offset:1024")
    else:
        for s in range(2):
            for t in range(2): mains.append(smf(AQ(t), Mf(s), wq(t, s)))
            for t in range(2): mains.append(smf(AK(t), Mf(s), wk(t, s)))
            for t in range(2): mains.append(smf(AV(t), Mf(s), vr(Wb(2*s + t), 8)))
        g = sg
        if not opt.get('sg2'): add(0, f"v_max_u32 v{T0}, v{M+1}, v{M+3}")
        add(g, "s_waitcnt vmcnt(0)", f"ds_write_b128 v{V_P1}, {Mf(1)} offset:1024", f"v_max3_u32 v{T0}, v{T0}, v{M+5}, v{M+7}")
        add(g + 1, f"v_cmp_eq_u32 vcc, -1, v{T0}")
        add(g + 3, f"s_cbranch_vccnz {tag}_h1retry")
    B1 = opt.get('b1', 6)
    add(B1, "s_waitcnt lgkmcnt(0)", *st_list('prebar1'), "s_barrier", *st_list('bar1'))
    mr = (V_MR1, V_MR2, V_MR3)
    for j, s in enumerate(range(2, 8)):
        add(B1 + j, f"ds_read_b128 {Mf(s)}, v{mr[(s >> 1) - 1]} offset:{(s & 1) * 1024}")
    for s in range(2, 8):
        for t in range(2): mains.append(smf(AQ(t), Mf(s), wq(t, s)))
    wvr = [x for j in range(4) for x in rd_wv(Wb(j), 2 + (j >> 1), j & 1)]
    for i, x in enumerate(wvr): add(14 + i, x)
    for s in range(2, 4):
        for t in range(2): mains.append(smf(AV(t), Mf(s), vr(Wb(2*(s-2) + t), 8)))
    for s in range(2, 8):
        for t in range(2): mains.append(smf(AK(t), Mf(s), wk(t, s)))
    ex4 = [f"buffer_store_dwordx4 {vr(VXn,4)}, v{V_LA}, {WS}, s{S_EXP} offen sc1"]
    bg = [f"buffer_load_dwordx4 v{V_P1}, {WS}, s{S_KPF} offen sc1 lds",
          f"buffer_load_dwordx4 v{V_P1}, {WS}, s{S_KPF} offen offset:1024 sc1 lds",
          f"buffer_load_dwordx4 {vr(VXn+4,4)}, v{V_P1}, {WS}, s{S_VPF} offen offset:1024 sc1",
          f"buffer_load_dwordx4 {vr(VXn,4)}, v{V_P1}, {WS}, s{S_VPF} offen sc1",
          f"buffer_load_dword v{V_FL}, off, {WS}, s{S_FLP} sc1"]
    tpos = opt.get('tpos')
    if tpos:
        add(tpos[0] - 1, f"s_add_u32 s{S_KD}, s{S_KPF}, {32*8192}")
        add(tpos[0], f"buffer_load_dwordx4 {vr(VXn+4,4)}, v{V_P1}, {WS}, s{S_KD} offen sc1", "#forget")
        add(tpos[1], f"buffer_load_dwordx4 {vr(VXn+4,4)}, v{V_P1}, {WS}, s{S_KD} offen offset:1024 sc1", "#forget")
    vpos = opt.get('vpos', (13, 15, 17, 19, 21, 22))
    add(5, f"s_mov_b32 m0, s{S_KM0 + (1 - par)}")
    late_bg = []; bub = {}; nbub = 0
    for x, i in zip(ex4 + bg, vpos):
        if i >= 200: bub.setdefault(i - 200, []).append(x); nbub += 1
        elif i >= 100: late_bg.append((i - 100, x))
        else: add(i, x)
    if b2: add(38, f"s_waitcnt vmcnt({len(ex4) + len(bg) + 1 + (2 if tpos else 0)})")
    add(20, f"s_sub_u32 s{S_T2}, s{S_STEP}, 1", f"s_max_i32 s{S_T2}, s{S_T2}, 0")
    add(21, f"v_mov_b32 v{V_PB}, s{S_T2}")
    add(23, f"buffer_store_dword v{V_PB}, v{V_GATH}, {WS}, s{S_FLA} offen sc1")
    sal = slot_lines() + [f"s_add_u32 s{S_EXP}, s{S_EXP}, {32*4096}", f"s_add_u32 s{S_KPF}, s{S_KPF}, {32*8192}", f"s_add_u32 s{S_VPF}, s{S_VPF}, {32*8192}"]
    if opt.get('samekv'): sal = sal[:-2]
    late_sal = []
    if opt.get('sameexp'): sal = [x for x in sal if f"s{S_EXP}," not in x]
    for j, x in enumerate(sal): F.setdefault(23 + j, []).insert(0, x)
    QF, KF = Wb(0), Wb(2)
    KX = [V_M, V_M + 4, Wb(2), Wb(2) + 4, Wb(3), Wb(3) + 4, V_M + 8, V_M + 12]
    qtr = [f"ds_read_b64_tr_b16 {vr(QF + 4*i + 2*hh, 2)}, v{V_QKR} offset:{i*1024 + hh*512}" for i in range(4) for hh in range(2)]
    kxr = [f"ds_read_b128 {vr(KX[2*i + T], 4)}, v{V_LA} offset:{Kc + T*4096 + i*1024}" for i in range(4) for T in range(2)]
    q0, q1 = AQ(0), AQ(1)
    add(22, kxr[0]); add(23, kxr[1])
    add(24, f"v_add_f32 v{q0}, v{q0}, v{q0+1}")
    add(25, f"v_add_f32 v{q0+2}, v{q0+2}, v{q0+3}")
    add(26, f"v_cvt_pk_bf16_f32 v{q0}, v{q0}, v{q0+2}")
    add(27, f"ds_write_b32 v{V_QW}, v{q0}", f"v_add_f32 v{q1}, v{q1}, v{q1+1}")
    add(28, kxr[2], f"v_add_f32 v{q1+2}, v{q1+2}, v{q1+3}")
    add(29, kxr[3], f"v_cvt_pk_bf16_f32 v{q1}, v{q1}, v{q1+2}")
    add(30, f"ds_write_b32 v{V_QW}, v{q1} offset:512")
    add(31, kxr[4]); add(32, kxr[5]); add(33, kxr[6])
    add(33, FLIP)
    B2 = opt.get('b2', 34)
    add(B2, "s_waitcnt lgkmcnt(3)", *st_list('prebar2'), "s_barrier", *st_list('bar2'))
    for j, x in enumerate(qtr): add(B2 + j, x)
    SX = lambda T: V_AQ + 4 * T
    nv4 = opt.get('nv4', 2)
    vrest = [smf(AV(t), Mf(s), wv_res(t, s)) for s in (4, 5, 6, 7) for t in range(2)]
    mains += vrest[:nv4]
    for i in range(4):
        for T in range(2):
            mains.append(mf32(SX(T), vr(KX[2*i + T], 4), vr(QF + 4*i, 4), "0" if i == 0 else vr(SX(T), 4)))
    k0, k1 = AK(0), AK(1)
    add(40, f"v_add_f32 v{k0}, v{k0}, v{k0+1}")
    add(41, f"v_add_f32 v{k0+2}, v{k0+2}, v{k0+3}")
    add(42, f"v_cvt_pk_bf16_f32 v{k0}, v{k0}, v{k0+2}", f"v_add_f32 v{k1}, v{k1}, v{k1+1}")
    add(43, f"ds_write_b32 v{V_QW}, v{k0} offset:4096", f"v_add_f32 v{k1+2}, v{k1+2}, v{k1+3}")
    add(opt.get('kx7', 44), kxr[7])
    add(44, f"v_cvt_pk_bf16_f32 v{k0+1}, v{k1}, v{k1+2}")
    add(45, f"ds_write_b32 v{V_QW}, v{k0+1} offset:4608")
    B3 = opt.get('b3', 49)
    add(B3, "s_waitcnt lgkmcnt(0)", *st_list('prebar3'), "s_barrier", *st_list('bar3'))
    ktr = [f"ds_read_b64_tr_b16 {vr(KF + 4*i + 2*hh, 2)}, v{V_QKR} offset:{4096 + i*1024 + hh*512}" for i in range(4) for hh in range(2)]
    mains += vrest[nv4:]
    for x, i in zip(ktr, opt.get('ktrpos', (49, 49, 50, 51, 52, 53, 54, 55))): add(i, x)
    ex = [f"v_exp_f32 v{V_AQ + r}, v{V_AQ + r}" for r in range(8)]
    for x, i in zip(ex, opt.get('expos', (50, 51, 52, 53, 54, 55, 56, 57))): add(i, x)
    SM = V_AK + 4
    for i in range(4):
        mains.append(mf32(SM, vr(KF + 4*i, 4), vr(QF + 4*i, 4), "0" if i == 0 else vr(SM, 4)))
    PX = V_AQ
    v0_, v1_ = AV(0), AV(1)
    add(58, f"v_cvt_pk_bf16_f32 v{PX}, v{V_AQ}, v{V_AQ+1}", f"v_cvt_pk_bf16_f32 v{PX+1}, v{V_AQ+2}, v{V_AQ+3}")
    add(59, f"v_cvt_pk_bf16_f32 v{PX+2}, v{V_AQ+4}, v{V_AQ+5}", f"v_cvt_pk_bf16_f32 v{PX+3}, v{V_AQ+6}, v{V_AQ+7}",
            f"v_add_f32 v{v0_}, v{v0_}, v{v0_+1}", f"v_add_f32 v{v0_+2}, v{v0_+2}, v{v0_+3}")
    OA, LA = V_M, V_M + 8
    mains.append(mf32(LA, vr(V_ONES, 4), vr(PX, 4), "0"))
    mains.append(mf32(OA, vr(VXc, 4), vr(PX, 4), "0"))
    mains.append(mf32(OA + 4, vr(VXc + 4, 4), vr(PX, 4), "0"))
    add(60, f"v_mul_f32 v{SM}, s{S_C}, v{SM}", f"v_mul_f32 v{SM+1}, s{S_C}, v{SM+1}")
    add(61, f"v_exp_f32 v{SM}, v{SM}", f"v_exp_f32 v{SM+1}, v{SM+1}")
    add(62, f"v_cvt_pk_bf16_f32 v{V_AK+2}, v{v0_}, v{v0_+2}", f"v_cvt_pk_bf16_f32 v{V_PB}, v{SM}, v{SM+1}",
            f"v_add_f32 v{v1_}, v{v1_}, v{v1_+1}", f"v_add_f32 v{v1_+2}, v{v1_+2}, v{v1_+3}")
    mains.append(mf16(LA, vr(V_ONES, 2), vr(V_PB, 2), vr(LA, 4)))
    add(63, f"v_cvt_pk_bf16_f32 v{V_AK+3}, v{v1_}, v{v1_+2}", f"v_cvt_pk_bf16_f32 v{V_PB+3}, v{SM}, v{SM+1}")
    mains.append(mf16(OA, vr(V_AK + 2, 2), vr(V_PB, 2), vr(OA, 4)))
    mains.append(mf16(OA + 4, vr(V_AK + 2, 2), vr(V_PB + 2, 2), vr(OA + 4, 4)))
    wo_order = [(t, kbo) for t in range(4, 8) for kbo in range(2)]
    wor = [x for j in range(4) for x in rd_wo(Wb(j), *wo_order[j])]
    npre = opt.get('npre', 4)
    for x, i in zip(wor[:npre], (64, 64, 65, 65, 65, 65, 65, 65)): add(i, x)
    drop = opt.get('drop', [])
    if drop:
        F = {i: [x for x in xs if not any(x.startswith(d) for d in drop)] for i, xs in F.items()}
    interleave(a, mains, F)
    st_at('pv')
    INV, OW = V_AQ + 0, V_AQ + 4
    a(f"v_rcp_f32 v{INV}, v{LA}")
    for hh in range(2):
        if opt.get('pkn', 1):
            for r in range(4 * hh, 4 * hh + 4, 2): a(f"v_pk_mul_f32 {vr(OA+r,2)}, {vr(OA+r,2)}, {vr(INV,2)} op_sel_hi:[1,0]")
        else:
            for r in range(4 * hh, 4 * hh + 4): a(f"v_mul_f32 v{OA+r}, v{OA+r}, v{INV}")
        for r in range(2 * hh, 2 * hh + 2): a(f"v_cvt_pk_bf16_f32 v{OW+r}, v{OA+2*r}, v{OA+2*r+1}")
        if not opt.get('ow128'): a(f"ds_write_b64 v{V_OW}, {vr(OW + 2*hh, 2)} offset:{8*hh}")
    if opt.get('ow128'): a(f"ds_write_b128 v{V_OW}, {vr(OW, 4)}")
    a(f"v_subrev_u32 v{INV+1}, s{S_LLO}, v{LA}")
    a(f"v_cmp_le_u32 vcc, s{S_LRG}, v{INV+1}")
    zm = opt.get('zm', 0)
    zacc = lambda t: mf16(V_M + 4*t, vr(V_PB + 2, 2), vr(V_PB, 2), "0") if zm == 0 else \
        "\n".join(f"v_mov_b64 {vr(V_M + 4*t + 2*j, 2)}, 0" for j in range(2)) if zm == 1 else \
        "\n".join(f"v_mov_b32 v{V_M + 4*t + j}, 0" for j in range(4))
    nb1, nb2 = opt.get('nb1', 0), opt.get('nb2', 0)
    b1l = wor[npre:npre + nb1]
    for t in range(opt.get('z1', 4)):
        a(zacc(t))
        for x in bub.get(t, []): a(x)
        for x in b1l[t::4]: a(x)
    a(f"s_cbranch_vccnz {tag}_fallback")
    a.label(f"{tag}_fbdone")
    a(f"s_waitcnt lgkmcnt({nb1})")
    st_at('prebar4')
    a("s_barrier")
    st_at('bar4')
    OF = VXc
    a(f"ds_read_b128 {vr(OF,4)}, v{V_LA}")
    a(f"ds_read_b128 {vr(OF+4,4)}, v{V_LA} offset:1024")
    HV = V_AK + 4
    a(f"s_add_u32 s{S_STEP}, s{S_STEP}, 1")
    for t in range(opt.get('z1', 4), 8):
        a(zacc(t))
        for x in bub.get(t, []): a(x)
        for x in wor[npre + nb1:npre + nb1 + nb2][t - 4::4]: a(x)
        if t == 4: a(f"v_mov_b32 v{HV}, s{S_STEP}")
    st_at('oex')
    mains = []; F = {}
    P = lambda t: V_M + 4 * t
    for t in range(4):
        for kbo in range(2): mains.append(smf(P(t), vr(OF + 4*kbo, 4), wo_res(t, kbo)))
    src = [Wb(0), Wb(1), Wb(2), Wb(3), V_AQ, V_AV, Wb(0), Wb(1)]
    for j, (t, kbo) in enumerate(wo_order): mains.append(smf(P(t), vr(OF + 4*kbo, 4), vr(src[j], 8)))
    nd = npre + nb1 + nb2
    late = wor[nd:] + [x for j in range(4, 8) for x in rd_wo(src[j], *wo_order[j])]
    n1 = 12 - nd
    lpos = [min(7, (j * 8) // max(n1, 8)) for j in range(n1)] + list(opt.get('lp', (8, 9, 9, 10)))
    for x, i in zip(late, lpos): add(i, x)
    split = opt.get('split', 0)
    def fold(t, dst):
        p = P(t)
        return [f"v_add_f32 v{p}, v{p}, v{p+1}", f"v_add_f32 v{p+2}, v{p+2}, v{p+3}", f"v_cvt_pk_bf16_f32 v{dst}, v{p}, v{p+2}"]
    for t in range(6):
        y = fold(t, P(t & 4) + (t & 3))
        add(2 * t + 3, y[0]); add(2 * t + 4, y[1], y[2])
        if t & 3 == 0: add(2 * t + 5, f"v_and_or_b32 v{P(t)}, v{P(t)}, -2, s{S_PH}")
        if split and t == 2: add(2 * t + 5, f"v_and_or_b32 v{P(0)+2}, v{P(0)+2}, -2, s{S_PH}")
    add(11, FLIP)
    for i, x in late_bg: F.setdefault(i, []).insert(0, x)
    for j, x in enumerate(late_sal): F.setdefault(12 + j, []).insert(0, x)
    y6 = fold(6, P(4) + 2); add(15, y6[0])
    sp = opt.get('st0', 11)
    F[sp].insert(0, f"buffer_store_dwordx4 {vr(P(0),4)}, v{V_PST}, {WS}, s{S_PST0} offen {st}")
    if split: F[15].insert(0, f"buffer_store_dwordx2 {vr(P(4),2)}, v{V_PST}, {WS}, s{S_PST1} offen {st}")
    probes = opt.get('probes', (14, 16))
    blind = opt.get('blind')
    if blind is not None: probes = ()
    else: F.setdefault(opt.get('hintpos', 7), []).insert(0, f"buffer_store_dword v{HV}, v{V_L4}, {WS}, s{S_HST} offen {st}")
    probe = lambda j: f"buffer_load_dword v{HV + 1 + j % 3}, v{V_L4}, {WS}, s{S_HLD} offen sc1"
    for j, g in enumerate(probes):
        if g < 16: F[g].insert(0, probe(j))
    interleave(a, mains, F)
    a(y6[1]); a(y6[2])
    if split: a(f"v_and_or_b32 v{P(4)+2}, v{P(4)+2}, -2, s{S_PH}")
    for j, g in enumerate(probes):
        if g == 16: a(probe(j))
    for y in fold(7, P(4) + 3): a(y)
    if split: a(f"buffer_store_dwordx2 {vr(P(4)+2,2)}, v{V_PST}, {WS}, s{S_PST1} offen offset:8 {st}")
    else: a(f"buffer_store_dwordx4 {vr(P(4),4)}, v{V_PST}, {WS}, s{S_PST1} offen {st}")
    st_at('pst')
    SEL, RA = V_AQ, V_AV
    def h2_issue():
        for i in range(8):
            a(f"buffer_load_dwordx4 {Mf(i)}, v{V_LA}, {WS}, s{S_INB0 if i < 4 else S_INB1} offen offset:{(i & 3)*1024} sc1")
    FLG = QB + 4 - MEMB
    a(f"s_cmp_lg_u32 s{S_WV}, 0")
    a(f"s_cbranch_scc1 {tag}_others")
    if blind is not None:
        TG = RA + 4
        for r in range(4): a(f"v_cndmask_b32 v{SEL+r}, 0, v{V_SELX}, s[{S_SELM+2*r}:{S_SELM+2*r+1}]")
        copy_export(a, 1 - par)
        if blind & 1: zero_b(a)
        if blind & 2:
            a("s_waitcnt vmcnt(2)")
            avail_check(a, f"{tag}_av0")
        if blind & 4:
            for r in range(V_AK + 4, V_AK + 8): a(f"v_mov_b32 v{r}, 0")
        for _ in range(opt.get('h2pad', 0)): a("s_nop 7")
        h2_issue()
        for _ in range(opt.get('h2gap', 0)): a("s_nop 7")
        for i in range(8):
            a(f"buffer_load_dwordx4 {vr(V_W + 4*i, 4)}, v{V_LA}, {WS}, s{S_INB0 if i < 4 else S_INB1} offen offset:{(i & 3)*1024} sc1")
        def red(base, fail):
            for i in range(8):
                a(mf32(RA, vr(base + 4*i, 4), vr(SEL, 4), "0" if i == 0 else vr(RA, 4)))
                if i == 0: a(f"v_xor_b32 v{TG}, s{S_PH}, v{base}")
                else: a(f"v_bitop3_b32 v{TG}, v{TG}, v{base + 4*i}, s{S_PH} bitop3:0xf6")
            a(f"v_and_b32 v{TG}, 1, v{TG}")
            a(f"v_cmp_ne_u32 vcc, 0, v{TG}")
            a(f"v_mov_b32 v{TG}, -1")
            a(f"v_mov_b32 v{TG+1}, -1")
            a(f"v_cvt_pk_bf16_f32 v{RA+6}, v{RA}, v{RA+1}")
            a(f"v_cvt_pk_bf16_f32 v{RA+7}, v{RA+2}, v{RA+3}")
            a(f"s_cbranch_vccnz {fail}")
        red(V_M, f"{tag}_b2")
        a(f"s_branch {tag}_pubit")
        a.label(f"{tag}_b2")
        a.items.append(('x', 'set_vm', [set(('v', r) for r in range(V_W + 4*i, V_W + 4*i + 4)) for i in range(8)]))
        a(f"s_add_u32 s{S_ACC+3}, s{S_ACC+3}, 1")
        red(V_W, f"{tag}_b3")
        a(f"s_branch {tag}_pubit")
        a.label(f"{tag}_b3")
        a("s_mov_b64 vcc, -1")
        a(f"s_branch {tag}_h2r")
    PR = [HV + 1, HV + 2, HV + 3, V_AV, V_AV + 1]
    probe_to = lambda r: f"buffer_load_dword v{r}, v{V_L4}, {WS}, s{S_HLD} offen sc1"
    def check(r):
        a(f"v_cmp_gt_u32 vcc, s{S_STEP}, v{r}")
        a(f"s_cbranch_vccz {tag}_go")
    n = len(probes)
    depth = opt.get('pdepth', 4)
    queue = []
    for g in sorted(set(list(probes) + [sp, 17])):
        if g in probes: queue.append(PR[probes.index(g)])
        if g == sp or g == 17: queue.append(None)
    if sp in probes:
        pass
    def issue(r):
        a(probe_to(r)); queue.append(r)
    def wait_check(r):
        k = max(i for i, x in enumerate(queue) if x == r)
        return len(queue) - 1 - k
    sel = [f"v_cndmask_b32 v{SEL+r}, 0, v{V_SELX}, s[{S_SELM+2*r}:{S_SELM+2*r+1}]" for r in range(4)]
    nxtr = n
    issue(PR[nxtr]); nxtr += 1
    for x in sel: a(x)
    copy_export(a, 1 - par)
    if depth > nxtr:
        zero_b(a)
        issue(PR[nxtr]); nxtr += 1
    order = list(range(nxtr))
    first = True
    short = opt.get('short')
    for j in range(n):
        if short is not None: a(f"s_mov_b32 s{S_SHORT}, {1 if j in short else 0}")
        a(f"s_waitcnt vmcnt({wait_check(PR[j])})")
        check(PR[j])
        if nxtr < depth:
            issue(PR[nxtr]); order.append(nxtr); nxtr += 1
            if first: wv_preload(a)
            issue(PR[j]); order.append(j)
        else:
            issue(PR[j]); order.append(j)
        first = False
    if short is not None: a(f"s_mov_b32 s{S_SHORT}, {1 if 9 in short else 0}")
    ring = order[n:]
    a.label(f"{tag}_hl")
    for j in ring:
        a(f"s_waitcnt vmcnt({len(ring) - 1})")
        check(PR[j])
        a(probe_to(PR[j]))
        a(f"s_add_u32 s{S_ACC+3}, s{S_ACC+3}, 1")
    a(f"s_add_u32 s{S_SPIN}, s{S_SPIN}, 1")
    a(f"s_cmp_gt_u32 s{S_SPIN}, {SPIN_LIMIT}")
    a(f"s_cbranch_scc0 {tag}_hl")
    a("s_branch L_abort")
    if opt.get('al', 1): a(".p2align 5")
    a.label(f"{tag}_go")
    for _ in range(opt.get('h2pad', 0)): a("s_nop 7")
    st_at('h2iss')
    h2_issue()
    ea = opt.get('ea', 3)
    if not ea & 1: wv_preload(a)
    if not ea & 2: idle_b(a, 1 - par, f"{tag}_av0", 10 + len(probes))
    a.label(f"{tag}_h2")
    TG = RA + 4
    for i in range(8):
        a(mf32(RA, Mf(i), vr(SEL, 4), "0" if i == 0 else vr(RA, 4)))
        if i == 0: a(f"v_xor_b32 v{TG}, s{S_PH}, v{V_M}")
        else: a(f"v_bitop3_b32 v{TG}, v{TG}, v{V_M + 4*i}, s{S_PH} bitop3:0xf6")
        if split: a(f"v_bitop3_b32 v{TG}, v{TG}, v{V_M + 4*i + 2}, s{S_PH} bitop3:0xf6")
    a(f"v_and_b32 v{TG}, 1, v{TG}")
    a(f"v_cmp_ne_u32 vcc, 0, v{TG}")
    a(f"v_mov_b32 v{TG}, -1")
    a(f"v_mov_b32 v{TG+1}, -1")
    a(f"v_cvt_pk_bf16_f32 v{RA+6}, v{RA}, v{RA+1}")
    a(f"v_cvt_pk_bf16_f32 v{RA+7}, v{RA+2}, v{RA+3}")
    a(f"s_cbranch_vccnz {tag}_h2r")
    a.label(f"{tag}_pubit")
    a(f"buffer_store_dwordx2 {vr(RA+6,2)}, v{V_PUB}, {WS}, s{S_PUBN} offen {st}")
    st_at('pub')
    a(f"buffer_store_dwordx2 {vr(TG,2)}, v{V_PUB}, {WS}, s{S_PUBC} offen {st}")
    if short is not None:
        a(f"s_cmp_eq_u32 s{S_SHORT}, 0")
        a(f"s_cbranch_scc1 {tag}_long")
        sw = opt.get('sw', 1)
        if sw & 1: idle_c1(a)
        if sw & 2: wv_preload(a)
        if sw & 4: idle_b(a, 1 - par, f"{tag}_av1", 63)
        avfirst = not sw & 4
        if avfirst: avail_check(a, f"{tag}_av1")
        a("s_barrier")
        if par == 0:
            a(f"s_cmp_eq_u32 s{S_STEP}, 63")
            a(f"s_cbranch_scc1 {tag}_shortlast")
        h1_issue(a, 0)
        if not sw & 1: idle_c1(a)
        if not sw & 2: wv_preload(a)
        if not sw & 4: zero_b(a)
        idle_c(a, 1 - par, True)
        a("s_waitcnt lgkmcnt(0)")
        a(f"s_branch {nxt}_h1")
        if par == 0:
            a.label(f"{tag}_shortlast")
            idle_c1(a); wv_preload(a); zero_b(a)
            a("s_branch L_last")
        a.label(f"{tag}_long")
    if blind is not None:
        if not blind & 1: zero_b(a)
        if not blind & 2: avail_check(a, f"{tag}_av0")
        idle_c1(a)
        a("s_waitcnt vmcnt(2)")
        wv_preload(a)
    else:
        if ea & 1: wv_preload(a)
        if ea & 2: idle_b(a, 1 - par, f"{tag}_av0", 63)
        idle_c1(a)
    a(f"s_branch {tag}_join")
    if opt.get('al', 1): a(".p2align 5")
    for _ in range(opt.get('sh2', 0)): a(".long 0xbf800000")
    a.label(f"{tag}_others")
    if opt.get('time') or opt.get('probe_t') == 's':
        for k, (st_, reg) in enumerate(((8, 80), (62, 82))):
            a(f"s_cmp_lg_u32 s{S_STEP}, {st_}")
            a(f"s_cbranch_scc1 {tag}_nt{k}")
            a(f"s_memtime s[{reg}:{reg+1}]")
            a("s_waitcnt lgkmcnt(0)")
            a.label(f"{tag}_nt{k}")
    if not b2 & 2: idle_c1(a)
    if not b2 & 8: wv_preload(a)
    copy_export(a, 1 - par)
    if not b2 & 4: zero_b(a)
    a(f"s_cmp_lg_u32 s{S_WV}, 1")
    a(f"s_cbranch_scc1 {tag}_av2_ok")
    a(f"s_waitcnt vmcnt({2 + len(probes) + len(late_bg) + nbub})")
    avail_check(a, f"{tag}_av2")
    for j in range(opt.get('dummy', 0)): a(smf(V_M + 8 + 4 * (j & 1), vr(V_W + 4 * (j & 3), 4), wq(j & 1, j & 7)))
    a.label(f"{tag}_join")
    a("s_barrier")
    for _ in range(opt.get('h1pad', 0)): a("s_nop 7")
    st_at('h1iss')
    if par == 0:
        a(f"s_cmp_eq_u32 s{S_STEP}, 63")
        a(f"s_cbranch_scc1 L_last")
    if sg and not opt.get('sgb2b'):
        a(f"buffer_load_dwordx4 {Mf(0)}, v{V_P1}, {WS}, s{S_MEMRD} offen sc1")
        a("s_waitcnt vmcnt(1)")
        for r in range(V_AK + 4, V_AK + 8): a(f"v_mov_b32 v{r}, 0")
        for _ in range(opt.get('sgpad', 0)): a("s_nop 3")
        a(f"buffer_load_dwordx4 {Mf(1)}, v{V_P1}, {WS}, s{S_MEMRD} offen offset:1024 sc1")
    else:
        h1_issue(a, 0)
        if b2:
            a(f"s_cmp_eq_u32 s{S_WV}, 0")
            a(f"s_cbranch_scc1 {tag}_w0b")
            if b2 & 2: idle_c1(a)
            if b2 & 4: zero_b(a)
            if b2 & 8: wv_preload(a)
            a.label(f"{tag}_w0b")
        idle_c(a, 1 - par, True)
        if b2:
            a(f"s_sub_u32 m0, s{S_KM0}, {KB[0] - MEMB}")
            a("s_nop 0")
            a(f"buffer_load_dwordx4 v{V_P1}, {WS}, s{S_MEMRD} offen sc1 lds")
            a(f"buffer_load_dwordx4 v{V_P1}, {WS}, s{S_MEMRD} offen offset:1024 sc1 lds")
    for j in range(opt.get('dummy2', 0)): a(smf(V_M + 8 + 4 * (j & 1), vr(V_W + 4 * (j & 3), 4), wq(j & 1, j & 7)))
    a("s_waitcnt lgkmcnt(0)")
    st_at('join')
    return h2_issue, None

def h1_issue(a, j):
    WS = f"s[{S_WS}:{S_WS+3}]"
    a(f"buffer_load_dwordx4 {Mf(2*j)}, v{V_P1}, {WS}, s{S_MEMRD} offen sc1")
    a(f"buffer_load_dwordx4 {Mf(2*j + 1)}, v{V_P1}, {WS}, s{S_MEMRD} offen offset:1024 sc1")

def step_tails(a, par, tag, h2, opt):
    WS = f"s[{S_WS}:{S_WS+3}]"
    VXc = V_VX[par]
    Kc = KB[par] - MEMB
    T0 = V_PB + 3
    def spin(k):
        a(f"s_add_u32 s{S_SPIN}, s{S_SPIN}, 1")
        a(f"s_cmp_gt_u32 s{S_SPIN}, {SPIN_LIMIT}")
        a("s_cbranch_scc1 L_abort")
        a(f"s_add_u32 s{S_ACC+k}, s{S_ACC+k}, 1")
    a.label(f"{tag}_h1retry")
    if opt.get('b2nd'):
        a("s_waitcnt vmcnt(0)")
        a(f"ds_read_b128 {Mf(0)}, v{V_P1}")
        a(f"ds_read_b128 {Mf(1)}, v{V_P1} offset:1024")
        a(f"s_add_u32 s{S_ACC+1}, s{S_ACC+1}, 1")
        a("s_nop 2")
        for r in range(8): a(f"v_mov_b32 v{V_AQ + r}, 0")
        a.label(f"{tag}_h1chk")
        a("s_waitcnt vmcnt(0) lgkmcnt(0)")
        a(f"v_max3_u32 v{T0}, v{V_M}, v{V_M+1}, v{V_M+2}")
        a(f"v_max3_u32 v{T0}, v{T0}, v{V_M+3}, v{V_M+4}")
        a(f"v_max3_u32 v{T0}, v{T0}, v{V_M+5}, v{V_M+6}")
        a(f"v_max_u32 v{T0}, v{T0}, v{V_M+7}")
        a(f"v_cmp_eq_u32 vcc, -1, v{T0}")
        a(f"s_cbranch_vccz {tag}_entry")
        a("s_mov_b64 exec, vcc")
        h1_issue(a, 0)
        a("s_mov_b64 exec, -1")
        spin(0)
        a(f"s_branch {tag}_h1chk")
    else:
        a("s_mov_b64 exec, vcc")
        h1_issue(a, 0)
        a("s_mov_b64 exec, -1")
        spin(1)
        a("s_nop 2")
        for r in range(24 if opt.get('sg') else 8): a(f"v_mov_b32 v{V_AQ + r}, 0")
        a(f"s_branch {tag}_h1")
    a.label(f"{tag}_h2r")
    a("s_mov_b64 exec, vcc")
    h2[0]()
    a("s_mov_b64 exec, -1")
    if h2[1]: a(h2[1])
    spin(2)
    a(f"s_branch {tag}_h2")
    for j in (0, 2) if opt.get('short') is None else (0, 1, 2): avail_slow(a, f"{tag}_av{j}")
    a.label(f"{tag}_fallback")
    a("s_nop 7")
    a("s_nop 3")
    a("s_waitcnt lgkmcnt(0)")
    QF, KF = Wb(0), Wb(2)
    SX, SM = V_AV, V_AK + 4
    OA, LA = V_M, V_M + 8
    for i in range(4):
        for hh in range(2): a(f"ds_read_b64_tr_b16 {vr(QF + 4*i + 2*hh, 2)}, v{V_QKR} offset:{i*1024 + hh*512}")
    for T in range(2):
        for i in range(4): a(f"ds_read_b128 {vr(KF + 4*i, 4)}, v{V_LA} offset:{Kc + T*4096 + i*1024}")
        for i in range(4): a(mf32(SX + 4*T, vr(KF + 4*i, 4), vr(QF + 4*i, 4), "0" if i == 0 else vr(SX + 4*T, 4)))
        a("s_nop 7")
    for i in range(4):
        for hh in range(2): a(f"ds_read_b64_tr_b16 {vr(KF + 4*i + 2*hh, 2)}, v{V_QKR} offset:{4096 + i*1024 + hh*512}")
    for i in range(4): a(mf32(SM, vr(KF + 4*i, 4), vr(QF + 4*i, 4), "0" if i == 0 else vr(SM, 4)))
    a(f"v_mul_f32 v{SM}, s{S_C}, v{SM}")
    a(f"v_mul_f32 v{SM+1}, s{S_C}, v{SM+1}")
    MX, T2 = SM + 2, SM + 3
    a(f"v_max3_f32 v{MX}, v{SM}, v{SM+1}, v{SX}")
    for r in range(1, 7, 2): a(f"v_max3_f32 v{MX}, v{MX}, v{SX+r}, v{SX+r+1}")
    a(f"v_max_f32 v{MX}, v{MX}, v{SX+7}")
    for sw in ("v_permlane16_swap_b32", "v_permlane32_swap_b32"):
        a(f"v_mov_b32 v{T2}, v{MX}")
        a(f"{sw} v{MX}, v{T2}")
        a(f"v_max_f32 v{MX}, v{MX}, v{T2}")
    for r in list(range(SX, SX + 8)) + [SM, SM + 1]:
        a(f"v_sub_f32 v{r}, v{r}, v{MX}")
        a(f"v_exp_f32 v{r}, v{r}")
    PX = V_AQ
    for r in range(4): a(f"v_cvt_pk_bf16_f32 v{PX+r}, v{SX+2*r}, v{SX+2*r+1}")
    a(f"v_cvt_pk_bf16_f32 v{V_PB}, v{SM}, v{SM+1}")
    a(f"v_cvt_pk_bf16_f32 v{V_PB+3}, v{SM}, v{SM+1}")
    a(mf32(LA, vr(V_ONES, 4), vr(PX, 4), "0"))
    a(mf32(OA, vr(VXc, 4), vr(PX, 4), "0"))
    a(mf32(OA + 4, vr(VXc + 4, 4), vr(PX, 4), "0"))
    a(mf16(LA, vr(V_ONES, 2), vr(V_PB, 2), vr(LA, 4)))
    a(mf16(OA, vr(V_AK + 2, 2), vr(V_PB, 2), vr(OA, 4)))
    a(mf16(OA + 4, vr(V_AK + 2, 2), vr(V_PB + 2, 2), vr(OA + 4, 4)))
    wo_order = [(t, kbo) for t in range(4, 8) for kbo in range(2)]
    for j in range(4):
        for x in rd_wo(Wb(j), *wo_order[j]): a(x)
    INV, OW = V_AQ + 0, V_AQ + 4
    a(f"v_rcp_f32 v{INV}, v{LA}")
    for r in range(8): a(f"v_mul_f32 v{OA+r}, v{OA+r}, v{INV}")
    for r in range(4): a(f"v_cvt_pk_bf16_f32 v{OW+r}, v{OA+2*r}, v{OA+2*r+1}")
    a(f"ds_write_b128 v{V_OW}, {vr(OW,4)}")
    for r in range(16): a(f"v_mov_b32 v{V_M + r}, 0")
    a("s_waitcnt lgkmcnt(0)")
    a("s_nop 1")
    a(f"s_branch {tag}_fbdone")

def role_chain(a, opt):
    WS = f"s[{S_WS}:{S_WS+3}]"; DB = f"s[{S_D}:{S_D+3}]"
    vq = VmQueue()
    HPERM[0] = opt.get('hperm', 0)
    WPOL[0] = opt.get('wpol', '')
    ZW[0] = opt.get('zw', 0)
    AHEAD[0] = 3 if opt.get('tpos') else 2
    set_rounds(opt.get('order', 0), opt.get('vfirst', 1))
    DEPTH0[0] = 2 if opt.get('pace') else 3
    SFX[0] = ''
    HINT_STRIDE[0] = opt.get('hs', 4); HINT_STRIDE[1] = opt.get('nr', 8); HINT_STRIDE[2] = opt.get('hfull', 0)
    CODEPF[0] = opt.get('codepf', 0)
    a.label("L_role_a0")
    start_weights(a, vq)
    a(f"s_mov_b32 s65, s{S_T2}")
    if opt.get('dbgtime'):
        a("s_not_b32 s96, s98"); a("s_mov_b64 exec, 1"); a("v_mov_b32 v126, s96"); a(f"buffer_atomic_umax v126, off, s[{S_D}:{S_D+3}], 0 offset:48"); a("s_mov_b64 exec, -1"); vq.add('x')
    setup_lanes(a)
    a(f"s_mov_b32 s{S_C}, {f32bits(CSCALE):#x}")
    a(f"s_mov_b32 s{S_LLO}, 0x21800000")
    a(f"s_mov_b32 s{S_LRG}, {0 if opt.get('forcefb') else 0x3c000000:#x}")
    for r in range(S_ACC, S_ACC + 4): a(f"s_mov_b32 s{r}, 0")
    a(f"s_lshl_b32 s{S_T0}, s{S_H}, 8")
    a(f"s_add_u32 s{S_HB_PST}, s{S_T0}, {WS_PART}")
    a(f"s_lshl_b32 s{S_T0}, s{S_H}, 13")
    a(f"s_add_u32 s{S_HB_INB}, s{S_T0}, {WS_PART - MEMB}")
    a(f"s_add_u32 s{S_KPF}, s{S_T0}, {WS_KX - MEMB}")
    a(f"s_add_u32 s{S_VPF}, s{S_T0}, {WS_VX - MEMB}")
    a(f"s_and_b32 s{S_T0}, s{S_H}, 3")
    a(f"s_lshl_b32 s{S_T0}, s{S_T0}, 6")
    a(f"s_lshr_b32 s{S_T1}, s{S_H}, 2")
    a(f"s_lshl_b32 s{S_T1}, s{S_T1}, 10")
    a(f"s_add_u32 s{S_T0}, s{S_T0}, s{S_T1}")
    a(f"s_add_u32 s{S_HB_PUB}, s{S_T0}, {WS_MEMRING}")
    a(f"s_lshl_b32 s{S_T0}, s{S_H}, 12")
    a(f"s_lshl_b32 s{S_T1}, s{S_WV}, 10")
    a(f"s_add_u32 s{S_T0}, s{S_T0}, s{S_T1}")
    a(f"s_add_u32 s{S_EXP}, s{S_T0}, {WS_KVM - MEMB - 32*4096}")
    a(f"s_lshl_b32 s{S_T0}, s{S_H}, 7")
    a(f"s_add_u32 s{S_FLP}, s{S_T0}, {WS_FLAG + FLAG_P * 128}")
    a(f"s_add_u32 s{S_FLA}, s{S_T0}, {WS_FLAG + FLAG_A * 128}")
    a(f"s_lshl_b32 s{S_T0}, s{S_WV}, 11")
    a(f"s_add_u32 s{S_KM0}, s{S_T0}, {KB[0]}")
    a(f"s_add_u32 s{S_KM0+1}, s{S_T0}, {KB[1]}")
    SN = V_W
    a(f"s_mov_b32 s{S_T2}, s65")
    S_OK = S_AVAIL
    PSTAMP[0] = opt.get('pstamp', -1)
    groups = opt.get('groups', [0])
    IV = V_M + 16
    srd(a, S_W, KA_MEM0, 8192)
    def seg0_loads():
        a(f"s_mov_b32 m0, s{S_KM0}")
        a("s_nop 0")
        a(f"buffer_load_dwordx4 v{V_P1}, {WS}, s{S_KPF} offen sc1 lds")
        a(f"buffer_load_dwordx4 v{V_P1}, {WS}, s{S_KPF} offen offset:1024 sc1 lds")
        a(f"buffer_load_dwordx4 {vr(V_VX[0],4)}, v{V_P1}, {WS}, s{S_VPF} offen sc1")
        a(f"buffer_load_dwordx4 {vr(V_VX[0]+4,4)}, v{V_P1}, {WS}, s{S_VPF} offen offset:1024 sc1")
    def h8(a):
        init_issue(a, IV); vq.add('init', 3)
        a(f"s_mov_b32 s{S_OK}, 0")
    def h16(a):
        assert vq.done('init')
        vq.add('fl')
        a.items.append(('x', 'forget_vm'))
        init_check(a, IV, groups, "L_ch_h16" + SFX[0])
        a(f"s_mov_b32 s{S_OK}, 1")
        if opt.get('preown', 0):
            a(f"s_cmp_eq_u32 s{S_MODE}, {opt.get('fastmode', 1)}")
            a("s_cbranch_scc0 L_ch_h16" + SFX[0])
            for r in range(4): a(f"v_mov_b32 v{V_M + 28 + r}, -1")
            for sl in range(2):
                for j in range(2):
                    a(f"s_add_u32 s{S_T0}, s{S_HB_PST}, {(sl << 18) + j * 32768}")
                    a(f"buffer_store_dwordx4 {vr(V_M + 28, 4)}, v{V_PST}, {WS}, s{S_T0} offen")
            for sl in range(1, 4):
                a(f"s_add_u32 s{S_T0}, s{S_HB_PUB}, {sl << 13}")
                a(f"buffer_store_dwordx2 {vr(V_M + 28, 2)}, v{V_PUB}, {WS}, s{S_T0} offen")
            a.items.append(('x', 'forget_vm'))
        a.label("L_ch_h16" + SFX[0])
        a(f"buffer_load_dword v{V_FL}, off, {WS}, s{S_FLP} sc1")
    def h24(a):
        assert vq.done('fl')
        vq.add('mem0', 2)
        a.items.append(('x', 'forget_vm'))
        a(f"buffer_load_dwordx4 {Mf(0)}, v{V_GATH}, s[{S_W}:{S_W+3}], 0 offen")
        a(f"buffer_load_dwordx4 {Mf(1)}, v{V_GATH}, s[{S_W}:{S_W+3}], 0 offen offset:128")
        a(f"v_readfirstlane_b32 s{S_T0}, v{V_FL}")
        a(f"s_lshr_b32 s{S_T1}, s{S_T0}, 16")
        a(f"s_and_b32 s{S_T0}, s{S_T0}, 0xffff")
        a(f"s_min_u32 s{S_T0}, s{S_T0}, s{S_T1}")
        a(f"s_cmp_ge_u32 s{S_T0}, {AHEAD[0]}")
        a(f"s_cselect_b32 s{S_T0}, s{S_OK}, 0")
        a(f"s_lshl_b32 s{S_OK}, s{S_T0}, 1")
        a(f"s_cmp_eq_u32 s{S_OK}, 0")
        a("s_cbranch_scc1 L_ch_h24" + SFX[0])
        seg0_loads()
        a.label("L_ch_h24" + SFX[0])
    hk = dict(zip(opt.get('hooks', (7, 11, 15)), (h8, h16, h24)))
    if 2 in (opt.get('late'), opt.get('latef')):
        def hrel(a):
            a(f"s_cmp_eq_u32 s{S_OK}, 0")
            a("s_cbranch_scc1 L_ch_norel" + SFX[0])
            a(f"v_mov_b32 v{IV}, 1")
            a(f"buffer_store_dword v{IV}, off, {WS}, s{S_FLA} offset:4 sc1")
            a.label("L_ch_norel" + SFX[0])
        hk[opt.get('relpos', 12)] = hrel
    if opt.get('pace'):
        import copy
        vq0 = copy.deepcopy(vq.q)
        a(f"s_and_b32 s{S_T0}, s{S_H}, 3")
        a(f"s_cmp_eq_u32 s{S_T0}, 1")
        a("s_cbranch_scc1 L_ch_deep")
        a(f"s_cmp_eq_u32 s{S_H}, 31")
        a("s_cbranch_scc1 L_ch_deep")
        SFX[0] = 'a'
        load_weights(a, hk, vq, 2)
        a("s_branch L_ch_loaded")
        a.label("L_ch_deep")
        SFX[0] = 'b'
        vq.q = vq0
        load_weights(a, hk, vq, 3)
        a.label("L_ch_loaded")
    else:
        load_weights(a, hk, vq)
    if opt.get('ptime') and 'pstamp' not in opt:
        a("s_memrealtime s[62:63]"); a("s_waitcnt lgkmcnt(0)"); a(f"s_sub_u32 s{S_ACC}, s62, s92"); a(f"s_lshl_b32 s{S_ACC}, s{S_ACC}, 2"); a(f"s_add_u32 s{S_ACC}, s{S_ACC}, s{S_OK}")
    if opt.get('ponly'):
        a(f"s_lshl_b32 s{S_T0}, s{S_H}, 2"); a(f"s_add_u32 s{S_T0}, s{S_T0}, s{S_WV}"); a(f"s_lshl_b32 s{S_T0}, s{S_T0}, 5"); a(f"s_add_u32 s{S_T0}, s{S_T0}, {WS_STAMP + 4}")
        a(f"v_mov_b32 v{V_M}, s{S_ACC}")
        a(f"buffer_store_dword v{V_M}, off, {WS}, s{S_T0}")
        a("s_endpgm")
    a(f"s_mov_b32 s{S_STEP}, 0")
    a(f"s_cmp_lg_u32 s{S_OK}, 0")
    a("s_cbranch_scc1 L_ch_ready")
    wait_init(a, IV, groups, "L_ch_init")
    a(f"v_mov_b32 v{V_FL}, 0")
    if 2 in (opt.get('late'), opt.get('latef')):
        a(f"v_mov_b32 v{IV}, 1")
        a(f"buffer_store_dword v{IV}, off, {WS}, s{S_FLA} offset:4 sc1")
    avail_check(a, "L_ch_av")
    seg0_loads()
    a.label("L_ch_ready")
    if opt.get('nokv'):
        a(f"s_mov_b32 m0, s{S_KM0+1}")
        a(f"s_nop 0")
        a(f"buffer_load_dwordx4 v{V_P1}, {WS}, s{S_KPF} offen sc1 lds")
        a(f"buffer_load_dwordx4 v{V_P1}, {WS}, s{S_KPF} offen offset:1024 sc1 lds")
        a(f"buffer_load_dwordx4 {vr(V_VX[1]+4,4)}, v{V_P1}, {WS}, s{S_VPF} offen offset:1024 sc1")
    a(f"s_add_u32 s{S_KPF}, s{S_KPF}, {32*8192}")
    a(f"s_add_u32 s{S_VPF}, s{S_VPF}, {32*8192}")
    idle_a(a, 0)
    for r in range(24): a(f"v_mov_b32 v{V_AQ + r}, 0")
    a(f"s_mov_b32 s{S_MEMRD}, {WS_MEMRING - MEMB}")
    a("s_waitcnt vmcnt(0)")
    a(f"v_cndmask_b32 v{V_GATH}, v{V_ONES}, 0, s[{S_L0}:{S_L0+1}]")
    a(f"s_cmp_ge_u32 s{S_WV}, 2")
    a(f"s_cselect_b32 s{S_FLP}, {OOB}, s{S_FLP}")
    for r in range(4): a(f"v_mov_b32 v{V_M + 8 + r}, 0")
    for j in range(2): a(f"ds_write_b128 v{V_P1}, {vr(V_M + 8, 4)} offset:{QB - MEMB + 1024*j}")
    a("s_waitcnt vmcnt(0) lgkmcnt(0)")
    if CODEPF[0] & 2:
        a(f"s_bfe_u32 s{S_T1}, s{S_H}, 0x20002")
        a(f"s_lshl_b32 s{S_T1}, s{S_T1}, 2")
        a(f"s_add_u32 s{S_T1}, s{S_T1}, s{S_WV}")
        code_prefetch(a, "L_F0_h1", "L_S0_h1", V_M + 8, V_VX[1] + 4, 127, S_T1, False)
        a("#forget")
    if opt.get('ringpf', 1):
        PF = V_VX[1] + 4
        a(f"s_add_u32 s{S_T1}, s{S_H}, 31")
        a(f"s_and_b32 s{S_T1}, s{S_T1}, 31")
        a(f"s_lshl_b32 s{S_T1}, s{S_T1}, 13")
        a(f"s_add_u32 s{S_T1}, s{S_T1}, {WS_PART - MEMB}")
        for base in (S_T1, S_HB_INB):
            for sl in range(2):
                a(f"s_add_u32 s{S_T0}, s{base}, {sl << 18}")
                for j in range(2):
                    a(f"buffer_load_dwordx4 {vr(PF, 4)}, v{V_P1}, {WS}, s{S_T0} offen offset:{1024 * j} sc1")
                    a("#forget")
        a(f"s_bfe_u32 s{S_T0}, s{S_H}, 0x20002")
        a(f"s_lshl_b32 s{S_T0}, s{S_T0}, 13")
        a(f"s_add_u32 s{S_T0}, s{S_T0}, {WS_MEMRING - MEMB}")
        for j in range(2):
            a(f"buffer_load_dwordx4 {vr(PF, 4)}, v{V_P1}, {WS}, s{S_T0} offen offset:{1024 * j} sc1")
            a("#forget")
        a(f"buffer_load_dword v{PF}, v{V_L4}, {WS}, s{S_HLD} offen sc1")
        a("#forget")
    for r in range(8): a(f"v_min_u32 v{V_M+r}, -2, v{V_M+r}")
    if opt.get('time'):
        a("s_mov_b32 s74, 0"); a("s_mov_b32 s73, -1"); a("s_mov_b32 s72, 0")
        a(f"s_memtime s[84:85]")
        a(f"s_memrealtime s[88:89]")
        a("s_waitcnt lgkmcnt(0)")
    if opt.get('probe_t'):
        a("s_memrealtime s[88:89]"); a("s_memtime s[84:85]"); a("s_waitcnt lgkmcnt(0)")
    if opt.get('dbgtime'): dbg_stamp(a, 13, vt=V_M + 30); a("s_waitcnt vmcnt(0)")
    a(f"s_cmp_eq_u32 s{S_MODE}, {opt.get('fastmode', 1)}")
    a("s_cbranch_scc0 L_S0_entry")
    a("s_branch L_F0_entry")
    for tag, st in (("L_F", ""), ("L_S", "sc1")):
        a(".p2align 8")
        for _ in range(opt.get('shift', 6)): a(".long 0xbf800000")
        h20 = step(a, 0, st, tag + "0", opt, tag + "1")
        h21 = step(a, 1, st, tag + "1", opt, tag + "0")
        a(f"s_branch {tag}0_h1")
        step_tails(a, 0, tag + "0", h20, opt)
        step_tails(a, 1, tag + "1", h21, opt)
    avail_slow(a, "L_ch_av")
    a.label("L_last")
    VXn = V_VX[0]
    h1_issue(a, 0)
    if opt.get('b2nd'): zero_b(a); idle_c1(a); wv_preload(a)
    a("s_waitcnt vmcnt(2)")
    for r in range(V_AK + 4, V_AK + 8): a(f"v_mov_b32 v{r}, 0")
    a.label("L_last_h1")
    a("s_waitcnt vmcnt(0) lgkmcnt(0)")
    a(f"ds_write_b128 v{V_P1}, {Mf(0)}")
    a(f"v_max3_u32 v{V_PB+3}, v{V_M+1}, v{V_M+3}, v{V_M+5}")
    a(f"v_max_u32 v{V_PB+3}, v{V_PB+3}, v{V_M+7}")
    a(f"v_cmp_eq_u32 vcc, -1, v{V_PB+3}")
    a(f"ds_write_b128 v{V_P1}, {Mf(1)} offset:1024")
    a("s_cbranch_vccz L_last_ok")
    a("s_mov_b64 exec, vcc")
    h1_issue(a, 0)
    a("s_mov_b64 exec, -1")
    a(f"s_add_u32 s{S_SPIN}, s{S_SPIN}, 1")
    a(f"s_cmp_gt_u32 s{S_SPIN}, {SPIN_LIMIT}")
    a("s_cbranch_scc0 L_last_h1")
    a("s_branch L_abort")
    a.label("L_last_ok")
    mains = []; F = {}
    AK = lambda t: V_AK + 4 * t
    AV = lambda t: V_AV + 4 * t
    for s_ in range(2):
        for t in range(2): mains.append(smf(AV(t), Mf(s_), vr(Wb(2*s_ + t), 8)))
    for s_ in range(8):
        for t in range(2): mains.append(smf(AK(t), Mf(s_), wk(t, s_)))
    for s_ in (4, 5, 6, 7):
        for t in range(2): mains.append(smf(AV(t), Mf(s_), wv_res(t, s_)))
    for s_ in (2, 3):
        for t in range(2): mains.append(smf(AV(t), Mf(s_), vr(Wb(2*(s_-2) + t), 8)))
    mr = (V_MR1, V_MR2, V_MR3)
    F[3] = ["s_waitcnt lgkmcnt(0)", "s_barrier"]
    for j, s_ in enumerate(range(2, 8)): F.setdefault(3 + j, []).append(f"ds_read_b128 {Mf(s_)}, v{mr[(s_ >> 1) - 1]} offset:{(s_ & 1) * 1024}")
    for j, x in enumerate([x for j in range(4) for x in rd_wv(Wb(j), 2 + (j >> 1), j & 1)]): F.setdefault(10 + j, []).append(x)
    F.setdefault(9, []).append(f"buffer_store_dwordx4 {vr(VXn,4)}, v{V_LA}, {WS}, s{S_EXP} offen sc1")
    F.setdefault(10, []).insert(0, f"s_add_u32 s{S_EXP}, s{S_EXP}, {32*4096}")
    F.setdefault(1, []).append(f"v_mov_b32 v{V_PB}, 62")
    F.setdefault(4, []).append(f"buffer_store_dword v{V_PB}, v{V_GATH}, {WS}, s{S_FLA} offen sc1")
    def fold2(a0, a1, d0, d1):
        return [f"v_add_f32 v{a0}, v{a0}, v{a0+1}", f"v_add_f32 v{a0+2}, v{a0+2}, v{a0+3}", f"v_cvt_pk_bf16_f32 v{d0}, v{a0}, v{a0+2}",
                f"v_add_f32 v{a1}, v{a1}, v{a1+1}", f"v_add_f32 v{a1+2}, v{a1+2}, v{a1+3}", f"v_cvt_pk_bf16_f32 v{d1}, v{a1}, v{a1+2}"]
    for j, x in enumerate(fold2(AK(0), AK(1), V_AK, V_AK + 1)): F.setdefault(22 + j, []).append(x)
    interleave(a, mains, F)
    for x in fold2(AV(0), AV(1), V_AK + 2, V_AK + 3): a(x)
    a(f"buffer_store_dwordx4 {vr(V_AK,4)}, v{V_LA}, {WS}, s{S_EXP} offen {opt.get('lastst', 'sc1')}")
    if opt.get('probe_t'):
        a("s_memrealtime s[90:91]"); a("s_waitcnt lgkmcnt(0)")
        k = opt['probe_t']
        if k == 'p': a("s_sub_u32 s42, s88, s92"); a("s_lshl_b32 s42, s42, 2")
        elif k == 'l': a("s_sub_u32 s42, s90, s88")
        elif k == 'y': a("s_memtime s[42:43]"); a("s_waitcnt lgkmcnt(0)"); a("s_sub_u32 s42, s42, s84"); a("s_lshr_b32 s42, s42, 5")
        elif k == 's': a("s_sub_u32 s42, s82, s80"); a("s_lshr_b32 s42, s42, 5"); a(f"s_cmp_eq_u32 s{S_WV}, 0"); a("s_cselect_b32 s42, 0, s42")
        else: a("s_mov_b32 s42, 5000")
        a.label("L_probe")
        a("s_sleep 1"); a("s_memrealtime s[44:45]"); a("s_waitcnt lgkmcnt(0)"); a("s_sub_u32 s44, s44, s90"); a("s_cmp_lt_u32 s44, s42"); a("s_cbranch_scc1 L_probe")
    if opt.get('lastwb'): a("s_waitcnt vmcnt(0)"); a("buffer_wbl2 sc1")
    if opt.get('drain'):
        a("s_memtime s[42:43]"); a("s_waitcnt lgkmcnt(0) vmcnt(0)"); a("s_memtime s[44:45]"); a("s_waitcnt lgkmcnt(0)"); a(f"s_sub_u32 s{S_ACC+2}, s44, s42")
    a("s_nop 1")
    if opt.get('wb'):
        a(f"s_or_b32 s{S_T0}, s{S_H}, s{S_WV}")
        a(f"s_cmp_lg_u32 s{S_T0}, 0")
        a("s_cbranch_scc1 L_ch_nowb")
        a("buffer_wbl2 sc1")
        a.label("L_ch_nowb")
    if opt.get('dbgtime'): dbg_stamp(a, 14, vt=V_M + 30)
    if opt.get('time'):
        a(f"s_memtime s[86:87]")
        a(f"s_memrealtime s[90:91]")
        a("s_waitcnt lgkmcnt(0)")
        a("s_sub_u32 s86, s86, s84")
        a(f"s_lshl_b32 s{S_T0}, s{S_H}, 2")
        a(f"s_add_u32 s{S_T0}, s{S_T0}, s{S_WV}")
        a(f"s_lshl_b32 s{S_T0}, s{S_T0}, 5")
        a(f"s_add_u32 s{S_T0}, s{S_T0}, {WS_STAMP}")
        for i, s in enumerate((86, S_ACC, S_ACC + 1, S_ACC + 2, 88, 90, 92, S_ACC + 3)):
            a(f"v_mov_b32 v{V_M+i}, s{s}")
        a(f"buffer_store_dwordx4 {vr(V_M,4)}, off, {WS}, s{S_T0}")
        a(f"buffer_store_dwordx4 {vr(V_M+4,4)}, off, {WS}, s{S_T0} offset:16")
        a(f"s_add_u32 s{S_T0}, s{S_T0}, 0x8000")
        if opt.get('trace'):
            a("s_mov_b32 s40, 0"); a("s_mov_b32 s41, 0"); a("s_mov_b32 s46, 0")
            a.label("L_cal")
            a("s_memtime s[42:43]"); a("s_memrealtime s[44:45]"); a("s_waitcnt lgkmcnt(0)")
            a("s_sub_u32 s42, s42, s84"); a("s_sub_u32 s44, s44, s88")
            a("s_add_u32 s40, s40, s42"); a("s_add_u32 s41, s41, s44")
            a("s_mul_i32 s47, s46, 7"); a("s_and_b32 s47, s47, 3")
            a.label("L_cal2")
            a("s_sub_u32 s47, s47, 1"); a("s_cbranch_scc0 L_cal2")
            a("s_add_u32 s46, s46, 1"); a("s_cmp_lt_u32 s46, 256"); a("s_cbranch_scc1 L_cal")
            a(f"v_mov_b32 v{V_M+20}, s40"); a(f"v_mov_b32 v{V_M+21}, s41")
            a(f"s_add_u32 s{S_T1}, s{S_T0}, 4096")
            a(f"buffer_store_dwordx2 {vr(V_M+20,2)}, off, {WS}, s{S_T1}")
        a("s_mov_b32 s75, s84")
        if not opt.get('trace') and not opt.get('stamp'): a("s_sub_u32 s68, s82, s80")
        for i in range(8): a(f"v_mov_b32 v{V_M+8+i}, s{68+i}")
        a(f"buffer_store_dwordx4 {vr(V_M+8,4)}, off, {WS}, s{S_T0}")
        a(f"buffer_store_dwordx4 {vr(V_M+12,4)}, off, {WS}, s{S_T0} offset:16")
    a("s_endpgm")
    a.label("L_chain_end")
```

```python
from asmlib import *

KNAME = "gated_mix__memory_aug_recurrent_mem_tr__geglu_ffn__prompt_kernel"

KA_X, KA_MEM0, KA_WQ, KA_WK, KA_WV, KA_WO = 0, 8, 16, 24, 32, 40
KA_WG, KA_WU, KA_WD, KA_GW, KA_OUT, KA_DBG, KA_WS = 64, 72, 80, 88, 96, 104, 112

WS_SIZE = 0x10000000
OOB = 0x10000000
WS_FLAG = 0x0000000
FLAG_P = 0
FLAG_A = 64
FLAG_F = 96
FLAG_G = 128
FLAG_C = 160
WS_HINT = 0x0030000
WS_MEMRING = 0x0040000
WS_G = 0x0050000
WS_STAMP = 0x0060000
WS_PART = 0x0100000
WS_KX = 0x1000000
WS_VX = 0x2000000
WS_KVM = 0x3100000
WS_FP = 0x4000000
WS_CP = 0x6000000

import os
SPIN_LIMIT = int(os.environ.get('SPINLIM', 200000))
CSCALE = (128 ** -0.5) * 1.4426950408889634

import struct
def f32bits(x): return struct.unpack('<I', struct.pack('<f', x))[0]

S_WS = 4
S_W = 8
S_D = 12
S_H = 16
S_WV = 17
S_SPIN = 18
S_T0, S_T1, S_T2, S_T3 = 19, 20, 21, 22
S_PTR = 24
S_MODE = 26

def srd(a, base, ka_off, size):
    a(f"s_load_dwordx2 s[{S_PTR}:{S_PTR+1}], s[0:1], {ka_off}")
    a("s_waitcnt lgkmcnt(0)")
    a(f"s_mov_b32 s{base}, s{S_PTR}")
    a(f"s_and_b32 s{base+1}, s{S_PTR+1}, 0xffff")
    a(f"s_mov_b32 s{base+2}, {size:#x}")
    a(f"s_mov_b32 s{base+3}, 0x20000")

def bitpat(a, dst, lane, terms, tmp, const=0):
    first = True
    for sh, mask, mul in terms:
        t = dst if first else tmp
        nb = mask.bit_length()
        assert mask == (1 << nb) - 1
        a(f"v_bfe_u32 v{t}, v{lane}, {sh}, {nb}")
        if mul & (mul - 1) == 0:
            if mul > 1: a(f"v_lshlrev_b32 v{t}, {mul.bit_length()-1}, v{t}")
        else:
            a(f"v_mul_u32_u24 v{t}, {mul}, v{t}")
        if not first: a(f"v_add_u32 v{dst}, v{dst}, v{t}")
        first = False
    if const: a(f"v_add_u32 v{dst}, {const}, v{dst}")

def chunk_src_pattern(a, dst, lane, tmp, rowbits, pitch):
    bp, brh, bg, brl = rowbits
    bitpat(a, dst, lane, [(5, 1, pitch << bp), (4, 1, pitch << bg), (3, 1, pitch << brh), (2, 1, pitch << brl), (0, 1, 16)], tmp)
    a(f"v_lshrrev_b32 v{tmp}, 3, v{lane}")
    a(f"v_xor_b32 v{tmp}, v{tmp}, v{lane}")
    a(f"v_and_b32 v{tmp}, 2, v{tmp}")
    a(f"v_lshl_add_u32 v{dst}, v{tmp}, 4, v{dst}")

def chunk_tr_pattern(a, dst, lane, tmp):
    bitpat(a, dst, lane, [(5, 1, 1024), (4, 1, 256 + 32), (3, 1, 128), (2, 1, 64), (0, 3, 8)], tmp)

def tr_off(p): return (p >> 1) * 2048 + (p & 1) * 512

S_XG = 27
S_XCC = 28

def common_srds(a):
    srd(a, S_WS, KA_WS, WS_SIZE)
    srd(a, S_D, KA_DBG, 256)

def register_wg(a, vt, lab, barrier=True):
    DB = f"s[{S_D}:{S_D+3}]"
    if barrier: a("s_barrier")
    a(f"s_cmp_lg_u32 s{S_WV}, 0")
    a(f"s_cbranch_scc1 {lab}")
    a(f"s_mul_i32 s{S_T0}, s{S_XCC}, s{S_XCC}")
    a(f"s_lshl_b32 s{S_T0}, s{S_T0}, 18")
    a(f"s_lshl_b32 s{S_T1}, s{S_XCC}, 9")
    a(f"s_add_u32 s{S_T0}, s{S_T0}, s{S_T1}")
    a(f"s_add_u32 s{S_T0}, s{S_T0}, 1")
    a(f"s_lshl_b32 s{S_T1}, s{S_XG}, 2")
    a("s_mov_b64 exec, 1")
    a(f"v_mov_b32 v{vt}, s{S_T0}")
    a(f"buffer_atomic_add v{vt}, off, {DB}, s{S_T1}")
    a("s_mov_b64 exec, -1")
    a.label(lab)

def init_issue(a, vt):
    DB = f"s[{S_D}:{S_D+3}]"
    a(f"buffer_load_dwordx4 {vr(vt,4)}, off, {DB}, 0 sc1")
    a(f"buffer_load_dwordx4 {vr(vt+4,4)}, off, {DB}, 0 offset:16 sc1")
    a(f"s_lshl_b32 s{S_T1}, s{S_XG}, 2")
    a(f"buffer_load_dword v{vt+8}, off, {DB}, s{S_T1} sc1")

def init_check(a, vt, groups, fail):
    for g in groups:
        a(f"v_readfirstlane_b32 s{S_T0}, v{vt+g}")
        a(f"s_and_b32 s{S_T0}, s{S_T0}, 0x1ff")
        a(f"s_cmp_ge_u32 s{S_T0}, 32")
        a(f"s_cbranch_scc0 {fail}")
    a(f"v_readfirstlane_b32 s{S_T0}, v{vt+8}")
    a(f"s_and_b32 s{S_T1}, s{S_T0}, 0x1ff")
    a(f"s_cmp_ge_u32 s{S_T1}, 32")
    a(f"s_cbranch_scc0 {fail}")
    a(f"s_mul_i32 s{S_T1}, s{S_XCC}, s{S_XCC}")
    a(f"s_lshl_b32 s{S_T1}, s{S_T1}, 18")
    a(f"s_lshl_b32 s{S_T2}, s{S_XCC}, 9")
    a(f"s_add_u32 s{S_T1}, s{S_T1}, s{S_T2}")
    a(f"s_add_u32 s{S_T1}, s{S_T1}, 1")
    a(f"s_lshl_b32 s{S_T1}, s{S_T1}, 5")
    a(f"s_cmp_eq_u32 s{S_T0}, s{S_T1}")
    a(f"s_cselect_b32 s{S_MODE}, 1, 0")

def wait_init(a, vt, groups, lab, pause=16):
    a(f"s_branch {lab}_first")
    a.label(lab)
    a(f"s_sleep {pause}")
    a.label(f"{lab}_first")
    init_issue(a, vt)
    a(f"s_add_u32 s{S_SPIN}, s{S_SPIN}, 1")
    a(f"s_cmp_gt_u32 s{S_SPIN}, {SPIN_LIMIT}")
    a("s_cbranch_scc1 L_abort")
    a("s_waitcnt vmcnt(0)")
    init_check(a, vt, groups, lab)

def dbg_stamp(a, word, neg=False, vt=126):
    a("s_memrealtime s[96:97]")
    a("s_waitcnt lgkmcnt(0)")
    if neg: a("s_not_b32 s96, s96")
    a("s_mov_b64 exec, 1")
    a(f"v_mov_b32 v{vt}, s96")
    a(f"buffer_atomic_umax v{vt}, off, s[{S_D}:{S_D+3}], 0 offset:{4*word}")
    a("s_mov_b64 exec, -1")

def code_prefetch(a, lo, hi, va, vd, lane, unit_sgpr, back):
    lab = a.newlabel("L_pc")
    a(f"s_getpc_b64 s[{S_PTR}:{S_PTR+1}]")
    a.label(lab)
    a(f"s_lshl_b32 s{S_T0}, s{unit_sgpr}, 10")
    a(f"v_lshl_add_u32 v{va}, v{lane}, 4, s{S_T0}")
    a(f"v_min_u32 v{va}, {hi}-{lo}-16, v{va}")
    a(f"s_add_u32 s{S_PTR}, s{S_PTR}, {lo}-{lab}")
    a(f"s_addc_u32 s{S_PTR+1}, s{S_PTR+1}, {-1 if back else 0}")
    a(f"v_mov_b32 v{va+1}, s{S_PTR+1}")
    a(f"v_add_co_u32 v{va}, vcc, s{S_PTR}, v{va}")
    a(f"v_addc_co_u32 v{va+1}, vcc, 0, v{va+1}, vcc")
    a(f"global_load_dwordx4 {vr(vd,4)}, {vr(va,2)}, off")
```

```python
import sys
from common import *
import chain, rolepf, rolec

def build(opt):
    a = Asm()
    import stream
    stream.SPOL[0] = opt.get('spol', '')
    nwg = opt.get('nwg', 32)
    a("s_cmp_ge_u32 s2, 256")
    a("s_cbranch_scc1 L_exit")
    if opt.get('time') or opt.get('dbgtime') or opt.get('probe_t'):
        a("s_memrealtime s[92:93]")
        a("s_waitcnt lgkmcnt(0)")
        a("s_mov_b32 s98, s92"); a("s_mov_b32 s99, 0"); a("s_mov_b32 s100, 0")
    a(f"s_load_dwordx8 s[{chain.S_KA}:{chain.S_KA+7}], s[0:1], {KA_WQ}")
    a(f"s_load_dwordx4 s[{chain.S_KA+8}:{chain.S_KA+11}], s[0:1], {KA_DBG}")
    a(f"s_mov_b32 s{S_SPIN}, 0")
    a(f"s_lshr_b32 s{S_H}, s2, 3")
    if opt.get('xrot'):
        a(f"s_add_u32 s{S_XG}, s2, {8 - opt['xrot']}")
        a(f"s_and_b32 s{S_XG}, s{S_XG}, 7")
    else:
        a(f"s_and_b32 s{S_XG}, s2, 7")
    a(f"s_getreg_b32 s{S_XCC}, hwreg(HW_REG_XCC_ID, 0, 4)")
    if opt.get('hxor'): a(f"s_xor_b32 s{S_H}, s{S_H}, {opt['hxor']}")
    if opt.get('spread'):
        a(f"s_mov_b32 s{S_H}, s2")
        a(f"s_lshr_b32 s{S_XG}, s2, 5")
    full = opt.get('full', 0)
    if full:
        opt = dict(opt); opt['groups'] = list(range(8))
        a(f"s_cmp_ge_u32 s{S_XG}, 5")
        a("s_cbranch_scc1 L_role_mix")
        a(f"s_cmp_lg_u32 s{S_XG}, 0")
        a("s_cbranch_scc1 L_role_c")
    else:
        a(f"s_cmp_eq_u32 s{S_XG}, 0")
        a("s_cbranch_scc0 L_exit")
    chain.role_chain(a, opt)
    if full:
        a.label("L_role_mix")
        common_srds(a)
        a(f"s_mul_i32 s{S_H}, s{S_H}, 3")
        a(f"s_add_u32 s{S_H}, s{S_H}, s{S_XG}")
        a(f"s_sub_u32 s{S_H}, s{S_H}, 5")
        a(f"s_lshr_b32 s{S_T0}, s{S_H}, 5")
        a(f"s_and_b32 s{S_H}, s{S_H}, 31")
        a(f"s_cmp_eq_u32 s{S_T0}, 1")
        a("s_cbranch_scc1 L_role_pv")
        a(f"s_cmp_eq_u32 s{S_T0}, 2")
        a("s_cbranch_scc1 L_role_fg")
        rolepf.role_p(a, opt, 'k')
        a.label("L_role_pv")
        rolepf.role_p(a, opt, 'v')
        a.label("L_role_fg")
        a(f"s_cmp_ge_u32 s{S_H}, 28")
        a("s_cbranch_scc1 L_role_g")
        rolepf.role_f(a, opt)
        a.label("L_role_g")
        rolepf.role_spare(a, opt)
        a.label("L_role_c")
        common_srds(a)
        rolec.role_c(a, opt)
    a.label("L_abort")
    a("s_mov_b64 exec, -1")
    a("v_mov_b32 v0, 0xdead")
    a(f"buffer_store_dword v0, off, s[{S_D}:{S_D+3}], 0 offset:60")
    if opt.get('abortinfo'):
        a("s_lshl_b32 s19, s2, 2"); a(f"s_add_u32 s19, s19, s{S_WV}"); a("s_lshl_b32 s19, s19, 5"); a(f"s_add_u32 s19, s19, {WS_STAMP + 0x20000}")
        for i, r in enumerate((30, 26, 28, 95, 96, 97, 61, 18)): a(f"v_mov_b32 v{i}, s{r}")
        a(f"buffer_store_dwordx4 v[0:3], off, s[{S_WS}:{S_WS+3}], s19")
        a(f"buffer_store_dwordx4 v[4:7], off, s[{S_WS}:{S_WS+3}], s19 offset:16")
    a.label("L_exit")
    a("s_endpgm")
    a.label("L_done")
    if opt.get('dbgtime'):
        a("s_waitcnt vmcnt(0)")
        dbg_stamp(a, 15)
    if opt.get('time'):
        a("s_waitcnt vmcnt(0)")
        a("s_memrealtime s[96:97]")
        a("s_waitcnt lgkmcnt(0)")
        a("s_lshl_b32 s19, s2, 4")
        a(f"s_add_u32 s19, s19, {WS_STAMP + 0x10000}")
        a("v_mov_b32 v0, s96"); a("v_mov_b32 v1, s98"); a("v_mov_b32 v2, s99"); a("v_mov_b32 v3, s100")
        a(f"buffer_store_dwordx4 v[0:3], off, s[{S_WS}:{S_WS+3}], s19")
    a("s_endpgm")
    a.label("L_code_end")
    autowait(a, opt.get('verbose'))
    a.pad(opt.get('verbose'))
    head = f"""; @launch grid=(256,1,1) block=(256,1,1) lds={chain.LDS_BYTES}
.amdgcn_target "amdgcn-amd-amdhsa--gfx950"
.text
.globl {KNAME}
.p2align 8
.type {KNAME},@function
{KNAME}:
"""
    tail = f""".section .rodata,"a"
.p2align 6
.amdhsa_kernel {KNAME}
  .amdhsa_next_free_vgpr 512
  .amdhsa_next_free_sgpr 102
  .amdhsa_accum_offset 256
  .amdhsa_group_segment_fixed_size 0
  .amdhsa_kernarg_size 120
  .amdhsa_user_sgpr_count 2
  .amdhsa_user_sgpr_kernarg_segment_ptr 1
  .amdhsa_system_sgpr_workgroup_id_x 1
  .amdhsa_float_denorm_mode_32 3
.end_amdhsa_kernel
"""
    return head + a.text() + tail

if __name__ == "__main__":
    opt = eval(sys.argv[2]) if len(sys.argv) > 2 else {}
    open(sys.argv[1], "w").write(build(opt))
```
